```python
import torch

def _softmax(x, axis=-1):
    return torch.softmax(x, dim=axis)
def _gelu(x):
    return torch.nn.functional.gelu(x, approximate="tanh")
def _silu(x):
    return torch.nn.functional.silu(x)
def _sigmoid(x):
    return torch.sigmoid(x)
def _layernorm(x, axis=-1, eps=1e-5):
    m = x.mean(dim=axis, keepdim=True)
    v = x.var(dim=axis, keepdim=True, unbiased=False)
    return (x - m) / torch.sqrt(v + eps)
def _scatter_add(tgt, idx, src, axis=0):
    return tgt.clone().index_add_(axis, idx, src)
def _segment_sum(src, seg, n):
    out = torch.zeros((n,) + src.shape[1:], dtype=src.dtype)
    return out.index_add_(0, seg, src)
def _pad(x, pw):
    flat = tuple(v for pair in reversed(pw) for v in pair)
    return torch.nn.functional.pad(x, flat)

kernel_name = 'concat_heads__gqa_block_cached__mha_block_cached__near_ridge'

def setup_inputs():

    _w = (lambda a: (lambda t: t.to(torch.bfloat16) if t.is_floating_point() else t)(torch.as_tensor(a)))
    def _A_setup():
        B, Sq, D = 8, 160, 512
        Hq, Hkv, Sk, Dh = 32, 32, 512, 128
        assert Hq % Hkv == 0, (Hq, Hkv)
        return {
            "x": _w((lambda *s: torch.randn(*s, dtype=torch.bfloat16) * 0.8)(B, Sq, D)),
            "k_cache": _w((lambda *s: torch.randn(*s, dtype=torch.bfloat16) * 0.8)(B, Hkv, Sk, Dh)),
            "v_cache": _w((lambda *s: torch.randn(*s, dtype=torch.bfloat16) * 0.05)(B, Hkv, Sk, Dh)),
            "wq": _w((lambda *s: torch.randn(*s, dtype=torch.bfloat16) * 0.8)(D, Hq * Dh) * (D ** -0.5)),
            "wo": _w((lambda *s: torch.randn(*s, dtype=torch.bfloat16) * 0.05)(Hq * Dh, D) * ((Hq * Dh) ** -0.5)),
        }
    _A_in = _A_setup()

    def _B_setup():
        B, Sq, D = 8, 160, 512
        H, Sk, Dh = 32, 512, 128
        return {
            "x": _w((lambda *s: torch.randn(*s, dtype=torch.bfloat16) * 0.8)(B, Sq, D)),
            "k_cache": _w((lambda *s: torch.randn(*s, dtype=torch.bfloat16) * 0.8)(B, H, Sk, Dh)),
            "v_cache": _w((lambda *s: torch.randn(*s, dtype=torch.bfloat16) * 0.05)(B, H, Sk, Dh)),
            "wq": _w((lambda *s: torch.randn(*s, dtype=torch.bfloat16) * 0.8)(D, H * Dh) * (D ** -0.5)),
            "wo": _w((lambda *s: torch.randn(*s, dtype=torch.bfloat16) * 0.05)(H * Dh, D) * ((H * Dh) ** -0.5)),
        }
    _B_in = _B_setup()

    return {
        "A_x": _A_in["x"],
        "A_k_cache": _A_in["k_cache"],
        "A_v_cache": _A_in["v_cache"],
        "A_wq": _A_in["wq"],
        "A_wo": _A_in["wo"],
        "B_x": _B_in["x"],
        "B_k_cache": _B_in["k_cache"],
        "B_v_cache": _B_in["v_cache"],
        "B_wq": _B_in["wq"],
        "B_wo": _B_in["wo"],
    }

def reference(A_x, A_k_cache, A_v_cache, A_wq, A_wo, B_x, B_k_cache, B_v_cache, B_wq, B_wo):
    def _A_ref(x, k_cache, v_cache, wq, wo):
        B, Sq, D = x.shape
        Hq, Dh = 32, 128
        Hkv = k_cache.shape[1]
        rep = Hq // Hkv
        q = (lambda x, *d: x.permute(*d))((x @ wq).reshape(B, Sq, Hq, Dh), 0, 2, 1, 3)
        k = (lambda x, n, axis: torch.repeat_interleave(x, n, dim=axis))(k_cache, rep, axis=1)
        v = (lambda x, n, axis: torch.repeat_interleave(x, n, dim=axis))(v_cache, rep, axis=1)
        scores = torch.einsum("bhqd,bhkd->bhqk", q, k) * (Dh ** -0.5)
        p = _softmax(scores, axis=-1)
        o = torch.einsum("bhqk,bhkd->bhqd", p, v)
        return (lambda x, *d: x.permute(*d))(o, 0, 2, 1, 3).reshape(B, Sq, Hq * Dh) @ wo

    def _B_ref(x, k_cache, v_cache, wq, wo):
        B, Sq, D = x.shape
        H, Dh = 32, 128
        q = (lambda x, *d: x.permute(*d))((x @ wq).reshape(B, Sq, H, Dh), 0, 2, 1, 3)
        scores = torch.einsum("bhqd,bhkd->bhqk", q, k_cache) * (Dh ** -0.5)
        p = _softmax(scores, axis=-1)
        o = torch.einsum("bhqk,bhkd->bhqd", p, v_cache)
        return (lambda x, *d: x.permute(*d))(o, 0, 2, 1, 3).reshape(B, Sq, H * Dh) @ wo

    a = _A_ref(A_x, A_k_cache, A_v_cache, A_wq, A_wo)
    b = _B_ref(B_x, B_k_cache, B_v_cache, B_wq, B_wo)
    return torch.concatenate([a, b], axis=-1)
```

```python
import re

def expand(op):
    op = op.strip()
    neg = op.lstrip('-')
    m = re.fullmatch(r'([vas])\[(\d+):(\d+)\]', neg)
    if m:
        return [f'{m.group(1)}{i}' for i in range(int(m.group(2)), int(m.group(3)) + 1)]
    m = re.fullmatch(r'([vas])(\d+)', neg)
    if m:
        return [neg]
    if neg in ('vcc',): return ['vcc']
    if neg in ('m0', 'exec', 'scc'): return [neg]
    return []

TRANS = ('v_exp_f32', 'v_rcp_f32', 'v_log_f32', 'v_rsq_f32', 'v_sqrt_f32')

class Inst:
    __slots__ = ('text', 'op', 'kind', 'reads', 'writes', 'tag', 'cread', 'abread', 'cost')
    def __init__(self, text, tag=None):
        self.text = text; self.tag = tag
        self.reads = set(); self.writes = set(); self.cread = set(); self.abread = set()
        t = text.split(';')[0].strip()
        if t.endswith(':'):
            self.op = 'label'; self.kind = 'label'; self.cost = 0; return
        parts = t.split(None, 1)
        self.op = op = parts[0]
        rest = parts[1] if len(parts) > 1 else ''
        ops = [o.strip() for o in rest.split(',')] if rest else []
        ops2 = []
        for o in ops:
            ops2.append(o.split()[0] if o else o)
        mods = rest
        R = lambda i: expand(ops2[i]) if i < len(ops2) else []
        self.cost = 1
        if op.startswith('v_mfma'):
            self.kind = 'mfma'; self.writes |= set(R(0)); self.abread = set(R(1) + R(2)); self.cread = set(R(3))
            self.reads |= self.abread | self.cread; self.cost = 2
        elif op.startswith('v_cmp'):
            self.kind = 'valu'; self.writes |= set(R(0)); self.reads |= set(R(1) + R(2))
        elif op.startswith('v_permlane') and 'swap' in op:
            self.kind = 'perm'; self.writes |= set(R(0) + R(1)); self.reads |= set(R(0) + R(1))
        elif op in ('v_readfirstlane_b32',):
            self.kind = 'rfl'; self.writes |= set(R(0)); self.reads |= set(R(1))
        elif op.startswith('v_'):
            self.kind = 'trans' if op.replace('_e32', '').replace('_e64', '') in TRANS else 'valu'
            if self.kind == 'trans': self.cost = 2
            self.writes |= set(R(0))
            for i in range(1, len(ops2)): self.reads |= set(R(i))
            if op.startswith('v_fmac') or op.startswith('v_dot2c'): self.reads |= set(R(0))
            if op.startswith('v_cndmask') and len(ops2) == 3: self.reads.add('vcc')
        elif op.startswith('ds_read'):
            self.kind = 'ds'; self.writes |= set(R(0)); self.reads |= set(R(1))
        elif op.startswith('ds_write'):
            self.kind = 'ds'; self.reads |= set(R(0) + R(1))
        elif op.startswith('buffer_load') or op.startswith('global_load'):
            if re.search(r'\blds\b', mods):
                self.kind = 'dma'
                for i in range(len(ops2)): self.reads |= set(R(i))
                self.reads.add('m0')
            else:
                self.kind = 'vld'; self.writes |= set(R(0))
                for i in range(1, len(ops2)): self.reads |= set(R(i))
        elif op.startswith('buffer_store') or op.startswith('global_store') or op.startswith('buffer_atomic') or op.startswith('global_atomic'):
            self.kind = 'vst'
            for i in range(len(ops2)): self.reads |= set(R(i))
        elif op.startswith('s_load') or op in ('s_memtime', 's_memrealtime'):
            self.kind = 'smem'; self.writes |= set(R(0))
            for i in range(1, len(ops2)): self.reads |= set(R(i))
        elif op == 's_waitcnt': self.kind = 'wait'
        elif op == 's_barrier': self.kind = 'barrier'
        elif op == 's_nop': self.kind = 'nop'
        elif op.startswith('s_cbranch') or op in ('s_branch', 's_endpgm', 's_setpc_b64', 's_swappc_b64', 's_call_b64'):
            self.kind = 'branch'
            if op == 's_swappc_b64': self.writes |= set(R(0)); self.reads |= set(R(1))
            if op == 's_setpc_b64': self.reads |= set(R(0))
        elif op.startswith('s_cmp'):
            self.kind = 'salu'; self.reads |= set(R(0) + R(1)); self.writes.add('scc')
        elif op in ('s_setprio', 's_sleep'): self.kind = 'salu'
        elif op.startswith('s_'):
            self.kind = 'salu'; self.writes |= set(R(0))
            for i in range(1, len(ops2)): self.reads |= set(R(i))
            if 'saveexec' in op: self.writes.add('exec')
        elif op == 'WAITTAG':
            self.kind = 'waittag'; self.cost = 0
        else:
            raise ValueError('unknown instruction ' + text)

def I(text, tag=None):
    return [Inst(x.strip(), tag) for x in text.split('\n') if x.strip() and not x.strip().startswith(';')]

def waittag(*tags):
    w = Inst('WAITTAG'); w.tag = tags; return [w]

def insert_waits(prog):
    out = []
    vq = []
    dq = []
    sm = []
    def emit(vm=None, lg=None):
        nonlocal vq, dq, sm
        s = []
        if vm is not None:
            vm = min(vm, 63); s.append(f'vmcnt({vm})'); vq = vq[len(vq) - vm:] if vm else []
        if lg is not None:
            lg = min(lg, 15); s.append(f'lgkmcnt({lg})'); dq = dq[len(dq) - lg:] if lg else []
            if lg == 0: sm = []
        out.append(Inst('s_waitcnt ' + ' '.join(s)))
    for ins in prog:
        if ins.kind == 'waittag':
            idx = [k for k, o in enumerate(vq) if o.tag in ins.tag]
            idd = [k for k, o in enumerate(dq) if o.tag in ins.tag]
            vm = len(vq) - 1 - idx[-1] if idx else None
            lg = len(dq) - 1 - idd[-1] if idd else None
            if lg is not None and sm: lg = 0
            if vm is not None or lg is not None: emit(vm, lg)
            continue
        if ins.kind == 'wait':
            m = re.search(r'vmcnt\((\d+)\)', ins.text)
            if m:
                n = int(m.group(1)); vq = vq[max(0, len(vq) - n):] if n else []
            m = re.search(r'lgkmcnt\((\d+)\)', ins.text)
            if m:
                n = int(m.group(1)); dq = dq[max(0, len(dq) - n):] if n else []
                if n == 0: sm = []
            out.append(ins); continue
        touch = ins.reads | ins.writes
        vm = lg = None
        idx = [k for k, o in enumerate(vq) if o.writes & touch]
        if idx: vm = len(vq) - 1 - idx[-1]
        idd = [k for k, o in enumerate(dq) if o.writes & touch]
        if idd: lg = len(dq) - 1 - idd[-1]
        if any(o.writes & touch for o in sm): lg = 0
        if lg is not None and sm: lg = 0
        if ins.kind == 'ds' and len(dq) >= 15 and (lg is None or lg > 11): lg = 0 if sm else 11
        if vm is not None or lg is not None: emit(vm, lg)
        out.append(ins)
        if ins.kind in ('vld', 'vst', 'dma'):
            vq.append(ins)
            assert len(vq) <= 63, 'too many vmem outstanding'
        elif ins.kind == 'ds':
            dq.append(ins)
        elif ins.kind == 'smem': sm.append(ins)
    return out

VALUK = ('valu', 'trans', 'perm', 'rfl')
def is_v(r): return r[0] in 'va' and r != 'vcc'
def is_s(r): return (r[0] == 's' and r != 'scc') or r == 'vcc'

def need_states(p, c):
    n = 0
    if p.kind in VALUK:
        vw = {r for r in p.writes if is_v(r)}
        sw = {r for r in p.writes if is_s(r)}
        if c.kind == 'mfma' and vw & c.reads: n = max(n, 2)
        if c.kind == 'perm' and vw & c.reads: n = max(n, 2)
        if c.kind == 'rfl' and vw & c.reads: n = max(n, 1)
        if p.kind == 'trans' and c.kind in ('valu', 'perm', 'rfl', 'mfma') and vw & c.reads: n = max(n, 1)
        if sw and c.kind in ('vld', 'vst', 'dma') and sw & c.reads: n = max(n, 5)
        if sw and c.kind in VALUK and sw & c.reads: n = max(n, 2)
        if sw and c.kind in ('salu',) and sw & c.reads: n = max(n, 1)
        if 'exec' in p.writes and c.kind == 'mfma': n = max(n, 4)
    if p.kind == 'mfma':
        if c.kind == 'mfma':
            if p.writes & c.abread: n = max(n, 8)
            if p.writes & c.cread and p.writes != c.cread: n = max(n, 6)
            if p.writes & c.writes and not (p.writes == c.cread): n = max(n, 6)
        elif c.kind in VALUK:
            if p.writes & (c.reads | c.writes): n = max(n, 8)
            if p.cread & c.writes: n = max(n, 3)
        elif c.kind in ('ds', 'vld', 'vst', 'dma'):
            if p.writes & (c.reads | c.writes): n = max(n, 8)
    if p.kind == 'salu' and 'm0' in p.writes and c.kind == 'dma': n = max(n, 1)
    if p.kind == 'vst' and ('x4' in p.op or 'x3' in p.op):
        if {r for r in p.reads if is_v(r)} & c.writes: n = max(n, 2)
    return n

def insert_nops(prog):
    out = []
    for ins in prog:
        if ins.kind != 'label':
            req = 0; dist = 0
            for p in reversed(out):
                if dist >= 8: break
                if p.kind == 'label': continue
                need = need_states(p, ins)
                if need > dist: req = max(req, need - dist)
                dist += (int(p.text.split()[1]) + 1) if p.kind == 'nop' else 1
            if req: out.append(Inst(f's_nop {req - 1}'))
        out.append(ins)
    return out

def finalize(prog):
    p = insert_nops(insert_waits(prog))
    return p

def text_of(prog):
    return '\n'.join((i.text if i.kind == 'label' else '  ' + i.text) for i in prog) + '\n'

def weave(main, fillers, budget=2, start=0):
    out = []; fi = 0; credit = 0.0
    for k, m in enumerate(main):
        out += m if isinstance(m, list) else [m]
        if k < start: continue
        credit += budget
        while fi < len(fillers):
            u = fillers[fi]; c = sum(x.cost for x in u)
            if c > credit + 1e-9: break
            out += u; credit -= c; fi += 1
    while fi < len(fillers):
        out += fillers[fi]; fi += 1
    return out
```

```python
KN = 'concat_heads__gqa_block_cached__mha_block_cached__near_ridge_kernel'
class Asm:
    def __init__(self):
        self.l = []
    def __call__(self, s):
        for x in s.split('\n'):
            x = x.strip()
            if x: self.l.append(('' if x.endswith(':') else '  ') + x)
    def text(self):
        return '\n'.join(self.l) + '\n'
def kernel_header(name):
    return f'.globl {name}\n.p2align 8\n.type {name},@function\n{name}:\n'
def kd(name, vgpr=256, sgpr=102, accum=256):
    return (f'.p2align 6\n.amdhsa_kernel {name}\n  .amdhsa_next_free_vgpr {vgpr}\n  .amdhsa_next_free_sgpr {sgpr}\n'
            f'  .amdhsa_accum_offset {accum}\n  .amdhsa_group_segment_fixed_size 0\n  .amdhsa_kernarg_size 104\n'
            f'  .amdhsa_user_sgpr_count 2\n  .amdhsa_user_sgpr_kernarg_segment_ptr 1\n  .amdhsa_system_sgpr_workgroup_id_x 1\n'
            f'.end_amdhsa_kernel\n')
def make_file(launches, kernels):
    s = ''
    for (n, g, b, lds) in launches:
        s += f'; @launch kernel={n} grid=({g},1,1) block=({b},1,1) lds={lds}\n'
    s += '.amdgcn_target "amdgcn-amd-amdhsa--gfx950"\n.text\n'
    for (n, body, v, sg, ac) in kernels:
        s += kernel_header(n) + body
    s += '.section .rodata,"a"\n'
    for (n, body, v, sg, ac) in kernels:
        s += kd(n, v, sg, ac)
    return s
```

```python
import sys, math
from asmlib import *
from gen_common import make_file, KN

class Cfg:
    kvpol = 'nt'
    wpol = ''
    stpol = 'sc1'
    rdpol = ''
    stamps = False
    kv_pro = 4
    thr = 8.0
STAMP_OFF = 0x8000000
PART_BYTES = 163840
import struct
def f32(x): return '0x%08x' % struct.unpack('<I', struct.pack('<f', x))[0]

SX, SWQ, SK, SV, SWO, SWS = 's[4:7]', 's[8:11]', 's[12:15]', 's[16:19]', 's[20:23]', 's[24:27]'
sW, sHH, sQH = 's3', 's28', 's29'
sKVOFF, sKVLDS, sWQOFF, sXOFF, sXLDS, sWO0, sWO1, sWOLDS, sPW = 's30', 's31', 's32', 's33', 's34', 's35', 's36', 's37', 's38'
sC, sT = 's40', 's41'
sT0, sT1, sT2, sT3 = 's42', 's43', 's44', 's45'
sRET = 's[60:61]'
STAMP0 = 64
def O(t, dt): return (t * 8 + dt) * 4
S0 = 160; P0 = 200; NM = 220
def Sreg(t, kt): return S0 + (t * 2 + kt) * 4
def Preg(t): return P0 + 4 * t
vMX0, vMX1, vTA, vTB = 225, 226, 227, 228
vK, vVE, vVO, aK, aVE = 229, 230, 231, 232, 233
vKVA, vKVB = 234, 235
vLANE = 236
vWQA, vWQB, vX0, vX1 = 200, 201, 202, 203
vQE = [204, 205, 206]; vQO = [207, 208, 209]; vXR = [210, 211]
vWOV = 237; vOE, vOO = 238, 239
vOEs, vOOs = 245, 246
vEX1, vEX2, vEXR1, vEXR2, vL16 = 247, 248, 249, 250, 251
vOE2, vOO2 = 252, 253
vRL = 240
OWN = 160
aKF, aVF, aL, aONE, aQ = 104, 0, 136, 156, 160
aPART, aAF = 0, 80
def vr(b, n=4): return f'v[{b}:{b+n-1}]'
def ar(b, n=4): return f'a[{b}:{b+n-1}]'
SLOT = 32768
WQBUF = [147456, 65536, 102400]
XBUF = [81920, 126976]

def place(main, items):
    items = sorted(enumerate(items), key=lambda e: (e[1][0], e[0]))
    out = []; k = 0
    for pos in range(-1, len(main)):
        if pos >= 0: out.append(main[pos])
        while k < len(items) and items[k][1][0] <= pos:
            out += items[k][1][1]; k += 1
    while k < len(items):
        out += items[k][1][1]; k += 1
    return out
def spread(units, lo, hi):
    n = len(units)
    return [(lo + (k * (hi - lo + 1)) // n, u) for k, u in enumerate(units)]

class Gen:
    def __init__(self, cfg):
        self.c = cfg; self.vWOV = vWOV; self.p = []; self.nst = 0; self.stubs = []
    def e(self, x, tag=None):
        self.p += I(x, tag) if isinstance(x, str) else x
    def stamp(self):
        if self.c.stamps:
            r = STAMP0 + 2 * self.nst; self.nst += 1
            self.e(f's_memrealtime s[{r}:{r+1}]\ns_waitcnt lgkmcnt(0)')
    def kv_part(self, stage, part):
        if part == 0: srd, tile = (SK, stage + 1) if stage < 15 else (SV, 15)
        else: srd, tile = (SK, 0) if stage == 0 else (SV, stage - 1)
        lds = (stage % 5) * SLOT + part * 16384
        pol = (' ' + self.c.kvpol) if self.c.kvpol else ''
        us = []
        for k in range(4):
            u = []
            u += I(f's_add_u32 m0, {sKVLDS}, {lds}\ns_add_u32 {sT0}, {sKVOFF}, {tile*8192}')
            u += I(f'buffer_load_dwordx4 v{vKVA if k % 2 == 0 else vKVB}, {srd}, {sT0} offen offset:{k*1024}{pol} lds', tag=f'kv{stage}')
            us.append(u)
        return us
    def kv_stage(self, stage):
        us = self.kv_part(stage, 0) + self.kv_part(stage, 1)
        return us
    def wq_units(self, j):
        pol = (' ' + self.c.wpol) if self.c.wpol else ''
        us = []
        for k in range(4):
            u = I(f's_add_u32 m0, {sKVLDS}, {WQBUF[j % 3]}\ns_add_u32 {sT0}, {sWQOFF}, {j*262144 + k*32768 - k*1024}')
            u += I(f'buffer_load_dwordx4 v{vWQA if k < 2 else vWQB}, {SWQ}, {sT0} offen offset:{k*1024}{pol} lds', tag=f'wq{j}')
            us.append(u)
        return us
    def x_units(self, J):
        pol = (' ' + self.c.wpol) if self.c.wpol else ''
        us = []
        for k in range(5):
            u = I(f's_add_u32 m0, {sXLDS}, {XBUF[J % 2] + k*1024}\ns_add_u32 {sT0}, {sXOFF}, {J*128 + k*8192}')
            u += I(f'buffer_load_dwordx4 v{vX0 if k % 2 == 0 else vX1}, {SX}, {sT0} offen{pol} lds', tag=f'x{J}')
            us.append(u)
        return us
    WOSLOT = [1, 2, 3, 4, 0, 1, 2, 3]
    def wo_units(self, j):
        pol = (' ' + self.c.wpol) if self.c.wpol else ''
        us = []
        base = sWO0 if j % 2 == 0 else sWO1
        for k in range(8):
            u = I(f's_add_u32 m0, {sWOLDS}, {self.WOSLOT[j]*SLOT + k*1024}\ns_add_u32 {sT0}, {base}, {(j//2)*128 + k*8192}')
            u += I(f'buffer_load_dwordx4 v{self.vWOV}, {SWO}, {sT0} offen{pol} lds', tag=f'wo{j}')
            us.append(u)
        return us
    def prologue(self):
        e = self.e
        e(f'''
        s_cmp_ge_u32 s2, 256
        s_cbranch_scc1 L_end
        s_load_dwordx16 s[64:79], s[0:1], 0
        s_load_dwordx4 s[80:83], s[0:1], 64
        s_load_dwordx2 s[24:25], s[0:1], 96
        v_lshrrev_b32 v1, 6, v0
        v_and_b32 v{vLANE}, 63, v0
        v_readfirstlane_b32 {sW}, v1
        s_and_b32 s46, s2, 7              ; xcd
        s_lshr_b32 s47, s2, 3             ; k
        s_lshr_b32 s48, s47, 2            ; b
        s_and_b32 s49, s47, 3             ; hp
        s_and_b32 s50, s46, 3
        s_lshl_b32 s50, s50, 2
        s_add_u32 s50, s50, s49           ; HP 0..15
        s_lshl_b32 s51, s50, 1            ; h0
        s_lshr_b32 s52, s46, 2            ; branch
        s_and_b32 {sHH}, {sW}, 1
        s_lshr_b32 {sQH}, {sW}, 1
        ''')
        L = f'v{vLANE}'
        e(f'''
        v_and_b32 v2, 3, {L}              ; cc
        v_lshlrev_b32 v2, 4, v2           ; cc*16
        v_lshrrev_b32 v3, 4, {L}          ; g = blk
        v_bfe_u32 v4, {L}, 2, 2           ; r
        v_lshl_add_u32 v5, v3, 6, v2      ; blk*64+cc*16
        v_lshl_add_u32 v{vKVA}, v4, 8, v5
        v_xor_b32 v{vKVB}, 32, v{vKVA}
        v_lshl_add_u32 v{vWQA}, v4, 13, v5
        v_xor_b32 v{vWQB}, 32, v{vWQA}
        v_lshrrev_b32 v6, 5, {L}          ; blk2
        v_bfe_u32 v7, {L}, 2, 3           ; r8
        v_lshl_add_u32 v8, v6, 6, v2
        v_lshl_add_u32 v8, v7, 10, v8     ; r8*1024+blk2*64+cc*16
        s_lshl_b32 {sT0}, {sHH}, 5
        v_xor_b32 v{vX0}, {sT0}, v8
        v_xor_b32 v{vX1}, 32, v{vX0}
        v_and_b32 v9, 1, v3               ; g&1
        v_lshlrev_b32 v9, 5, v9           ; 32*(g&1)
        v_xor_b32 v{vWOV}, v9, v8
        ''')
        e(f'''
        s_lshl_b32 {sKVOFF}, {sHH}, 17
        s_lshl_b32 {sT0}, {sQH}, 12
        s_add_u32 {sKVOFF}, {sKVOFF}, {sT0}
        s_lshl_b32 {sKVLDS}, {sHH}, 13
        s_add_u32 {sKVLDS}, {sKVLDS}, {sT0}
        s_add_u32 {sT1}, s51, {sHH}
        s_lshl_b32 {sWQOFF}, {sT1}, 8
        s_lshl_b32 {sT0}, {sQH}, 17
        s_add_u32 {sWQOFF}, {sWQOFF}, {sT0}
        s_mul_i32 {sXOFF}, {sW}, {5*8192}
        s_mul_i32 {sXLDS}, {sW}, {5*1024}
        s_lshl_b32 {sT0}, {sQH}, 16
        s_lshl_b32 {sT2}, {sHH}, 9
        s_add_u32 {sT0}, {sT0}, {sT2}
        s_lshl_b32 {sWO0}, {sT1}, 17
        s_add_u32 {sWO0}, {sWO0}, {sT0}
        s_xor_b32 {sWO1}, {sWO0}, 0x20000
        s_lshl_b32 {sWOLDS}, {sHH}, 14
        s_lshl_b32 {sT0}, {sQH}, 13
        s_add_u32 {sWOLDS}, {sWOLDS}, {sT0}
        s_mul_i32 {sPW}, {sW}, 40960
        s_mov_b32 {sC}, {f32(128 ** -0.5 * math.log2(math.e))}
        s_mov_b32 {sT}, {f32(self.c.thr)}
        s_mul_i32 s53, s48, 163840         ; x offset
        s_lshl_b32 s54, s48, 5
        s_add_u32 s54, s54, s51
        s_lshl_b32 s54, s54, 17
        s_lshl_b32 s55, s52, 3
        s_add_u32 s55, s55, s48
        s_lshl_b32 s55, s55, 4
        s_add_u32 s55, s55, s50
        s_mul_i32 s55, s55, {PART_BYTES}
        s_cmp_eq_u32 s52, 0
        s_cselect_b64 s[4:5], s[64:65], s[74:75]
        s_cselect_b64 s[12:13], s[66:67], s[76:77]
        s_cselect_b64 s[16:17], s[68:69], s[78:79]
        s_cselect_b64 s[8:9], s[70:71], s[80:81]
        s_cselect_b64 s[20:21], s[72:73], s[82:83]
        s_add_u32 s4, s4, s53
        s_addc_u32 s5, s5, 0
        s_mov_b32 s6, 163840
        s_mov_b32 s7, 0x20000
        s_mov_b32 s10, 0x400000
        s_mov_b32 s11, 0x20000
        s_add_u32 s12, s12, s54
        s_addc_u32 s13, s13, 0
        s_mov_b32 s14, 0x40000
        s_mov_b32 s15, 0x20000
        s_add_u32 s16, s16, s54
        s_addc_u32 s17, s17, 0
        s_mov_b32 s18, 0x40000
        s_mov_b32 s19, 0x20000
        s_mov_b32 s22, 0x400000
        s_mov_b32 s23, 0x20000
        s_mov_b64 s[56:57], s[24:25]
        s_add_u32 s24, s24, s55
        s_addc_u32 s25, s25, 0
        s_mov_b32 s26, {PART_BYTES}
        s_mov_b32 s27, 0x20000
        ''')
        self.stamp()
        self.kvq = self.kv_part(0, 1) + self.kv_part(0, 0) + self.kv_stage(1)
        for u in self.x_units(0) + self.wq_units(0) + self.wq_units(1) + self.x_units(1) + self.wq_units(2): e(u)
        for _ in range(self.c.kv_pro): e(self.kvq.pop(0))
        e(f'''
        v_and_b32 v10, 15, {L}
        v_and_b32 v11, 3, {L}             ; c4 / r of K
        v_lshrrev_b32 v12, 2, v10         ; (l&15)>>2
        v_and_b32 v13, 1, v12
        v_lshlrev_b32 v13, 5, v13
        v_lshlrev_b32 v14, 4, v3          ; g*16
        v_xor_b32 v13, v13, v14
        v_lshl_add_u32 v13, v11, 6, v13
        v_lshl_add_u32 v13, v12, 10, v13
        s_lshl_b32 {sT1}, {sHH}, 13
        v_add_u32 v{aK}, {sT1}, v13
        v_lshl_add_u32 v15, v11, 3, v9    ; 8*c4 + 32*(g&1)
        v_lshl_add_u32 v15, v4, 6, v15    ; + r*64
        v_lshl_add_u32 v16, v3, 10, v15
        v_add_u32 v{aVE}, {sT1}, v16
        v_lshl_add_u32 v16, v3, 11, v15
        v_add_u32 v16, {sT1}, v16         ; qE
        v_add_u32 v{vQE[0]}, {WQBUF[0]}, v16
        v_add_u32 v{vQE[1]}, {WQBUF[1]}, v16
        v_add_u32 v{vQE[2]}, {WQBUF[2]}, v16
        v_xor_b32 v{vQO[0]}, 32, v{vQE[0]}
        v_xor_b32 v{vQO[1]}, 32, v{vQE[1]}
        v_xor_b32 v{vQO[2]}, 32, v{vQE[2]}
        v_lshrrev_b32 v17, 3, v10         ; (l&15)>>3
        v_lshlrev_b32 v18, 5, v17
        v_xor_b32 v18, v18, v14
        v_and_b32 v19, 7, {L}
        v_lshl_add_u32 v18, v19, 6, v18
        v_lshl_add_u32 v18, v17, 10, v18
        s_mul_i32 {sT2}, {sQH}, 10240
        v_add_u32 v18, {sT2}, v18
        v_add_u32 v{vXR[0]}, {XBUF[0]}, v18
        v_add_u32 v{vXR[1]}, {XBUF[1]}, v18
        v_lshrrev_b32 v19, 1, v3          ; g>>1
        v_lshl_add_u32 v20, v9, 3, v15    ; + 256*(g&1)
        v_lshl_add_u32 v20, v19, 10, v20
        s_lshl_b32 {sT2}, {sHH}, 14
        v_add_u32 v{vOE}, {sT2}, v20
        v_xor_b32 v{vOO}, 32, v{vOE}
        v_mov_b32 v21, 0x3f803f80
        v_accvgpr_write_b32 a{aONE}, v21
        v_accvgpr_write_b32 a{aONE+1}, v21
        v_accvgpr_write_b32 a{aONE+2}, v21
        v_accvgpr_write_b32 a{aONE+3}, v21
        ''')
    def q_reads(self, j):
        st = (j & 1) * 52; us = []
        xr = [I(f'ds_read_b128 {ar(st + 32 + 4*t)}, v{vXR[(j >> 1) & 1]} offset:{t*2048 + (j & 1)*512}') for t in range(5)]
        aa = []
        for dt in range(8):
            for u in range(2):
                adr = (vQE if dt % 2 == 0 else vQO)[j % 3]
                aa.append(I(f'ds_read_b64_tr_b16 {ar(st + 4*dt + 2*u, 2)}, v{adr} offset:{u*1024 + (dt >> 1)*256}'))
        return aa[:2] + xr + aa[2:]
    def q_phase(self):
        e = self.e
        e(waittag('x0', 'wq0')); e('s_barrier')
        for u in self.q_reads(0): e(u)
        e(waittag('wq1')); e('s_waitcnt lgkmcnt(0)\ns_barrier')
        for j in range(16):
            st = (j & 1) * 52
            main = []
            for dt in range(8):
                for t in range(5):
                    c = vr(O(t, dt)) if j else '0'
                    main += I(f'v_mfma_f32_16x16x32_bf16 {vr(O(t, dt))}, {ar(st + 4*dt)}, {ar(st + 32 + 4*t)}, {c}')
            items = []
            if j < 15: items += spread(self.q_reads(j + 1), 0, 26)
            else: items += spread(self.k_reads_units(0, 1), 0, 20)
            d = []
            if j + 3 < 16: d += self.wq_units(j + 3)
            if j % 2 == 1 and (j - 1) // 2 + 2 < 8: d += self.x_units((j - 1) // 2 + 2)
            n = -(-len(self.kvq) // max(1, 13 - j)) if j < 13 else len(self.kvq)
            for _ in range(n): d.append(self.kvq.pop(0))
            if j == 13: d += self.kv_stage(2)
            if j == 15: d += self.kv_stage(3) + self.kv_stage(4)
            if d: items += spread(d, 1, 38)
            e(place(main, items))
            if j < 15:
                tags = []
                if j + 2 < 16:
                    tags.append(f'wq{j+2}')
                    if (j + 2) % 2 == 0: tags.append(f'x{(j+2)//2}')
                if j == 14: tags.append('kv0')
                e(waittag(*tags)); e('s_waitcnt lgkmcnt(0)\ns_barrier')
    def k_reads_units(self, stage, part):
        base = (stage % 5) * SLOT + part * 16384
        us = [I(f'v_add_u32 v{vK}, {base}, v{aK}')]
        for kt in range(2):
            for ks in range(4):
                us.append(I(f'ds_read_b128 {ar(aKF + (kt*4+ks)*4)}, v{vK} offset:{kt*4096 + ks*256}'))
        return [us[0] + us[1]] + us[2:]
    def v_reads_units(self, stage, part):
        base = (stage % 5) * SLOT + part * 16384
        pre = I(f'v_add_u32 v{vVE}, {base}, v{aVE}\nv_xor_b32 v{vVO}, 32, v{vVE}')
        us = []
        for dt in range(8):
            u = []
            for h in range(2):
                u += I(f'ds_read_b64_tr_b16 {ar(aVF + 4*dt + 2*h, 2)}, v{vVE if dt % 2 == 0 else vVO} offset:{h*4096 + (dt >> 1)*256}')
            us.append(u)
        us[0] = pre + us[0]
        return us
    def s_mfmas(self, t):
        m = []
        for kt in range(2):
            for ks in range(4):
                c = vr(Sreg(t, kt)) if ks else '0'
                m += I(f'v_mfma_f32_16x16x32_bf16 {vr(Sreg(t, kt))}, {ar(aKF + (kt*4+ks)*4)}, {ar(aQ + (ks*5+t)*4)}, {c}')
        return m
    def q_convert_units(self, t):
        us = []
        for ks in range(4):
            x = O(t, 2*ks); y = O(t, 2*ks + 1); d = aQ + (ks*5 + t)*4
            for s in (f'v_cvt_pk_bf16_f32 v{x}, v{x}, v{x+1}', f'v_cvt_pk_bf16_f32 v{y}, v{y}, v{y+1}',
                      f'v_cvt_pk_bf16_f32 v{x+1}, v{x+2}, v{x+3}', f'v_cvt_pk_bf16_f32 v{y+1}, v{y+2}, v{y+3}'):
                us.append(I(s))
        for ks in range(4):
            x = O(t, 2*ks); y = O(t, 2*ks + 1)
            us += [I(f'v_permlane32_swap_b32 v{x}, v{y}'), I(f'v_permlane32_swap_b32 v{x+1}, v{y+1}')]
        for ks in range(4):
            x = O(t, 2*ks); y = O(t, 2*ks + 1)
            us += [I(f'v_permlane16_swap_b32 v{x}, v{y}'), I(f'v_permlane16_swap_b32 v{x+1}, v{y+1}')]
        for ks in range(4):
            x = O(t, 2*ks); y = O(t, 2*ks + 1); d = aQ + (ks*5 + t)*4
            for k, r in enumerate((x, x+1, y, y+1)):
                us.append(I(f'v_accvgpr_write_b32 a{d+k}, v{r}'))
        return us
    def q_to_s0(self):
        e = self.e
        for u in self.q_convert_units(0): e(u)
        for t in range(5):
            items = spread(self.q_convert_units(t + 1), 0, 7) if t < 4 else []
            e(place(self.s_mfmas(t), items))
    def exp_units(self, t):
        us = []
        b = Sreg(t, 0)
        for k in range(8): us.append(I(f'v_exp_f32 v{b+k}, v{b+k}'))
        for k in range(4): us.append(I(f'v_cvt_pk_bf16_f32 v{Preg(t)+k}, v{b+2*k}, v{b+2*k+1}'))
        return us
    def xlane_max(self, m, c):
        return I(f'''v_mov_b32 v{c}, v{m}
        v_permlane32_swap_b32 v{m}, v{c}
        v_max_f32 v{m}, v{m}, v{c}
        v_mov_b32 v{c}, v{m}
        v_permlane16_swap_b32 v{m}, v{c}
        v_max_f32 v{m}, v{m}, v{c}''')
    def max8(self, m, b):
        return I(f'''v_max3_f32 v{m}, v{b}, v{b+1}, v{b+2}
        v_max3_f32 v{m}, v{m}, v{b+3}, v{b+4}
        v_max3_f32 v{m}, v{m}, v{b+5}, v{b+6}
        v_max_f32 v{m}, v{m}, v{b+7}''')
    def pv_mfmas(self, first, touter=False):
        ones = []; m = []
        for t in range(5):
            c = '0' if first else ar(aL + 4*t)
            ones += I(f'v_mfma_f32_16x16x32_bf16 {ar(aL + 4*t)}, {ar(aONE)}, {vr(Preg(t))}, {c}')
        def one(t, dt):
            c = '0' if first else vr(O(t, dt))
            return I(f'v_mfma_f32_16x16x32_bf16 {vr(O(t, dt))}, {ar(aVF + 4*dt)}, {vr(Preg(t))}, {c}')
        if touter:
            for t in range(5):
                for dt in range(8): m += one(t, dt)
        else:
            for dt in range(8):
                for t in range(5): m += one(t, dt)
        return ones + m
    def h2(self, has_s, dma):
        e = self.e
        for u in self.exp_units(0): e(u)
        for t in range(5):
            nxt = self.exp_units(t + 1) if t < 4 else []
            dd = [dma.pop(0)] if dma else []
            if has_s:
                items = (spread(nxt, 0, 7) if nxt else []) + [(3, u) for u in dd]
                e(place(self.s_mfmas(t), items))
            else:
                for u in nxt + dd: e(u)
        for u in dma: e(u)
    def iteration(self, i):
        e = self.e
        dma = []
        if 1 <= i <= 11: dma = self.kv_stage(i + 4)
        elif i == 12: dma = self.wo_units(0)
        elif i == 13: dma = self.wo_units(1)
        if i == 0:
            for u in self.k_reads_units(0, 0): e(u)
            for t in range(5):
                b = Sreg(t, 0)
                e(self.max8(vMX0, b)); e(self.xlane_max(vMX0, vMX1))
                e(f'v_mul_f32 v{NM+t}, {sC}, v{vMX0}\nv_sub_f32 v{NM+t}, 0, v{NM+t}')
                for k in range(8): e(f'v_fma_f32 v{b+k}, v{b+k}, {sC}, v{NM+t}')
            self.h2(True, [])
            return
        e(waittag(f'kv{i}')); e('s_barrier')
        main = self.pv_mfmas(first=(i == 1))
        items = []
        vu = self.v_reads_units(i, 1)
        for dt, u in enumerate(vu): items.append((max(-1, 5*dt - 8), u))
        if i < 15: items += spread(self.k_reads_units(i, 0), 30, 43)
        fm = []
        cnt = 0
        for t in range(5):
            b = Sreg(t, 0)
            for k in range(8): fm.append(I(f'v_fma_f32 v{b+k}, v{b+k}, {sC}, v{NM+t}'))
            for k in range(4):
                mx = vMX0 if k % 2 == 0 else vMX1
                if t == 0 and k < 2: fm.append(I(f'v_max_f32 v{mx}, v{b+2*k}, v{b+2*k+1}'))
                else: fm.append(I(f'v_max3_f32 v{mx}, v{b+2*k}, v{b+2*k+1}, v{mx}'))
        fm.append(I(f'v_max_f32 v{vMX0}, v{vMX0}, v{vMX1}'))
        items += spread(fm, -1, 43)
        nd = min(len(dma), 3)
        if nd: items += spread(dma[:nd], 8, 40); dma = dma[nd:]
        e(place(main, items))
        e(f'v_cmp_lt_f32 vcc, {sT}, v{vMX0}\ns_cbranch_vccnz L_stub{i}\nL_ret{i}:')
        self.stubs.append(i)
        self.h2(i < 15, dma)
    def rare(self):
        p = I('L_rare:\ns_nop 7\ns_nop 1')
        for t in range(5):
            b = Sreg(t, 0)
            p += self.max8(vMX0, b) + self.xlane_max(vMX0, vMX1)
            p += I(f'v_max_f32 v{vMX0}, 0, v{vMX0}\nv_sub_f32 v{NM+t}, v{NM+t}, v{vMX0}')
            for k in range(8): p += I(f'v_sub_f32 v{b+k}, v{b+k}, v{vMX0}')
            p += I(f'v_sub_f32 v{vTA}, 0, v{vMX0}\nv_exp_f32 v{vTA}, v{vTA}')
            for k in range(32): p += I(f'v_mul_f32 v{O(t,0)+k}, v{O(t,0)+k}, v{vTA}')
            for k in range(4):
                p += I(f'v_accvgpr_read_b32 v{vTB}, a{aL+4*t+k}\nv_mul_f32 v{vTB}, v{vTB}, v{vTA}\nv_accvgpr_write_b32 a{aL+4*t+k}, v{vTB}')
        p += I(f's_nop 1\ns_setpc_b64 {sRET}')
        return p
    def norm_units(self, t):
        us = [I(f'v_accvgpr_read_b32 v{vRL+t}, a{aL+4*t}'), I(f'v_rcp_f32 v{vRL+t}, v{vRL+t}')]
        for ks in range(4):
            for h in range(2):
                b = O(t, 2*ks + h)
                for k in range(4): us.append(I(f'v_mul_f32 v{b+k}, v{b+k}, v{vRL+t}'))
                for k in range(2): us.append(I(f'v_cvt_pk_bf16_f32 v{self.own(ks, t) + 2*h + k}, v{b+2*k}, v{b+2*k+1}'))
            f = ks*5 + t
            adr, off = (vEX1, f*1024) if f < 16 else (vEX2, (f-16)*1024)
            us.append(I(f'ds_write_b128 v{adr}, {vr(self.own(ks, t))} offset:{off}', tag='exw'))
        return us
    def own(self, ks, t):
        return self.ownmap[(ks, t)]
    def af_units(self, j):
        us = []
        for ks in range(4):
            for nt in range(4):
                f = j*16 + ks*4 + nt
                d = aAF + (f % 6)*4
                u = []
                for h in range(2):
                    u += I(f'ds_read_b64_tr_b16 {ar(d + 2*h, 2)}, v{vOEs if nt % 2 == 0 else vOOs} offset:{ks*4096 + h*2048 + (nt >> 1)*512}')
                us.append(u)
        us[0] = I(f'v_add_u32 v{vOEs}, {self.WOSLOT[j]*SLOT}, v{vOE2}\nv_add_u32 v{vOOs}, {self.WOSLOT[j]*SLOT}, v{vOO2}') + us[0]
        return us
    def acc(self, p, t, nt): return (p % 2)*80 + (t*4 + nt)*4
    def store_units(self, p):
        us = []
        pol = (' ' + self.c.stpol) if self.c.stpol else ''
        for t in range(5):
            for m in range(2):
                b = self.acc(p, t, 2*m)
                for k in range(4): us.append(I(f'v_cvt_pk_bf16_f32 v{b+k}, v{b+2*k}, v{b+2*k+1}'))
                us.append(I(f's_add_u32 {sT1}, {sPW}, {p*10240 + (t*2+m)*1024}') +
                          I(f'buffer_store_dwordx4 {vr(b)}, v{vL16}, {SWS}, {sT1} offen{pol}', tag='st'))
        return us
    def tail(self):
        e = self.e
        regs = list(range(160, 200, 4)) + list(range(220, 240, 4)) + list(range(200, 220, 4))
        order = [(ks, t) for t in range(5) for ks in range(4)]
        self.ownmap = dict(zip(order, regs))
        L = f'v{vLANE}'
        e('s_barrier')
        vu = self.v_reads_units(15, 0)
        for u in vu[:6]: e(u)
        e(f'''
        v_mov_b32 v{vOE2}, v{vOE}
        v_mov_b32 v{vOO2}, v{vOO}
        v_mov_b32 v254, v{vWOV}
        v_lshlrev_b32 v{vL16}, 4, {L}
        s_lshl_b32 {sT1}, {sW}, 14
        s_add_u32 {sT1}, {sT1}, 98304
        v_add_u32 v{vEX1}, {sT1}, v{vL16}
        v_xor_b32 v{vEXR1}, 0x4000, v{vEX1}
        s_lshl_b32 {sT1}, {sW}, 12
        s_add_u32 {sT1}, {sT1}, 16384
        v_add_u32 v{vEX2}, {sT1}, v{vL16}
        v_xor_b32 v{vEXR2}, 0x1000, v{vEX2}
        ''')
        for u in vu[6:]: e(u)
        self.vWOV = 254
        main = self.pv_mfmas(False, touter=True)
        items = []
        for t in range(3): items += spread(self.norm_units(t), 5 + 8*t + 8, 5 + 8*t + 15)
        e(place(main, items))
        for t in (3, 4):
            for u in self.norm_units(t): e(u)
        self.stamp()
        e(waittag('wo0')); e('s_waitcnt lgkmcnt(0)\ns_barrier')
        PD = 4
        af = []
        for j in range(8): af += [(j, k, u) for k, u in enumerate(self.af_units(j))]
        for (_, _, u) in af[:PD]: e(u)
        nxt = PD
        exr = []
        for f in range(20):
            adr, off = (vEXR1, f*1024) if f < 16 else (vEXR2, (f-16)*1024)
            exr.append(I(f'ds_read_b128 {ar(aPART + 4*f)}, v{adr} offset:{off}', tag='exr'))
        for j in range(8):
            p = j // 2; sub = j % 2
            main = []; items = []
            for ks in range(4):
                for nt in range(4):
                    f = j*16 + ks*4 + nt
                    for t in range(5):
                        B = vr(self.own(ks, t)) if sub == 0 else ar(aPART + (ks*5+t)*4)
                        c = '0' if (sub == 0 and ks == 0) else vr(self.acc(p, t, nt))
                        main += I(f'v_mfma_f32_16x16x32_bf16 {vr(self.acc(p, t, nt))}, {ar(aAF + (f % 6)*4)}, {B}, {c}')
                    if nxt < len(af):
                        jj, kk, u = af[nxt]; nxt += 1
                        pre = []
                        if kk == 0:
                            pre = waittag(f'wo{jj}') + I('s_barrier')
                        items.append(((ks*4+nt)*5, pre + u))
                        if kk == 0 and jj in (2, 3, 4):
                            d = self.wo_units(jj + 3)
                            self.pending = d
            if j == 0:
                items += spread(exr, 0, 24)
                items.append((30, waittag('exr') + I('s_barrier')))
                items += spread(self.wo_units(2) + self.wo_units(3), 31, 58)
            if j == 1: items += spread(self.wo_units(4), 2, 40)
            if j in (2, 3, 4): items += spread(self.wo_units(j + 3), 0, 12)
            if sub == 0 and p > 0: items += spread(self.store_units(p - 1), 13, 58)
            e(place(main, items))
        for u in self.store_units(3): e(u)
    def build(self):
        self.prologue(); self.q_phase(); self.q_to_s0(); self.stamp()
        for i in range(16):
            self.iteration(i)
            if i in (4, 8, 12): self.stamp()
        self.tail()
        e = self.e
        if self.c.stamps:
            e('s_waitcnt vmcnt(0)'); self.stamp()
            e(f'''s_mov_b64 s[24:25], s[56:57]
            s_mov_b32 s26, 0x10000000
            s_mul_i32 {sT1}, s2, {self.nst*8}
            s_add_u32 {sT1}, {sT1}, {STAMP_OFF}
            v_mov_b32 v2, {sT1}
            v_cmp_eq_u32 vcc, 0, v255
            s_and_saveexec_b64 s[58:59], vcc
            s_cbranch_execz L_end''')
            for k in range(self.nst):
                e(f'v_mov_b32 v{4+2*k}, s{STAMP0+2*k}\nv_mov_b32 v{5+2*k}, s{STAMP0+2*k+1}\nbuffer_store_dwordx2 v[{4+2*k}:{5+2*k}], v2, {SWS}, 0 offen offset:{8*k}')
        e('L_end:\ns_endpgm')
        prog = finalize(self.p)
        for i in self.stubs: prog += I(f'L_stub{i}:\ns_call_b64 {sRET}, L_rare\ns_branch L_ret{i}')
        prog += finalize(self.rare())
        return prog

def reduce_kernel(cfg):
    pol = (' ' + cfg.rdpol) if cfg.rdpol else ''
    p = I(f'''
    s_cmp_ge_u32 s2, 640
    s_cbranch_scc1 L_rend
    s_load_dwordx2 s[4:5], s[0:1], 96
    s_load_dwordx2 s[8:9], s[0:1], 80
    v_lshrrev_b32 v1, 6, v0
    v_and_b32 v2, 63, v0
    v_readfirstlane_b32 s3, v1
    v_lshlrev_b32 v3, 4, v2
    s_mul_i32 s12, s2, 1639
    s_lshr_b32 s12, s12, 16          ; grp
    s_mul_i32 s13, s12, 40
    s_sub_u32 s13, s2, s13           ; rem
    s_lshl_b32 s13, s13, 2
    s_add_u32 s13, s13, s3           ; piece 0..159
    s_mul_i32 s16, s12, {16*PART_BYTES}
    s_lshl_b32 s17, s13, 10
    s_add_u32 s16, s16, s17
    s_mov_b32 s6, {256*PART_BYTES}
    s_mov_b32 s7, 0x20000
    s_mov_b32 s10, {8*160*1024*2}
    s_mov_b32 s11, 0x20000
    ''')
    for i in range(16):
        p += I(f'buffer_load_dwordx4 v[{8+4*i}:{11+4*i}], v3, s[4:7], s16 offen{pol}')
        if i < 15: p += I(f's_add_u32 s16, s16, {PART_BYTES}')
    p += I(f'''
    s_mul_i32 s14, s13, 1639
    s_lshr_b32 s14, s14, 16          ; w
    s_mul_i32 s15, s14, 40
    s_sub_u32 s15, s13, s15          ; 0..39
    s_mul_i32 s18, s15, 6554
    s_lshr_b32 s18, s18, 16          ; pass
    s_mul_i32 s19, s18, 10
    s_sub_u32 s19, s15, s19          ; idx
    s_lshr_b32 s20, s19, 1           ; t
    s_and_b32 s21, s19, 1            ; m
    s_and_b32 s22, s12, 7            ; b
    s_lshr_b32 s23, s12, 3           ; branch
    s_mul_i32 s24, s22, 160
    s_lshr_b32 s25, s14, 1
    s_mul_i32 s25, s25, 80
    s_add_u32 s24, s24, s25
    s_lshl_b32 s25, s20, 4
    s_add_u32 s24, s24, s25
    s_lshl_b32 s24, s24, 11          ; row*2048
    s_lshl_b32 s25, s23, 10
    s_add_u32 s24, s24, s25
    s_and_b32 s25, s14, 1
    s_lshl_b32 s25, s25, 9
    s_add_u32 s24, s24, s25
    s_lshl_b32 s25, s18, 7
    s_add_u32 s24, s24, s25
    s_lshl_b32 s25, s21, 6
    s_add_u32 s24, s24, s25
    v_and_b32 v4, 15, v2
    v_lshlrev_b32 v4, 11, v4
    v_lshrrev_b32 v5, 4, v2
    v_lshl_add_u32 v4, v5, 3, v4
    ''')
    for i in range(16):
        for j in range(4):
            r = 8 + 4*i + j
            if i == 0: p += I(f'v_lshlrev_b32 v{80+2*j}, 16, v{r}\nv_and_b32 v{81+2*j}, 0xffff0000, v{r}')
            else: p += I(f'v_lshlrev_b32 v6, 16, v{r}\nv_and_b32 v7, 0xffff0000, v{r}\nv_add_f32 v{80+2*j}, v{80+2*j}, v6\nv_add_f32 v{81+2*j}, v{81+2*j}, v7')
    for j in range(4): p += I(f'v_cvt_pk_bf16_f32 v{88+j}, v{80+2*j}, v{81+2*j}')
    p += I('''buffer_store_dwordx2 v[88:89], v4, s[8:11], s24 offen
    buffer_store_dwordx2 v[90:91], v4, s[8:11], s24 offen offset:32
    L_rend:
    s_endpgm''')
    return finalize(p)

def generate(cfg, path):
    g = Gen(cfg)
    if cfg.stamps: g.e('v_mov_b32 v255, v0')
    main = g.build()
    red = reduce_kernel(cfg)
    s = make_file([(KN, 256, 256, 163840), ('reduce_heads_kernel', 640, 256, 0)],
                  [(KN, text_of(main), 512, 102, 256), ('reduce_heads_kernel', text_of(red), 96, 32, 96)])
    open(path, 'w').write(s)
    return g.nst, main

if __name__ == '__main__':
    cfg = Cfg()
    out = sys.argv[1]
    for kv in sys.argv[2:]:
        k, v = kv.split('=')
        cur = getattr(cfg, k)
        setattr(cfg, k, type(cur)(int(v)) if isinstance(cur, (bool, int)) and not isinstance(cur, float) else type(cur)(v.replace('+', ' ')))
    nst, main = generate(cfg, out)
    from collections import Counter
    c = Counter(i.kind for i in main)
    print(out, 'stamps', nst, dict(c))
```

```python
import sys, math
from asmlib import *
from gen_common import make_file, KN

class Cfg:
    kvpol = 'nt'
    wpol = ''
    stpol = 'sc1'
    rdpol = ''
    stamps = False
    stset = 'main'
    codepf = 0
    kv_pro = 4
    thr = 8.0
STAMP_OFF = 0x8000000
PART_BYTES = 163840
import struct
def f32(x): return '0x%08x' % struct.unpack('<I', struct.pack('<f', x))[0]

SX, SWQ, SK, SV, SWO, SWS = 's[4:7]', 's[8:11]', 's[12:15]', 's[16:19]', 's[20:23]', 's[24:27]'
sW, sHH, sQH = 's3', 's28', 's29'
sKVOFF, sKVLDS, sWQOFF, sXOFF, sXLDS, sWO0, sWO1, sWOLDS, sPW = 's30', 's31', 's32', 's33', 's34', 's35', 's36', 's37', 's38'
sC, sT = 's40', 's41'
sT0, sT1, sT2, sT3 = 's42', 's43', 's44', 's45'
sRET = 's[60:61]'
STAMP0 = 64
def O(t, dt): return (t * 8 + dt) * 4
S0 = 160; P0 = 200; NM = 220
def Sreg(t, kt): return S0 + (t * 2 + kt) * 4
def Preg(t): return P0 + 4 * t
vMX0, vMX1, vTA, vTB = 225, 226, 227, 228
vK, vVE, vVO, aK, aVE = 229, 230, 231, 232, 233
vKVA, vKVB = 234, 235
vLANE = 236
vWQA, vWQB, vX0, vX1 = 200, 201, 202, 203
vQE = [204, 205, 206]; vQO = [207, 208, 209]; vXR = [210, 211]
vWOV = 237; vOE, vOO = 238, 239
vOEs, vOOs = 245, 246
vEX1, vEX2, vEXR1, vEXR2, vL16 = 247, 248, 249, 250, 251
vOE2, vOO2 = 252, 253
vRL = 240
OWN = 160
aKF, aVF, aL, aONE, aQ = 104, 0, 136, 156, 160
aPART, aAF = 0, 80
def vr(b, n=4): return f'v[{b}:{b+n-1}]'
def ar(b, n=4): return f'a[{b}:{b+n-1}]'
SLOT = 32768
WQBUF = [147456, 65536, 102400]
XBUF = [81920, 126976]

def place(main, items):
    items = sorted(enumerate(items), key=lambda e: (e[1][0], e[0]))
    out = []; k = 0
    for pos in range(-1, len(main)):
        if pos >= 0: out.append(main[pos])
        while k < len(items) and items[k][1][0] <= pos:
            out += items[k][1][1]; k += 1
    while k < len(items):
        out += items[k][1][1]; k += 1
    return out
def spread(units, lo, hi):
    n = len(units)
    return [(lo + (k * (hi - lo + 1)) // n, u) for k, u in enumerate(units)]

class Gen:
    def __init__(self, cfg):
        self.c = cfg; self.vWOV = vWOV; self.p = []; self.nst = 0; self.stubs = []
    def e(self, x, tag=None):
        self.p += I(x, tag) if isinstance(x, str) else x
    def stamp(self, grp='all'):
        if self.c.stamps and grp in ('all', self.c.stset):
            r = STAMP0 + 2 * self.nst; self.nst += 1
            self.e(f's_memrealtime s[{r}:{r+1}]\ns_waitcnt lgkmcnt(0)')
    def kv_part(self, stage, part):
        if part == 0: srd, tile = (SK, stage + 1) if stage < 15 else (SV, 15)
        else: srd, tile = (SK, 0) if stage == 0 else (SV, stage - 1)
        lds = (stage % 5) * SLOT + part * 16384
        pol = (' ' + self.c.kvpol) if self.c.kvpol else ''
        us = []
        for k in range(4):
            u = []
            u += I(f's_add_u32 m0, {sKVLDS}, {lds}\ns_add_u32 {sT0}, {sKVOFF}, {tile*8192}')
            u += I(f'buffer_load_dwordx4 v{vKVA if k % 2 == 0 else vKVB}, {srd}, {sT0} offen offset:{k*1024}{pol} lds', tag=f'kv{stage}')
            us.append(u)
        return us
    def kv_stage(self, stage):
        us = self.kv_part(stage, 0) + self.kv_part(stage, 1)
        return us
    def wq_units(self, j):
        pol = (' ' + self.c.wpol) if self.c.wpol else ''
        us = []
        for k in range(4):
            u = I(f's_add_u32 m0, {sKVLDS}, {WQBUF[j % 3]}\ns_add_u32 {sT0}, {sWQOFF}, {j*262144 + k*32768 - k*1024}')
            u += I(f'buffer_load_dwordx4 v{vWQA if k < 2 else vWQB}, {SWQ}, {sT0} offen offset:{k*1024}{pol} lds', tag=f'wq{j}')
            us.append(u)
        return us
    def x_units(self, J):
        pol = (' ' + self.c.wpol) if self.c.wpol else ''
        us = []
        for k in range(5):
            u = I(f's_add_u32 m0, {sXLDS}, {XBUF[J % 2] + k*1024}\ns_add_u32 {sT0}, {sXOFF}, {J*128 + k*8192}')
            u += I(f'buffer_load_dwordx4 v{vX0 if k % 2 == 0 else vX1}, {SX}, {sT0} offen{pol} lds', tag=f'x{J}')
            us.append(u)
        return us
    WOSLOT = [1, 2, 3, 4, 0, 1, 2, 3]
    def wo_units(self, j):
        pol = (' ' + self.c.wpol) if self.c.wpol else ''
        us = []
        base = sWO0 if j % 2 == 0 else sWO1
        for k in range(8):
            u = I(f's_add_u32 m0, {sWOLDS}, {self.WOSLOT[j]*SLOT + k*1024}\ns_add_u32 {sT0}, {base}, {(j//2)*128 + k*8192}')
            u += I(f'buffer_load_dwordx4 v{self.vWOV}, {SWO}, {sT0} offen{pol} lds', tag=f'wo{j}')
            us.append(u)
        return us
    def prologue(self):
        e = self.e
        e(f'''
        s_cmp_ge_u32 s2, 256
        s_cbranch_scc1 L_end
        s_load_dwordx16 s[64:79], s[0:1], 0
        s_load_dwordx4 s[80:83], s[0:1], 64
        s_load_dwordx2 s[24:25], s[0:1], 96
        v_lshrrev_b32 v1, 6, v0
        v_and_b32 v{vLANE}, 63, v0
        v_readfirstlane_b32 {sW}, v1
        s_and_b32 s46, s2, 7              ; xcd
        s_lshr_b32 s47, s2, 3             ; k
        s_lshr_b32 s48, s47, 2            ; b
        s_and_b32 s49, s47, 3             ; hp
        s_and_b32 s50, s46, 3
        s_lshl_b32 s50, s50, 2
        s_add_u32 s50, s50, s49           ; HP 0..15
        s_lshl_b32 s51, s50, 1            ; h0
        s_lshr_b32 s52, s46, 2            ; branch
        s_and_b32 {sHH}, {sW}, 1
        s_lshr_b32 {sQH}, {sW}, 1
        ''')
        L = f'v{vLANE}'
        e(f'''
        v_and_b32 v2, 3, {L}              ; cc
        v_lshlrev_b32 v2, 4, v2           ; cc*16
        v_lshrrev_b32 v3, 4, {L}          ; g = blk
        v_bfe_u32 v4, {L}, 2, 2           ; r
        v_lshl_add_u32 v5, v3, 6, v2      ; blk*64+cc*16
        v_lshl_add_u32 v{vKVA}, v4, 8, v5
        v_xor_b32 v{vKVB}, 32, v{vKVA}
        v_lshl_add_u32 v{vWQA}, v4, 13, v5
        v_xor_b32 v{vWQB}, 32, v{vWQA}
        v_lshrrev_b32 v6, 5, {L}          ; blk2
        v_bfe_u32 v7, {L}, 2, 3           ; r8
        v_lshl_add_u32 v8, v6, 6, v2
        v_lshl_add_u32 v8, v7, 10, v8     ; r8*1024+blk2*64+cc*16
        s_lshl_b32 {sT0}, {sHH}, 5
        v_xor_b32 v{vX0}, {sT0}, v8
        v_xor_b32 v{vX1}, 32, v{vX0}
        v_and_b32 v9, 1, v3               ; g&1
        v_lshlrev_b32 v9, 5, v9           ; 32*(g&1)
        v_xor_b32 v{vWOV}, v9, v8
        ''')
        e(f'''
        s_lshl_b32 {sKVOFF}, {sHH}, 17
        s_lshl_b32 {sT0}, {sQH}, 12
        s_add_u32 {sKVOFF}, {sKVOFF}, {sT0}
        s_lshl_b32 {sKVLDS}, {sHH}, 13
        s_add_u32 {sKVLDS}, {sKVLDS}, {sT0}
        s_add_u32 {sT1}, s51, {sHH}
        s_lshl_b32 {sWQOFF}, {sT1}, 8
        s_lshl_b32 {sT0}, {sQH}, 17
        s_add_u32 {sWQOFF}, {sWQOFF}, {sT0}
        s_mul_i32 {sXOFF}, {sW}, {5*8192}
        s_mul_i32 {sXLDS}, {sW}, {5*1024}
        s_lshl_b32 {sT0}, {sQH}, 16
        s_lshl_b32 {sT2}, {sHH}, 9
        s_add_u32 {sT0}, {sT0}, {sT2}
        s_lshl_b32 {sWO0}, {sT1}, 17
        s_add_u32 {sWO0}, {sWO0}, {sT0}
        s_xor_b32 {sWO1}, {sWO0}, 0x20000
        s_lshl_b32 {sWOLDS}, {sHH}, 14
        s_lshl_b32 {sT0}, {sQH}, 13
        s_add_u32 {sWOLDS}, {sWOLDS}, {sT0}
        s_mul_i32 {sPW}, {sW}, 40960
        s_mov_b32 {sC}, {f32(128 ** -0.5 * math.log2(math.e))}
        s_mov_b32 {sT}, {f32(self.c.thr)}
        s_mul_i32 s53, s48, 163840         ; x offset
        s_lshl_b32 s54, s48, 5
        s_add_u32 s54, s54, s51
        s_lshl_b32 s54, s54, 17
        s_lshl_b32 s55, s52, 3
        s_add_u32 s55, s55, s48
        s_lshl_b32 s55, s55, 4
        s_add_u32 s55, s55, s50
        s_mul_i32 s55, s55, {PART_BYTES}
        s_cmp_eq_u32 s52, 0
        s_cselect_b64 s[4:5], s[64:65], s[74:75]
        s_cselect_b64 s[12:13], s[66:67], s[76:77]
        s_cselect_b64 s[16:17], s[68:69], s[78:79]
        s_cselect_b64 s[8:9], s[70:71], s[80:81]
        s_cselect_b64 s[20:21], s[72:73], s[82:83]
        s_add_u32 s4, s4, s53
        s_addc_u32 s5, s5, 0
        s_mov_b32 s6, 163840
        s_mov_b32 s7, 0x20000
        s_mov_b32 s10, 0x400000
        s_mov_b32 s11, 0x20000
        s_add_u32 s12, s12, s54
        s_addc_u32 s13, s13, 0
        s_mov_b32 s14, 0x40000
        s_mov_b32 s15, 0x20000
        s_add_u32 s16, s16, s54
        s_addc_u32 s17, s17, 0
        s_mov_b32 s18, 0x40000
        s_mov_b32 s19, 0x20000
        s_mov_b32 s22, 0x400000
        s_mov_b32 s23, 0x20000
        s_mov_b64 s[56:57], s[24:25]
        s_add_u32 s24, s24, s55
        s_addc_u32 s25, s25, 0
        s_mov_b32 s26, {PART_BYTES}
        s_mov_b32 s27, 0x20000
        ''')
        self.stamp()
        self.kvq = self.kv_part(0, 1) + self.kv_part(0, 0) + self.kv_stage(1)
        for u in self.x_units(0) + self.wq_units(0) + self.wq_units(1) + self.x_units(1) + self.wq_units(2): e(u)
        for _ in range(self.c.kv_pro): e(self.kvq.pop(0))
        if self.c.codepf:
            e(f'''s_getpc_b64 s[84:85]
            L_pc0:
            s_mov_b32 s86, L_codeend-L_pc0
            s_mov_b32 s87, 0x20000
            v_lshlrev_b32 v22, 7, v0
            buffer_load_dword a240, v22, s[84:87], 0 offen
            s_mov_b32 {sT0}, 32768
            buffer_load_dword a241, v22, s[84:87], {sT0} offen''')
        e(f'''
        v_and_b32 v10, 15, {L}
        v_and_b32 v11, 3, {L}             ; c4 / r of K
        v_lshrrev_b32 v12, 2, v10         ; (l&15)>>2
        v_and_b32 v13, 1, v12
        v_lshlrev_b32 v13, 5, v13
        v_lshlrev_b32 v14, 4, v3          ; g*16
        v_xor_b32 v13, v13, v14
        v_lshl_add_u32 v13, v11, 6, v13
        v_lshl_add_u32 v13, v12, 10, v13
        s_lshl_b32 {sT1}, {sHH}, 13
        v_add_u32 v{aK}, {sT1}, v13
        v_lshl_add_u32 v15, v11, 3, v9    ; 8*c4 + 32*(g&1)
        v_lshl_add_u32 v15, v4, 6, v15    ; + r*64
        v_lshl_add_u32 v16, v3, 10, v15
        v_add_u32 v{aVE}, {sT1}, v16
        v_lshl_add_u32 v16, v3, 11, v15
        v_add_u32 v16, {sT1}, v16         ; qE
        v_add_u32 v{vQE[0]}, {WQBUF[0]}, v16
        v_add_u32 v{vQE[1]}, {WQBUF[1]}, v16
        v_add_u32 v{vQE[2]}, {WQBUF[2]}, v16
        v_xor_b32 v{vQO[0]}, 32, v{vQE[0]}
        v_xor_b32 v{vQO[1]}, 32, v{vQE[1]}
        v_xor_b32 v{vQO[2]}, 32, v{vQE[2]}
        v_lshrrev_b32 v17, 3, v10         ; (l&15)>>3
        v_lshlrev_b32 v18, 5, v17
        v_xor_b32 v18, v18, v14
        v_and_b32 v19, 7, {L}
        v_lshl_add_u32 v18, v19, 6, v18
        v_lshl_add_u32 v18, v17, 10, v18
        s_mul_i32 {sT2}, {sQH}, 10240
        v_add_u32 v18, {sT2}, v18
        v_add_u32 v{vXR[0]}, {XBUF[0]}, v18
        v_add_u32 v{vXR[1]}, {XBUF[1]}, v18
        v_lshrrev_b32 v19, 1, v3          ; g>>1
        v_lshl_add_u32 v20, v9, 3, v15    ; + 256*(g&1)
        v_lshl_add_u32 v20, v19, 10, v20
        s_lshl_b32 {sT2}, {sHH}, 14
        v_add_u32 v{vOE}, {sT2}, v20
        v_xor_b32 v{vOO}, 32, v{vOE}
        v_mov_b32 v21, 0x3f803f80
        v_accvgpr_write_b32 a{aONE}, v21
        v_accvgpr_write_b32 a{aONE+1}, v21
        v_accvgpr_write_b32 a{aONE+2}, v21
        v_accvgpr_write_b32 a{aONE+3}, v21
        ''')
    def q_reads(self, j):
        st = (j & 1) * 52; us = []
        xr = [I(f'ds_read_b128 {ar(st + 32 + 4*t)}, v{vXR[(j >> 1) & 1]} offset:{t*2048 + (j & 1)*512}') for t in range(5)]
        aa = []
        for dt in range(8):
            for u in range(2):
                adr = (vQE if dt % 2 == 0 else vQO)[j % 3]
                aa.append(I(f'ds_read_b64_tr_b16 {ar(st + 4*dt + 2*u, 2)}, v{adr} offset:{u*1024 + (dt >> 1)*256}'))
        return aa[:2] + xr + aa[2:]
    def q_phase(self):
        e = self.e
        e(waittag('x0', 'wq0')); e('s_barrier')
        self.stamp('q')
        for u in self.q_reads(0): e(u)
        e(waittag('wq1')); e('s_waitcnt lgkmcnt(0)\ns_barrier')
        for j in range(16):
            st = (j & 1) * 52
            main = []
            for dt in range(8):
                for t in range(5):
                    c = vr(O(t, dt)) if j else '0'
                    main += I(f'v_mfma_f32_16x16x32_bf16 {vr(O(t, dt))}, {ar(st + 4*dt)}, {ar(st + 32 + 4*t)}, {c}')
            items = []
            if j < 15: items += spread(self.q_reads(j + 1), 0, 26)
            else: items += spread(self.k_reads_units(0, 1), 0, 20)
            d = []
            if j + 3 < 16: d += self.wq_units(j + 3)
            if j % 2 == 1 and (j - 1) // 2 + 2 < 8: d += self.x_units((j - 1) // 2 + 2)
            n = -(-len(self.kvq) // max(1, 13 - j)) if j < 13 else len(self.kvq)
            for _ in range(n): d.append(self.kvq.pop(0))
            if j == 13: d += self.kv_stage(2)
            if j == 15: d += self.kv_stage(3) + self.kv_stage(4)
            if d: items += spread(d, 1, 38)
            e(place(main, items))
            if j < 15:
                tags = []
                if j + 2 < 16:
                    tags.append(f'wq{j+2}')
                    if (j + 2) % 2 == 0: tags.append(f'x{(j+2)//2}')
                if j == 14: tags.append('kv0')
                e(waittag(*tags)); e('s_waitcnt lgkmcnt(0)\ns_barrier')
                self.stamp('q')
    def k_reads_units(self, stage, part):
        base = (stage % 5) * SLOT + part * 16384
        us = [I(f'v_add_u32 v{vK}, {base}, v{aK}')]
        for kt in range(2):
            for ks in range(4):
                us.append(I(f'ds_read_b128 {ar(aKF + (kt*4+ks)*4)}, v{vK} offset:{kt*4096 + ks*256}'))
        return [us[0] + us[1]] + us[2:]
    def v_reads_units(self, stage, part):
        base = (stage % 5) * SLOT + part * 16384
        pre = I(f'v_add_u32 v{vVE}, {base}, v{aVE}\nv_xor_b32 v{vVO}, 32, v{vVE}')
        us = []
        for dt in range(8):
            u = []
            for h in range(2):
                u += I(f'ds_read_b64_tr_b16 {ar(aVF + 4*dt + 2*h, 2)}, v{vVE if dt % 2 == 0 else vVO} offset:{h*4096 + (dt >> 1)*256}')
            us.append(u)
        us[0] = pre + us[0]
        return us
    def s_mfmas(self, t):
        m = []
        for kt in range(2):
            for ks in range(4):
                c = vr(Sreg(t, kt)) if ks else '0'
                m += I(f'v_mfma_f32_16x16x32_bf16 {vr(Sreg(t, kt))}, {ar(aKF + (kt*4+ks)*4)}, {ar(aQ + (ks*5+t)*4)}, {c}')
        return m
    def q_convert_units(self, t):
        us = []
        for ks in range(4):
            x = O(t, 2*ks); y = O(t, 2*ks + 1); d = aQ + (ks*5 + t)*4
            for s in (f'v_cvt_pk_bf16_f32 v{x}, v{x}, v{x+1}', f'v_cvt_pk_bf16_f32 v{y}, v{y}, v{y+1}',
                      f'v_cvt_pk_bf16_f32 v{x+1}, v{x+2}, v{x+3}', f'v_cvt_pk_bf16_f32 v{y+1}, v{y+2}, v{y+3}'):
                us.append(I(s))
        for ks in range(4):
            x = O(t, 2*ks); y = O(t, 2*ks + 1)
            us += [I(f'v_permlane32_swap_b32 v{x}, v{y}'), I(f'v_permlane32_swap_b32 v{x+1}, v{y+1}')]
        for ks in range(4):
            x = O(t, 2*ks); y = O(t, 2*ks + 1)
            us += [I(f'v_permlane16_swap_b32 v{x}, v{y}'), I(f'v_permlane16_swap_b32 v{x+1}, v{y+1}')]
        for ks in range(4):
            x = O(t, 2*ks); y = O(t, 2*ks + 1); d = aQ + (ks*5 + t)*4
            for k, r in enumerate((x, x+1, y, y+1)):
                us.append(I(f'v_accvgpr_write_b32 a{d+k}, v{r}'))
        return us
    def q_to_s0(self):
        e = self.e
        for u in self.q_convert_units(0): e(u)
        for t in range(5):
            items = spread(self.q_convert_units(t + 1), 0, 7) if t < 4 else []
            e(place(self.s_mfmas(t), items))
    def exp_units(self, t):
        us = []
        b = Sreg(t, 0)
        for k in range(8): us.append(I(f'v_exp_f32 v{b+k}, v{b+k}'))
        for k in range(4): us.append(I(f'v_cvt_pk_bf16_f32 v{Preg(t)+k}, v{b+2*k}, v{b+2*k+1}'))
        return us
    def xlane_max(self, m, c):
        return I(f'''v_mov_b32 v{c}, v{m}
        v_permlane32_swap_b32 v{m}, v{c}
        v_max_f32 v{m}, v{m}, v{c}
        v_mov_b32 v{c}, v{m}
        v_permlane16_swap_b32 v{m}, v{c}
        v_max_f32 v{m}, v{m}, v{c}''')
    def max8(self, m, b):
        return I(f'''v_max3_f32 v{m}, v{b}, v{b+1}, v{b+2}
        v_max3_f32 v{m}, v{m}, v{b+3}, v{b+4}
        v_max3_f32 v{m}, v{m}, v{b+5}, v{b+6}
        v_max_f32 v{m}, v{m}, v{b+7}''')
    def pv_mfmas(self, first, touter=False):
        ones = []; m = []
        for t in range(5):
            c = '0' if first else ar(aL + 4*t)
            ones += I(f'v_mfma_f32_16x16x32_bf16 {ar(aL + 4*t)}, {ar(aONE)}, {vr(Preg(t))}, {c}')
        def one(t, dt):
            c = '0' if first else vr(O(t, dt))
            return I(f'v_mfma_f32_16x16x32_bf16 {vr(O(t, dt))}, {ar(aVF + 4*dt)}, {vr(Preg(t))}, {c}')
        if touter:
            for t in range(5):
                for dt in range(8): m += one(t, dt)
        else:
            for dt in range(8):
                for t in range(5): m += one(t, dt)
        return ones + m
    def h2(self, has_s, dma):
        e = self.e
        for u in self.exp_units(0): e(u)
        for t in range(5):
            nxt = self.exp_units(t + 1) if t < 4 else []
            dd = [dma.pop(0)] if dma else []
            if has_s:
                items = (spread(nxt, 0, 7) if nxt else []) + [(3, u) for u in dd]
                e(place(self.s_mfmas(t), items))
            else:
                for u in nxt + dd: e(u)
        for u in dma: e(u)
    def iteration(self, i):
        e = self.e
        dma = []
        if 1 <= i <= 11: dma = self.kv_stage(i + 4)
        elif i == 12: dma = self.wo_units(0)
        elif i == 13: dma = self.wo_units(1)
        if i == 0:
            for u in self.k_reads_units(0, 0): e(u)
            for t in range(5):
                b = Sreg(t, 0)
                e(self.max8(vMX0, b)); e(self.xlane_max(vMX0, vMX1))
                e(f'v_mul_f32 v{NM+t}, {sC}, v{vMX0}\nv_sub_f32 v{NM+t}, 0, v{NM+t}')
                for k in range(8): e(f'v_fma_f32 v{b+k}, v{b+k}, {sC}, v{NM+t}')
            self.h2(True, [])
            return
        e(waittag(f'kv{i}')); e('s_barrier')
        main = self.pv_mfmas(first=(i == 1))
        items = []
        vu = self.v_reads_units(i, 1)
        for dt, u in enumerate(vu): items.append((max(-1, 5*dt - 8), u))
        if i < 15: items += spread(self.k_reads_units(i, 0), 30, 43)
        fm = []
        cnt = 0
        for t in range(5):
            b = Sreg(t, 0)
            for k in range(8): fm.append(I(f'v_fma_f32 v{b+k}, v{b+k}, {sC}, v{NM+t}'))
            for k in range(4):
                mx = vMX0 if k % 2 == 0 else vMX1
                if t == 0 and k < 2: fm.append(I(f'v_max_f32 v{mx}, v{b+2*k}, v{b+2*k+1}'))
                else: fm.append(I(f'v_max3_f32 v{mx}, v{b+2*k}, v{b+2*k+1}, v{mx}'))
        fm.append(I(f'v_max_f32 v{vMX0}, v{vMX0}, v{vMX1}'))
        items += spread(fm, -1, 43)
        nd = min(len(dma), 3)
        if nd: items += spread(dma[:nd], 8, 40); dma = dma[nd:]
        e(place(main, items))
        e(f'v_cmp_lt_f32 vcc, {sT}, v{vMX0}\ns_cbranch_vccnz L_stub{i}\nL_ret{i}:')
        self.stubs.append(i)
        self.h2(i < 15, dma)
    def rare(self):
        p = I('L_rare:\ns_nop 7\ns_nop 1')
        for t in range(5):
            b = Sreg(t, 0)
            p += self.max8(vMX0, b) + self.xlane_max(vMX0, vMX1)
            p += I(f'v_max_f32 v{vMX0}, 0, v{vMX0}\nv_sub_f32 v{NM+t}, v{NM+t}, v{vMX0}')
            for k in range(8): p += I(f'v_sub_f32 v{b+k}, v{b+k}, v{vMX0}')
            p += I(f'v_sub_f32 v{vTA}, 0, v{vMX0}\nv_exp_f32 v{vTA}, v{vTA}')
            for k in range(32): p += I(f'v_mul_f32 v{O(t,0)+k}, v{O(t,0)+k}, v{vTA}')
            for k in range(4):
                p += I(f'v_accvgpr_read_b32 v{vTB}, a{aL+4*t+k}\nv_mul_f32 v{vTB}, v{vTB}, v{vTA}\nv_accvgpr_write_b32 a{aL+4*t+k}, v{vTB}')
        p += I(f's_nop 1\ns_setpc_b64 {sRET}')
        return p
    def norm_units(self, t):
        us = [I(f'v_accvgpr_read_b32 v{vRL+t}, a{aL+4*t}'), I(f'v_rcp_f32 v{vRL+t}, v{vRL+t}')]
        for ks in range(4):
            for h in range(2):
                b = O(t, 2*ks + h)
                for k in range(4): us.append(I(f'v_mul_f32 v{b+k}, v{b+k}, v{vRL+t}'))
                for k in range(2): us.append(I(f'v_cvt_pk_bf16_f32 v{self.own(ks, t) + 2*h + k}, v{b+2*k}, v{b+2*k+1}'))
            f = ks*5 + t
            adr, off = (vEX1, f*1024) if f < 16 else (vEX2, (f-16)*1024)
            us.append(I(f'ds_write_b128 v{adr}, {vr(self.own(ks, t))} offset:{off}', tag='exw'))
        return us
    def own(self, ks, t):
        return self.ownmap[(ks, t)]
    def af_units(self, j):
        us = []
        for ks in range(4):
            for nt in range(4):
                f = j*16 + ks*4 + nt
                d = aAF + (f % 6)*4
                u = []
                for h in range(2):
                    u += I(f'ds_read_b64_tr_b16 {ar(d + 2*h, 2)}, v{vOEs if nt % 2 == 0 else vOOs} offset:{ks*4096 + h*2048 + (nt >> 1)*512}')
                us.append(u)
        us[0] = I(f'v_add_u32 v{vOEs}, {self.WOSLOT[j]*SLOT}, v{vOE2}\nv_add_u32 v{vOOs}, {self.WOSLOT[j]*SLOT}, v{vOO2}') + us[0]
        return us
    def acc(self, p, t, nt): return (p % 2)*80 + (t*4 + nt)*4
    def store_units(self, p):
        us = []
        pol = (' ' + self.c.stpol) if self.c.stpol else ''
        for t in range(5):
            for m in range(2):
                b = self.acc(p, t, 2*m)
                for k in range(4): us.append(I(f'v_cvt_pk_bf16_f32 v{b+k}, v{b+2*k}, v{b+2*k+1}'))
                us.append(I(f's_add_u32 {sT1}, {sPW}, {p*10240 + (t*2+m)*1024}') +
                          I(f'buffer_store_dwordx4 {vr(b)}, v{vL16}, {SWS}, {sT1} offen{pol}', tag='st'))
        return us
    def tail(self):
        e = self.e
        regs = list(range(160, 200, 4)) + list(range(220, 240, 4)) + list(range(200, 220, 4))
        order = [(ks, t) for t in range(5) for ks in range(4)]
        self.ownmap = dict(zip(order, regs))
        L = f'v{vLANE}'
        self.stamp('o')
        e('s_barrier')
        vu = self.v_reads_units(15, 0)
        for u in vu[:6]: e(u)
        e(f'''
        v_mov_b32 v{vOE2}, v{vOE}
        v_mov_b32 v{vOO2}, v{vOO}
        v_mov_b32 v254, v{vWOV}
        v_lshlrev_b32 v{vL16}, 4, {L}
        s_lshl_b32 {sT1}, {sW}, 14
        s_add_u32 {sT1}, {sT1}, 98304
        v_add_u32 v{vEX1}, {sT1}, v{vL16}
        v_xor_b32 v{vEXR1}, 0x4000, v{vEX1}
        s_lshl_b32 {sT1}, {sW}, 12
        s_add_u32 {sT1}, {sT1}, 16384
        v_add_u32 v{vEX2}, {sT1}, v{vL16}
        v_xor_b32 v{vEXR2}, 0x1000, v{vEX2}
        ''')
        for u in vu[6:]: e(u)
        self.vWOV = 254
        main = self.pv_mfmas(False, touter=True)
        items = []
        for t in range(3): items += spread(self.norm_units(t), 5 + 8*t + 8, 5 + 8*t + 15)
        e(place(main, items))
        for t in (3, 4):
            for u in self.norm_units(t): e(u)
        self.stamp('main'); self.stamp('o')
        e(waittag('wo0')); e('s_waitcnt lgkmcnt(0)\ns_barrier')
        self.stamp('o')
        PD = 4
        af = []
        for j in range(8): af += [(j, k, u) for k, u in enumerate(self.af_units(j))]
        for (_, _, u) in af[:PD]: e(u)
        nxt = PD
        exr = []
        for f in range(20):
            adr, off = (vEXR1, f*1024) if f < 16 else (vEXR2, (f-16)*1024)
            exr.append(I(f'ds_read_b128 {ar(aPART + 4*f)}, v{adr} offset:{off}', tag='exr'))
        for j in range(8):
            p = j // 2; sub = j % 2
            main = []; items = []
            for ks in range(4):
                for nt in range(4):
                    f = j*16 + ks*4 + nt
                    for t in range(5):
                        B = vr(self.own(ks, t)) if sub == 0 else ar(aPART + (ks*5+t)*4)
                        c = '0' if (sub == 0 and ks == 0) else vr(self.acc(p, t, nt))
                        main += I(f'v_mfma_f32_16x16x32_bf16 {vr(self.acc(p, t, nt))}, {ar(aAF + (f % 6)*4)}, {B}, {c}')
                    if nxt < len(af):
                        jj, kk, u = af[nxt]; nxt += 1
                        pre = []
                        if kk == 0:
                            pre = waittag(f'wo{jj}') + I('s_barrier')
                        items.append(((ks*4+nt)*5, pre + u))
                        if kk == 0 and jj in (2, 3, 4):
                            d = self.wo_units(jj + 3)
                            self.pending = d
            if j == 0:
                items += spread(exr, 0, 24)
                items.append((30, waittag('exr') + I('s_barrier')))
                items += spread(self.wo_units(2) + self.wo_units(3), 31, 58)
            if j == 1: items += spread(self.wo_units(4), 2, 40)
            if j in (2, 3, 4): items += spread(self.wo_units(j + 3), 0, 12)
            if sub == 0 and p > 0: items += spread(self.store_units(p - 1), 13, 58)
            e(place(main, items))
            self.stamp('o')
        for u in self.store_units(3): e(u)
    def build(self):
        self.prologue(); self.q_phase(); self.q_to_s0(); self.stamp('main'); self.stamp('q'); self.stamp('a')
        for i in range(16):
            self.iteration(i)
            if i in (4, 8, 12): self.stamp('main')
            self.stamp('a')
        self.tail()
        e = self.e
        if self.c.stamps:
            e('s_waitcnt vmcnt(0)'); self.stamp()
            e(f'''s_mov_b64 s[24:25], s[56:57]
            s_mov_b32 s26, 0x10000000
            s_mul_i32 {sT1}, s2, {self.nst*8}
            s_add_u32 {sT1}, {sT1}, {STAMP_OFF}
            v_mov_b32 v2, {sT1}
            v_cmp_eq_u32 vcc, 0, v255
            s_and_saveexec_b64 s[58:59], vcc
            s_cbranch_execz L_end''')
            for k in range(self.nst):
                e(f'v_mov_b32 v{4+2*k}, s{STAMP0+2*k}\nv_mov_b32 v{5+2*k}, s{STAMP0+2*k+1}\nbuffer_store_dwordx2 v[{4+2*k}:{5+2*k}], v2, {SWS}, 0 offen offset:{8*k}')
        e('L_end:\ns_endpgm')
        prog = finalize(self.p)
        for i in self.stubs: prog += I(f'L_stub{i}:\ns_call_b64 {sRET}, L_rare\ns_branch L_ret{i}')
        prog += finalize(self.rare())
        prog += I('L_codeend:')
        return prog

def reduce_kernel(cfg):
    pol = (' ' + cfg.rdpol) if cfg.rdpol else ''
    p = I(f'''
    s_cmp_ge_u32 s2, 640
    s_cbranch_scc1 L_rend
    s_load_dwordx2 s[4:5], s[0:1], 96
    s_load_dwordx2 s[8:9], s[0:1], 80
    v_lshrrev_b32 v1, 6, v0
    v_and_b32 v2, 63, v0
    v_readfirstlane_b32 s3, v1
    v_lshlrev_b32 v3, 4, v2
    s_mul_i32 s12, s2, 1639
    s_lshr_b32 s12, s12, 16          ; grp
    s_mul_i32 s13, s12, 40
    s_sub_u32 s13, s2, s13           ; rem
    s_lshl_b32 s13, s13, 2
    s_add_u32 s13, s13, s3           ; piece 0..159
    s_mul_i32 s16, s12, {16*PART_BYTES}
    s_lshl_b32 s17, s13, 10
    s_add_u32 s16, s16, s17
    s_mov_b32 s6, {256*PART_BYTES}
    s_mov_b32 s7, 0x20000
    s_mov_b32 s10, {8*160*1024*2}
    s_mov_b32 s11, 0x20000
    ''')
    for i in range(16):
        p += I(f'buffer_load_dwordx4 v[{8+4*i}:{11+4*i}], v3, s[4:7], s16 offen{pol}')
        if i < 15: p += I(f's_add_u32 s16, s16, {PART_BYTES}')
    p += I(f'''
    s_mul_i32 s14, s13, 1639
    s_lshr_b32 s14, s14, 16          ; w
    s_mul_i32 s15, s14, 40
    s_sub_u32 s15, s13, s15          ; 0..39
    s_mul_i32 s18, s15, 6554
    s_lshr_b32 s18, s18, 16          ; pass
    s_mul_i32 s19, s18, 10
    s_sub_u32 s19, s15, s19          ; idx
    s_lshr_b32 s20, s19, 1           ; t
    s_and_b32 s21, s19, 1            ; m
    s_and_b32 s22, s12, 7            ; b
    s_lshr_b32 s23, s12, 3           ; branch
    s_mul_i32 s24, s22, 160
    s_lshr_b32 s25, s14, 1
    s_mul_i32 s25, s25, 80
    s_add_u32 s24, s24, s25
    s_lshl_b32 s25, s20, 4
    s_add_u32 s24, s24, s25
    s_lshl_b32 s24, s24, 11          ; row*2048
    s_lshl_b32 s25, s23, 10
    s_add_u32 s24, s24, s25
    s_and_b32 s25, s14, 1
    s_lshl_b32 s25, s25, 9
    s_add_u32 s24, s24, s25
    s_lshl_b32 s25, s18, 7
    s_add_u32 s24, s24, s25
    s_lshl_b32 s25, s21, 6
    s_add_u32 s24, s24, s25
    v_and_b32 v4, 15, v2
    v_lshlrev_b32 v4, 11, v4
    v_lshrrev_b32 v5, 4, v2
    v_lshl_add_u32 v4, v5, 3, v4
    ''')
    for i in range(16):
        for j in range(4):
            r = 8 + 4*i + j
            if i == 0: p += I(f'v_lshlrev_b32 v{80+2*j}, 16, v{r}\nv_and_b32 v{81+2*j}, 0xffff0000, v{r}')
            else: p += I(f'v_lshlrev_b32 v6, 16, v{r}\nv_and_b32 v7, 0xffff0000, v{r}\nv_add_f32 v{80+2*j}, v{80+2*j}, v6\nv_add_f32 v{81+2*j}, v{81+2*j}, v7')
    for j in range(4): p += I(f'v_cvt_pk_bf16_f32 v{88+j}, v{80+2*j}, v{81+2*j}')
    p += I('''buffer_store_dwordx2 v[88:89], v4, s[8:11], s24 offen
    buffer_store_dwordx2 v[90:91], v4, s[8:11], s24 offen offset:32
    L_rend:
    s_endpgm''')
    return finalize(p)

def generate(cfg, path):
    g = Gen(cfg)
    if cfg.stamps: g.e('v_mov_b32 v255, v0')
    main = g.build()
    red = reduce_kernel(cfg)
    s = make_file([(KN, 256, 256, 163840), ('reduce_heads_kernel', 640, 256, 0)],
                  [(KN, text_of(main), 512, 102, 256), ('reduce_heads_kernel', text_of(red), 96, 32, 96)])
    open(path, 'w').write(s)
    return g.nst, main

if __name__ == '__main__':
    cfg = Cfg()
    out = sys.argv[1]
    for kv in sys.argv[2:]:
        k, v = kv.split('=')
        cur = getattr(cfg, k)
        setattr(cfg, k, type(cur)(int(v)) if isinstance(cur, (bool, int)) and not isinstance(cur, float) else type(cur)(v.replace('+', ' ')))
    nst, main = generate(cfg, out)
    from collections import Counter
    c = Counter(i.kind for i in main)
    print(out, 'stamps', nst, dict(c))
```

```python
import re

def expand(op):
    op = op.strip()
    neg = op.lstrip('-')
    m = re.fullmatch(r'([vas])\[(\d+):(\d+)\]', neg)
    if m:
        return [f'{m.group(1)}{i}' for i in range(int(m.group(2)), int(m.group(3)) + 1)]
    m = re.fullmatch(r'([vas])(\d+)', neg)
    if m:
        return [neg]
    if neg in ('vcc', 'vcc_lo', 'vcc_hi'): return ['vcc']
    if neg in ('m0', 'exec', 'scc'): return [neg]
    return []

TRANS = ('v_exp_f32', 'v_rcp_f32', 'v_log_f32', 'v_rsq_f32', 'v_sqrt_f32')

class Inst:
    __slots__ = ('text', 'op', 'kind', 'reads', 'writes', 'tag', 'cread', 'abread', 'cost')
    def __init__(self, text, tag=None):
        self.text = text; self.tag = tag
        self.reads = set(); self.writes = set(); self.cread = set(); self.abread = set()
        t = text.split(';')[0].strip()
        if t.endswith(':'):
            self.op = 'label'; self.kind = 'label'; self.cost = 0; return
        parts = t.split(None, 1)
        self.op = op = parts[0]
        rest = parts[1] if len(parts) > 1 else ''
        ops = [o.strip() for o in rest.split(',')] if rest else []
        ops2 = []
        for o in ops:
            ops2.append(o.split()[0] if o else o)
        mods = rest
        R = lambda i: expand(ops2[i]) if i < len(ops2) else []
        self.cost = 1
        if op.startswith('v_mfma'):
            self.kind = 'mfma'; self.writes |= set(R(0)); self.abread = set(R(1) + R(2)); self.cread = set(R(3))
            self.reads |= self.abread | self.cread; self.cost = 2
        elif op.startswith('v_cmp'):
            self.kind = 'valu'; self.writes |= set(R(0)); self.reads |= set(R(1) + R(2))
        elif op.startswith('v_permlane') and 'swap' in op:
            self.kind = 'perm'; self.writes |= set(R(0) + R(1)); self.reads |= set(R(0) + R(1))
        elif op in ('v_readfirstlane_b32', 'v_readlane_b32'):
            self.kind = 'rfl'; self.writes |= set(R(0)); self.reads |= set(R(1))
        elif op.startswith('v_'):
            self.kind = 'trans' if op.replace('_e32', '').replace('_e64', '') in TRANS else 'valu'
            if self.kind == 'trans': self.cost = 2
            self.writes |= set(R(0))
            for i in range(1, len(ops2)): self.reads |= set(R(i))
            if op.startswith('v_fmac') or op.startswith('v_dot2c'): self.reads |= set(R(0))
            if op.startswith('v_cndmask') and len(ops2) == 3: self.reads.add('vcc')
        elif op.startswith('ds_read'):
            self.kind = 'ds'; self.writes |= set(R(0)); self.reads |= set(R(1))
        elif op.startswith('ds_write'):
            self.kind = 'ds'; self.reads |= set(R(0) + R(1))
        elif op.startswith('buffer_load') or op.startswith('global_load'):
            if re.search(r'\blds\b', mods):
                self.kind = 'dma'
                for i in range(len(ops2)): self.reads |= set(R(i))
                self.reads.add('m0')
            else:
                self.kind = 'vld'; self.writes |= set(R(0))
                for i in range(1, len(ops2)): self.reads |= set(R(i))
        elif op.startswith('buffer_wbl2') or op.startswith('buffer_inv') or op.startswith('buffer_store') or op.startswith('global_store') or op.startswith('buffer_atomic') or op.startswith('global_atomic'):
            self.kind = 'vst'
            for i in range(len(ops2)): self.reads |= set(R(i))
        elif op.startswith('s_load') or op in ('s_memtime', 's_memrealtime'):
            self.kind = 'smem'; self.writes |= set(R(0))
            for i in range(1, len(ops2)): self.reads |= set(R(i))
        elif op == 's_waitcnt': self.kind = 'wait'
        elif op == 's_barrier': self.kind = 'barrier'
        elif op == 's_nop': self.kind = 'nop'
        elif op.startswith('s_cbranch') or op in ('s_branch', 's_endpgm', 's_setpc_b64', 's_swappc_b64', 's_call_b64'):
            self.kind = 'branch'
            if op == 's_swappc_b64': self.writes |= set(R(0)); self.reads |= set(R(1))
            if op == 's_setpc_b64': self.reads |= set(R(0))
        elif op.startswith('s_cmp') or op.startswith('s_bitcmp'):
            self.kind = 'salu'; self.reads |= set(R(0) + R(1)); self.writes.add('scc')
        elif op in ('s_setprio', 's_sleep'): self.kind = 'salu'
        elif op.startswith('s_'):
            self.kind = 'salu'; self.writes |= set(R(0))
            for i in range(1, len(ops2)): self.reads |= set(R(i))
            if 'saveexec' in op: self.writes.add('exec')
        elif op == 'WAITTAG':
            self.kind = 'waittag'; self.cost = 0
        else:
            raise ValueError('unknown instruction ' + text)

def I(text, tag=None):
    return [Inst(x.strip(), tag) for x in text.split('\n') if x.strip() and not x.strip().startswith(';')]

def waittag(*tags):
    w = Inst('WAITTAG'); w.tag = tags; return [w]

def insert_waits(prog):
    out = []
    vq = []
    dq = []
    sm = []
    def emit(vm=None, lg=None):
        nonlocal vq, dq, sm
        s = []
        if vm is not None:
            vm = min(vm, 63); s.append(f'vmcnt({vm})'); vq = vq[len(vq) - vm:] if vm else []
        if lg is not None:
            lg = min(lg, 15); s.append(f'lgkmcnt({lg})'); dq = dq[len(dq) - lg:] if lg else []
            if lg == 0: sm = []
        out.append(Inst('s_waitcnt ' + ' '.join(s)))
    for ins in prog:
        if ins.kind == 'waittag':
            idx = [k for k, o in enumerate(vq) if o.tag in ins.tag]
            idd = [k for k, o in enumerate(dq) if o.tag in ins.tag]
            vm = len(vq) - 1 - idx[-1] if idx else None
            lg = len(dq) - 1 - idd[-1] if idd else None
            if lg is not None and sm: lg = 0
            if vm is not None or lg is not None: emit(vm, lg)
            continue
        if ins.kind == 'wait':
            m = re.search(r'vmcnt\((\d+)\)', ins.text)
            if m:
                n = int(m.group(1)); vq = vq[max(0, len(vq) - n):] if n else []
            m = re.search(r'lgkmcnt\((\d+)\)', ins.text)
            if m:
                n = int(m.group(1)); dq = dq[max(0, len(dq) - n):] if n else []
                if n == 0: sm = []
            out.append(ins); continue
        touch = ins.reads | ins.writes
        vm = lg = None
        idx = [k for k, o in enumerate(vq) if o.writes & touch]
        if idx: vm = len(vq) - 1 - idx[-1]
        idd = [k for k, o in enumerate(dq) if o.writes & touch]
        if idd: lg = len(dq) - 1 - idd[-1]
        if any(o.writes & touch for o in sm): lg = 0
        if lg is not None and sm: lg = 0
        if ins.kind == 'ds' and len(dq) >= 15 and (lg is None or lg > 11): lg = 0 if sm else 11
        if vm is not None or lg is not None: emit(vm, lg)
        out.append(ins)
        if ins.kind in ('vld', 'vst', 'dma'):
            vq.append(ins)
            assert len(vq) <= 63, 'too many vmem outstanding'
        elif ins.kind == 'ds':
            dq.append(ins)
        elif ins.kind == 'smem': sm.append(ins)
    return out

VALUK = ('valu', 'trans', 'perm', 'rfl')
def is_v(r): return r[0] in 'va' and r != 'vcc'
def is_s(r): return (r[0] == 's' and r != 'scc') or r == 'vcc'

def need_states(p, c):
    n = 0
    if p.kind in VALUK:
        vw = {r for r in p.writes if is_v(r)}
        sw = {r for r in p.writes if is_s(r)}
        if c.kind == 'mfma' and vw & c.reads: n = max(n, 2)
        if c.kind == 'perm' and vw & c.reads: n = max(n, 2)
        if c.kind == 'rfl' and vw & c.reads: n = max(n, 1)
        if p.kind == 'trans' and c.kind in ('valu', 'perm', 'rfl', 'mfma') and vw & c.reads: n = max(n, 1)
        if sw and c.kind in ('vld', 'vst', 'dma') and sw & c.reads: n = max(n, 5)
        if sw and c.kind in VALUK and sw & c.reads: n = max(n, 2)
        if sw and c.kind in ('salu',) and sw & c.reads: n = max(n, 1)
        if 'exec' in p.writes and c.kind == 'mfma': n = max(n, 4)
    if p.kind == 'mfma':
        if c.kind == 'mfma':
            if p.writes & c.abread: n = max(n, 8)
            if p.writes & c.cread and p.writes != c.cread: n = max(n, 6)
            if p.writes & c.writes and not (p.writes == c.cread): n = max(n, 6)
        elif c.kind in VALUK:
            if p.writes & (c.reads | c.writes): n = max(n, 8)
            if p.cread & c.writes: n = max(n, 3)
        elif c.kind in ('ds', 'vld', 'vst', 'dma'):
            if p.writes & (c.reads | c.writes): n = max(n, 8)
    if p.kind == 'salu' and 'm0' in p.writes and c.kind == 'dma': n = max(n, 1)
    if p.kind == 'vst' and ('x4' in p.op or 'x3' in p.op):
        if {r for r in p.reads if is_v(r)} & c.writes: n = max(n, 2)
    return n

def insert_nops(prog):
    out = []
    for ins in prog:
        if ins.kind != 'label':
            req = 0; dist = 0
            for p in reversed(out):
                if dist >= 8: break
                if p.kind == 'label': continue
                need = need_states(p, ins)
                if need > dist: req = max(req, need - dist)
                dist += (int(p.text.split()[1]) + 1) if p.kind == 'nop' else 1
            if req: out.append(Inst(f's_nop {req - 1}'))
        out.append(ins)
    return out

def finalize(prog):
    p = insert_nops(insert_waits(prog))
    return p

def text_of(prog):
    return '\n'.join((i.text if i.kind == 'label' else '  ' + i.text) for i in prog) + '\n'

def weave(main, fillers, budget=2, start=0):
    out = []; fi = 0; credit = 0.0
    for k, m in enumerate(main):
        out += m if isinstance(m, list) else [m]
        if k < start: continue
        credit += budget
        while fi < len(fillers):
            u = fillers[fi]; c = sum(x.cost for x in u)
            if c > credit + 1e-9: break
            out += u; credit -= c; fi += 1
    while fi < len(fillers):
        out += fillers[fi]; fi += 1
    return out

class F:
    __slots__ = ('ins', 'cost', 'lo', 'hi')
    def __init__(self, ins, lo=-1, hi=10**6, cost=None):
        self.ins = ins; self.lo = lo; self.hi = hi
        self.cost = cost if cost is not None else sum(x.cost for x in ins)

def mem_first(ins):
    ins = list(ins)
    MEM = ('ds', 'dma', 'vld', 'vst')
    changed = True
    while changed:
        changed = False
        for k in range(1, len(ins)):
            a, b = ins[k - 1], ins[k]
            if b.kind in MEM and a.kind in ('valu', 'trans', 'perm') and not (a.writes & (b.reads | b.writes)) and not (a.reads & b.writes):
                ins[k - 1], ins[k] = b, a; changed = True
    return ins

def sched(main, streams, cap=2, pre_cap=0, verbose=None):
    streams = [list(s) for s in streams if s]
    n = len(main)
    for s in streams:
        acc = 0.0
        for k in range(len(s) - 2, -1, -1):
            s[k].hi = min(s[k].hi, s[k + 1].hi)
    out = []; load = []
    for g in range(-1, n):
        if g >= 0:
            u = main[g]; out += u if isinstance(u, list) else [u]
        room = pre_cap if g < 0 else cap
        if g + 1 < n and isinstance(main[g + 1], list):
            room -= sum(x.cost for x in main[g + 1] if x.kind != 'mfma' and x.kind != 'waittag') + sum(1 for x in main[g + 1] if x.kind == 'waittag')
        used = 0; gap0 = len(out)
        while True:
            cands = [s for s in streams if s and s[0].lo <= g]
            if not cands: break
            def key(s):
                best = 1e9; c = 0
                for f in s:
                    c += f.cost
                    best = min(best, (f.hi - g + 1) * cap - c)
                return best
            cands.sort(key=key)
            pick = None
            for s in cands:
                if s[0].hi <= g or s[0].cost <= room - used: pick = s; break
            if pick is None: break
            f = pick.pop(0); out += f.ins; used += f.cost
        load.append(used)
        out[gap0:] = mem_first(out[gap0:])
    left = [f for s in streams for f in s]
    for f in left: out += f.ins
    if verbose is not None:
        verbose.append((n, sum(max(0, l - cap) for l in load[1:]), load[0], sum(f.cost for f in left), ''.join(str(min(l, 9)) for l in load)))
    return out
```

```python
import sys, math
from asmlib import *
from gen_common import make_file, KN

class Cfg:
    kvpol = 'nt'
    wpol = ''
    stpol = 'sc1'
    rdpol = ''
    stamps = False
    stset = 'main'
    codepf = 0
    kv_pro = 4
    thr = 8.0
    l2pf = 1
    pfit = 10
    pfpol = ''
    regpf = 1
    kv_end = 13
    ck = 12
    explast = 76
    klo = 20
    khi = 40
    dlo = 14
    dhi = 80
    nomem = ''
    qd_hi = 38
    qr_lo = 0
    qr_hi = 26
    loop = 1
    clk = 0
STAMP_OFF = 0x8000000
PART_BYTES = 163840
import struct
def f32(x): return '0x%08x' % struct.unpack('<I', struct.pack('<f', x))[0]

SX, SWQ, SK, SV, SWO, SWS = 's[4:7]', 's[8:11]', 's[12:15]', 's[16:19]', 's[20:23]', 's[24:27]'
sW, sHH, sQH = 's3', 's28', 's29'
sKVOFF, sKVLDS, sWQOFF, sXOFF, sXLDS, sWO0, sWO1, sWOLDS, sPW = 's30', 's31', 's32', 's33', 's34', 's35', 's36', 's37', 's38'
sC, sT = 's40', 's41'
sT0, sT1, sT2, sT3 = 's42', 's43', 's44', 's45'
sRET = 's[60:61]'
sRB, sDB, sKO, sVO, sIT = 's46', 's47', 's52', 's53', 's50'
sB, sHP, sH0 = 's48', 's49', 's51'
STAMP0 = 64
def O(t, dt): return (t * 8 + dt) * 4
S0 = 160; P0 = 200; NM4 = 220
def Sreg(t, kt): return S0 + (t * 2 + kt) * 4
def Preg(t): return P0 + 4 * t
vMX0, vMX1, vTA, vTB = 240, 241, 242, 243
vK, vVE, vVO, aK, aVE = 244, 245, 246, 247, 248
vKVA, vKVB = 249, 250
vLANE = 251
vWOV, vOE = 252, 253
vWQA, vWQB, vX0, vX1 = 200, 201, 202, 203
vQE = [204, 205, 206]; vQO = [207, 208, 209]; vXR = [210, 211]
vWA = [212, 213]; vPF = 214
vRL = 240
vOEs, vOOs = 245, 246
vEX1, vEX2, vEXR1, vEXR2, vL16 = 247, 248, 249, 250, 254
aSTG = 160
aKF, aVF, aL, aONE, aQ = 104, 0, 136, 156, 160
aPART, aAF = 0, 80
def vr(b, n=4): return f'v[{b}:{b+n-1}]'
def ar(b, n=4): return f'a[{b}:{b+n-1}]'
SLOT = 32768
WQBUF = [147456, 65536, 102400]
XBUF = [81920, 126976]

def place(main, items):
    items = sorted(enumerate(items), key=lambda e: (e[1][0], e[0]))
    out = []; k = 0
    for pos in range(-1, len(main)):
        if pos >= 0: out.append(main[pos])
        while k < len(items) and items[k][1][0] <= pos:
            out += items[k][1][1]; k += 1
    while k < len(items):
        out += items[k][1][1]; k += 1
    return out
def spread(units, lo, hi):
    n = len(units)
    return [(lo + (k * (hi - lo + 1)) // n, u) for k, u in enumerate(units)]

class Gen:
    def __init__(self, cfg):
        self.c = cfg; self.vWOV = vWOV; self.p = []; self.nst = 0; self.stubs = []
    def e(self, x, tag=None):
        self.p += I(x, tag) if isinstance(x, str) else x
    def stamp(self, grp='all'):
        if self.c.stamps and grp in ('all', self.c.stset):
            r = STAMP0 + 2 * self.nst; self.nst += 1
            self.e(f's_mem{"" if self.c.clk else "real"}time s[{r}:{r+1}]\ns_waitcnt lgkmcnt(0)')
    def kv_part(self, stage, part):
        if part == 0: srd, tile = (SK, stage + 1) if stage < 15 else (SV, 15)
        else: srd, tile = (SK, 0) if stage == 0 else (SV, stage - 1)
        lds = (stage % 5) * SLOT + part * 16384
        pol = (' ' + self.c.kvpol) if self.c.kvpol else ''
        us = []
        for k in range(4):
            u = []
            u += I(f's_add_u32 m0, {sKVLDS}, {lds}\ns_add_u32 {sT0}, {sKVOFF}, {tile*8192}')
            u += I(f'buffer_load_dwordx4 v{vKVA if k % 2 == 0 else vKVB}, {srd}, {sT0} offen offset:{k*1024}{pol} lds', tag=f'kv{stage}')
            us.append(u)
        return us
    def kv_stage(self, stage):
        us = self.kv_part(stage, 0) + self.kv_part(stage, 1)
        return us
    def kv_reg_units(self, stage):
        pol = (' ' + self.c.kvpol) if self.c.kvpol else ''
        us = []
        for part in range(2):
            srd, tile = (SK, stage + 1) if part == 0 else (SV, stage - 1)
            for k in range(4):
                d = aSTG + ((stage - 2)*8 + part*4 + k)*4
                us.append(I(f's_add_u32 {sT0}, {sKVOFF}, {tile*8192}') +
                          I(f'buffer_load_dwordx4 {ar(d)}, v{vKVA if k % 2 == 0 else vKVB}, {srd}, {sT0} offen offset:{k*1024}{pol}'))
        return us
    def kv_drain_units(self, stage):
        us = []
        for part in range(2):
            for k in range(4):
                d = aSTG + ((stage - 2)*8 + part*4 + k)*4
                adr, off = (vWA[0], (stage - 2)*SLOT) if stage < 4 else (vWA[1], 0)
                us.append(I(f'ds_write_b128 v{adr}, {ar(d)} offset:{off + part*16384 + k*1024}', tag=f'kv{stage}'))
        return us
    def l2pf_q(self):
        pol = (' ' + self.c.pfpol) if self.c.pfpol else ''
        L = f'v{vLANE}'
        return I(f'''v_lshrrev_b32 v22, 3, {L}
        v_and_b32 v23, 7, {L}
        v_lshlrev_b32 v22, 13, v22
        v_lshl_add_u32 v22, v23, 6, v22
        s_lshl_b32 {sT0}, {sB}, 19
        s_lshl_b32 {sT1}, {sW}, 17
        s_add_u32 {sT0}, {sT0}, {sT1}
        s_lshl_b32 {sT1}, {sH0}, 8
        s_add_u32 {sT0}, {sT0}, {sT1}
        buffer_load_dword a138, v22, {SWQ}, {sT0} offen{pol}
        s_add_u32 {sT0}, {sT0}, 65536
        buffer_load_dword a139, v22, {SWQ}, {sT0} offen{pol}
        v_lshlrev_b32 v23, 6, {L}
        s_mul_i32 {sT0}, {sHP}, 40960
        s_mul_i32 {sT1}, {sW}, 10240
        s_add_u32 {sT0}, {sT0}, {sT1}
        buffer_load_dword a140, v23, {SX}, {sT0} offen{pol}
        s_add_u32 {sT0}, {sT0}, 4096
        buffer_load_dword a141, v23, {SX}, {sT0} offen{pol}
        s_add_u32 {sT0}, {sT0}, 4096
        buffer_load_dword a142, v23, {SX}, {sT0} offen{pol}''')
    def l2pf_wo(self):
        pol = (' ' + self.c.pfpol) if self.c.pfpol else ''
        return I(f'''v_lshlrev_b32 v{vTA}, 6, v{vLANE}
        s_lshl_b32 {sT0}, {sH0}, 17
        s_lshl_b32 {sT1}, {sB}, 15
        s_add_u32 {sT0}, {sT0}, {sT1}
        s_lshl_b32 {sT1}, {sW}, 13
        s_add_u32 {sT0}, {sT0}, {sT1}
        buffer_load_dword a240, v{vTA}, {SWO}, {sT0} offen{pol}
        s_add_u32 {sT0}, {sT0}, 4096
        buffer_load_dword a241, v{vTA}, {SWO}, {sT0} offen{pol}''')
    def kv_stage_dyn(self, stage):
        pol = (' ' + self.c.kvpol) if self.c.kvpol else ''
        us = []
        for part in range(2):
            for k in range(4):
                u = I(f's_add_u32 m0, {sDB}, {part*16384}') if k == 0 else []
                u += I(f'buffer_load_dwordx4 v{vKVA if k % 2 == 0 else vKVB}, {SK if part == 0 else SV}, {sKO if part == 0 else sVO} offen offset:{k*1024}{pol} lds', tag=f'kv{stage}')
                us.append(u)
        return us
    def wq_units(self, j):
        pol = (' ' + self.c.wpol) if self.c.wpol else ''
        us = []
        for k in range(4):
            u = I(f's_add_u32 m0, {sKVLDS}, {WQBUF[j % 3]}\ns_add_u32 {sT0}, {sWQOFF}, {j*262144 + k*32768 - k*1024}')
            u += I(f'buffer_load_dwordx4 v{vWQA if k < 2 else vWQB}, {SWQ}, {sT0} offen offset:{k*1024}{pol} lds', tag=f'wq{j}')
            us.append(u)
        return us
    def x_units(self, J):
        pol = (' ' + self.c.wpol) if self.c.wpol else ''
        us = []
        for k in range(5):
            u = I(f's_add_u32 m0, {sXLDS}, {XBUF[J % 2] + k*1024}\ns_add_u32 {sT0}, {sXOFF}, {J*128 + k*8192}')
            u += I(f'buffer_load_dwordx4 v{vX0 if k % 2 == 0 else vX1}, {SX}, {sT0} offen{pol} lds', tag=f'x{J}')
            us.append(u)
        return us
    WOSLOT = [1, 2, 3, 4, 0, 1, 2, 3]
    def wo_units(self, j):
        pol = (' ' + self.c.wpol) if self.c.wpol else ''
        us = []
        base = sWO0 if j % 2 == 0 else sWO1
        for k in range(8):
            u = I(f's_add_u32 m0, {sWOLDS}, {self.WOSLOT[j]*SLOT + k*1024}\ns_add_u32 {sT0}, {base}, {(j//2)*128 + k*8192}')
            u += I(f'buffer_load_dwordx4 v{self.vWOV}, {SWO}, {sT0} offen{pol} lds', tag=f'wo{j}')
            us.append(u)
        return us
    def prologue(self):
        e = self.e
        e(f'''
        s_cmp_ge_u32 s2, 256
        s_cbranch_scc1 L_end
        s_load_dwordx16 s[64:79], s[0:1], 0
        s_load_dwordx4 s[80:83], s[0:1], 64
        s_load_dwordx2 s[24:25], s[0:1], 96
        v_lshrrev_b32 v1, 6, v0
        v_and_b32 v{vLANE}, 63, v0
        v_readfirstlane_b32 {sW}, v1
        s_and_b32 s46, s2, 7              ; xcd
        s_lshr_b32 s47, s2, 3             ; k
        s_lshr_b32 s48, s47, 2            ; b
        s_and_b32 s49, s47, 3             ; hp
        s_and_b32 s50, s46, 3
        s_lshl_b32 s50, s50, 2
        s_add_u32 s50, s50, s49           ; HP 0..15
        s_lshl_b32 s51, s50, 1            ; h0
        s_lshr_b32 s52, s46, 2            ; branch
        s_and_b32 {sHH}, {sW}, 1
        s_lshr_b32 {sQH}, {sW}, 1
        ''')
        L = f'v{vLANE}'
        e(f'''
        v_and_b32 v2, 3, {L}              ; cc
        v_lshlrev_b32 v2, 4, v2           ; cc*16
        v_lshrrev_b32 v3, 4, {L}          ; g = blk
        v_bfe_u32 v4, {L}, 2, 2           ; r
        v_lshl_add_u32 v5, v3, 6, v2      ; blk*64+cc*16
        v_lshl_add_u32 v{vKVA}, v4, 8, v5
        v_xor_b32 v{vKVB}, 32, v{vKVA}
        v_lshl_add_u32 v{vWQA}, v4, 13, v5
        v_xor_b32 v{vWQB}, 32, v{vWQA}
        v_lshrrev_b32 v6, 5, {L}          ; blk2
        v_bfe_u32 v7, {L}, 2, 3           ; r8
        v_lshl_add_u32 v8, v6, 6, v2
        v_lshl_add_u32 v8, v7, 10, v8     ; r8*1024+blk2*64+cc*16
        s_lshl_b32 {sT0}, {sHH}, 5
        v_xor_b32 v{vX0}, {sT0}, v8
        v_xor_b32 v{vX1}, 32, v{vX0}
        v_and_b32 v9, 1, v3               ; g&1
        v_lshlrev_b32 v9, 5, v9           ; 32*(g&1)
        v_xor_b32 v{vWOV}, v9, v8
        ''')
        e(f'''
        s_lshl_b32 {sKVOFF}, {sHH}, 17
        s_lshl_b32 {sT0}, {sQH}, 12
        s_add_u32 {sKVOFF}, {sKVOFF}, {sT0}
        s_lshl_b32 {sKVLDS}, {sHH}, 13
        s_add_u32 {sKVLDS}, {sKVLDS}, {sT0}
        s_add_u32 {sT1}, s51, {sHH}
        s_lshl_b32 {sWQOFF}, {sT1}, 8
        s_lshl_b32 {sT0}, {sQH}, 17
        s_add_u32 {sWQOFF}, {sWQOFF}, {sT0}
        s_mul_i32 {sXOFF}, {sW}, {5*8192}
        s_mul_i32 {sXLDS}, {sW}, {5*1024}
        s_lshl_b32 {sT0}, {sQH}, 16
        s_lshl_b32 {sT2}, {sHH}, 9
        s_add_u32 {sT0}, {sT0}, {sT2}
        s_lshl_b32 {sWO0}, {sT1}, 17
        s_add_u32 {sWO0}, {sWO0}, {sT0}
        s_xor_b32 {sWO1}, {sWO0}, 0x20000
        s_lshl_b32 {sWOLDS}, {sHH}, 14
        s_lshl_b32 {sT0}, {sQH}, 13
        s_add_u32 {sWOLDS}, {sWOLDS}, {sT0}
        s_mul_i32 {sPW}, {sW}, 40960
        s_mov_b32 {sC}, {f32(128 ** -0.5 * math.log2(math.e))}
        s_mov_b32 {sT}, {f32(self.c.thr)}
        s_mul_i32 s53, s48, 163840         ; x offset
        s_lshl_b32 s54, s48, 5
        s_add_u32 s54, s54, s51
        s_lshl_b32 s54, s54, 17
        s_lshl_b32 s55, s52, 3
        s_add_u32 s55, s55, s48
        s_lshl_b32 s55, s55, 4
        s_add_u32 s55, s55, s50
        s_mul_i32 s55, s55, {PART_BYTES}
        s_cmp_eq_u32 s52, 0
        s_cselect_b64 s[4:5], s[64:65], s[74:75]
        s_cselect_b64 s[12:13], s[66:67], s[76:77]
        s_cselect_b64 s[16:17], s[68:69], s[78:79]
        s_cselect_b64 s[8:9], s[70:71], s[80:81]
        s_cselect_b64 s[20:21], s[72:73], s[82:83]
        s_add_u32 s4, s4, s53
        s_addc_u32 s5, s5, 0
        s_mov_b32 s6, 163840
        s_mov_b32 s7, 0x20000
        s_mov_b32 s10, 0x400000
        s_mov_b32 s11, 0x20000
        s_add_u32 s12, s12, s54
        s_addc_u32 s13, s13, 0
        s_mov_b32 s14, 0x40000
        s_mov_b32 s15, 0x20000
        s_add_u32 s16, s16, s54
        s_addc_u32 s17, s17, 0
        s_mov_b32 s18, 0x40000
        s_mov_b32 s19, 0x20000
        s_mov_b32 s22, 0x400000
        s_mov_b32 s23, 0x20000
        s_mov_b64 s[56:57], s[24:25]
        s_add_u32 s24, s24, s55
        s_addc_u32 s25, s25, 0
        s_mov_b32 s26, {PART_BYTES}
        s_mov_b32 s27, 0x20000
        ''')
        self.stamp()
        self.kvq = self.kv_part(0, 1) + self.kv_part(0, 0) + self.kv_stage(1)
        if self.c.regpf: self.kvq += self.kv_reg_units(2) + self.kv_reg_units(3) + self.kv_reg_units(4)
        for u in self.x_units(0) + self.wq_units(0): e(u)
        if self.c.l2pf: e(self.l2pf_q())
        for u in self.wq_units(1) + self.x_units(1) + self.wq_units(2): e(u)
        for _ in range(self.c.kv_pro): e(self.kvq.pop(0))
        if self.c.codepf:
            e(f'''s_getpc_b64 s[84:85]
            L_pc0:
            s_mov_b32 s86, L_codeend-L_pc0
            s_mov_b32 s87, 0x20000
            v_lshlrev_b32 v22, 7, v0
            buffer_load_dword a136, v22, s[84:87], 0 offen
            s_mov_b32 {sT0}, 32768
            buffer_load_dword a137, v22, s[84:87], {sT0} offen''')
        e(f'''
        v_and_b32 v10, 15, {L}
        v_and_b32 v11, 3, {L}             ; c4 / r of K
        v_lshrrev_b32 v12, 2, v10         ; (l&15)>>2
        v_and_b32 v13, 1, v12
        v_lshlrev_b32 v13, 5, v13
        v_lshlrev_b32 v14, 4, v3          ; g*16
        v_xor_b32 v13, v13, v14
        v_lshl_add_u32 v13, v11, 6, v13
        v_lshl_add_u32 v13, v12, 10, v13
        s_lshl_b32 {sT1}, {sHH}, 13
        v_add_u32 v{aK}, {sT1}, v13
        v_lshl_add_u32 v15, v11, 3, v9    ; 8*c4 + 32*(g&1)
        v_lshl_add_u32 v15, v4, 6, v15    ; + r*64
        v_lshl_add_u32 v16, v3, 10, v15
        v_add_u32 v{aVE}, {sT1}, v16
        v_lshl_add_u32 v16, v3, 11, v15
        v_add_u32 v16, {sT1}, v16         ; qE
        v_add_u32 v{vQE[0]}, {WQBUF[0]}, v16
        v_add_u32 v{vQE[1]}, {WQBUF[1]}, v16
        v_add_u32 v{vQE[2]}, {WQBUF[2]}, v16
        v_xor_b32 v{vQO[0]}, 32, v{vQE[0]}
        v_xor_b32 v{vQO[1]}, 32, v{vQE[1]}
        v_xor_b32 v{vQO[2]}, 32, v{vQE[2]}
        v_lshrrev_b32 v17, 3, v10         ; (l&15)>>3
        v_lshlrev_b32 v18, 5, v17
        v_xor_b32 v18, v18, v14
        v_and_b32 v19, 7, {L}
        v_lshl_add_u32 v18, v19, 6, v18
        v_lshl_add_u32 v18, v17, 10, v18
        s_mul_i32 {sT2}, {sQH}, 10240
        v_add_u32 v18, {sT2}, v18
        v_add_u32 v{vXR[0]}, {XBUF[0]}, v18
        v_add_u32 v{vXR[1]}, {XBUF[1]}, v18
        v_lshrrev_b32 v19, 1, v3          ; g>>1
        v_lshl_add_u32 v20, v9, 3, v15    ; + 256*(g&1)
        v_lshl_add_u32 v20, v19, 10, v20
        s_lshl_b32 {sT2}, {sHH}, 14
        v_add_u32 v{vOE}, {sT2}, v20
        v_lshlrev_b32 v{vWA[0]}, 4, {L}
        v_add_u32 v{vWA[0]}, {sKVLDS}, v{vWA[0]}
        v_add_u32 v{vWA[1]}, 131072, v{vWA[0]}
        v_add_u32 v{vWA[0]}, 65536, v{vWA[0]}
        v_mov_b32 v21, 0x3f803f80
        v_accvgpr_write_b32 a{aONE}, v21
        v_accvgpr_write_b32 a{aONE+1}, v21
        v_accvgpr_write_b32 a{aONE+2}, v21
        v_accvgpr_write_b32 a{aONE+3}, v21
        ''')
    def q_reads(self, j):
        st = (j & 1) * 52; us = []
        xr = [I(f'ds_read_b128 {ar(st + 32 + 4*t)}, v{vXR[(j >> 1) & 1]} offset:{t*2048 + (j & 1)*512}') for t in range(5)]
        aa = []
        for dt in range(8):
            for u in range(2):
                adr = (vQE if dt % 2 == 0 else vQO)[j % 3]
                aa.append(I(f'ds_read_b64_tr_b16 {ar(st + 4*dt + 2*u, 2)}, v{adr} offset:{u*1024 + (dt >> 1)*256}'))
        return aa[:2] + xr + aa[2:]
    def q_phase(self):
        e = self.e
        e(waittag('x0', 'wq0')); e('s_barrier')
        self.stamp('q')
        for u in self.q_reads(0): e(u)
        e(waittag('wq1')); e('s_waitcnt lgkmcnt(0)\ns_barrier')
        for j in range(16):
            st = (j & 1) * 52
            main = []
            for dt in range(8):
                for t in range(5):
                    c = vr(O(t, dt)) if j else '0'
                    main += I(f'v_mfma_f32_16x16x32_bf16 {vr(O(t, dt))}, {ar(st + 4*dt)}, {ar(st + 32 + 4*t)}, {c}')
            items = []
            if j < 15: items += spread(self.q_reads(j + 1), self.c.qr_lo, self.c.qr_hi)
            else: items += spread(self.k_reads_units(0, 1), 0, 20)
            d = []
            if j + 3 < 16: d += self.wq_units(j + 3)
            if j % 2 == 1 and (j - 1) // 2 + 2 < 8: d += self.x_units((j - 1) // 2 + 2)
            if d: items += spread(d, 0, self.c.qd_hi)
            d = []
            ke = self.c.kv_end
            n = -(-len(self.kvq) // max(1, ke - j)) if j < ke else len(self.kvq)
            for _ in range(n): d.append(self.kvq.pop(0))
            if not self.c.regpf:
                if j == 13: d += self.kv_stage(2)
                if j == 15: d += self.kv_stage(3) + self.kv_stage(4)
            else:
                if j == 14: items += spread(self.kv_drain_units(2), 27, 39)
                if j == 15: items += spread(self.kv_drain_units(3) + self.kv_drain_units(4), 10, 39)
            if d: items += spread(d, min(self.c.qd_hi + 1, 30), 38)
            e(place(main, items))
            if j < 15:
                tags = []
                if j + 2 < 16:
                    tags.append(f'wq{j+2}')
                    if (j + 2) % 2 == 0: tags.append(f'x{(j+2)//2}')
                if j == 14: tags.append('kv0')
                e(waittag(*tags)); e('s_waitcnt lgkmcnt(0)\ns_barrier')
                self.stamp('q')
    def k_reads_units(self, stage, part, dyn=False):
        base = (stage % 5) * SLOT + part * 16384
        po = 0
        if dyn: base = sRB
        us = [I(f'v_add_u32 v{vK}, {base}, v{aK}')]
        for kt in range(2):
            for ks in range(4):
                us.append(I(f'ds_read_b128 {ar(aKF + (kt*4+ks)*4)}, v{vK} offset:{kt*4096 + ks*256}'))
        return [us[0] + us[1]] + us[2:]
    def v_reads_units(self, stage, part, dyn=False):
        base = (stage % 5) * SLOT + part * 16384
        po = 0
        if dyn: base = sRB; po = 16384
        pre = I(f'v_add_u32 v{vVE}, {base}, v{aVE}\nv_xor_b32 v{vVO}, 32, v{vVE}')
        us = []
        for dt in range(8):
            u = []
            for h in range(2):
                u += I(f'ds_read_b64_tr_b16 {ar(aVF + 4*dt + 2*h, 2)}, v{vVE if dt % 2 == 0 else vVO} offset:{po + h*4096 + (dt >> 1)*256}')
            us.append(u)
        us[0] = pre + us[0]
        return us
    def s_mfmas(self, t, zero=False):
        m = []
        for kt in range(2):
            for ks in range(4):
                c = vr(Sreg(t, kt)) if ks else ('0' if zero else vr(NM4 + 4*t))
                m += I(f'v_mfma_f32_16x16x32_bf16 {vr(Sreg(t, kt))}, {ar(aKF + (kt*4+ks)*4)}, {ar(aQ + (ks*5+t)*4)}, {c}')
        return m
    def q_convert_units(self, t):
        us = []
        for ks in range(4):
            x = O(t, 2*ks); y = O(t, 2*ks + 1); d = aQ + (ks*5 + t)*4
            for k in range(8): us.append(I(f'v_mul_f32 v{x+k}, {sC}, v{x+k}'))
            for s in (f'v_cvt_pk_bf16_f32 v{x}, v{x}, v{x+1}', f'v_cvt_pk_bf16_f32 v{y}, v{y}, v{y+1}',
                      f'v_cvt_pk_bf16_f32 v{x+1}, v{x+2}, v{x+3}', f'v_cvt_pk_bf16_f32 v{y+1}, v{y+2}, v{y+3}'):
                us.append(I(s))
        for ks in range(4):
            x = O(t, 2*ks); y = O(t, 2*ks + 1)
            us += [I(f'v_permlane32_swap_b32 v{x}, v{y}'), I(f'v_permlane32_swap_b32 v{x+1}, v{y+1}')]
        for ks in range(4):
            x = O(t, 2*ks); y = O(t, 2*ks + 1)
            us += [I(f'v_permlane16_swap_b32 v{x}, v{y}'), I(f'v_permlane16_swap_b32 v{x+1}, v{y+1}')]
        for ks in range(4):
            x = O(t, 2*ks); y = O(t, 2*ks + 1); d = aQ + (ks*5 + t)*4
            for k, r in enumerate((x, x+1, y, y+1)):
                us.append(I(f'v_accvgpr_write_b32 a{d+k}, v{r}'))
        return us
    def q_to_s0(self):
        e = self.e
        for u in self.q_convert_units(0): e(u)
        for t in range(5):
            items = spread(self.q_convert_units(t + 1), 0, 7) if t < 4 else []
            e(place(self.s_mfmas(t, zero=True), items))
    def exp_units(self, t):
        us = []
        b = Sreg(t, 0)
        for k in range(8): us.append(I(f'v_exp_f32 v{b+k}, v{b+k}'))
        for k in range(4): us.append(I(f'v_cvt_pk_bf16_f32 v{Preg(t)+k}, v{b+2*k}, v{b+2*k+1}'))
        return us
    def xlane_max(self, m, c):
        return I(f'''v_mov_b32 v{c}, v{m}
        v_permlane32_swap_b32 v{m}, v{c}
        v_max_f32 v{m}, v{m}, v{c}
        v_mov_b32 v{c}, v{m}
        v_permlane16_swap_b32 v{m}, v{c}
        v_max_f32 v{m}, v{m}, v{c}''')
    def max8(self, m, b):
        return I(f'''v_max3_f32 v{m}, v{b}, v{b+1}, v{b+2}
        v_max3_f32 v{m}, v{m}, v{b+3}, v{b+4}
        v_max3_f32 v{m}, v{m}, v{b+5}, v{b+6}
        v_max_f32 v{m}, v{m}, v{b+7}''')
    def pv_mfmas(self, first, touter=False):
        ones = []; m = []
        for t in range(5):
            c = '0' if first else ar(aL + 4*t)
            ones += I(f'v_mfma_f32_16x16x32_bf16 {ar(aL + 4*t)}, {ar(aONE)}, {vr(Preg(t))}, {c}')
        def one(t, dt):
            c = '0' if first else vr(O(t, dt))
            return I(f'v_mfma_f32_16x16x32_bf16 {vr(O(t, dt))}, {ar(aVF + 4*dt)}, {vr(Preg(t))}, {c}')
        if touter:
            for t in range(5):
                for dt in range(8): m += one(t, dt)
        else:
            for dt in range(8):
                for t in range(5): m += one(t, dt)
        return ones + m
    def iteration(self, i):
        e = self.e
        dma = []
        dyn = self.c.loop and 2 <= i <= 9
        if dyn:
            if i == 2:
                e(f's_mov_b32 {sRB}, {SLOT}\ns_add_u32 {sKO}, {sKVOFF}, {6*8192}')
            e(f'L_loopmark{i}:')
            e(f'''s_add_u32 {sDB}, {sRB}, {sKVLDS}
            s_add_u32 {sRB}, {sRB}, {SLOT}
            s_cmp_eq_u32 {sRB}, {5*SLOT}
            s_cselect_b32 {sRB}, 0, {sRB}
            s_add_u32 {sKO}, {sKO}, 8192
            s_sub_u32 {sVO}, {sKO}, 16384''')
            dma = self.kv_stage_dyn(i + 4)
        elif 1 <= i <= 11: dma = self.kv_stage(i + 4)
        elif i == 12: dma = self.wo_units(0)
        elif i == 13: dma = self.wo_units(1)
        if self.c.l2pf and i == self.c.pfit: dma = dma + [self.l2pf_wo()]
        smf = []
        if i < 15:
            for t in range(5): smf += self.s_mfmas(t)
        if i == 0:
            for u in self.k_reads_units(0, 0): e(u)
            for t in range(5):
                b = Sreg(t, 0)
                e(self.max8(vMX0, b)); e(self.xlane_max(vMX0, vMX1))
                for k in range(4): e(f'v_sub_f32 v{NM4+4*t+k}, 0, v{vMX0}')
                for k in range(8): e(f'v_sub_f32 v{b+k}, v{b+k}, v{vMX0}')
            for u in self.exp_units(0): e(u)
            items = []
            for t in range(1, 5): items += spread(self.exp_units(t), 8*(t-1), 8*t - 1)
            e(place(smf, items))
            return
        e(waittag(f'kv{i}')); e('s_barrier')
        main = self.pv_mfmas(first=(i == 1), touter=True) + smf
        n = len(main)
        items = []
        vu = self.v_reads_units(i, 1, dyn)
        for dt, u in enumerate(vu): items.append((-1 if dt < 3 else dt - 3, u))
        mx = []
        for t in range(5):
            b = Sreg(t, 0)
            for k in range(4):
                m = vMX0 if k % 2 == 0 else vMX1
                if t == 0 and k < 2: mx.append(I(f'v_max_f32 v{m}, v{b+2*k}, v{b+2*k+1}'))
                else: mx.append(I(f'v_max3_f32 v{m}, v{b+2*k}, v{b+2*k+1}, v{m}'))
        mx.append(I(f'v_max_f32 v{vMX0}, v{vMX0}, v{vMX1}'))
        CK = self.c.ck
        items += spread(mx, -1, CK - 1)
        items.append((CK, I(f'v_cmp_lt_f32 vcc, {sT}, v{vMX0}\ns_cbranch_vccnz L_stub{i}\nL_ret{i}:')))
        self.stubs.append(i)
        last = self.c.explast if i < 15 else 44
        w = (last - CK) / 5.0
        for t in range(5):
            lo = CK + 1 + int(t * w); hi = CK + int((t + 1) * w)
            assert hi < 45 + 8*t
            eu = self.exp_units(t)
            pl = spread(eu, lo, hi)
            pl = [(max(p, 5 + 8*t + 7) if k >= 8 else p, u) for k, (p, u) in enumerate(pl)]
            items += pl
        if i < 15: items += spread(self.k_reads_units(i, 0, dyn), self.c.klo, self.c.khi)
        if dma: items += spread(dma, self.c.dlo, min(self.c.dhi, n - 2))
        e(place(main, items))
        if dyn: e(f'L_loopend{i}:')
    def rare(self):
        p = I('L_rare:\ns_nop 7\ns_nop 1')
        for t in range(5):
            b = Sreg(t, 0)
            p += self.max8(vMX0, b) + self.xlane_max(vMX0, vMX1)
            p += I(f'v_max_f32 v{vMX0}, 0, v{vMX0}')
            for k in range(4): p += I(f'v_sub_f32 v{NM4+4*t+k}, v{NM4+4*t+k}, v{vMX0}')
            for k in range(8): p += I(f'v_sub_f32 v{b+k}, v{b+k}, v{vMX0}')
            p += I(f'v_sub_f32 v{vTA}, 0, v{vMX0}\nv_exp_f32 v{vTA}, v{vTA}')
            for k in range(32): p += I(f'v_mul_f32 v{O(t,0)+k}, v{O(t,0)+k}, v{vTA}')
            for k in range(4):
                p += I(f'v_accvgpr_read_b32 v{vTB}, a{aL+4*t+k}\nv_mul_f32 v{vTB}, v{vTB}, v{vTA}\nv_accvgpr_write_b32 a{aL+4*t+k}, v{vTB}')
            for k in range(4):
                r = Preg(t) + k
                p += I(f'''v_lshlrev_b32 v{vTB}, 16, v{r}
                v_and_b32 v{vMX1}, 0xffff0000, v{r}
                v_mul_f32 v{vTB}, v{vTB}, v{vTA}
                v_mul_f32 v{vMX1}, v{vMX1}, v{vTA}
                v_cvt_pk_bf16_f32 v{r}, v{vTB}, v{vMX1}''')
        p += I(f's_nop 1\ns_setpc_b64 {sRET}')
        return p
    def norm_units(self, t):
        us = [I(f'v_accvgpr_read_b32 v{vRL+t}, a{aL+4*t}'), I(f'v_rcp_f32 v{vRL+t}, v{vRL+t}')]
        for ks in range(4):
            for h in range(2):
                b = O(t, 2*ks + h)
                for k in range(4): us.append(I(f'v_mul_f32 v{b+k}, v{b+k}, v{vRL+t}'))
                for k in range(2): us.append(I(f'v_cvt_pk_bf16_f32 v{self.own(ks, t) + 2*h + k}, v{b+2*k}, v{b+2*k+1}'))
            f = ks*5 + t
            adr, off = (vEX1, f*1024) if f < 16 else (vEX2, (f-16)*1024)
            us.append(I(f'ds_write_b128 v{adr}, {vr(self.own(ks, t))} offset:{off}', tag='exw'))
        return us
    def own(self, ks, t):
        return self.ownmap[(ks, t)]
    def af_units(self, j):
        us = []
        for ks in range(4):
            for nt in range(4):
                f = j*16 + ks*4 + nt
                d = aAF + (f % 6)*4
                u = []
                for h in range(2):
                    u += I(f'ds_read_b64_tr_b16 {ar(d + 2*h, 2)}, v{vOEs if nt % 2 == 0 else vOOs} offset:{ks*4096 + h*2048 + (nt >> 1)*512}')
                us.append(u)
        us[0] = I(f'v_add_u32 v{vOEs}, {self.WOSLOT[j]*SLOT}, v{vOE}\nv_xor_b32 v{vOOs}, 32, v{vOEs}') + us[0]
        return us
    def acc(self, p, t, nt): return (p % 2)*80 + (t*4 + nt)*4
    def store_units(self, p):
        us = []
        pol = (' ' + self.c.stpol) if self.c.stpol else ''
        for t in range(5):
            for m in range(2):
                b = self.acc(p, t, 2*m)
                for k in range(4): us.append(I(f'v_cvt_pk_bf16_f32 v{b+k}, v{b+2*k}, v{b+2*k+1}'))
                us.append(I(f's_add_u32 {sT1}, {sPW}, {p*10240 + (t*2+m)*1024}') +
                          I(f'buffer_store_dwordx4 {vr(b)}, v{vL16}, {SWS}, {sT1} offen{pol}', tag='st'))
        return us
    def tail(self):
        e = self.e
        regs = list(range(160, 200, 4)) + list(range(220, 240, 4)) + list(range(200, 220, 4))
        order = [(ks, t) for t in range(5) for ks in range(4)]
        self.ownmap = dict(zip(order, regs))
        L = f'v{vLANE}'
        self.stamp('o')
        e('s_barrier')
        vu = self.v_reads_units(15, 0)
        for u in vu: e(u)
        e(f'''
        v_lshlrev_b32 v{vL16}, 4, {L}
        s_lshl_b32 {sT1}, {sW}, 14
        s_add_u32 {sT1}, {sT1}, 98304
        v_add_u32 v{vEX1}, {sT1}, v{vL16}
        v_xor_b32 v{vEXR1}, 0x4000, v{vEX1}
        s_lshl_b32 {sT1}, {sW}, 12
        s_add_u32 {sT1}, {sT1}, 16384
        v_add_u32 v{vEX2}, {sT1}, v{vL16}
        v_xor_b32 v{vEXR2}, 0x1000, v{vEX2}
        ''')
        main = self.pv_mfmas(False, touter=True)
        items = []
        for t in range(3): items += spread(self.norm_units(t), 5 + 8*t + 8, 5 + 8*t + 15)
        e(place(main, items))
        for t in (3, 4):
            for u in self.norm_units(t): e(u)
        self.stamp('main'); self.stamp('o')
        e(waittag('wo0')); e('s_waitcnt lgkmcnt(0)\ns_barrier')
        self.stamp('o')
        PD = 4
        af = []
        for j in range(8): af += [(j, k, u) for k, u in enumerate(self.af_units(j))]
        for (_, _, u) in af[:PD]: e(u)
        nxt = PD
        exr = []
        for f in range(20):
            adr, off = (vEXR1, f*1024) if f < 16 else (vEXR2, (f-16)*1024)
            exr.append(I(f'ds_read_b128 {ar(aPART + 4*f)}, v{adr} offset:{off}', tag='exr'))
        for j in range(8):
            p = j // 2; sub = j % 2
            main = []; items = []
            for ks in range(4):
                for nt in range(4):
                    f = j*16 + ks*4 + nt
                    for t in range(5):
                        B = vr(self.own(ks, t)) if sub == 0 else ar(aPART + (ks*5+t)*4)
                        c = '0' if (sub == 0 and ks == 0) else vr(self.acc(p, t, nt))
                        main += I(f'v_mfma_f32_16x16x32_bf16 {vr(self.acc(p, t, nt))}, {ar(aAF + (f % 6)*4)}, {B}, {c}')
                    if nxt < len(af):
                        jj, kk, u = af[nxt]; nxt += 1
                        pre = []
                        if kk == 0:
                            pre = waittag(f'wo{jj}') + I('s_barrier')
                        items.append(((ks*4+nt)*5, pre + u))
                        if kk == 0 and jj in (2, 3, 4):
                            d = self.wo_units(jj + 3)
                            self.pending = d
            if j == 0:
                items += spread(exr, 0, 24)
                items.append((30, waittag('exr') + I('s_barrier')))
                items += spread(self.wo_units(2) + self.wo_units(3), 31, 58)
            if j == 1: items += spread(self.wo_units(4), 2, 40)
            if j in (2, 3, 4): items += spread(self.wo_units(j + 3), 0, 12)
            if sub == 0 and p > 0: items += spread(self.store_units(p - 1), 13, 58)
            e(place(main, items))
            self.stamp('o')
        for u in self.store_units(3): e(u)
    def fold(self, prog):
        import re
        idx = {x.text: k for k, x in enumerate(prog) if x.kind == 'label'}
        its = [i for i in range(16) if f'L_loopmark{i}:' in idx]
        norm = lambda x: re.sub(r'(L_stub|L_ret)\d+', r'\1', x.text)
        body = {i: [norm(x) for x in prog[idx[f'L_loopmark{i}:'] + 1: idx[f'L_loopend{i}:']]] for i in its}
        last = its[-1]
        first = last
        while first - 1 in body and body[first - 1] == body[last]: first -= 1
        print('loop folds iterations', first, '..', last, 'body instrs', len(body[last]), file=sys.stderr)
        for i in range(first + 1, last + 1): self.stubs.remove(i)
        a = idx[f'L_loopmark{first}:']; b = idx[f'L_loopend{first}:']; c = idx[f'L_loopend{last}:']
        out = prog[:a] + I(f's_mov_b32 {sIT}, {last - first + 1}') + prog[a:b] + \
              I(f's_sub_u32 {sIT}, {sIT}, 1\ns_cmp_lg_u32 {sIT}, 0\ns_cbranch_scc1 L_loopmark{first}') + prog[c + 1:]
        return out
    def build(self):
        self.prologue(); self.q_phase(); self.q_to_s0(); self.stamp('main'); self.stamp('q'); self.stamp('a')
        for i in range(16):
            self.iteration(i)
            if i in (1, 9, 12): self.stamp('main')
            if not (self.c.loop and 2 <= i < 9): self.stamp('a')
        self.tail()
        e = self.e
        if self.c.stamps:
            e('s_waitcnt vmcnt(0)'); self.stamp()
            e(f'''s_mov_b64 s[24:25], s[56:57]
            s_mov_b32 s26, 0x10000000
            s_mul_i32 {sT1}, s2, {self.nst*8}
            s_add_u32 {sT1}, {sT1}, {STAMP_OFF}
            v_mov_b32 v2, {sT1}
            v_cmp_eq_u32 vcc, 0, v255
            s_and_saveexec_b64 s[58:59], vcc
            s_cbranch_execz L_end''')
            for k in range(self.nst):
                e(f'v_mov_b32 v{4+2*k}, s{STAMP0+2*k}\nv_mov_b32 v{5+2*k}, s{STAMP0+2*k+1}\nbuffer_store_dwordx2 v[{4+2*k}:{5+2*k}], v2, {SWS}, 0 offen offset:{8*k}')
        e('L_end:\ns_endpgm')
        if self.c.nomem:
            def drop(x):
                if x.kind not in ('dma', 'vld', 'vst'): return False
                t = x.text
                if 'buffer_load_dword a' in t: return 'p' in self.c.nomem
                if SX in t or SWQ in t: return 'q' in self.c.nomem
                if SK in t or SV in t: return 'k' in self.c.nomem
                if SWO in t: return 'o' in self.c.nomem
                if x.tag == 'st': return 's' in self.c.nomem
                return False
            self.p = [x for x in self.p if not drop(x)]
        prog = finalize(self.p)
        if self.c.loop: prog = self.fold(prog)
        for i in self.stubs: prog += I(f'L_stub{i}:\ns_call_b64 {sRET}, L_rare\ns_branch L_ret{i}')
        prog += finalize(self.rare())
        prog += I('L_codeend:')
        return prog

def reduce_kernel(cfg):
    pol = (' ' + cfg.rdpol) if cfg.rdpol else ''
    p = I(f'''
    s_cmp_ge_u32 s2, 640
    s_cbranch_scc1 L_rend
    s_load_dwordx2 s[4:5], s[0:1], 96
    s_load_dwordx2 s[8:9], s[0:1], 80
    v_lshrrev_b32 v1, 6, v0
    v_and_b32 v2, 63, v0
    v_readfirstlane_b32 s3, v1
    v_lshlrev_b32 v3, 4, v2
    s_mul_i32 s12, s2, 1639
    s_lshr_b32 s12, s12, 16          ; grp
    s_mul_i32 s13, s12, 40
    s_sub_u32 s13, s2, s13           ; rem
    s_lshl_b32 s13, s13, 2
    s_add_u32 s13, s13, s3           ; piece 0..159
    s_mul_i32 s16, s12, {16*PART_BYTES}
    s_lshl_b32 s17, s13, 10
    s_add_u32 s16, s16, s17
    s_mov_b32 s6, {256*PART_BYTES}
    s_mov_b32 s7, 0x20000
    s_mov_b32 s10, {8*160*1024*2}
    s_mov_b32 s11, 0x20000
    ''')
    for i in range(16):
        p += I(f'buffer_load_dwordx4 v[{8+4*i}:{11+4*i}], v3, s[4:7], s16 offen{pol}')
        if i < 15: p += I(f's_add_u32 s16, s16, {PART_BYTES}')
    p += I(f'''
    s_mul_i32 s14, s13, 1639
    s_lshr_b32 s14, s14, 16          ; w
    s_mul_i32 s15, s14, 40
    s_sub_u32 s15, s13, s15          ; 0..39
    s_mul_i32 s18, s15, 6554
    s_lshr_b32 s18, s18, 16          ; pass
    s_mul_i32 s19, s18, 10
    s_sub_u32 s19, s15, s19          ; idx
    s_lshr_b32 s20, s19, 1           ; t
    s_and_b32 s21, s19, 1            ; m
    s_and_b32 s22, s12, 7            ; b
    s_lshr_b32 s23, s12, 3           ; branch
    s_mul_i32 s24, s22, 160
    s_lshr_b32 s25, s14, 1
    s_mul_i32 s25, s25, 80
    s_add_u32 s24, s24, s25
    s_lshl_b32 s25, s20, 4
    s_add_u32 s24, s24, s25
    s_lshl_b32 s24, s24, 11          ; row*2048
    s_lshl_b32 s25, s23, 10
    s_add_u32 s24, s24, s25
    s_and_b32 s25, s14, 1
    s_lshl_b32 s25, s25, 9
    s_add_u32 s24, s24, s25
    s_lshl_b32 s25, s18, 7
    s_add_u32 s24, s24, s25
    s_lshl_b32 s25, s21, 6
    s_add_u32 s24, s24, s25
    v_and_b32 v4, 15, v2
    v_lshlrev_b32 v4, 11, v4
    v_lshrrev_b32 v5, 4, v2
    v_lshl_add_u32 v4, v5, 3, v4
    ''')
    for i in range(16):
        for j in range(4):
            r = 8 + 4*i + j
            if i == 0: p += I(f'v_lshlrev_b32 v{80+2*j}, 16, v{r}\nv_and_b32 v{81+2*j}, 0xffff0000, v{r}')
            else: p += I(f'v_lshlrev_b32 v6, 16, v{r}\nv_and_b32 v7, 0xffff0000, v{r}\nv_add_f32 v{80+2*j}, v{80+2*j}, v6\nv_add_f32 v{81+2*j}, v{81+2*j}, v7')
    for j in range(4): p += I(f'v_cvt_pk_bf16_f32 v{88+j}, v{80+2*j}, v{81+2*j}')
    p += I('''buffer_store_dwordx2 v[88:89], v4, s[8:11], s24 offen
    buffer_store_dwordx2 v[90:91], v4, s[8:11], s24 offen offset:32
    L_rend:
    s_endpgm''')
    return finalize(p)

def generate(cfg, path):
    g = Gen(cfg)
    if cfg.stamps: g.e('v_mov_b32 v255, v0')
    main = g.build()
    red = reduce_kernel(cfg)
    s = make_file([(KN, 256, 256, 163840), ('reduce_heads_kernel', 640, 256, 0)],
                  [(KN, text_of(main), 512, 102, 256), ('reduce_heads_kernel', text_of(red), 96, 32, 96)])
    open(path, 'w').write(s)
    open(path[:-2] + '.nst', 'w').write(str(g.nst))
    return g.nst, main

if __name__ == '__main__':
    cfg = Cfg()
    out = sys.argv[1]
    for kv in sys.argv[2:]:
        k, v = kv.split('=')
        cur = getattr(cfg, k)
        setattr(cfg, k, type(cur)(int(v)) if isinstance(cur, (bool, int)) and not isinstance(cur, float) else type(cur)(v.replace('+', ' ')))
    nst, main = generate(cfg, out)
    from collections import Counter
    c = Counter(i.kind for i in main)
    print(out, 'stamps', nst, dict(c))
```

```python
import sys, math, struct, re
from asmlib import *
from gen_common import make_file, KN

class Cfg:
    kvpol = 'nt'; wpol = ''; stpol = 'sc1'; rdpol = ''; pfpol = ''
    stamps = False; stset = 'main'; clk = 0
    codepf = 1
    kv_pro = 4
    kv_end = 13
    l2pf = 1; pfit = 11; l2pfq = 0
    nstg = 3
    late = 1
    early5 = 1
    rot = 2
    vsp = 4
    kveven = 1
    thr = 8.0
    loop = 1
    nomem = ''
    verbose = 0
    normlast = 140
    lend = 10
    dlo = 24
    dhi = 80
STAMP_OFF = 0x8000000
PART_BYTES = 163840
def f32(x): return '0x%08x' % struct.unpack('<I', struct.pack('<f', x))[0]

SX, SWQ, SK, SV, SWO, SWS = 's[4:7]', 's[8:11]', 's[12:15]', 's[16:19]', 's[20:23]', 's[24:27]'
sW, sHH, sQH = 's3', 's28', 's29'
sKVOFF, sKVLDS, sWQOFF, sXOFF, sXLDS, sWO0, sWO1, sWOLDS, sPW = 's30', 's31', 's32', 's33', 's34', 's35', 's36', 's37', 's38'
sC, sT = 's40', 's41'
sT0, sT1, sT2, sT3 = 's42', 's43', 's44', 's45'
sRET = 's[60:61]'
sRB, sDB, sKO, sVO, sIT = 's46', 's47', 's52', 's53', 's50'
sB, sHP, sH0 = 's48', 's49', 's51'
sWQC, sXC, sWQB, sXB, sOC, sOB, sPC = 's88', 's89', 's90', 's91', 's92', 's93', 's94'
STAMP0 = 62
def O(t, dt): return (t * 8 + dt) * 4
S0 = 160; P0 = 200; NM4 = 220
def Sreg(t, kt): return S0 + (t * 2 + kt) * 4
def Preg(t): return P0 + 4 * t
vMX0, vMX1, vTA, vTB = 240, 241, 242, 243
vK, vVE, vVO, aK, aVE = 244, 245, 246, 247, 248
vKVA, vKVB, vLANE, vWOV, vOE = 249, 250, 251, 252, 253
vWQA, vWQB, vX0, vX1 = 200, 201, 202, 203
vQE = [204, 205, 206]; vQO = [207, 208, 209]; vXR = [210, 211]
vWA = [212, 213]
vWA1 = 254
vRL = 240
vOEs, vOOs = 245, 246
vEX1, vEX2, vEXR1, vEXR2, vL16 = 247, 248, 249, 250, 254
aVF, aAF, aKF, aL, aONE, aQ = 0, 80, 104, 136, 156, 160
aPART = 0; aA0 = 160
def Qf(ks, t): return aQ + (t * 4 + ks) * 4
def vr(b, n=4): return f'v[{b}:{b+n-1}]'
def ar(b, n=4): return f'a[{b}:{b+n-1}]'
SLOT = 32768
WQBUF = [147456, 65536, 102400]
XBUF = [81920, 126976]
WOSLOT = [1, 2, 1, 3, 4, 0, 2, 1]
MF = 'v_mfma_f32_16x16x32_bf16'

def FS(units, lo=-1, hi=10**6, step=None):
    return [F(u, lo if step is None else int(lo + k * step), hi) for k, u in enumerate(units)]

class Gen:
    def __init__(self, cfg):
        self.c = cfg; self.p = []; self.nst = 0; self.stubs = []; self.log = []
    def e(self, x, tag=None):
        self.p += I(x, tag) if isinstance(x, str) else x
    def stamp_i(self, grp='all'):
        if self.c.stamps and grp in ('all', self.c.stset):
            self.nst += 1
            return I(f's_mem{"" if self.c.clk else "real"}time s[62:63]\ns_waitcnt lgkmcnt(0)\nv_writelane_b32 v255, s62, {self.nst - 1}')
        return []
    def stamp(self, *grps):
        for g in grps or ('all',): self.e(self.stamp_i(g))
    def sch(self, name, main, streams, **kw):
        v = []
        self.e(sched(main, streams, verbose=v, **kw))
        self.log.append((name,) + v[0])
    @staticmethod
    def pol(p): return (' ' + p) if p else ''
    def kv_dma(self, srd, tile, lds, tag):
        us = []
        for k in range(4):
            u = I(f's_add_u32 m0, {sKVLDS}, {lds}\ns_add_u32 {sT2}, {sKVOFF}, {tile*8192}')
            u += I(f'buffer_load_dwordx4 v{vKVA if k % 2 == 0 else vKVB}, {srd}, {sT2} offen offset:{k*1024}{self.pol(self.c.kvpol)} lds', tag=tag)
            us.append(u)
        return us
    def kv_stage(self, st):
        b = (st % 5) * SLOT
        return (self.kv_dma(SK, st + 1, b, f'kv{st}') if st < 15 else []) + self.kv_dma(SV, st, b + 16384, f'kv{st}')
    def kv_stage_dyn(self, st):
        us = []
        for part in range(2):
            for k in range(4):
                u = I(f's_add_u32 m0, {sDB}, {part*16384}') if k == 0 else []
                if k == 0: us.append(u); u = []
                u += I(f'buffer_load_dwordx4 v{vKVA if k % 2 == 0 else vKVB}, {SK if part == 0 else SV}, {sKO if part == 0 else sVO} offen offset:{k*1024}{self.pol(self.c.kvpol)} lds', tag=f'kv{st}')
                us.append(u)
        return us
    def stg(self, st, part, k):
        if st >= 6: return ar(32 + ((st - 6)*8 + part*4 + k)*4)
        return ar(160 + ((st - 2)*8 + part*4 + k)*4)
    def kv_reg(self, st, parts=(0, 1)):
        us = []
        for part in parts:
            srd, tile = (SK, st + 1) if part == 0 else (SV, st)
            for k in range(4):
                us.append(I(f's_add_u32 {sT2}, {sKVOFF}, {tile*8192}') +
                          I(f'buffer_load_dwordx4 {self.stg(st, part, k)}, v{vKVA if k % 2 == 0 else vKVB}, {srd}, {sT2} offen offset:{k*1024}{self.pol(self.c.kvpol)}'))
        return us
    def kv_drain(self, st, parts=(0, 1)):
        us = []
        for part in parts:
            for k in range(4):
                adr, off = {2: (vWA[0], 0), 3: (vWA[0], SLOT), 4: (vWA[1], 0), 6: (vWA1, 0), 7: (vWA1, SLOT)}[st]
                off += part*16384
                us.append(I(f'ds_write_b128 v{adr}, {self.stg(st, part, k)} offset:{off + k*1024}', tag=f'kv{st}'))
        return us
    def wq_next(self, j):
        if self.c.rot == 2 and j < 2: return I(f's_add_u32 {sWQB}, {sWQOFF}, {j*262144}')
        wrap = f's_cmp_eq_u32 {sWQC}, 0x400000\ns_cselect_b32 {sWQC}, 0x80000, {sWQC}' if self.c.rot == 2 else f's_and_b32 {sWQC}, {sWQC}, 0x3fffff'
        return I(f's_add_u32 {sWQB}, {sWQC}, {sWQOFF}\ns_add_u32 {sWQC}, {sWQC}, 262144\n{wrap}')
    def x_next(self, J):
        if self.c.rot == 2 and J < 1: return I(f's_add_u32 {sXB}, {sXOFF}, 0')
        wrap = f's_cmp_eq_u32 {sXC}, 1024\ns_cselect_b32 {sXC}, 128, {sXC}' if self.c.rot == 2 else f's_and_b32 {sXC}, {sXC}, 1023'
        return I(f's_add_u32 {sXB}, {sXC}, {sXOFF}\ns_add_u32 {sXC}, {sXC}, 128\n{wrap}')
    def wo_next(self, j):
        u = I(f's_add_u32 {sOB}, {sOC}, {sWO0 if j % 2 == 0 else sWO1}')
        if j % 2 == 1: u += I(f's_add_u32 {sOC}, {sOC}, 128\ns_and_b32 {sOC}, {sOC}, 511')
        return u
    def wq_units(self, j):
        us = []
        for k in range(4):
            u = I(f's_add_u32 m0, {sKVLDS}, {WQBUF[j % 3]}\ns_add_u32 {sT0}, {sWQB}, {k*32768 - k*1024}')
            u += I(f'buffer_load_dwordx4 v{vWQA if k < 2 else vWQB}, {SWQ}, {sT0} offen offset:{k*1024}{self.pol(self.c.wpol)} lds', tag=f'wq{j}')
            us.append(u)
        if j == 0: us[0] = self.wq_next(0) + us[0]
        if j < 15: us[-1] += self.wq_next(j + 1)
        return us
    def x_units(self, J):
        us = []
        for k in range(5):
            im = (k % 4) * 1024
            u = I(f's_add_u32 m0, {sXLDS}, {XBUF[J % 2] + (k // 4)*4096}\ns_add_u32 {sT0}, {sXB}, {k*8192 - im}')
            u += I(f'buffer_load_dwordx4 v{vX0 if k % 2 == 0 else vX1}, {SX}, {sT0} offen offset:{im}{self.pol(self.c.wpol)} lds', tag=f'x{J}')
            us.append(u)
        if J == 0: us[0] = self.x_next(0) + us[0]
        if J < 7: us[-1] += self.x_next(J + 1)
        return us
    def wo_units(self, j):
        us = []
        for k in range(8):
            im = (k % 4) * 1024
            u = I(f's_add_u32 m0, {sWOLDS}, {WOSLOT[j]*SLOT + (k // 4)*4096}\ns_add_u32 {sT0}, {sOB}, {k*8192 - im}')
            u += I(f'buffer_load_dwordx4 v{vWOV}, {SWO}, {sT0} offen offset:{im}{self.pol(self.c.wpol)} lds', tag=f'wo{j}')
            us.append(u)
        if j == 0: us[0] = self.wo_next(0) + us[0]
        if j < 7: us[-1] += self.wo_next(j + 1)
        return us
    def l2pf_q(self):
        pol = self.pol(self.c.pfpol); L = f'v{vLANE}'
        return [I(f'v_lshrrev_b32 v214, 3, {L}\nv_and_b32 v215, 7, {L}'),
                I(f'v_lshlrev_b32 v214, 13, v214\nv_lshl_add_u32 v214, v215, 6, v214'),
                I(f's_lshl_b32 {sT3}, {sB}, 19\ns_lshl_b32 {sT1}, {sW}, 17'),
                I(f's_add_u32 {sT3}, {sT3}, {sT1}\ns_lshl_b32 {sT1}, {sH0}, 8'),
                I(f's_add_u32 {sT3}, {sT3}, {sT1}\nbuffer_load_dword a138, v214, {SWQ}, {sT3} offen{pol}'),
                I(f's_add_u32 {sT3}, {sT3}, 65536\nbuffer_load_dword a139, v214, {SWQ}, {sT3} offen{pol}'),
                I(f'v_lshlrev_b32 v215, 6, {L}\ns_mul_i32 {sT3}, {sHP}, 40960'),
                I(f's_mul_i32 {sT1}, {sW}, 10240\ns_add_u32 {sT3}, {sT3}, {sT1}'),
                I(f'buffer_load_dword a140, v215, {SX}, {sT3} offen{pol}'),
                I(f's_add_u32 {sT3}, {sT3}, 4096\nbuffer_load_dword a141, v215, {SX}, {sT3} offen{pol}'),
                I(f's_add_u32 {sT3}, {sT3}, 4096\nbuffer_load_dword a142, v215, {SX}, {sT3} offen{pol}')]
    def l2pf_wo(self):
        pol = self.pol(self.c.pfpol)
        return [I(f'v_lshlrev_b32 v{vTA}, 6, v{vLANE}\ns_lshl_b32 {sT3}, {sH0}, 17'),
                I(f's_lshl_b32 {sT1}, {sB}, 15\ns_add_u32 {sT3}, {sT3}, {sT1}'),
                I(f's_lshl_b32 {sT1}, {sW}, 13\ns_add_u32 {sT3}, {sT3}, {sT1}'),
                I(f'buffer_load_dword a240, v{vTA}, {SWO}, {sT3} offen{pol}'),
                I(f's_add_u32 {sT3}, {sT3}, 4096\nbuffer_load_dword a241, v{vTA}, {SWO}, {sT3} offen{pol}')]
    def dma_stream(self, units, lo, hi, slack=4):
        fs = []; n = len(units); prev = {}
        for k, u in enumerate(units):
            l = lo + (k * (hi - lo + 1)) // n
            after = False
            for x in u:
                c = 1
                if x.op == 's_cselect_b32':
                    fs[-1].ins.append(x); fs[-1].cost += 1; continue
                if x.kind == 'salu' and x.op == 's_add_u32' and len(x.writes) == 1:
                    w = next(iter(x.writes))
                    if prev.get(w) == x.text and w not in x.reads: c = 0
                    prev[w] = x.text
                if x.kind != 'salu': fs.append(F([x], l, l + slack, cost=c)); after = True
                elif after: fs.append(F([x], l, 10**6, cost=c))
                else: fs.append(F([x], l - 3, l, cost=c))
        return fs
    def rot_setup(self):
        if self.c.rot != 2: return f's_and_b32 {sXC}, {sXC}, {7 if self.c.rot else 0}'
        return f's_cmp_ge_u32 {sXC}, 7\ns_cselect_b32 {sWQC}, 7, 0\ns_sub_u32 {sXC}, {sXC}, {sWQC}\ns_add_u32 {sXC}, {sXC}, 1'
    def prologue(self):
        e = self.e; L = f'v{vLANE}'
        e(f'''
        s_cmp_ge_u32 s2, 256
        s_cbranch_scc1 L_end
        s_load_dwordx16 s[64:79], s[0:1], 0
        s_load_dwordx4 s[80:83], s[0:1], 64
        s_load_dwordx2 s[24:25], s[0:1], 96
        v_lshrrev_b32 v1, 6, v0
        v_and_b32 {L}, 63, v0
        v_readfirstlane_b32 {sW}, v1
        s_and_b32 s46, s2, 7
        s_lshr_b32 s47, s2, 3
        s_lshr_b32 {sB}, s47, 2
        s_and_b32 {sHP}, s47, 3
        s_and_b32 s50, s46, 3
        s_lshl_b32 s50, s50, 2
        s_add_u32 s50, s50, {sHP}
        s_lshl_b32 {sH0}, s50, 1
        s_lshr_b32 s52, s46, 2            ; branch
        s_and_b32 {sHH}, {sW}, 1
        s_lshr_b32 {sQH}, {sW}, 1
        v_and_b32 v2, 3, {L}
        v_lshlrev_b32 v2, 4, v2           ; cc*16
        v_lshrrev_b32 v3, 4, {L}          ; g
        v_bfe_u32 v4, {L}, 2, 2           ; r
        v_lshl_add_u32 v5, v3, 6, v2
        v_lshl_add_u32 v{vKVA}, v4, 8, v5
        v_xor_b32 v{vKVB}, 32, v{vKVA}
        v_lshl_add_u32 v{vWQA}, v4, 13, v5
        v_xor_b32 v{vWQB}, 32, v{vWQA}
        v_lshrrev_b32 v6, 5, {L}
        v_bfe_u32 v7, {L}, 2, 3
        v_lshl_add_u32 v8, v6, 6, v2
        v_lshl_add_u32 v8, v7, 10, v8
        s_lshl_b32 {sT0}, {sHH}, 5
        v_xor_b32 v{vX0}, {sT0}, v8
        v_xor_b32 v{vX1}, 32, v{vX0}
        s_lshl_b32 {sT0}, {sQH}, 12
        s_lshl_b32 {sKVLDS}, {sHH}, 13
        s_add_u32 {sKVLDS}, {sKVLDS}, {sT0}
        s_lshl_b32 {sKVOFF}, {sHH}, 17
        s_add_u32 {sKVOFF}, {sKVOFF}, {sT0}
        s_add_u32 {sT1}, {sH0}, {sHH}
        s_lshl_b32 {sWQOFF}, {sT1}, 8
        s_lshl_b32 {sT0}, {sQH}, 17
        s_add_u32 {sWQOFF}, {sWQOFF}, {sT0}
        s_mul_i32 {sXOFF}, {sW}, {5*8192}
        s_mul_i32 {sXLDS}, {sW}, {5*1024}
        s_lshl_b32 {sXC}, {sHP}, 1
        s_add_u32 {sXC}, {sXC}, {sB}
        {self.rot_setup()}
        s_lshl_b32 {sWQC}, {sXC}, 19
        s_lshl_b32 {sXC}, {sXC}, 7
        s_mul_i32 s53, {sB}, 163840
        s_lshl_b32 s54, {sB}, 5
        s_add_u32 s54, s54, {sH0}
        s_lshl_b32 s54, s54, 17
        s_mov_b32 s6, 163840
        s_mov_b32 s7, 0x20000
        s_mov_b32 s10, 0x400000
        s_mov_b32 s11, 0x20000
        s_mov_b32 s14, 0x40000
        s_mov_b32 s15, 0x20000
        s_mov_b32 s18, 0x40000
        s_mov_b32 s19, 0x20000
        s_cmp_eq_u32 s52, 0
        s_cselect_b64 s[4:5], s[64:65], s[74:75]
        s_cselect_b64 s[8:9], s[70:71], s[80:81]
        s_cselect_b64 s[12:13], s[66:67], s[76:77]
        s_cselect_b64 s[16:17], s[68:69], s[78:79]
        s_cselect_b64 s[20:21], s[72:73], s[82:83]
        s_add_u32 s4, s4, s53
        s_addc_u32 s5, s5, 0
        ''')
        self.stamp()
        for u in self.x_units(0) + self.wq_units(0) + self.wq_units(1): e(u)
        e(f'''
        s_add_u32 s12, s12, s54
        s_addc_u32 s13, s13, 0
        s_add_u32 s16, s16, s54
        s_addc_u32 s17, s17, 0
        ''')
        self.kvq = self.kv_dma(SK, 0, SLOT + 16384, 'k0') + self.kv_stage(0) + self.kv_dma(SK, 2, SLOT, 'kv1')
        for st in (2, 3, 4)[:self.c.nstg]: self.kvq += self.kv_reg(st)
        for u in self.x_units(1) + self.wq_units(2): e(u)
        for _ in range(self.c.kv_pro): e(self.kvq.pop(0))
        if self.c.codepf:
            e(f'''s_getpc_b64 s[84:85]
            L_pc0:
            s_mov_b32 s86, L_codeend-L_pc0
            s_mov_b32 s87, 0x20000
            v_lshlrev_b32 v22, 7, v0
            buffer_load_dword a136, v22, s[84:87], 0 offen
            s_mov_b32 {sT0}, 32768
            buffer_load_dword a137, v22, s[84:87], {sT0} offen''')
        e(f'''
        s_lshl_b32 {sT0}, {sQH}, 16
        s_lshl_b32 {sT2}, {sHH}, 9
        s_add_u32 {sT0}, {sT0}, {sT2}
        s_lshl_b32 {sWO0}, {sT1}, 17
        s_add_u32 {sWO0}, {sWO0}, {sT0}
        s_xor_b32 {sWO1}, {sWO0}, 0x20000
        s_lshl_b32 {sWOLDS}, {sHH}, 14
        s_lshl_b32 {sT0}, {sQH}, 13
        s_add_u32 {sWOLDS}, {sWOLDS}, {sT0}
        s_mul_i32 {sPW}, {sW}, 40960
        s_and_b32 {sPC}, {sB}, {3 if self.c.rot else 0}
        s_lshl_b32 {sOC}, {sPC}, 7
        s_mul_i32 {sPC}, {sPC}, 10240
        s_mov_b32 {sC}, {f32(128 ** -0.5 * math.log2(math.e))}
        s_mov_b32 {sT}, {f32(self.c.thr)}
        s_lshl_b32 s55, s52, 3
        s_add_u32 s55, s55, {sB}
        s_lshl_b32 s55, s55, 4
        s_add_u32 s55, s55, s50
        s_mul_i32 s55, s55, {PART_BYTES}
        s_mov_b32 s22, 0x400000
        s_mov_b32 s23, 0x20000
        s_mov_b64 s[56:57], s[24:25]
        s_add_u32 s24, s24, s55
        s_addc_u32 s25, s25, 0
        s_mov_b32 s26, {PART_BYTES}
        s_mov_b32 s27, 0x20000
        v_and_b32 v9, 1, v3
        v_lshlrev_b32 v9, 5, v9           ; 32*(g&1)
        v_xor_b32 v{vWOV}, v9, v8
        v_and_b32 v10, 15, {L}
        v_and_b32 v11, 3, {L}
        v_lshrrev_b32 v12, 2, v10
        v_and_b32 v13, 1, v12
        v_lshlrev_b32 v13, 5, v13
        v_lshlrev_b32 v14, 4, v3
        v_xor_b32 v13, v13, v14
        v_lshl_add_u32 v13, v11, 6, v13
        v_lshl_add_u32 v13, v12, 10, v13
        s_lshl_b32 {sT1}, {sHH}, 13
        v_add_u32 v{aK}, {sT1}, v13
        v_lshl_add_u32 v15, v11, 3, v9
        v_lshl_add_u32 v15, v4, 6, v15
        v_lshl_add_u32 v16, v3, 10, v15
        v_add_u32 v{aVE}, {sT1}, v16
        v_lshl_add_u32 v16, v3, 11, v15
        v_add_u32 v16, {sT1}, v16
        v_add_u32 v{vQE[0]}, {WQBUF[0]}, v16
        v_add_u32 v{vQE[1]}, {WQBUF[1]}, v16
        v_add_u32 v{vQE[2]}, {WQBUF[2]}, v16
        v_xor_b32 v{vQO[0]}, 32, v{vQE[0]}
        v_xor_b32 v{vQO[1]}, 32, v{vQE[1]}
        v_xor_b32 v{vQO[2]}, 32, v{vQE[2]}
        v_lshrrev_b32 v17, 3, v10
        v_lshlrev_b32 v18, 5, v17
        v_xor_b32 v18, v18, v14
        v_and_b32 v19, 7, {L}
        v_lshl_add_u32 v18, v19, 6, v18
        v_lshl_add_u32 v18, v17, 10, v18
        s_mul_i32 {sT2}, {sQH}, 10240
        v_add_u32 v18, {sT2}, v18
        v_add_u32 v{vXR[0]}, {XBUF[0]}, v18
        v_add_u32 v{vXR[1]}, {XBUF[1]}, v18
        v_lshrrev_b32 v19, 1, v3
        v_lshl_add_u32 v20, v9, 3, v15
        v_lshl_add_u32 v20, v19, 10, v20
        s_lshl_b32 {sT2}, {sHH}, 14
        v_add_u32 v{vOE}, {sT2}, v20
        v_lshlrev_b32 v{vWA1}, 4, {L}
        v_add_u32 v{vWA1}, {sKVLDS}, v{vWA1}
        v_add_u32 v{vWA[0]}, 65536, v{vWA1}
        v_add_u32 v{vWA[1]}, 131072, v{vWA1}
        v_add_u32 v{vWA1}, {SLOT}, v{vWA1}
        v_mov_b32 v21, 0x3f803f80
        v_accvgpr_write_b32 a{aONE}, v21
        v_accvgpr_write_b32 a{aONE+1}, v21
        v_accvgpr_write_b32 a{aONE+2}, v21
        v_accvgpr_write_b32 a{aONE+3}, v21
        ''')
    def q_reads(self, j):
        st = (j & 1) * 52
        xr = [I(f'ds_read_b128 {ar(st + 32 + 4*t)}, v{vXR[(j >> 1) & 1]} offset:{t*2048 + (j & 1)*512}') for t in range(5)]
        aa = []
        for dt in range(8):
            for u in range(2):
                adr = (vQE if dt % 2 == 0 else vQO)[j % 3]
                aa.append(I(f'ds_read_b64_tr_b16 {ar(st + 4*dt + 2*u, 2)}, v{adr} offset:{u*1024 + (dt >> 1)*256}'))
        return aa[:2] + xr + aa[2:]
    def k_reads(self, base, tag='kr'):
        us = [I(f'v_add_u32 v{vK}, {base}, v{aK}')]
        for ks in range(4):
            for kt in range(2):
                us.append(I(f'ds_read_b128 {ar(aKF + (kt*4+ks)*4)}, v{vK} offset:{kt*4096 + ks*256}', tag=tag))
        return us
    def v_reads(self, base, dst=aVF, tag='vr'):
        pre = [I(f'v_add_u32 v{vVE}, {base}, v{aVE}'), I(f'v_xor_b32 v{vVO}, 32, v{vVE}')]
        us = []
        for dt in range(8):
            for h in range(2):
                us.append((dt, I(f'ds_read_b64_tr_b16 {ar(dst + 4*dt + 2*h, 2)}, v{vVE if dt % 2 == 0 else vVO} offset:{16384 + h*4096 + (dt >> 1)*256}', tag=tag)))
        return pre, us
    def q_mfmas(self, j, touter=False):
        st = (j & 1) * 52; m = []
        order = [(t, dt) for t in range(5) for dt in range(8)] if touter else [(t, dt) for dt in range(8) for t in range(5)]
        for t, dt in order:
            m += I(f'{MF} {vr(O(t, dt))}, {ar(st + 4*dt)}, {ar(st + 32 + 4*t)}, {vr(O(t, dt)) if j else "0"}')
        return m
    def s_mfmas(self, zero=False):
        m = []
        for t in range(5):
            for ks in range(4):
                for kt in range(2):
                    c = vr(Sreg(t, kt)) if ks else ('0' if zero else vr(NM4 + 4*t))
                    m += I(f'{MF} {vr(Sreg(t, kt))}, {ar(aKF + (kt*4+ks)*4)}, {ar(Qf(ks, t))}, {c}')
        m[0] = waittag('kr') + [m[0]]
        return m
    def pv_mfmas(self, first=False, vf=aVF, ones_first=True):
        ones = [I(f'{MF} {ar(aL + 4*t)}, {ar(aONE)}, {vr(Preg(t))}, {"0" if first else ar(aL + 4*t)}')[0] for t in range(5)]
        m = list(ones) if ones_first else []
        for t in range(5):
            if not ones_first: m.append(ones[t])
            for dt in range(8):
                m += I(f'{MF} {vr(O(t, dt))}, {ar(vf + 4*dt)}, {vr(Preg(t))}, {"0" if first else vr(O(t, dt))}')
        return m
    def q_convert(self, t):
        us = []
        for ks in range(4):
            x = O(t, 2*ks); y = x + 4
            for k in range(8): us.append(I(f'v_mul_f32 v{x+k}, {sC}, v{x+k}'))
        for ks in range(4):
            x = O(t, 2*ks); y = x + 4
            for s in (f'v{x}, v{x}, v{x+1}', f'v{y}, v{y}, v{y+1}', f'v{x+1}, v{x+2}, v{x+3}', f'v{y+1}, v{y+2}, v{y+3}'):
                us.append(I('v_cvt_pk_bf16_f32 ' + s))
        for op in ('32', '16'):
            for ks in range(4):
                x = O(t, 2*ks); y = x + 4
                for k in range(2):
                    u = I(f'v_permlane{op}_swap_b32 v{x+k}, v{y+k}'); u[0].cost = 2; us.append(u)
        for ks in range(4):
            x = O(t, 2*ks); y = x + 4
            for k, r in enumerate((x, x+1, y, y+1)): us.append(I(f'v_accvgpr_write_b32 a{Qf(ks, t)+k}, v{r}'))
        return us
    def exp_units(self, t):
        b = Sreg(t, 0)
        return [I(f'v_exp_f32 v{b+k}, v{b+k}') for k in range(8)], [I(f'v_cvt_pk_bf16_f32 v{Preg(t)+k}, v{b+2*k}, v{b+2*k+1}') for k in range(4)]
    def rowmax(self, m, c, b):
        return I(f'''v_max3_f32 v{m}, v{b}, v{b+1}, v{b+2}
        v_max3_f32 v{c}, v{b+3}, v{b+4}, v{b+5}
        v_max3_f32 v{m}, v{m}, v{b+6}, v{b+7}
        v_max_f32 v{m}, v{m}, v{c}
        v_mov_b32 v{c}, v{m}
        v_permlane32_swap_b32 v{m}, v{c}
        v_max_f32 v{m}, v{m}, v{c}
        v_mov_b32 v{c}, v{m}
        v_permlane16_swap_b32 v{m}, v{c}
        v_max_f32 v{m}, v{m}, v{c}''')
    def softmax_streams(self, i, ck, exp_dead, cvt_lo):
        mx = []
        for t in range(5):
            b = Sreg(t, 0)
            for k in range(4):
                m = vMX0 if k % 2 == 0 else vMX1
                if t == 0 and k < 2: mx.append(I(f'v_max_f32 v{m}, v{b+2*k}, v{b+2*k+1}'))
                else: mx.append(I(f'v_max3_f32 v{m}, v{b+2*k}, v{b+2*k+1}, v{m}'))
        mx.append(I(f'v_max_f32 v{vMX0}, v{vMX0}, v{vMX1}'))
        st = FS(mx + [I(f'v_cmp_lt_f32 vcc, {sT}, v{vMX0}')], -1, ck - 1)
        st.append(F(I(f's_cbranch_vccnz L_stub{i}\nL_ret{i}:'), ck, ck, cost=1))
        self.stubs.append(i)
        for t in range(5):
            ex, cv = self.exp_units(t)
            st += FS(ex, -1, exp_dead(t)) + FS(cv, cvt_lo(t), exp_dead(t))
        return st
    def q_phase(self):
        e = self.e
        e(waittag('x0', 'wq0')); e('s_barrier'); self.stamp('q')
        for u in self.q_reads(0): e(u)
        e(waittag('wq1')); e('s_waitcnt lgkmcnt(0)\ns_barrier')
        for j in range(15):
            d = []
            if j + 3 < 16: d += self.wq_units(j + 3)
            if j % 2 == 1 and (j - 1) // 2 + 2 < 8: d += self.x_units((j - 1) // 2 + 2)
            ke = self.c.kv_end
            if self.c.kveven:
                left = len([k for k in range(j, ke) if k % 2 == 0 or k >= 13])
                n = 0 if (j % 2 == 1 and j < 13) else (-(-len(self.kvq) // max(1, left)))
            else:
                n = -(-len(self.kvq) // max(1, ke - j)) if j < ke else len(self.kvq)
            d += [self.kvq.pop(0) for _ in range(min(n, len(self.kvq)))]
            ds = self.dma_stream(d, 1, min(39, self.c.vsp * len(d)), slack=1) if d else []
            streams = [FS(self.q_reads(j + 1), 0, 30), ds]
            if j == 0 and self.c.l2pfq: streams.append(FS(self.l2pf_q(), 22, 39))
            if j == 14 and self.c.nstg >= 1: streams.append(FS(self.kv_drain(2), 20, 39, step=2))
            if j == 13 and self.c.nstg < 1: streams.append(self.dma_stream(self.kv_stage(2), 4, 36))
            self.sch(f'q{j}', self.q_mfmas(j), streams)
            tags = []
            if j + 2 < 16:
                tags.append(f'wq{j+2}')
                if (j + 2) % 2 == 0: tags.append(f'x{(j+2)//2}')
            if j == 14: tags += ['k0', 'kv0']
            e(waittag(*tags)); e('s_waitcnt lgkmcnt(0)\ns_barrier'); self.stamp('q')
    def q_to_attn(self):
        main = self.q_mfmas(15, touter=True) + self.s_mfmas(zero=True) + self.s_mfmas()
        conv = []
        for t in range(5):
            cu = self.q_convert(t)
            conv += FS(cu, 8*t + 9, 39 + 8*t)
        drains = FS(self.kv_drain(3), 8, 24, step=2) if self.c.nstg >= 2 else []
        if self.c.nstg >= 3: drains += FS(self.kv_drain(4), 24, 40, step=2)
        for f in conv:
            w = [r for x in f.ins for r in x.writes if r[0] == 'a']
            if w and int(w[0][1:]) >= 192: f.lo = max(f.lo, 26 if int(w[0][1:]) < 224 else 42)
        init = []
        for t in range(5):
            b = Sreg(t, 0); lo = 40 + 8*t + 9; hi = 79 + 8*t
            u = [[x] for x in self.rowmax(vMX0, vMX1, b)]
            u += [I(f'v_sub_f32 v{NM4+4*t+k}, 0, v{vMX0}') for k in range(4)]
            u += [I(f'v_sub_f32 v{b+k}, v{b+k}, v{vMX0}') for k in range(8)]
            ex, cv = self.exp_units(t)
            init += FS(u + ex + cv, lo, hi)
        k0 = FS(self.k_reads(SLOT + 16384), -1, 12)
        k1 = self.k_reads(0)
        k1s = [F(k1[0], 60, 79)] + [F(u, 72 + k, 79) for k, u in enumerate(k1[1:])]
        pre, vu = self.v_reads(0)
        vs = FS(pre, 44, 70) + [F(u, 44, 84) for _, u in vu]
        d0 = (self.kv_stage(3) if self.c.nstg < 2 else []) + (self.kv_stage(4) if self.c.nstg < 3 else [])
        v1 = self.dma_stream(d0, 0, 40) if d0 else []
        if self.c.late and not d0: v1 += self.dma_stream(self.kv_reg(6, (0,)), 4, 40)
        v1 += [F(I('s_barrier'), 46, 50)] + self.dma_stream(self.kv_dma(SV, 1, SLOT + 16384, 'kv1'), 50, 64)
        if self.c.late: v1 += self.dma_stream(self.kv_reg(6, (1,) if not d0 else (0, 1)), 66, 86)
        if self.c.early5:
            v1 += [F(waittag('vr') + I('s_barrier'), 88, 90, cost=2)] + self.dma_stream(self.kv_stage(5), 92, 116)
        self.sch('q15..s1', main, [k0, drains, conv + init, k1s, vs, v1], pre_cap=9)
    def iteration(self, i):
        e = self.e
        L0 = 4 if self.c.late else 2
        dyn = self.c.loop and L0 <= i <= self.c.lend
        if dyn and i == L0:
            e(f's_mov_b32 {sRB}, {(L0 % 5)*SLOT}\ns_add_u32 {sDB}, {sKVLDS}, {((L0 - 1) % 5)*SLOT}\ns_add_u32 {sKO}, {sKVOFF}, {(L0 + 5)*8192}\ns_add_u32 {sVO}, {sKVOFF}, {(L0 + 4)*8192}')
        if dyn: e(f'L_loopmark{i}:')
        tags = [f'kv{i}', 'vr'] + (['wo0'] if i == 15 else [])
        if dyn: e('s_waitcnt vmcnt(24) lgkmcnt(0)')
        e(waittag(*tags)); e('s_barrier')
        if i == 15: return self.tail()
        if dyn: dma = self.kv_stage_dyn(i + 4)
        elif i == 1 and self.c.early5: dma = self.kv_reg(7) if self.c.late else []
        elif i in (2, 3) and self.c.late: dma = self.kv_drain(i + 4)
        elif i <= 11: dma = self.kv_stage(i + 4)
        elif i <= 13: dma = self.wo_units(i - 12)
        else: dma = []
        main = self.pv_mfmas(first=(i == 1)) + self.s_mfmas()
        base = sRB if dyn else (i % 5) * SLOT
        sm = self.softmax_streams(i, 11, lambda t: 44 + 8*t, lambda t: 12 + 8*t)
        ks = FS(self.k_reads(base), -1, 36)
        pre, vu = self.v_reads(base)
        vs = FS(pre, 20, 60) + [F(u, 37 + dt, 80) for dt, u in vu]
        streams = [sm, ks, vs]
        ds = self.dma_stream(dma, self.c.dlo, self.c.dhi) if dma else []
        if self.c.l2pf and i == self.c.pfit: ds += FS(self.l2pf_wo(), 77, 84)
        if dyn:
            ds += FS([I(x) for x in (f's_add_u32 {sDB}, {sRB}, {sKVLDS}', f's_add_u32 {sRB}, {sRB}, {SLOT}',
                      f's_cmp_eq_u32 {sRB}, {5*SLOT}\ns_cselect_b32 {sRB}, 0, {sRB}', f's_mov_b32 {sVO}, {sKO}', f's_add_u32 {sKO}, {sKO}, 8192')], 61, 84)
        streams.append(ds)
        self.sch(f'it{i}', main, streams)
        if dyn: e(f'L_loopend{i}:')
    def rare(self):
        p = I('L_rare:\ns_nop 7\ns_nop 1')
        for t in range(5):
            b = Sreg(t, 0)
            p += self.rowmax(vMX0, vMX1, b)
            p += I(f'v_max_f32 v{vMX0}, 0, v{vMX0}')
            for k in range(4): p += I(f'v_sub_f32 v{NM4+4*t+k}, v{NM4+4*t+k}, v{vMX0}')
            for k in range(8): p += I(f'v_sub_f32 v{b+k}, v{b+k}, v{vMX0}')
            p += I(f'v_sub_f32 v{vTA}, 0, v{vMX0}\nv_exp_f32 v{vTA}, v{vTA}')
            for k in range(32): p += I(f'v_mul_f32 v{O(t,0)+k}, v{O(t,0)+k}, v{vTA}')
            for k in range(4):
                p += I(f'v_accvgpr_read_b32 v{vTB}, a{aL+4*t+k}\nv_mul_f32 v{vTB}, v{vTB}, v{vTA}\nv_accvgpr_write_b32 a{aL+4*t+k}, v{vTB}')
            for k in range(4):
                r = Preg(t) + k
                p += I(f'''v_lshlrev_b32 v{vTB}, 16, v{r}
                v_and_b32 v{vMX1}, 0xffff0000, v{r}
                v_mul_f32 v{vTB}, v{vTB}, v{vTA}
                v_mul_f32 v{vMX1}, v{vMX1}, v{vTA}
                v_cvt_pk_bf16_f32 v{r}, v{vTB}, v{vMX1}''')
        p += I(f's_nop 1\ns_setpc_b64 {sRET}')
        return p
    def own(self, ks, t): return self.ownmap[(ks, t)]
    def acc(self, p, t, nt): return 32*t + 16*(p % 2) + 4*nt
    def norm_units(self, t):
        us = [I(f'v_accvgpr_read_b32 v{vRL+t}, a{aL+4*t}'), I(f'v_rcp_f32 v{vRL+t}, v{vRL+t}')]
        for ks in range(4):
            b = O(t, 2*ks)
            for k in range(8): us.append(I(f'v_mul_f32 v{b+k}, v{b+k}, v{vRL+t}'))
            for k in range(4): us.append(I(f'v_cvt_pk_bf16_f32 v{self.own(ks, t) + k}, v{b+2*k}, v{b+2*k+1}'))
            f = ks*5 + t
            adr, off = (vEX1, f*1024) if f < 16 else (vEX2, (f-16)*1024)
            us.append(I(f'ds_write_b128 v{adr}, {vr(self.own(ks, t))} offset:{off}', tag='exw'))
        return us
    def af_units(self, j, dst):
        us = [I(f'v_add_u32 v{vOEs}, {WOSLOT[j]*SLOT}, v{vOE}\nv_xor_b32 v{vOOs}, 32, v{vOEs}')]
        for ks in range(4):
            for nt in range(4):
                d = dst(ks*4 + nt)
                us.append([I(f'ds_read_b64_tr_b16 {ar(d + 2*h, 2)}, v{vOEs if nt % 2 == 0 else vOOs} offset:{ks*4096 + h*2048 + (nt >> 1)*512}', tag=f'af{j}')[0] for h in range(2)])
        return us
    def store_units(self, p):
        us = [I(f's_add_u32 {sT3}, {sPW}, {sPC}'), I(f's_add_u32 {sPC}, {sPC}, 10240'), I(f's_cmp_eq_u32 {sPC}, 40960\ns_cselect_b32 {sPC}, 0, {sPC}')]
        for t in range(5):
            for m in range(2):
                b = self.acc(p, t, 2*m)
                for k in range(4): us.append(I(f'v_cvt_pk_bf16_f32 v{b+k}, v{b+2*k}, v{b+2*k+1}'))
                us.append(I(f's_add_u32 {sT1}, {sT3}, {(t*2+m)*1024}') +
                          I(f'buffer_store_dwordx4 {vr(b)}, v{vL16}, {SWS}, {sT1} offen{self.pol(self.c.stpol)}', tag='st'))
        return us
    def tail(self):
        e = self.e; L = f'v{vLANE}'
        regs = {0: [220, 224, 228, 232], 1: [236, 160, 164, 168], 2: [172, 176, 180, 184], 3: [188, 192, 196, 200], 4: [204, 208, 212, 216]}
        self.ownmap = {(ks, t): regs[t][ks] for t in range(5) for ks in range(4)}
        o0 = []
        for t in range(5):
            for ks in range(4):
                for nt in range(4):
                    o0 += I(f'{MF} {vr(self.acc(0, t, nt))}, {ar(aA0 + (ks*4+nt)*4)}, {vr(self.own(ks, t))}, {vr(self.acc(0, t, nt)) if ks else "0"}')
        pv15 = self.pv_mfmas(vf=aKF, ones_first=False)
        pv15[0] = waittag('vr') + [pv15[0]]
        o0[0] = waittag('af0') + [o0[0]]
        main = self.pv_mfmas() + pv15 + o0
        sm = self.softmax_streams(15, 11, lambda t: 43 + 9*t, lambda t: 12 + 8*t)
        pre, vu = self.v_reads(0, dst=aKF)
        rd = FS(pre + [u for _, u in vu], -1, 30) + FS(self.af_units(0, lambda f: aA0 + 4*f), -1, 70)
        setup = [I(x) for x in (f'v_lshlrev_b32 v{vL16}, 4, {L}', f's_lshl_b32 {sT1}, {sW}, 14', f's_add_u32 {sT1}, {sT1}, 98304',
                 f'v_add_u32 v{vEX1}, {sT1}, v{vL16}', f'v_xor_b32 v{vEXR1}, 0x4000, v{vEX1}', f's_lshl_b32 {sT1}, {sW}, 12',
                 f'v_add_u32 v{vEX2}, {sT1}, v{vL16}', f'v_xor_b32 v{vEXR2}, 0x1000, v{vEX2}')]
        rd += FS(setup, 12, 52)
        rd += [F(waittag('af0') + I('s_barrier'), 72, 80, cost=2)] + self.dma_stream(self.wo_units(2), 74, 100)
        nl = self.c.normlast
        nm = []
        for t in range(5):
            nm += FS(self.norm_units(t), 45 + 9*t + 10, min(89 + 16*t, nl))
        exr = []
        for f in range(20):
            adr, off = (vEXR1, f*1024) if f < 16 else (vEXR2, (f-16)*1024)
            exr.append(I(f'ds_read_b128 {ar(aPART + 4*f)}, v{adr} offset:{off}', tag='exr'))
        nm += [F(waittag('exw') + I('s_barrier'), -1, nl + 6, cost=2)] + FS(exr, -1, 160)
        PD = 4
        af = []
        for j in range(1, 8): af += [(j, k, u) for k, u in enumerate(self.af_units(j, lambda f, j=j: aAF + ((j*16 + f) % 6)*4))]
        def take():
            j, k, u = af.pop(0)
            if k == 0:
                j, k, u2 = af.pop(0)
                return [F(waittag(f'wo{j}') + I('s_barrier'), cost=2), F(u), F(u2)]
            return [F(u)]
        first = []
        for _ in range(PD): first += take()
        for f in first: f.lo = 150; f.hi = 166
        self.sch('tail', main, [sm, rd, nm, first])
        self.stamp('main', 'o')
        for j in range(1, 8):
            p = j // 2; sub = j % 2
            main = []; rs = []
            for ks in range(4):
                for nt in range(4):
                    f = j*16 + ks*4 + nt
                    for t in range(5):
                        B = vr(self.own(ks, t)) if sub == 0 else ar(aPART + (ks*5+t)*4)
                        c = '0' if (sub == 0 and ks == 0) else vr(self.acc(p, t, nt))
                        main += I(f'{MF} {vr(self.acc(p, t, nt))}, {ar(aAF + (f % 6)*4)}, {B}, {c}')
                    if af:
                        g = (ks*4 + nt)*5
                        for x in take(): x.lo = g; x.hi = g + 3; rs.append(x)
            streams = [rs]
            if j == 1:
                main[0] = waittag('exr') + [main[0]]
                streams.append([F(I('s_barrier'), 0, 2)] + self.dma_stream(self.wo_units(3) + self.wo_units(4), 3, 76, slack=1))
            nd = 0
            if j in (2, 3, 4): streams.append(self.dma_stream(self.wo_units(j + 3), 2, 33 if sub == 0 else 60, slack=1)); nd = 34
            if sub == 0:
                su = self.store_units(p - 1)
                fs = FS(su, 2, 79); k = 0
                for f in fs:
                    if any(x.kind == 'vst' for x in f.ins):
                        f.lo = nd + (k * (78 - nd)) // 10; k += 1
                streams.append(fs)
            self.sch(f'o{j}', main, streams)
            self.stamp('o')
        for u in self.store_units(3): e(u)
    def peephole(self, prog):
        out = []; prev = {}
        for x in prog:
            if x.kind in ('label', 'branch'): prev = {}
            if x.kind == 'salu' and x.op == 's_add_u32' and len(x.writes) == 1:
                w = next(iter(x.writes))
                if w in ('m0', sT0, sT2) and prev.get(w) == x.text and w not in x.reads: continue
            for w in x.writes:
                prev.pop(w, None)
                for k in [k for k, v in prev.items() if re.search(rf'\b{w}\b', v.split(',', 1)[1])]: prev.pop(k)
            if x.kind == 'salu' and x.op == 's_add_u32' and len(x.writes) == 1: prev[next(iter(x.writes))] = x.text
            out.append(x)
        return out
    def fold(self, prog):
        idx = {x.text: k for k, x in enumerate(prog) if x.kind == 'label'}
        its = [i for i in range(16) if f'L_loopmark{i}:' in idx]
        norm = lambda x: re.sub(r'(L_stub|L_ret)\d+', r'\1', x.text)
        body = {i: [norm(x) for x in prog[idx[f'L_loopmark{i}:'] + 1: idx[f'L_loopend{i}:']]] for i in its}
        last = its[-1]; first = last
        while first - 1 in body and body[first - 1] == body[last]: first -= 1
        self.log.append(('loop', first, last, len(body[last])))
        for i in range(first + 1, last + 1): self.stubs.remove(i)
        a = idx[f'L_loopmark{first}:']; b = idx[f'L_loopend{first}:']; c = idx[f'L_loopend{last}:']
        return prog[:a] + I(f's_add_u32 {sIT}, {sKVOFF}, {(last + 6)*8192}') + prog[a:b] + \
            I(f's_cmp_lg_u32 {sIT}, {sKO}\ns_cbranch_scc1 L_loopmark{first}') + prog[c + 1:]
    def build(self):
        self.prologue(); self.q_phase(); self.q_to_attn(); self.stamp('main', 'q', 'a')
        for i in range(1, 16):
            if i == 15: self.stamp('o')
            self.iteration(i)
            if i in (3, 10, 12): self.stamp('main')
            if i < 15 and not (self.c.loop and 4 <= i < self.c.lend): self.stamp('a')
        e = self.e
        if self.c.stamps:
            e('s_waitcnt vmcnt(0)'); self.stamp()
            e(f'''s_mov_b64 s[24:25], s[56:57]
            s_mov_b32 s26, 0x10000000
            s_mul_i32 {sT1}, s2, {self.nst*8}
            s_add_u32 {sT1}, {sT1}, {STAMP_OFF}
            s_cmp_lg_u32 {sW}, 0
            s_cbranch_scc1 L_end
            v_lshlrev_b32 v2, 3, v{vLANE}
            v_mov_b32 v4, v255
            v_mov_b32 v5, 0
            v_cmp_gt_u32 vcc, {self.nst}, v{vLANE}
            s_and_saveexec_b64 s[58:59], vcc
            buffer_store_dwordx2 v[4:5], v2, {SWS}, {sT1} offen''')
        e('L_end:\ns_endpgm')
        if self.c.nomem:
            def drop(x):
                if x.kind not in ('dma', 'vld', 'vst'): return False
                t = x.text
                if 'buffer_load_dword a' in t: return 'p' in self.c.nomem and 's[84:87]' not in t
                if SX in t or SWQ in t: return 'q' in self.c.nomem
                if SK in t or SV in t: return 'k' in self.c.nomem
                if SWO in t: return 'o' in self.c.nomem
                if x.tag == 'st': return 's' in self.c.nomem
                return False
            self.p = [x for x in self.p if not drop(x)]
        prog = finalize(self.peephole(self.p))
        if self.c.loop: prog = self.fold(prog)
        for i in self.stubs: prog += I(f'L_stub{i}:\ns_call_b64 {sRET}, L_rare\ns_branch L_ret{i}')
        prog += finalize(self.rare())
        prog += I('L_codeend:')
        return prog

from gen2 import reduce_kernel

def generate(cfg, path):
    g = Gen(cfg)
    main = g.build()
    red = reduce_kernel(cfg)
    s = make_file([(KN, 256, 256, 163840), ('reduce_heads_kernel', 640, 256, 0)],
                  [(KN, text_of(main), 512, 102, 256), ('reduce_heads_kernel', text_of(red), 96, 32, 96)])
    open(path, 'w').write(s)
    open(path[:-2] + '.nst', 'w').write(str(g.nst))
    return g, main

if __name__ == '__main__':
    cfg = Cfg()
    out = sys.argv[1]
    for kv in sys.argv[2:]:
        k, v = kv.split('=')
        cur = getattr(cfg, k)
        setattr(cfg, k, type(cur)(int(v)) if isinstance(cur, (bool, int)) and not isinstance(cur, float) else type(cur)(v.replace('+', ' ')))
    g, main = generate(cfg, out)
    from collections import Counter
    print(out, 'stamps', g.nst, dict(Counter(i.kind for i in main)))
    if cfg.verbose:
        for l in g.log: print(*l)
```

```python
import sys, math, struct, re
from asmlib import *
from gen_common import make_file, KN

class Cfg:
    kpol = 'nt'; vpol = 'nt'; kpolB = '='; vpolB = '='; wpol = ''; stpol = 'sc1'; rdpol = ''; pfpol = ''
    stamps = False; stset = 'main'; clk = 0
    codepf = 1
    kv_pro = 4
    kv_end = 13
    l2pf = 1; pfit = 11; l2pfq = 0
    nstg = 3
    late = 1
    early5 = 1
    rot = 2
    vsp = 4
    kveven = 1
    thr = 8.0
    loop = 1
    nomem = ''
    verbose = 0
    normlast = 140
    lend = 10
    dlo = 24
    dhi = 80
STAMP_OFF = 0x8000000
PART_BYTES = 163840
def f32(x): return '0x%08x' % struct.unpack('<I', struct.pack('<f', x))[0]

SX, SWQ, SK, SV, SWO, SWS = 's[4:7]', 's[8:11]', 's[12:15]', 's[16:19]', 's[20:23]', 's[24:27]'
sW, sHH, sQH = 's3', 's28', 's29'
sKVOFF, sKVLDS, sWQOFF, sXOFF, sXLDS, sWO0, sWO1, sWOLDS, sPW = 's30', 's31', 's32', 's33', 's34', 's35', 's36', 's37', 's38'
sC, sT = 's40', 's41'
sT0, sT1, sT2, sT3 = 's42', 's43', 's44', 's45'
sRET = 's[60:61]'
sRB, sDB, sKO, sVO, sIT = 's46', 's47', 's52', 's53', 's50'
sB, sHP, sH0 = 's48', 's49', 's51'
sWQC, sXC, sWQB, sXB, sOC, sOB, sPC = 's88', 's89', 's90', 's91', 's92', 's93', 's94'
STAMP0 = 62
def O(t, dt): return (t * 8 + dt) * 4
S0 = 160; P0 = 200; NM4 = 220
def Sreg(t, kt): return S0 + (t * 2 + kt) * 4
def Preg(t): return P0 + 4 * t
vMX0, vMX1, vTA, vTB = 240, 241, 242, 243
vK, vVE, vVO, aK, aVE = 244, 245, 246, 247, 248
vKVA, vKVB, vLANE, vWOV, vOE = 249, 250, 251, 252, 253
vWQA, vWQB, vX0, vX1 = 200, 201, 202, 203
vQE = [204, 205, 206]; vQO = [207, 208, 209]; vXR = [210, 211]
vWA = [212, 213]
vWA1 = 254
vRL = 240
vOEs, vOOs = 245, 246
vEX1, vEX2, vEXR1, vEXR2, vL16 = 247, 248, 249, 250, 254
aVF, aAF, aKF, aL, aONE, aQ = 0, 80, 104, 136, 156, 160
aPART = 0; aA0 = 160
def Qf(ks, t): return aQ + (t * 4 + ks) * 4
def vr(b, n=4): return f'v[{b}:{b+n-1}]'
def ar(b, n=4): return f'a[{b}:{b+n-1}]'
SLOT = 32768
WQBUF = [147456, 65536, 102400]
XBUF = [81920, 126976]
WOSLOT = [1, 2, 1, 3, 4, 0, 2, 1]
MF = 'v_mfma_f32_16x16x32_bf16'

def FS(units, lo=-1, hi=10**6, step=None):
    return [F(u, lo if step is None else int(lo + k * step), hi) for k, u in enumerate(units)]

class Gen:
    def __init__(self, cfg):
        self.c = cfg; self.p = []; self.nst = 0; self.stubs = []; self.log = []
    def e(self, x, tag=None):
        self.p += I(x, tag) if isinstance(x, str) else x
    def stamp_i(self, grp='all'):
        if self.c.stamps and grp in ('all', self.c.stset):
            self.nst += 1
            return I(f's_mem{"" if self.c.clk else "real"}time s[62:63]\ns_waitcnt lgkmcnt(0)\nv_writelane_b32 v255, s62, {self.nst - 1}')
        return []
    def stamp(self, *grps):
        for g in grps or ('all',): self.e(self.stamp_i(g))
    def sch(self, name, main, streams, **kw):
        v = []
        self.e(sched(main, streams, verbose=v, **kw))
        self.log.append((name,) + v[0])
    @staticmethod
    def pol(p): return (' ' + p) if p else ''
    def kvp(self, srd): return self.pol(self.c.kpol if srd == SK else self.c.vpol)
    def kv_dma(self, srd, tile, lds, tag):
        us = []
        for k in range(4):
            u = I(f's_add_u32 m0, {sKVLDS}, {lds}\ns_add_u32 {sT2}, {sKVOFF}, {tile*8192}')
            u += I(f'buffer_load_dwordx4 v{vKVA if k % 2 == 0 else vKVB}, {srd}, {sT2} offen offset:{k*1024}{self.kvp(srd)} lds', tag=tag)
            us.append(u)
        return us
    def kv_stage(self, st):
        b = (st % 5) * SLOT
        return (self.kv_dma(SK, st + 1, b, f'kv{st}') if st < 15 else []) + self.kv_dma(SV, st, b + 16384, f'kv{st}')
    def kv_stage_dyn(self, st):
        us = []
        for part in range(2):
            for k in range(4):
                u = I(f's_add_u32 m0, {sDB}, {part*16384}') if k == 0 else []
                if k == 0: us.append(u); u = []
                u += I(f'buffer_load_dwordx4 v{vKVA if k % 2 == 0 else vKVB}, {SK if part == 0 else SV}, {sKO if part == 0 else sVO} offen offset:{k*1024}{self.kvp(SK if part == 0 else SV)} lds', tag=f'kv{st}')
                us.append(u)
        return us
    def stg(self, st, part, k):
        if st >= 6: return ar(32 + ((st - 6)*8 + part*4 + k)*4)
        return ar(160 + ((st - 2)*8 + part*4 + k)*4)
    def kv_reg(self, st, parts=(0, 1)):
        us = []
        for part in parts:
            srd, tile = (SK, st + 1) if part == 0 else (SV, st)
            for k in range(4):
                us.append(I(f's_add_u32 {sT2}, {sKVOFF}, {tile*8192}') +
                          I(f'buffer_load_dwordx4 {self.stg(st, part, k)}, v{vKVA if k % 2 == 0 else vKVB}, {srd}, {sT2} offen offset:{k*1024}{self.kvp(srd)}'))
        return us
    def kv_drain(self, st, parts=(0, 1)):
        us = []
        for part in parts:
            for k in range(4):
                adr, off = {2: (vWA[0], 0), 3: (vWA[0], SLOT), 4: (vWA[1], 0), 6: (vWA1, 0), 7: (vWA1, SLOT)}[st]
                off += part*16384
                us.append(I(f'ds_write_b128 v{adr}, {self.stg(st, part, k)} offset:{off + k*1024}', tag=f'kv{st}'))
        return us
    def wq_next(self, j):
        if self.c.rot == 2 and j < 2: return I(f's_add_u32 {sWQB}, {sWQOFF}, {j*262144}')
        wrap = f's_cmp_eq_u32 {sWQC}, 0x400000\ns_cselect_b32 {sWQC}, 0x80000, {sWQC}' if self.c.rot == 2 else f's_and_b32 {sWQC}, {sWQC}, 0x3fffff'
        return I(f's_add_u32 {sWQB}, {sWQC}, {sWQOFF}\ns_add_u32 {sWQC}, {sWQC}, 262144\n{wrap}')
    def x_next(self, J):
        if self.c.rot == 2 and J < 1: return I(f's_add_u32 {sXB}, {sXOFF}, 0')
        wrap = f's_cmp_eq_u32 {sXC}, 1024\ns_cselect_b32 {sXC}, 128, {sXC}' if self.c.rot == 2 else f's_and_b32 {sXC}, {sXC}, 1023'
        return I(f's_add_u32 {sXB}, {sXC}, {sXOFF}\ns_add_u32 {sXC}, {sXC}, 128\n{wrap}')
    def wo_next(self, j):
        u = I(f's_add_u32 {sOB}, {sOC}, {sWO0 if j % 2 == 0 else sWO1}')
        if j % 2 == 1: u += I(f's_add_u32 {sOC}, {sOC}, 128\ns_and_b32 {sOC}, {sOC}, 511')
        return u
    def wq_units(self, j):
        us = []
        for k in range(4):
            u = I(f's_add_u32 m0, {sKVLDS}, {WQBUF[j % 3]}\ns_add_u32 {sT0}, {sWQB}, {k*32768 - k*1024}')
            u += I(f'buffer_load_dwordx4 v{vWQA if k < 2 else vWQB}, {SWQ}, {sT0} offen offset:{k*1024}{self.pol(self.c.wpol)} lds', tag=f'wq{j}')
            us.append(u)
        if j == 0: us[0] = self.wq_next(0) + us[0]
        if j < 15: us[-1] += self.wq_next(j + 1)
        return us
    def x_units(self, J):
        us = []
        for k in range(5):
            im = (k % 4) * 1024
            u = I(f's_add_u32 m0, {sXLDS}, {XBUF[J % 2] + (k // 4)*4096}\ns_add_u32 {sT0}, {sXB}, {k*8192 - im}')
            u += I(f'buffer_load_dwordx4 v{vX0 if k % 2 == 0 else vX1}, {SX}, {sT0} offen offset:{im}{self.pol(self.c.wpol)} lds', tag=f'x{J}')
            us.append(u)
        if J == 0: us[0] = self.x_next(0) + us[0]
        if J < 7: us[-1] += self.x_next(J + 1)
        return us
    def wo_units(self, j):
        us = []
        for k in range(8):
            im = (k % 4) * 1024
            u = I(f's_add_u32 m0, {sWOLDS}, {WOSLOT[j]*SLOT + (k // 4)*4096}\ns_add_u32 {sT0}, {sOB}, {k*8192 - im}')
            u += I(f'buffer_load_dwordx4 v{vWOV}, {SWO}, {sT0} offen offset:{im}{self.pol(self.c.wpol)} lds', tag=f'wo{j}')
            us.append(u)
        if j == 0: us[0] = self.wo_next(0) + us[0]
        if j < 7: us[-1] += self.wo_next(j + 1)
        return us
    def l2pf_q(self):
        pol = self.pol(self.c.pfpol); L = f'v{vLANE}'
        return [I(f'v_lshrrev_b32 v214, 3, {L}\nv_and_b32 v215, 7, {L}'),
                I(f'v_lshlrev_b32 v214, 13, v214\nv_lshl_add_u32 v214, v215, 6, v214'),
                I(f's_lshl_b32 {sT3}, {sB}, 19\ns_lshl_b32 {sT1}, {sW}, 17'),
                I(f's_add_u32 {sT3}, {sT3}, {sT1}\ns_lshl_b32 {sT1}, {sH0}, 8'),
                I(f's_add_u32 {sT3}, {sT3}, {sT1}\nbuffer_load_dword a138, v214, {SWQ}, {sT3} offen{pol}'),
                I(f's_add_u32 {sT3}, {sT3}, 65536\nbuffer_load_dword a139, v214, {SWQ}, {sT3} offen{pol}'),
                I(f'v_lshlrev_b32 v215, 6, {L}\ns_mul_i32 {sT3}, {sHP}, 40960'),
                I(f's_mul_i32 {sT1}, {sW}, 10240\ns_add_u32 {sT3}, {sT3}, {sT1}'),
                I(f'buffer_load_dword a140, v215, {SX}, {sT3} offen{pol}'),
                I(f's_add_u32 {sT3}, {sT3}, 4096\nbuffer_load_dword a141, v215, {SX}, {sT3} offen{pol}'),
                I(f's_add_u32 {sT3}, {sT3}, 4096\nbuffer_load_dword a142, v215, {SX}, {sT3} offen{pol}')]
    def l2pf_wo(self):
        pol = self.pol(self.c.pfpol)
        return [I(f'v_lshlrev_b32 v{vTA}, 6, v{vLANE}\ns_lshl_b32 {sT3}, {sH0}, 17'),
                I(f's_lshl_b32 {sT1}, {sB}, 15\ns_add_u32 {sT3}, {sT3}, {sT1}'),
                I(f's_lshl_b32 {sT1}, {sW}, 13\ns_add_u32 {sT3}, {sT3}, {sT1}'),
                I(f'buffer_load_dword a240, v{vTA}, {SWO}, {sT3} offen{pol}'),
                I(f's_add_u32 {sT3}, {sT3}, 4096\nbuffer_load_dword a241, v{vTA}, {SWO}, {sT3} offen{pol}')]
    def dma_stream(self, units, lo, hi, slack=4):
        fs = []; n = len(units); prev = {}
        for k, u in enumerate(units):
            l = lo + (k * (hi - lo + 1)) // n
            after = False
            for x in u:
                c = 1
                if x.op == 's_cselect_b32':
                    fs[-1].ins.append(x); fs[-1].cost += 1; continue
                if x.kind == 'salu' and x.op == 's_add_u32' and len(x.writes) == 1:
                    w = next(iter(x.writes))
                    if prev.get(w) == x.text and w not in x.reads: c = 0
                    prev[w] = x.text
                if x.kind != 'salu': fs.append(F([x], l, l + slack, cost=c)); after = True
                elif after: fs.append(F([x], l, 10**6, cost=c))
                else: fs.append(F([x], l - 3, l, cost=c))
        return fs
    def rot_setup(self):
        if self.c.rot != 2: return f's_and_b32 {sXC}, {sXC}, {7 if self.c.rot else 0}'
        return f's_cmp_ge_u32 {sXC}, 7\ns_cselect_b32 {sWQC}, 7, 0\ns_sub_u32 {sXC}, {sXC}, {sWQC}\ns_add_u32 {sXC}, {sXC}, 1'
    def prologue(self):
        e = self.e; L = f'v{vLANE}'
        e(f'''
        s_cmp_ge_u32 s2, 256
        s_cbranch_scc1 L_end
        s_load_dwordx16 s[64:79], s[0:1], 0
        s_load_dwordx4 s[80:83], s[0:1], 64
        s_load_dwordx2 s[24:25], s[0:1], 96
        v_lshrrev_b32 v1, 6, v0
        v_and_b32 {L}, 63, v0
        v_readfirstlane_b32 {sW}, v1
        s_and_b32 s46, s2, 7
        s_lshr_b32 s47, s2, 3
        s_lshr_b32 {sB}, s47, 2
        s_and_b32 {sHP}, s47, 3
        s_and_b32 s50, s46, 3
        s_lshl_b32 s50, s50, 2
        s_add_u32 s50, s50, {sHP}
        s_lshl_b32 {sH0}, s50, 1
        s_lshr_b32 s52, s46, 2            ; branch
        s_and_b32 {sHH}, {sW}, 1
        s_lshr_b32 {sQH}, {sW}, 1
        v_and_b32 v2, 3, {L}
        v_lshlrev_b32 v2, 4, v2           ; cc*16
        v_lshrrev_b32 v3, 4, {L}          ; g
        v_bfe_u32 v4, {L}, 2, 2           ; r
        v_lshl_add_u32 v5, v3, 6, v2
        v_lshl_add_u32 v{vKVA}, v4, 8, v5
        v_xor_b32 v{vKVB}, 32, v{vKVA}
        v_lshl_add_u32 v{vWQA}, v4, 13, v5
        v_xor_b32 v{vWQB}, 32, v{vWQA}
        v_lshrrev_b32 v6, 5, {L}
        v_bfe_u32 v7, {L}, 2, 3
        v_lshl_add_u32 v8, v6, 6, v2
        v_lshl_add_u32 v8, v7, 10, v8
        s_lshl_b32 {sT0}, {sHH}, 5
        v_xor_b32 v{vX0}, {sT0}, v8
        v_xor_b32 v{vX1}, 32, v{vX0}
        s_lshl_b32 {sT0}, {sQH}, 12
        s_lshl_b32 {sKVLDS}, {sHH}, 13
        s_add_u32 {sKVLDS}, {sKVLDS}, {sT0}
        s_lshl_b32 {sKVOFF}, {sHH}, 17
        s_add_u32 {sKVOFF}, {sKVOFF}, {sT0}
        s_add_u32 {sT1}, {sH0}, {sHH}
        s_lshl_b32 {sWQOFF}, {sT1}, 8
        s_lshl_b32 {sT0}, {sQH}, 17
        s_add_u32 {sWQOFF}, {sWQOFF}, {sT0}
        s_mul_i32 {sXOFF}, {sW}, {5*8192}
        s_mul_i32 {sXLDS}, {sW}, {5*1024}
        s_lshl_b32 {sXC}, {sHP}, 1
        s_add_u32 {sXC}, {sXC}, {sB}
        {self.rot_setup()}
        s_lshl_b32 {sWQC}, {sXC}, 19
        s_lshl_b32 {sXC}, {sXC}, 7
        s_mul_i32 s53, {sB}, 163840
        s_lshl_b32 s54, {sB}, 5
        s_add_u32 s54, s54, {sH0}
        s_lshl_b32 s54, s54, 17
        s_mov_b32 s6, 163840
        s_mov_b32 s7, 0x20000
        s_mov_b32 s10, 0x400000
        s_mov_b32 s11, 0x20000
        s_mov_b32 s14, 0x40000
        s_mov_b32 s15, 0x20000
        s_mov_b32 s18, 0x40000
        s_mov_b32 s19, 0x20000
        s_cmp_eq_u32 s52, 0
        s_cselect_b64 s[4:5], s[64:65], s[74:75]
        s_cselect_b64 s[8:9], s[70:71], s[80:81]
        s_cselect_b64 s[12:13], s[66:67], s[76:77]
        s_cselect_b64 s[16:17], s[68:69], s[78:79]
        s_cselect_b64 s[20:21], s[72:73], s[82:83]
        s_add_u32 s4, s4, s53
        s_addc_u32 s5, s5, 0
        ''')
        self.stamp()
        for u in self.x_units(0) + self.wq_units(0) + self.wq_units(1): e(u)
        e(f'''
        s_add_u32 s12, s12, s54
        s_addc_u32 s13, s13, 0
        s_add_u32 s16, s16, s54
        s_addc_u32 s17, s17, 0
        ''')
        self.kvq = self.kv_dma(SK, 0, SLOT + 16384, 'k0') + self.kv_stage(0) + self.kv_dma(SK, 2, SLOT, 'kv1')
        for st in (2, 3, 4)[:self.c.nstg]: self.kvq += self.kv_reg(st)
        for u in self.x_units(1) + self.wq_units(2): e(u)
        for _ in range(self.c.kv_pro): e(self.kvq.pop(0))
        if self.c.codepf:
            e(f'''s_getpc_b64 s[84:85]
            L_pc0:
            s_mov_b32 s86, L_codeend-L_pc0
            s_mov_b32 s87, 0x20000
            v_lshlrev_b32 v22, 7, v0
            buffer_load_dword a136, v22, s[84:87], 0 offen
            s_mov_b32 {sT0}, 32768
            buffer_load_dword a137, v22, s[84:87], {sT0} offen''')
        e(f'''
        s_lshl_b32 {sT0}, {sQH}, 16
        s_lshl_b32 {sT2}, {sHH}, 9
        s_add_u32 {sT0}, {sT0}, {sT2}
        s_lshl_b32 {sWO0}, {sT1}, 17
        s_add_u32 {sWO0}, {sWO0}, {sT0}
        s_xor_b32 {sWO1}, {sWO0}, 0x20000
        s_lshl_b32 {sWOLDS}, {sHH}, 14
        s_lshl_b32 {sT0}, {sQH}, 13
        s_add_u32 {sWOLDS}, {sWOLDS}, {sT0}
        s_mul_i32 {sPW}, {sW}, 40960
        s_and_b32 {sPC}, {sB}, {3 if self.c.rot else 0}
        s_lshl_b32 {sOC}, {sPC}, 7
        s_mul_i32 {sPC}, {sPC}, 10240
        s_mov_b32 {sC}, {f32(128 ** -0.5 * math.log2(math.e))}
        s_mov_b32 {sT}, {f32(self.c.thr)}
        s_lshl_b32 s55, s52, 3
        s_add_u32 s55, s55, {sB}
        s_lshl_b32 s55, s55, 4
        s_add_u32 s55, s55, s50
        s_mul_i32 s55, s55, {PART_BYTES}
        s_mov_b32 s22, 0x400000
        s_mov_b32 s23, 0x20000
        s_mov_b64 s[56:57], s[24:25]
        s_add_u32 s24, s24, s55
        s_addc_u32 s25, s25, 0
        s_mov_b32 s26, {PART_BYTES}
        s_mov_b32 s27, 0x20000
        v_and_b32 v9, 1, v3
        v_lshlrev_b32 v9, 5, v9           ; 32*(g&1)
        v_xor_b32 v{vWOV}, v9, v8
        v_and_b32 v10, 15, {L}
        v_and_b32 v11, 3, {L}
        v_lshrrev_b32 v12, 2, v10
        v_and_b32 v13, 1, v12
        v_lshlrev_b32 v13, 5, v13
        v_lshlrev_b32 v14, 4, v3
        v_xor_b32 v13, v13, v14
        v_lshl_add_u32 v13, v11, 6, v13
        v_lshl_add_u32 v13, v12, 10, v13
        s_lshl_b32 {sT1}, {sHH}, 13
        v_add_u32 v{aK}, {sT1}, v13
        v_lshl_add_u32 v15, v11, 3, v9
        v_lshl_add_u32 v15, v4, 6, v15
        v_lshl_add_u32 v16, v3, 10, v15
        v_add_u32 v{aVE}, {sT1}, v16
        v_lshl_add_u32 v16, v3, 11, v15
        v_add_u32 v16, {sT1}, v16
        v_add_u32 v{vQE[0]}, {WQBUF[0]}, v16
        v_add_u32 v{vQE[1]}, {WQBUF[1]}, v16
        v_add_u32 v{vQE[2]}, {WQBUF[2]}, v16
        v_xor_b32 v{vQO[0]}, 32, v{vQE[0]}
        v_xor_b32 v{vQO[1]}, 32, v{vQE[1]}
        v_xor_b32 v{vQO[2]}, 32, v{vQE[2]}
        v_lshrrev_b32 v17, 3, v10
        v_lshlrev_b32 v18, 5, v17
        v_xor_b32 v18, v18, v14
        v_and_b32 v19, 7, {L}
        v_lshl_add_u32 v18, v19, 6, v18
        v_lshl_add_u32 v18, v17, 10, v18
        s_mul_i32 {sT2}, {sQH}, 10240
        v_add_u32 v18, {sT2}, v18
        v_add_u32 v{vXR[0]}, {XBUF[0]}, v18
        v_add_u32 v{vXR[1]}, {XBUF[1]}, v18
        v_lshrrev_b32 v19, 1, v3
        v_lshl_add_u32 v20, v9, 3, v15
        v_lshl_add_u32 v20, v19, 10, v20
        s_lshl_b32 {sT2}, {sHH}, 14
        v_add_u32 v{vOE}, {sT2}, v20
        v_lshlrev_b32 v{vWA1}, 4, {L}
        v_add_u32 v{vWA1}, {sKVLDS}, v{vWA1}
        v_add_u32 v{vWA[0]}, 65536, v{vWA1}
        v_add_u32 v{vWA[1]}, 131072, v{vWA1}
        v_add_u32 v{vWA1}, {SLOT}, v{vWA1}
        v_mov_b32 v21, 0x3f803f80
        v_accvgpr_write_b32 a{aONE}, v21
        v_accvgpr_write_b32 a{aONE+1}, v21
        v_accvgpr_write_b32 a{aONE+2}, v21
        v_accvgpr_write_b32 a{aONE+3}, v21
        ''')
    def q_reads(self, j):
        st = (j & 1) * 52
        xr = [I(f'ds_read_b128 {ar(st + 32 + 4*t)}, v{vXR[(j >> 1) & 1]} offset:{t*2048 + (j & 1)*512}') for t in range(5)]
        aa = []
        for dt in range(8):
            for u in range(2):
                adr = (vQE if dt % 2 == 0 else vQO)[j % 3]
                aa.append(I(f'ds_read_b64_tr_b16 {ar(st + 4*dt + 2*u, 2)}, v{adr} offset:{u*1024 + (dt >> 1)*256}'))
        return aa[:2] + xr + aa[2:]
    def k_reads(self, base, tag='kr'):
        us = [I(f'v_add_u32 v{vK}, {base}, v{aK}')]
        for ks in range(4):
            for kt in range(2):
                us.append(I(f'ds_read_b128 {ar(aKF + (kt*4+ks)*4)}, v{vK} offset:{kt*4096 + ks*256}', tag=tag))
        return us
    def v_reads(self, base, dst=aVF, tag='vr'):
        pre = [I(f'v_add_u32 v{vVE}, {base}, v{aVE}'), I(f'v_xor_b32 v{vVO}, 32, v{vVE}')]
        us = []
        for dt in range(8):
            for h in range(2):
                us.append((dt, I(f'ds_read_b64_tr_b16 {ar(dst + 4*dt + 2*h, 2)}, v{vVE if dt % 2 == 0 else vVO} offset:{16384 + h*4096 + (dt >> 1)*256}', tag=tag)))
        return pre, us
    def q_mfmas(self, j, touter=False):
        st = (j & 1) * 52; m = []
        order = [(t, dt) for t in range(5) for dt in range(8)] if touter else [(t, dt) for dt in range(8) for t in range(5)]
        for t, dt in order:
            m += I(f'{MF} {vr(O(t, dt))}, {ar(st + 4*dt)}, {ar(st + 32 + 4*t)}, {vr(O(t, dt)) if j else "0"}')
        return m
    def s_mfmas(self, zero=False):
        m = []
        for t in range(5):
            for ks in range(4):
                for kt in range(2):
                    c = vr(Sreg(t, kt)) if ks else ('0' if zero else vr(NM4 + 4*t))
                    m += I(f'{MF} {vr(Sreg(t, kt))}, {ar(aKF + (kt*4+ks)*4)}, {ar(Qf(ks, t))}, {c}')
        m[0] = waittag('kr') + [m[0]]
        return m
    def pv_mfmas(self, first=False, vf=aVF, ones_first=True):
        ones = [I(f'{MF} {ar(aL + 4*t)}, {ar(aONE)}, {vr(Preg(t))}, {"0" if first else ar(aL + 4*t)}')[0] for t in range(5)]
        m = list(ones) if ones_first else []
        for t in range(5):
            if not ones_first: m.append(ones[t])
            for dt in range(8):
                m += I(f'{MF} {vr(O(t, dt))}, {ar(vf + 4*dt)}, {vr(Preg(t))}, {"0" if first else vr(O(t, dt))}')
        return m
    def q_convert(self, t):
        us = []
        for ks in range(4):
            x = O(t, 2*ks); y = x + 4
            for k in range(8): us.append(I(f'v_mul_f32 v{x+k}, {sC}, v{x+k}'))
        for ks in range(4):
            x = O(t, 2*ks); y = x + 4
            for s in (f'v{x}, v{x}, v{x+1}', f'v{y}, v{y}, v{y+1}', f'v{x+1}, v{x+2}, v{x+3}', f'v{y+1}, v{y+2}, v{y+3}'):
                us.append(I('v_cvt_pk_bf16_f32 ' + s))
        for op in ('32', '16'):
            for ks in range(4):
                x = O(t, 2*ks); y = x + 4
                for k in range(2):
                    u = I(f'v_permlane{op}_swap_b32 v{x+k}, v{y+k}'); u[0].cost = 2; us.append(u)
        for ks in range(4):
            x = O(t, 2*ks); y = x + 4
            for k, r in enumerate((x, x+1, y, y+1)): us.append(I(f'v_accvgpr_write_b32 a{Qf(ks, t)+k}, v{r}'))
        return us
    def exp_units(self, t):
        b = Sreg(t, 0)
        return [I(f'v_exp_f32 v{b+k}, v{b+k}') for k in range(8)], [I(f'v_cvt_pk_bf16_f32 v{Preg(t)+k}, v{b+2*k}, v{b+2*k+1}') for k in range(4)]
    def rowmax(self, m, c, b):
        return I(f'''v_max3_f32 v{m}, v{b}, v{b+1}, v{b+2}
        v_max3_f32 v{c}, v{b+3}, v{b+4}, v{b+5}
        v_max3_f32 v{m}, v{m}, v{b+6}, v{b+7}
        v_max_f32 v{m}, v{m}, v{c}
        v_mov_b32 v{c}, v{m}
        v_permlane32_swap_b32 v{m}, v{c}
        v_max_f32 v{m}, v{m}, v{c}
        v_mov_b32 v{c}, v{m}
        v_permlane16_swap_b32 v{m}, v{c}
        v_max_f32 v{m}, v{m}, v{c}''')
    def softmax_streams(self, i, ck, exp_dead, cvt_lo):
        mx = []
        for t in range(5):
            b = Sreg(t, 0)
            for k in range(4):
                m = vMX0 if k % 2 == 0 else vMX1
                if t == 0 and k < 2: mx.append(I(f'v_max_f32 v{m}, v{b+2*k}, v{b+2*k+1}'))
                else: mx.append(I(f'v_max3_f32 v{m}, v{b+2*k}, v{b+2*k+1}, v{m}'))
        mx.append(I(f'v_max_f32 v{vMX0}, v{vMX0}, v{vMX1}'))
        st = FS(mx + [I(f'v_cmp_lt_f32 vcc, {sT}, v{vMX0}')], -1, ck - 1)
        st.append(F(I(f's_cbranch_vccnz L_stub{i}\nL_ret{i}:'), ck, ck, cost=1))
        self.stubs.append(i)
        for t in range(5):
            ex, cv = self.exp_units(t)
            st += FS(ex, -1, exp_dead(t)) + FS(cv, cvt_lo(t), exp_dead(t))
        return st
    def q_phase(self):
        e = self.e
        e(waittag('x0', 'wq0')); e('s_barrier'); self.stamp('q')
        for u in self.q_reads(0): e(u)
        e(waittag('wq1')); e('s_waitcnt lgkmcnt(0)\ns_barrier')
        for j in range(15):
            d = []
            if j + 3 < 16: d += self.wq_units(j + 3)
            if j % 2 == 1 and (j - 1) // 2 + 2 < 8: d += self.x_units((j - 1) // 2 + 2)
            ke = self.c.kv_end
            if self.c.kveven:
                left = len([k for k in range(j, ke) if k % 2 == 0 or k >= 13])
                n = 0 if (j % 2 == 1 and j < 13) else (-(-len(self.kvq) // max(1, left)))
            else:
                n = -(-len(self.kvq) // max(1, ke - j)) if j < ke else len(self.kvq)
            d += [self.kvq.pop(0) for _ in range(min(n, len(self.kvq)))]
            ds = self.dma_stream(d, 1, min(39, self.c.vsp * len(d)), slack=1) if d else []
            streams = [FS(self.q_reads(j + 1), 0, 30), ds]
            if j == 0 and self.c.l2pfq: streams.append(FS(self.l2pf_q(), 22, 39))
            if j == 14 and self.c.nstg >= 1: streams.append(FS(self.kv_drain(2), 20, 39, step=2))
            if j == 13 and self.c.nstg < 1: streams.append(self.dma_stream(self.kv_stage(2), 4, 36))
            self.sch(f'q{j}', self.q_mfmas(j), streams)
            tags = []
            if j + 2 < 16:
                tags.append(f'wq{j+2}')
                if (j + 2) % 2 == 0: tags.append(f'x{(j+2)//2}')
            if j == 14: tags += ['k0', 'kv0']
            e(waittag(*tags)); e('s_waitcnt lgkmcnt(0)\ns_barrier'); self.stamp('q')
    def q_to_attn(self):
        main = self.q_mfmas(15, touter=True) + self.s_mfmas(zero=True) + self.s_mfmas()
        conv = []
        for t in range(5):
            cu = self.q_convert(t)
            conv += FS(cu, 8*t + 9, 39 + 8*t)
        drains = FS(self.kv_drain(3), 8, 24, step=2) if self.c.nstg >= 2 else []
        if self.c.nstg >= 3: drains += FS(self.kv_drain(4), 24, 40, step=2)
        for f in conv:
            w = [r for x in f.ins for r in x.writes if r[0] == 'a']
            if w and int(w[0][1:]) >= 192: f.lo = max(f.lo, 26 if int(w[0][1:]) < 224 else 42)
        init = []
        for t in range(5):
            b = Sreg(t, 0); lo = 40 + 8*t + 9; hi = 79 + 8*t
            u = [[x] for x in self.rowmax(vMX0, vMX1, b)]
            u += [I(f'v_sub_f32 v{NM4+4*t+k}, 0, v{vMX0}') for k in range(4)]
            u += [I(f'v_sub_f32 v{b+k}, v{b+k}, v{vMX0}') for k in range(8)]
            ex, cv = self.exp_units(t)
            init += FS(u + ex + cv, lo, hi)
        k0 = FS(self.k_reads(SLOT + 16384), -1, 12)
        k1 = self.k_reads(0)
        k1s = [F(k1[0], 60, 79)] + [F(u, 72 + k, 79) for k, u in enumerate(k1[1:])]
        pre, vu = self.v_reads(0)
        vs = FS(pre, 44, 70) + [F(u, 44, 84) for _, u in vu]
        d0 = (self.kv_stage(3) if self.c.nstg < 2 else []) + (self.kv_stage(4) if self.c.nstg < 3 else [])
        v1 = self.dma_stream(d0, 0, 40) if d0 else []
        if self.c.late and not d0: v1 += self.dma_stream(self.kv_reg(6, (0,)), 4, 40)
        v1 += [F(I('s_barrier'), 46, 50)] + self.dma_stream(self.kv_dma(SV, 1, SLOT + 16384, 'kv1'), 50, 64)
        if self.c.late: v1 += self.dma_stream(self.kv_reg(6, (1,) if not d0 else (0, 1)), 66, 86)
        if self.c.early5:
            v1 += [F(waittag('vr') + I('s_barrier'), 88, 90, cost=2)] + self.dma_stream(self.kv_stage(5), 92, 116)
        self.sch('q15..s1', main, [k0, drains, conv + init, k1s, vs, v1], pre_cap=9)
    def iteration(self, i):
        e = self.e
        L0 = 4 if self.c.late else 2
        dyn = self.c.loop and L0 <= i <= self.c.lend
        if dyn and i == L0:
            e(f's_mov_b32 {sRB}, {(L0 % 5)*SLOT}\ns_add_u32 {sDB}, {sKVLDS}, {((L0 - 1) % 5)*SLOT}\ns_add_u32 {sKO}, {sKVOFF}, {(L0 + 5)*8192}\ns_add_u32 {sVO}, {sKVOFF}, {(L0 + 4)*8192}')
        if dyn: e(f'L_loopmark{i}:')
        tags = [f'kv{i}', 'vr'] + (['wo0'] if i == 15 else [])
        if dyn: e('s_waitcnt vmcnt(24) lgkmcnt(0)')
        e(waittag(*tags)); e('s_barrier')
        if i == 15: return self.tail()
        if dyn: dma = self.kv_stage_dyn(i + 4)
        elif i == 1 and self.c.early5: dma = self.kv_reg(7) if self.c.late else []
        elif i in (2, 3) and self.c.late: dma = self.kv_drain(i + 4)
        elif i <= 11: dma = self.kv_stage(i + 4)
        elif i <= 13: dma = self.wo_units(i - 12)
        else: dma = []
        main = self.pv_mfmas(first=(i == 1)) + self.s_mfmas()
        base = sRB if dyn else (i % 5) * SLOT
        sm = self.softmax_streams(i, 11, lambda t: 44 + 8*t, lambda t: 12 + 8*t)
        ks = FS(self.k_reads(base), -1, 36)
        pre, vu = self.v_reads(base)
        vs = FS(pre, 20, 60) + [F(u, 37 + dt, 80) for dt, u in vu]
        streams = [sm, ks, vs]
        ds = self.dma_stream(dma, self.c.dlo, self.c.dhi) if dma else []
        if self.c.l2pf and i == self.c.pfit: ds += FS(self.l2pf_wo(), 77, 84)
        if dyn:
            ds += FS([I(x) for x in (f's_add_u32 {sDB}, {sRB}, {sKVLDS}', f's_add_u32 {sRB}, {sRB}, {SLOT}',
                      f's_cmp_eq_u32 {sRB}, {5*SLOT}\ns_cselect_b32 {sRB}, 0, {sRB}', f's_mov_b32 {sVO}, {sKO}', f's_add_u32 {sKO}, {sKO}, 8192')], 61, 84)
        streams.append(ds)
        self.sch(f'it{i}', main, streams)
        if dyn: e(f'L_loopend{i}:')
    def rare(self):
        p = I('L_rare:\ns_nop 7\ns_nop 1')
        for t in range(5):
            b = Sreg(t, 0)
            p += self.rowmax(vMX0, vMX1, b)
            p += I(f'v_max_f32 v{vMX0}, 0, v{vMX0}')
            for k in range(4): p += I(f'v_sub_f32 v{NM4+4*t+k}, v{NM4+4*t+k}, v{vMX0}')
            for k in range(8): p += I(f'v_sub_f32 v{b+k}, v{b+k}, v{vMX0}')
            p += I(f'v_sub_f32 v{vTA}, 0, v{vMX0}\nv_exp_f32 v{vTA}, v{vTA}')
            for k in range(32): p += I(f'v_mul_f32 v{O(t,0)+k}, v{O(t,0)+k}, v{vTA}')
            for k in range(4):
                p += I(f'v_accvgpr_read_b32 v{vTB}, a{aL+4*t+k}\nv_mul_f32 v{vTB}, v{vTB}, v{vTA}\nv_accvgpr_write_b32 a{aL+4*t+k}, v{vTB}')
            for k in range(4):
                r = Preg(t) + k
                p += I(f'''v_lshlrev_b32 v{vTB}, 16, v{r}
                v_and_b32 v{vMX1}, 0xffff0000, v{r}
                v_mul_f32 v{vTB}, v{vTB}, v{vTA}
                v_mul_f32 v{vMX1}, v{vMX1}, v{vTA}
                v_cvt_pk_bf16_f32 v{r}, v{vTB}, v{vMX1}''')
        p += I(f's_nop 1\ns_setpc_b64 {sRET}')
        return p
    def own(self, ks, t): return self.ownmap[(ks, t)]
    def acc(self, p, t, nt): return 32*t + 16*(p % 2) + 4*nt
    def norm_units(self, t):
        us = [I(f'v_accvgpr_read_b32 v{vRL+t}, a{aL+4*t}'), I(f'v_rcp_f32 v{vRL+t}, v{vRL+t}')]
        for ks in range(4):
            b = O(t, 2*ks)
            for k in range(8): us.append(I(f'v_mul_f32 v{b+k}, v{b+k}, v{vRL+t}'))
            for k in range(4): us.append(I(f'v_cvt_pk_bf16_f32 v{self.own(ks, t) + k}, v{b+2*k}, v{b+2*k+1}'))
            f = ks*5 + t
            adr, off = (vEX1, f*1024) if f < 16 else (vEX2, (f-16)*1024)
            us.append(I(f'ds_write_b128 v{adr}, {vr(self.own(ks, t))} offset:{off}', tag='exw'))
        return us
    def af_units(self, j, dst):
        us = [I(f'v_add_u32 v{vOEs}, {WOSLOT[j]*SLOT}, v{vOE}\nv_xor_b32 v{vOOs}, 32, v{vOEs}')]
        for ks in range(4):
            for nt in range(4):
                d = dst(ks*4 + nt)
                us.append([I(f'ds_read_b64_tr_b16 {ar(d + 2*h, 2)}, v{vOEs if nt % 2 == 0 else vOOs} offset:{ks*4096 + h*2048 + (nt >> 1)*512}', tag=f'af{j}')[0] for h in range(2)])
        return us
    def store_units(self, p):
        us = [I(f's_add_u32 {sT3}, {sPW}, {sPC}'), I(f's_add_u32 {sPC}, {sPC}, 10240'), I(f's_cmp_eq_u32 {sPC}, 40960\ns_cselect_b32 {sPC}, 0, {sPC}')]
        for t in range(5):
            for m in range(2):
                b = self.acc(p, t, 2*m)
                for k in range(4): us.append(I(f'v_cvt_pk_bf16_f32 v{b+k}, v{b+2*k}, v{b+2*k+1}'))
                us.append(I(f's_add_u32 {sT1}, {sT3}, {(t*2+m)*1024}') +
                          I(f'buffer_store_dwordx4 {vr(b)}, v{vL16}, {SWS}, {sT1} offen{self.pol(self.c.stpol)}', tag='st'))
        return us
    def tail(self):
        e = self.e; L = f'v{vLANE}'
        regs = {0: [220, 224, 228, 232], 1: [236, 160, 164, 168], 2: [172, 176, 180, 184], 3: [188, 192, 196, 200], 4: [204, 208, 212, 216]}
        self.ownmap = {(ks, t): regs[t][ks] for t in range(5) for ks in range(4)}
        o0 = []
        for t in range(5):
            for ks in range(4):
                for nt in range(4):
                    o0 += I(f'{MF} {vr(self.acc(0, t, nt))}, {ar(aA0 + (ks*4+nt)*4)}, {vr(self.own(ks, t))}, {vr(self.acc(0, t, nt)) if ks else "0"}')
        pv15 = self.pv_mfmas(vf=aKF, ones_first=False)
        pv15[0] = waittag('vr') + [pv15[0]]
        o0[0] = waittag('af0') + [o0[0]]
        main = self.pv_mfmas() + pv15 + o0
        sm = self.softmax_streams(15, 11, lambda t: 43 + 9*t, lambda t: 12 + 8*t)
        pre, vu = self.v_reads(0, dst=aKF)
        rd = FS(pre + [u for _, u in vu], -1, 30) + FS(self.af_units(0, lambda f: aA0 + 4*f), -1, 70)
        setup = [I(x) for x in (f'v_lshlrev_b32 v{vL16}, 4, {L}', f's_lshl_b32 {sT1}, {sW}, 14', f's_add_u32 {sT1}, {sT1}, 98304',
                 f'v_add_u32 v{vEX1}, {sT1}, v{vL16}', f'v_xor_b32 v{vEXR1}, 0x4000, v{vEX1}', f's_lshl_b32 {sT1}, {sW}, 12',
                 f'v_add_u32 v{vEX2}, {sT1}, v{vL16}', f'v_xor_b32 v{vEXR2}, 0x1000, v{vEX2}')]
        rd += FS(setup, 12, 52)
        rd += [F(waittag('af0') + I('s_barrier'), 72, 80, cost=2)] + self.dma_stream(self.wo_units(2), 74, 100)
        nl = self.c.normlast
        nm = []
        for t in range(5):
            nm += FS(self.norm_units(t), 45 + 9*t + 10, min(89 + 16*t, nl))
        exr = []
        for f in range(20):
            adr, off = (vEXR1, f*1024) if f < 16 else (vEXR2, (f-16)*1024)
            exr.append(I(f'ds_read_b128 {ar(aPART + 4*f)}, v{adr} offset:{off}', tag='exr'))
        nm += [F(waittag('exw') + I('s_barrier'), -1, nl + 6, cost=2)] + FS(exr, -1, 160)
        PD = 4
        af = []
        for j in range(1, 8): af += [(j, k, u) for k, u in enumerate(self.af_units(j, lambda f, j=j: aAF + ((j*16 + f) % 6)*4))]
        def take():
            j, k, u = af.pop(0)
            if k == 0:
                j, k, u2 = af.pop(0)
                return [F(waittag(f'wo{j}') + I('s_barrier'), cost=2), F(u), F(u2)]
            return [F(u)]
        first = []
        for _ in range(PD): first += take()
        for f in first: f.lo = 150; f.hi = 166
        self.sch('tail', main, [sm, rd, nm, first])
        self.stamp('main', 'o')
        for j in range(1, 8):
            p = j // 2; sub = j % 2
            main = []; rs = []
            for ks in range(4):
                for nt in range(4):
                    f = j*16 + ks*4 + nt
                    for t in range(5):
                        B = vr(self.own(ks, t)) if sub == 0 else ar(aPART + (ks*5+t)*4)
                        c = '0' if (sub == 0 and ks == 0) else vr(self.acc(p, t, nt))
                        main += I(f'{MF} {vr(self.acc(p, t, nt))}, {ar(aAF + (f % 6)*4)}, {B}, {c}')
                    if af:
                        g = (ks*4 + nt)*5
                        for x in take(): x.lo = g; x.hi = g + 3; rs.append(x)
            streams = [rs]
            if j == 1:
                main[0] = waittag('exr') + [main[0]]
                streams.append([F(I('s_barrier'), 0, 2)] + self.dma_stream(self.wo_units(3) + self.wo_units(4), 3, 76, slack=1))
            nd = 0
            if j in (2, 3, 4): streams.append(self.dma_stream(self.wo_units(j + 3), 2, 33 if sub == 0 else 60, slack=1)); nd = 34
            if sub == 0:
                su = self.store_units(p - 1)
                fs = FS(su, 2, 79); k = 0
                for f in fs:
                    if any(x.kind == 'vst' for x in f.ins):
                        f.lo = nd + (k * (78 - nd)) // 10; k += 1
                streams.append(fs)
            self.sch(f'o{j}', main, streams)
            self.stamp('o')
        for u in self.store_units(3): e(u)
    def peephole(self, prog):
        out = []; prev = {}
        for x in prog:
            if x.kind in ('label', 'branch'): prev = {}
            if x.kind == 'salu' and x.op == 's_add_u32' and len(x.writes) == 1:
                w = next(iter(x.writes))
                if w in ('m0', sT0, sT2) and prev.get(w) == x.text and w not in x.reads: continue
            for w in x.writes:
                prev.pop(w, None)
                for k in [k for k, v in prev.items() if re.search(rf'\b{w}\b', v.split(',', 1)[1])]: prev.pop(k)
            if x.kind == 'salu' and x.op == 's_add_u32' and len(x.writes) == 1: prev[next(iter(x.writes))] = x.text
            out.append(x)
        return out
    def fold(self, prog):
        idx = {x.text: k for k, x in enumerate(prog) if x.kind == 'label'}
        its = [i for i in range(16) if f'L_loopmark{i}:' in idx]
        norm = lambda x: re.sub(r'(L_stub|L_ret)\d+', r'\1', x.text)
        body = {i: [norm(x) for x in prog[idx[f'L_loopmark{i}:'] + 1: idx[f'L_loopend{i}:']]] for i in its}
        last = its[-1]; first = last
        while first - 1 in body and body[first - 1] == body[last]: first -= 1
        self.log.append(('loop', first, last, len(body[last])))
        for i in range(first + 1, last + 1): self.stubs.remove(i)
        a = idx[f'L_loopmark{first}:']; b = idx[f'L_loopend{first}:']; c = idx[f'L_loopend{last}:']
        return prog[:a] + I(f's_add_u32 {sIT}, {sKVOFF}, {(last + 6)*8192}') + prog[a:b] + \
            I(f's_cmp_lg_u32 {sIT}, {sKO}\ns_cbranch_scc1 L_loopmark{first}') + prog[c + 1:]
    def build(self):
        self.prologue(); self.q_phase(); self.q_to_attn(); self.stamp('main', 'q', 'a')
        for i in range(1, 16):
            if i == 15: self.stamp('o')
            self.iteration(i)
            if i in (3, 10, 12): self.stamp('main')
            if i < 15 and not (self.c.loop and 4 <= i < self.c.lend): self.stamp('a')
        e = self.e
        if self.c.stamps:
            e('s_waitcnt vmcnt(0)'); self.stamp()
            e(f'''s_mov_b64 s[24:25], s[56:57]
            s_mov_b32 s26, 0x10000000
            s_mul_i32 {sT1}, s2, {self.nst*8}
            s_add_u32 {sT1}, {sT1}, {STAMP_OFF}
            s_cmp_lg_u32 {sW}, 0
            s_cbranch_scc1 L_end
            v_lshlrev_b32 v2, 3, v{vLANE}
            v_mov_b32 v4, v255
            v_mov_b32 v5, 0
            v_cmp_gt_u32 vcc, {self.nst}, v{vLANE}
            s_and_saveexec_b64 s[58:59], vcc
            buffer_store_dwordx2 v[4:5], v2, {SWS}, {sT1} offen''')
        e('L_end:\ns_endpgm')
        if self.c.nomem:
            def drop(x):
                if x.kind not in ('dma', 'vld', 'vst'): return False
                t = x.text
                if 'buffer_load_dword a' in t: return 'p' in self.c.nomem and 's[84:87]' not in t
                if SX in t or SWQ in t: return 'q' in self.c.nomem
                if SK in t or SV in t: return 'k' in self.c.nomem
                if SWO in t: return 'o' in self.c.nomem
                if x.tag == 'st': return 's' in self.c.nomem
                return False
            self.p = [x for x in self.p if not drop(x)]
        prog = finalize(self.peephole(self.p))
        if self.c.loop: prog = self.fold(prog)
        for i in self.stubs: prog += I(f'L_stub{i}:\ns_call_b64 {sRET}, L_rare\ns_branch L_ret{i}')
        prog += finalize(self.rare())
        prog += I('L_codeend:')
        return prog

from gen2 import reduce_kernel

def generate(cfg, path):
    g = Gen(cfg)
    main = g.build()
    if cfg.kpolB != '=' or cfg.vpolB != '=':
        import copy
        c2 = copy.copy(cfg)
        if cfg.kpolB != '=': c2.kpol = cfg.kpolB
        if cfg.vpolB != '=': c2.vpol = cfg.vpolB
        m2 = Gen(c2).build()
        for x in m2: x.text = re.sub(r'\bL_(\w+)', r'LB_\1', x.text)
        main = I('s_bitcmp1_b32 s2, 2\ns_cbranch_scc1 LB_entry') + main + I('LB_entry:') + m2
    red = reduce_kernel(cfg)
    s = make_file([(KN, 256, 256, 163840), ('reduce_heads_kernel', 640, 256, 0)],
                  [(KN, text_of(main), 512, 102, 256), ('reduce_heads_kernel', text_of(red), 96, 32, 96)])
    open(path, 'w').write(s)
    open(path[:-2] + '.nst', 'w').write(str(g.nst))
    return g, main

if __name__ == '__main__':
    cfg = Cfg()
    out = sys.argv[1]
    for kv in sys.argv[2:]:
        k, v = kv.split('=')
        cur = getattr(cfg, k)
        setattr(cfg, k, type(cur)(int(v)) if isinstance(cur, (bool, int)) and not isinstance(cur, float) else type(cur)(v.replace('+', ' ')))
    g, main = generate(cfg, out)
    from collections import Counter
    print(out, 'stamps', g.nst, dict(Counter(i.kind for i in main)))
    if cfg.verbose:
        for l in g.log: print(*l)
```

```python
import sys, math, struct, re
from asmlib import *
from gen_common import make_file, KN

class Cfg:
    kpol = 'nt'; vpol = 'nt'; kpolB = '='; vpolB = '='; wpol = ''; stpol = 'sc1'; rdpol = ''; pfpol = ''
    stamps = False; stset = 'main'; clk = 0
    codepf = 1
    kv_pro = 4
    kv_end = 13
    l2pf = 1; pfit = 11; l2pfq = 0
    nstg = 3
    late = 1
    early5 = 1
    rot = 2
    vsp = 4
    kveven = 1
    thr = 8.0
    loop = 1
    nomem = ''
    verbose = 0
    dbgwg = -1
    normlast = 140
    lend = 10
    dlo = 24
    dhi = 80
STAMP_OFF = 0x8000000
PART_BYTES = 163840
def f32(x): return '0x%08x' % struct.unpack('<I', struct.pack('<f', x))[0]

SX, SWQ, SK, SV, SWO, SWS = 's[4:7]', 's[8:11]', 's[12:15]', 's[16:19]', 's[20:23]', 's[24:27]'
sW, sHH, sQH = 's3', 's28', 's29'
sKVOFF, sKVLDS, sWQOFF, sXOFF, sXLDS, sWO0, sWO1, sWOLDS, sPW = 's30', 's31', 's32', 's33', 's34', 's35', 's36', 's37', 's38'
sC, sT = 's40', 's41'
sT0, sT1, sT2, sT3 = 's42', 's43', 's44', 's45'
sRET = 's[60:61]'
sRB, sDB, sKO, sVO, sIT = 's46', 's47', 's52', 's53', 's50'
sB, sHP, sH0 = 's48', 's49', 's51'
sWQC, sXC, sWQB, sXB, sOC, sOB, sPC = 's88', 's89', 's90', 's91', 's92', 's93', 's94'
STAMP0 = 62
def O(t, dt): return (t * 8 + dt) * 4
S0 = 160; P0 = 200; NM4 = 220
def Sreg(t, kt): return S0 + (t * 2 + kt) * 4
def Preg(t): return P0 + 4 * t
vMX0, vMX1, vTA, vTB = 240, 241, 242, 243
vK, vVE, vVO, aK, aVE = 244, 245, 246, 247, 248
vKVA, vKVB, vLANE, vWOV, vOE = 249, 250, 251, 252, 253
vWQA, vWQB, vX0, vX1 = 200, 201, 202, 203
vQE = [204, 205, 206]; vQO = [207, 208, 209]; vXR = [210, 211]
vWA = [212, 213]
vWA1 = 254
vRL = 240
vOEs, vOOs = 245, 246
vEX1, vEX2, vEXR1, vEXR2, vL16 = 247, 248, 249, 250, 254
aVF, aAF, aKF, aL, aONE, aQ = 0, 80, 104, 136, 156, 160
aPART = 0; aA0 = 160
def Qf(ks, t): return aQ + (t * 4 + ks) * 4
def vr(b, n=4): return f'v[{b}:{b+n-1}]'
def ar(b, n=4): return f'a[{b}:{b+n-1}]'
SLOT = 32768
WQBUF = [147456, 65536, 102400]
XBUF = [81920, 126976]
WOSLOT = [1, 2, 1, 3, 4, 0, 2, 1]
MF = 'v_mfma_f32_16x16x32_bf16'

def FS(units, lo=-1, hi=10**6, step=None):
    return [F(u, lo if step is None else int(lo + k * step), hi) for k, u in enumerate(units)]

class Gen:
    def __init__(self, cfg):
        self.c = cfg; self.p = []; self.nst = 0; self.stubs = []; self.log = []
    def e(self, x, tag=None):
        self.p += I(x, tag) if isinstance(x, str) else x
    def stamp_i(self, grp='all'):
        if self.c.stamps and grp in ('all', self.c.stset):
            self.nst += 1
            return I(f's_mem{"" if self.c.clk else "real"}time s[62:63]\ns_waitcnt lgkmcnt(0)\nv_writelane_b32 v255, s62, {self.nst - 1}')
        return []
    def stamp(self, *grps):
        for g in grps or ('all',): self.e(self.stamp_i(g))
    def sch(self, name, main, streams, **kw):
        v = []
        self.e(sched(main, streams, verbose=v, **kw))
        self.log.append((name,) + v[0])
    @staticmethod
    def pol(p): return (' ' + p) if p else ''
    def kvp(self, srd): return self.pol(self.c.kpol if srd == SK else self.c.vpol)
    def kv_dma(self, srd, tile, lds, tag):
        us = []
        for k in range(4):
            u = I(f's_add_u32 m0, {sKVLDS}, {lds}\ns_add_u32 {sT2}, {sKVOFF}, {tile*8192}')
            u += I(f'buffer_load_dwordx4 v{vKVA if k % 2 == 0 else vKVB}, {srd}, {sT2} offen offset:{k*1024}{self.kvp(srd)} lds', tag=tag)
            us.append(u)
        return us
    def kv_stage(self, st):
        b = (st % 5) * SLOT
        return (self.kv_dma(SK, st + 1, b, f'kv{st}') if st < 15 else []) + self.kv_dma(SV, st, b + 16384, f'kv{st}')
    def kv_stage_dyn(self, st):
        us = []
        for part in range(2):
            for k in range(4):
                u = I(f's_add_u32 m0, {sDB}, {part*16384}') if k == 0 else []
                if k == 0: us.append(u); u = []
                u += I(f'buffer_load_dwordx4 v{vKVA if k % 2 == 0 else vKVB}, {SK if part == 0 else SV}, {sKO if part == 0 else sVO} offen offset:{k*1024}{self.kvp(SK if part == 0 else SV)} lds', tag=f'kv{st}')
                us.append(u)
        return us
    def stg(self, st, part, k):
        if st >= 6: return ar(32 + ((st - 6)*8 + part*4 + k)*4)
        return ar(160 + ((st - 2)*8 + part*4 + k)*4)
    def kv_reg(self, st, parts=(0, 1)):
        us = []
        for part in parts:
            srd, tile = (SK, st + 1) if part == 0 else (SV, st)
            for k in range(4):
                us.append(I(f's_add_u32 {sT2}, {sKVOFF}, {tile*8192}') +
                          I(f'buffer_load_dwordx4 {self.stg(st, part, k)}, v{vKVA if k % 2 == 0 else vKVB}, {srd}, {sT2} offen offset:{k*1024}{self.kvp(srd)}'))
        return us
    def kv_drain(self, st, parts=(0, 1)):
        us = []
        for part in parts:
            for k in range(4):
                adr, off = {2: (vWA[0], 0), 3: (vWA[0], SLOT), 4: (vWA[1], 0), 6: (vWA1, 0), 7: (vWA1, SLOT)}[st]
                off += part*16384
                us.append(I(f'ds_write_b128 v{adr}, {self.stg(st, part, k)} offset:{off + k*1024}', tag=f'kv{st}'))
        return us
    def wq_next(self, j):
        if self.c.rot == 2 and j < 2: return I(f's_add_u32 {sWQB}, {sWQOFF}, {j*262144}')
        wrap = f's_cmp_eq_u32 {sWQC}, 0x400000\ns_cselect_b32 {sWQC}, 0x80000, {sWQC}' if self.c.rot == 2 else f's_and_b32 {sWQC}, {sWQC}, 0x3fffff'
        return I(f's_add_u32 {sWQB}, {sWQC}, {sWQOFF}\ns_add_u32 {sWQC}, {sWQC}, 262144\n{wrap}')
    def x_next(self, J):
        if self.c.rot == 2 and J < 1: return I(f's_add_u32 {sXB}, {sXOFF}, 0')
        wrap = f's_cmp_eq_u32 {sXC}, 1024\ns_cselect_b32 {sXC}, 128, {sXC}' if self.c.rot == 2 else f's_and_b32 {sXC}, {sXC}, 1023'
        return I(f's_add_u32 {sXB}, {sXC}, {sXOFF}\ns_add_u32 {sXC}, {sXC}, 128\n{wrap}')
    def wo_next(self, j):
        u = I(f's_add_u32 {sOB}, {sOC}, {sWO0 if j % 2 == 0 else sWO1}')
        if j % 2 == 1: u += I(f's_add_u32 {sOC}, {sOC}, 128\ns_and_b32 {sOC}, {sOC}, 511')
        return u
    def wq_units(self, j):
        us = []
        for k in range(4):
            u = I(f's_add_u32 m0, {sKVLDS}, {WQBUF[j % 3]}\ns_add_u32 {sT0}, {sWQB}, {k*32768 - k*1024}')
            u += I(f'buffer_load_dwordx4 v{vWQA if k < 2 else vWQB}, {SWQ}, {sT0} offen offset:{k*1024}{self.pol(self.c.wpol)} lds', tag=f'wq{j}')
            us.append(u)
        if j == 0: us[0] = self.wq_next(0) + us[0]
        if j < 15: us[-1] += self.wq_next(j + 1)
        return us
    def x_units(self, J):
        us = []
        for k in range(5):
            im = (k % 4) * 1024
            u = I(f's_add_u32 m0, {sXLDS}, {XBUF[J % 2] + (k // 4)*4096}\ns_add_u32 {sT0}, {sXB}, {k*8192 - im}')
            u += I(f'buffer_load_dwordx4 v{vX0 if k % 2 == 0 else vX1}, {SX}, {sT0} offen offset:{im}{self.pol(self.c.wpol)} lds', tag=f'x{J}')
            us.append(u)
        if J == 0: us[0] = self.x_next(0) + us[0]
        if J < 7: us[-1] += self.x_next(J + 1)
        return us
    def wo_units(self, j):
        us = []
        for k in range(8):
            im = (k % 4) * 1024
            u = I(f's_add_u32 m0, {sWOLDS}, {WOSLOT[j]*SLOT + (k // 4)*4096}\ns_add_u32 {sT0}, {sOB}, {k*8192 - im}')
            u += I(f'buffer_load_dwordx4 v{vWOV}, {SWO}, {sT0} offen offset:{im}{self.pol(self.c.wpol)} lds', tag=f'wo{j}')
            us.append(u)
        if j == 0: us[0] = self.wo_next(0) + us[0]
        if j < 7: us[-1] += self.wo_next(j + 1)
        return us
    def l2pf_q(self):
        pol = self.pol(self.c.pfpol); L = f'v{vLANE}'
        return [I(f'v_lshrrev_b32 v214, 3, {L}\nv_and_b32 v215, 7, {L}'),
                I(f'v_lshlrev_b32 v214, 13, v214\nv_lshl_add_u32 v214, v215, 6, v214'),
                I(f's_lshl_b32 {sT3}, {sB}, 19\ns_lshl_b32 {sT1}, {sW}, 17'),
                I(f's_add_u32 {sT3}, {sT3}, {sT1}\ns_lshl_b32 {sT1}, {sH0}, 8'),
                I(f's_add_u32 {sT3}, {sT3}, {sT1}\nbuffer_load_dword a138, v214, {SWQ}, {sT3} offen{pol}'),
                I(f's_add_u32 {sT3}, {sT3}, 65536\nbuffer_load_dword a139, v214, {SWQ}, {sT3} offen{pol}'),
                I(f'v_lshlrev_b32 v215, 6, {L}\ns_mul_i32 {sT3}, {sHP}, 40960'),
                I(f's_mul_i32 {sT1}, {sW}, 10240\ns_add_u32 {sT3}, {sT3}, {sT1}'),
                I(f'buffer_load_dword a140, v215, {SX}, {sT3} offen{pol}'),
                I(f's_add_u32 {sT3}, {sT3}, 4096\nbuffer_load_dword a141, v215, {SX}, {sT3} offen{pol}'),
                I(f's_add_u32 {sT3}, {sT3}, 4096\nbuffer_load_dword a142, v215, {SX}, {sT3} offen{pol}')]
    def l2pf_wo(self):
        pol = self.pol(self.c.pfpol)
        return [I(f'v_lshlrev_b32 v{vTA}, 6, v{vLANE}\ns_lshl_b32 {sT3}, {sH0}, 17'),
                I(f's_lshl_b32 {sT1}, {sB}, 15\ns_add_u32 {sT3}, {sT3}, {sT1}'),
                I(f's_lshl_b32 {sT1}, {sW}, 13\ns_add_u32 {sT3}, {sT3}, {sT1}'),
                I(f'buffer_load_dword a240, v{vTA}, {SWO}, {sT3} offen{pol}'),
                I(f's_add_u32 {sT3}, {sT3}, 4096\nbuffer_load_dword a241, v{vTA}, {SWO}, {sT3} offen{pol}')]
    def dma_stream(self, units, lo, hi, slack=4):
        fs = []; n = len(units); prev = {}
        for k, u in enumerate(units):
            l = lo + (k * (hi - lo + 1)) // n
            after = False
            for x in u:
                c = 1
                if x.op == 's_cselect_b32':
                    fs[-1].ins.append(x); fs[-1].cost += 1; continue
                if x.kind == 'salu' and x.op == 's_add_u32' and len(x.writes) == 1:
                    w = next(iter(x.writes))
                    if prev.get(w) == x.text and w not in x.reads: c = 0
                    prev[w] = x.text
                if x.kind != 'salu': fs.append(F([x], l, l + slack, cost=c)); after = True
                elif after: fs.append(F([x], l, 10**6, cost=c))
                else: fs.append(F([x], l - 3, l, cost=c))
        return fs
    def rot_setup(self):
        if self.c.rot != 2: return f's_and_b32 {sXC}, {sXC}, {7 if self.c.rot else 0}'
        return f's_cmp_ge_u32 {sXC}, 7\ns_cselect_b32 {sWQC}, 7, 0\ns_sub_u32 {sXC}, {sXC}, {sWQC}\ns_add_u32 {sXC}, {sXC}, 1'
    def prologue(self):
        e = self.e; L = f'v{vLANE}'
        e(f'''
        s_cmp_ge_u32 s2, 256
        s_cbranch_scc1 L_end
        s_load_dwordx16 s[64:79], s[0:1], 0
        s_load_dwordx4 s[80:83], s[0:1], 64
        s_load_dwordx2 s[24:25], s[0:1], 96
        v_lshrrev_b32 v1, 6, v0
        v_and_b32 {L}, 63, v0
        v_readfirstlane_b32 {sW}, v1
        s_and_b32 s46, s2, 7
        s_lshr_b32 s47, s2, 3
        s_lshr_b32 {sB}, s47, 2
        s_and_b32 {sHP}, s47, 3
        s_and_b32 s50, s46, 3
        s_lshl_b32 s50, s50, 2
        s_add_u32 s50, s50, {sHP}
        s_lshl_b32 {sH0}, s50, 1
        s_lshr_b32 s52, s46, 2            ; branch
        s_and_b32 {sHH}, {sW}, 1
        s_lshr_b32 {sQH}, {sW}, 1
        v_and_b32 v2, 3, {L}
        v_lshlrev_b32 v2, 4, v2           ; cc*16
        v_lshrrev_b32 v3, 4, {L}          ; g
        v_bfe_u32 v4, {L}, 2, 2           ; r
        v_lshl_add_u32 v5, v3, 6, v2
        v_lshl_add_u32 v{vKVA}, v4, 8, v5
        v_xor_b32 v{vKVB}, 32, v{vKVA}
        v_lshl_add_u32 v{vWQA}, v4, 13, v5
        v_xor_b32 v{vWQB}, 32, v{vWQA}
        v_lshrrev_b32 v6, 5, {L}
        v_bfe_u32 v7, {L}, 2, 3
        v_lshl_add_u32 v8, v6, 6, v2
        v_lshl_add_u32 v8, v7, 10, v8
        s_lshl_b32 {sT0}, {sHH}, 5
        v_xor_b32 v{vX0}, {sT0}, v8
        v_xor_b32 v{vX1}, 32, v{vX0}
        s_lshl_b32 {sT0}, {sQH}, 12
        s_lshl_b32 {sKVLDS}, {sHH}, 13
        s_add_u32 {sKVLDS}, {sKVLDS}, {sT0}
        s_lshl_b32 {sKVOFF}, {sHH}, 17
        s_add_u32 {sKVOFF}, {sKVOFF}, {sT0}
        s_add_u32 {sT1}, {sH0}, {sHH}
        s_lshl_b32 {sWQOFF}, {sT1}, 8
        s_lshl_b32 {sT0}, {sQH}, 17
        s_add_u32 {sWQOFF}, {sWQOFF}, {sT0}
        s_mul_i32 {sXOFF}, {sW}, {5*8192}
        s_mul_i32 {sXLDS}, {sW}, {5*1024}
        s_lshl_b32 {sXC}, {sHP}, 1
        s_add_u32 {sXC}, {sXC}, {sB}
        {self.rot_setup()}
        s_lshl_b32 {sWQC}, {sXC}, 19
        s_lshl_b32 {sXC}, {sXC}, 7
        s_mul_i32 s53, {sB}, 163840
        s_lshl_b32 s54, {sB}, 5
        s_add_u32 s54, s54, {sH0}
        s_lshl_b32 s54, s54, 17
        s_mov_b32 s6, 163840
        s_mov_b32 s7, 0x20000
        s_mov_b32 s10, 0x400000
        s_mov_b32 s11, 0x20000
        s_mov_b32 s14, 0x40000
        s_mov_b32 s15, 0x20000
        s_mov_b32 s18, 0x40000
        s_mov_b32 s19, 0x20000
        s_cmp_eq_u32 s52, 0
        s_cselect_b64 s[4:5], s[64:65], s[74:75]
        s_cselect_b64 s[8:9], s[70:71], s[80:81]
        s_cselect_b64 s[12:13], s[66:67], s[76:77]
        s_cselect_b64 s[16:17], s[68:69], s[78:79]
        s_cselect_b64 s[20:21], s[72:73], s[82:83]
        s_add_u32 s4, s4, s53
        s_addc_u32 s5, s5, 0
        ''')
        self.stamp()
        for u in self.x_units(0) + self.wq_units(0) + self.wq_units(1): e(u)
        e(f'''
        s_add_u32 s12, s12, s54
        s_addc_u32 s13, s13, 0
        s_add_u32 s16, s16, s54
        s_addc_u32 s17, s17, 0
        ''')
        self.kvq = self.kv_dma(SK, 0, SLOT + 16384, 'k0') + self.kv_stage(0) + self.kv_dma(SK, 2, SLOT, 'kv1')
        for st in (2, 3, 4)[:self.c.nstg]: self.kvq += self.kv_reg(st)
        for u in self.x_units(1) + self.wq_units(2): e(u)
        for _ in range(self.c.kv_pro): e(self.kvq.pop(0))
        if self.c.codepf:
            e(f'''s_getpc_b64 s[84:85]
            L_pc0:
            s_mov_b32 s86, L_codeend-L_pc0
            s_mov_b32 s87, 0x20000
            v_lshlrev_b32 v22, 7, v0
            buffer_load_dword a136, v22, s[84:87], 0 offen
            s_mov_b32 {sT0}, 32768
            buffer_load_dword a137, v22, s[84:87], {sT0} offen''')
        e(f'''
        s_lshl_b32 {sT0}, {sQH}, 16
        s_lshl_b32 {sT2}, {sHH}, 9
        s_add_u32 {sT0}, {sT0}, {sT2}
        s_lshl_b32 {sWO0}, {sT1}, 17
        s_add_u32 {sWO0}, {sWO0}, {sT0}
        s_xor_b32 {sWO1}, {sWO0}, 0x20000
        s_lshl_b32 {sWOLDS}, {sHH}, 14
        s_lshl_b32 {sT0}, {sQH}, 13
        s_add_u32 {sWOLDS}, {sWOLDS}, {sT0}
        s_mul_i32 {sPW}, {sW}, 40960
        s_and_b32 {sPC}, {sB}, {3 if self.c.rot else 0}
        s_lshl_b32 {sOC}, {sPC}, 7
        s_mul_i32 {sPC}, {sPC}, 10240
        s_mov_b32 {sC}, {f32(128 ** -0.5 * math.log2(math.e))}
        s_mov_b32 {sT}, {f32(self.c.thr)}
        s_lshl_b32 s55, s52, 3
        s_add_u32 s55, s55, {sB}
        s_lshl_b32 s55, s55, 4
        s_add_u32 s55, s55, s50
        s_mul_i32 s55, s55, {PART_BYTES}
        s_mov_b32 s22, 0x400000
        s_mov_b32 s23, 0x20000
        s_mov_b64 s[56:57], s[24:25]
        s_add_u32 s24, s24, s55
        s_addc_u32 s25, s25, 0
        s_mov_b32 s26, {PART_BYTES}
        s_mov_b32 s27, 0x20000
        v_and_b32 v9, 1, v3
        v_lshlrev_b32 v9, 5, v9           ; 32*(g&1)
        v_xor_b32 v{vWOV}, v9, v8
        v_and_b32 v10, 15, {L}
        v_and_b32 v11, 3, {L}
        v_lshrrev_b32 v12, 2, v10
        v_and_b32 v13, 1, v12
        v_lshlrev_b32 v13, 5, v13
        v_lshlrev_b32 v14, 4, v3
        v_xor_b32 v13, v13, v14
        v_lshl_add_u32 v13, v11, 6, v13
        v_lshl_add_u32 v13, v12, 10, v13
        s_lshl_b32 {sT1}, {sHH}, 13
        v_add_u32 v{aK}, {sT1}, v13
        v_lshl_add_u32 v15, v11, 3, v9
        v_lshl_add_u32 v15, v4, 6, v15
        v_lshl_add_u32 v16, v3, 10, v15
        v_add_u32 v{aVE}, {sT1}, v16
        v_lshl_add_u32 v16, v3, 11, v15
        v_add_u32 v16, {sT1}, v16
        v_add_u32 v{vQE[0]}, {WQBUF[0]}, v16
        v_add_u32 v{vQE[1]}, {WQBUF[1]}, v16
        v_add_u32 v{vQE[2]}, {WQBUF[2]}, v16
        v_xor_b32 v{vQO[0]}, 32, v{vQE[0]}
        v_xor_b32 v{vQO[1]}, 32, v{vQE[1]}
        v_xor_b32 v{vQO[2]}, 32, v{vQE[2]}
        v_lshrrev_b32 v17, 3, v10
        v_lshlrev_b32 v18, 5, v17
        v_xor_b32 v18, v18, v14
        v_and_b32 v19, 7, {L}
        v_lshl_add_u32 v18, v19, 6, v18
        v_lshl_add_u32 v18, v17, 10, v18
        s_mul_i32 {sT2}, {sQH}, 10240
        v_add_u32 v18, {sT2}, v18
        v_add_u32 v{vXR[0]}, {XBUF[0]}, v18
        v_add_u32 v{vXR[1]}, {XBUF[1]}, v18
        v_lshrrev_b32 v19, 1, v3
        v_lshl_add_u32 v20, v9, 3, v15
        v_lshl_add_u32 v20, v19, 10, v20
        s_lshl_b32 {sT2}, {sHH}, 14
        v_add_u32 v{vOE}, {sT2}, v20
        v_lshlrev_b32 v{vWA1}, 4, {L}
        v_add_u32 v{vWA1}, {sKVLDS}, v{vWA1}
        v_add_u32 v{vWA[0]}, 65536, v{vWA1}
        v_add_u32 v{vWA[1]}, 131072, v{vWA1}
        v_add_u32 v{vWA1}, {SLOT}, v{vWA1}
        v_mov_b32 v21, 0x3f803f80
        v_accvgpr_write_b32 a{aONE}, v21
        v_accvgpr_write_b32 a{aONE+1}, v21
        v_accvgpr_write_b32 a{aONE+2}, v21
        v_accvgpr_write_b32 a{aONE+3}, v21
        ''')
    def q_reads(self, j):
        st = (j & 1) * 52
        xr = [I(f'ds_read_b128 {ar(st + 32 + 4*t)}, v{vXR[(j >> 1) & 1]} offset:{t*2048 + (j & 1)*512}') for t in range(5)]
        aa = []
        for dt in range(8):
            for u in range(2):
                adr = (vQE if dt % 2 == 0 else vQO)[j % 3]
                aa.append(I(f'ds_read_b64_tr_b16 {ar(st + 4*dt + 2*u, 2)}, v{adr} offset:{u*1024 + (dt >> 1)*256}'))
        return aa[:2] + xr + aa[2:]
    def k_reads(self, base, tag='kr'):
        us = [I(f'v_add_u32 v{vK}, {base}, v{aK}')]
        for ks in range(4):
            for kt in range(2):
                us.append(I(f'ds_read_b128 {ar(aKF + (kt*4+ks)*4)}, v{vK} offset:{kt*4096 + ks*256}', tag=tag))
        return us
    def v_reads(self, base, dst=aVF, tag='vr'):
        pre = [I(f'v_add_u32 v{vVE}, {base}, v{aVE}'), I(f'v_xor_b32 v{vVO}, 32, v{vVE}')]
        us = []
        for dt in range(8):
            for h in range(2):
                us.append((dt, I(f'ds_read_b64_tr_b16 {ar(dst + 4*dt + 2*h, 2)}, v{vVE if dt % 2 == 0 else vVO} offset:{16384 + h*4096 + (dt >> 1)*256}', tag=tag)))
        return pre, us
    def q_mfmas(self, j, touter=False):
        st = (j & 1) * 52; m = []
        order = [(t, dt) for t in range(5) for dt in range(8)] if touter else [(t, dt) for dt in range(8) for t in range(5)]
        for t, dt in order:
            m += I(f'{MF} {vr(O(t, dt))}, {ar(st + 4*dt)}, {ar(st + 32 + 4*t)}, {vr(O(t, dt)) if j else "0"}')
        return m
    def s_mfmas(self, zero=False):
        m = []
        for t in range(5):
            for ks in range(4):
                for kt in range(2):
                    c = vr(Sreg(t, kt)) if ks else ('0' if zero else vr(NM4 + 4*t))
                    m += I(f'{MF} {vr(Sreg(t, kt))}, {ar(aKF + (kt*4+ks)*4)}, {ar(Qf(ks, t))}, {c}')
        m[0] = waittag('kr') + [m[0]]
        return m
    def pv_mfmas(self, first=False, vf=aVF, ones_first=True):
        ones = [I(f'{MF} {ar(aL + 4*t)}, {ar(aONE)}, {vr(Preg(t))}, {"0" if first else ar(aL + 4*t)}')[0] for t in range(5)]
        m = list(ones) if ones_first else []
        for t in range(5):
            if not ones_first: m.append(ones[t])
            for dt in range(8):
                m += I(f'{MF} {vr(O(t, dt))}, {ar(vf + 4*dt)}, {vr(Preg(t))}, {"0" if first else vr(O(t, dt))}')
        return m
    def q_convert(self, t):
        us = []
        for ks in range(4):
            x = O(t, 2*ks); y = x + 4
            for k in range(8): us.append(I(f'v_mul_f32 v{x+k}, {sC}, v{x+k}'))
        for ks in range(4):
            x = O(t, 2*ks); y = x + 4
            for s in (f'v{x}, v{x}, v{x+1}', f'v{y}, v{y}, v{y+1}', f'v{x+1}, v{x+2}, v{x+3}', f'v{y+1}, v{y+2}, v{y+3}'):
                us.append(I('v_cvt_pk_bf16_f32 ' + s))
        for op in ('32', '16'):
            for ks in range(4):
                x = O(t, 2*ks); y = x + 4
                for k in range(2):
                    u = I(f'v_permlane{op}_swap_b32 v{x+k}, v{y+k}'); u[0].cost = 2; us.append(u)
        for ks in range(4):
            x = O(t, 2*ks); y = x + 4
            for k, r in enumerate((x, x+1, y, y+1)): us.append(I(f'v_accvgpr_write_b32 a{Qf(ks, t)+k}, v{r}'))
        return us
    def exp_units(self, t):
        b = Sreg(t, 0)
        return [I(f'v_exp_f32 v{b+k}, v{b+k}') for k in range(8)], [I(f'v_cvt_pk_bf16_f32 v{Preg(t)+k}, v{b+2*k}, v{b+2*k+1}') for k in range(4)]
    def rowmax(self, m, c, b):
        return I(f'''v_max3_f32 v{m}, v{b}, v{b+1}, v{b+2}
        v_max3_f32 v{c}, v{b+3}, v{b+4}, v{b+5}
        v_max3_f32 v{m}, v{m}, v{b+6}, v{b+7}
        v_max_f32 v{m}, v{m}, v{c}
        v_mov_b32 v{c}, v{m}
        v_permlane32_swap_b32 v{m}, v{c}
        v_max_f32 v{m}, v{m}, v{c}
        v_mov_b32 v{c}, v{m}
        v_permlane16_swap_b32 v{m}, v{c}
        v_max_f32 v{m}, v{m}, v{c}''')
    def softmax_streams(self, i, ck, exp_dead, cvt_lo):
        mx = []
        for t in range(5):
            b = Sreg(t, 0)
            for k in range(4):
                m = vMX0 if k % 2 == 0 else vMX1
                if t == 0 and k < 2: mx.append(I(f'v_max_f32 v{m}, v{b+2*k}, v{b+2*k+1}'))
                else: mx.append(I(f'v_max3_f32 v{m}, v{b+2*k}, v{b+2*k+1}, v{m}'))
        mx.append(I(f'v_max_f32 v{vMX0}, v{vMX0}, v{vMX1}'))
        st = FS(mx + [I(f'v_cmp_lt_f32 vcc, {sT}, v{vMX0}')], -1, ck - 1)
        st.append(F(I(f's_cbranch_vccnz L_stub{i}\nL_ret{i}:'), ck, ck, cost=1))
        self.stubs.append(i)
        for t in range(5):
            ex, cv = self.exp_units(t)
            st += FS(ex, -1, exp_dead(t)) + FS(cv, cvt_lo(t), exp_dead(t))
        return st
    def q_phase(self):
        e = self.e
        e(waittag('x0', 'wq0')); e('s_barrier'); self.stamp('q')
        for u in self.q_reads(0): e(u)
        e(waittag('wq1')); e('s_waitcnt lgkmcnt(0)\ns_barrier')
        for j in range(15):
            d = []
            if j + 3 < 16: d += self.wq_units(j + 3)
            if j % 2 == 1 and (j - 1) // 2 + 2 < 8: d += self.x_units((j - 1) // 2 + 2)
            ke = self.c.kv_end
            if self.c.kveven:
                left = len([k for k in range(j, ke) if k % 2 == 0 or k >= 13])
                n = 0 if (j % 2 == 1 and j < 13) else (-(-len(self.kvq) // max(1, left)))
            else:
                n = -(-len(self.kvq) // max(1, ke - j)) if j < ke else len(self.kvq)
            d += [self.kvq.pop(0) for _ in range(min(n, len(self.kvq)))]
            ds = self.dma_stream(d, 1, min(39, self.c.vsp * len(d)), slack=1) if d else []
            streams = [FS(self.q_reads(j + 1), 0, 30), ds]
            if j == 0 and self.c.l2pfq: streams.append(FS(self.l2pf_q(), 22, 39))
            if j == 14 and self.c.nstg >= 1: streams.append(FS(self.kv_drain(2), 20, 39, step=2))
            if j == 13 and self.c.nstg < 1: streams.append(self.dma_stream(self.kv_stage(2), 4, 36))
            self.sch(f'q{j}', self.q_mfmas(j), streams)
            tags = []
            if j + 2 < 16:
                tags.append(f'wq{j+2}')
                if (j + 2) % 2 == 0: tags.append(f'x{(j+2)//2}')
            if j == 14: tags += ['k0', 'kv0']
            e(waittag(*tags)); e('s_waitcnt lgkmcnt(0)\ns_barrier'); self.stamp('q')
    def q_to_attn(self):
        main = self.q_mfmas(15, touter=True) + self.s_mfmas(zero=True) + self.s_mfmas()
        conv = []
        for t in range(5):
            cu = self.q_convert(t)
            conv += FS(cu, 8*t + 9, 39 + 8*t)
        drains = FS(self.kv_drain(3), 8, 24, step=2) if self.c.nstg >= 2 else []
        if self.c.nstg >= 3: drains += FS(self.kv_drain(4), 24, 40, step=2)
        for f in conv:
            w = [r for x in f.ins for r in x.writes if r[0] == 'a']
            if w and int(w[0][1:]) >= 192: f.lo = max(f.lo, 26 if int(w[0][1:]) < 224 else 42)
        init = []
        for t in range(5):
            b = Sreg(t, 0); lo = 40 + 8*t + 9; hi = 79 + 8*t
            u = [[x] for x in self.rowmax(vMX0, vMX1, b)]
            u += [I(f'v_sub_f32 v{NM4+4*t+k}, 0, v{vMX0}') for k in range(4)]
            u += [I(f'v_sub_f32 v{b+k}, v{b+k}, v{vMX0}') for k in range(8)]
            ex, cv = self.exp_units(t)
            init += FS(u + ex + cv, lo, hi)
        k0 = FS(self.k_reads(SLOT + 16384), -1, 12)
        k1 = self.k_reads(0)
        k1s = [F(k1[0], 60, 79)] + [F(u, 72 + k, 79) for k, u in enumerate(k1[1:])]
        pre, vu = self.v_reads(0)
        vs = FS(pre, 44, 70) + [F(u, 44, 84) for _, u in vu]
        d0 = (self.kv_stage(3) if self.c.nstg < 2 else []) + (self.kv_stage(4) if self.c.nstg < 3 else [])
        v1 = self.dma_stream(d0, 0, 40) if d0 else []
        if self.c.late and not d0: v1 += self.dma_stream(self.kv_reg(6, (0,)), 4, 40)
        v1 += [F(I('s_barrier'), 46, 50)] + self.dma_stream(self.kv_dma(SV, 1, SLOT + 16384, 'kv1'), 50, 64)
        if self.c.late: v1 += self.dma_stream(self.kv_reg(6, (1,) if not d0 else (0, 1)), 66, 86)
        if self.c.early5:
            v1 += [F(waittag('vr') + I('s_barrier'), 88, 90, cost=2)] + self.dma_stream(self.kv_stage(5), 92, 116)
        self.sch('q15..s1', main, [k0, drains, conv + init, k1s, vs, v1], pre_cap=9)
    def iteration(self, i):
        e = self.e
        L0 = 4 if self.c.late else 2
        dyn = self.c.loop and L0 <= i <= self.c.lend
        if dyn and i == L0:
            e(f's_mov_b32 {sRB}, {(L0 % 5)*SLOT}\ns_add_u32 {sDB}, {sKVLDS}, {((L0 - 1) % 5)*SLOT}\ns_add_u32 {sKO}, {sKVOFF}, {(L0 + 5)*8192}\ns_add_u32 {sVO}, {sKVOFF}, {(L0 + 4)*8192}')
        if dyn: e(f'L_loopmark{i}:')
        tags = [f'kv{i}', 'vr'] + (['wo0'] if i == 15 else [])
        if dyn: e('s_waitcnt vmcnt(24) lgkmcnt(0)')
        e(waittag(*tags)); e('s_barrier')
        if i == 15: return self.tail()
        if dyn: dma = self.kv_stage_dyn(i + 4)
        elif i == 1 and self.c.early5: dma = self.kv_reg(7) if self.c.late else []
        elif i in (2, 3) and self.c.late: dma = self.kv_drain(i + 4)
        elif i <= 11: dma = self.kv_stage(i + 4)
        elif i <= 13: dma = self.wo_units(i - 12)
        else: dma = []
        main = self.pv_mfmas(first=(i == 1)) + self.s_mfmas()
        base = sRB if dyn else (i % 5) * SLOT
        sm = self.softmax_streams(i, 11, lambda t: 44 + 8*t, lambda t: 12 + 8*t)
        ks = FS(self.k_reads(base), -1, 36)
        pre, vu = self.v_reads(base)
        vs = FS(pre, 20, 60) + [F(u, 37 + dt, 80) for dt, u in vu]
        streams = [sm, ks, vs]
        ds = self.dma_stream(dma, self.c.dlo, self.c.dhi) if dma else []
        if self.c.l2pf and i == self.c.pfit: ds += FS(self.l2pf_wo(), 77, 84)
        if dyn:
            ds += FS([I(x) for x in (f's_add_u32 {sDB}, {sRB}, {sKVLDS}', f's_add_u32 {sRB}, {sRB}, {SLOT}',
                      f's_cmp_eq_u32 {sRB}, {5*SLOT}\ns_cselect_b32 {sRB}, 0, {sRB}', f's_mov_b32 {sVO}, {sKO}', f's_add_u32 {sKO}, {sKO}, 8192')], 61, 84)
        streams.append(ds)
        self.sch(f'it{i}', main, streams)
        if dyn: e(f'L_loopend{i}:')
    def rare(self):
        p = I('L_rare:\ns_nop 7\ns_nop 1')
        for t in range(5):
            b = Sreg(t, 0)
            p += self.rowmax(vMX0, vMX1, b)
            p += I(f'v_max_f32 v{vMX0}, 0, v{vMX0}')
            for k in range(4): p += I(f'v_sub_f32 v{NM4+4*t+k}, v{NM4+4*t+k}, v{vMX0}')
            for k in range(8): p += I(f'v_sub_f32 v{b+k}, v{b+k}, v{vMX0}')
            p += I(f'v_sub_f32 v{vTA}, 0, v{vMX0}\nv_exp_f32 v{vTA}, v{vTA}')
            for k in range(32): p += I(f'v_mul_f32 v{O(t,0)+k}, v{O(t,0)+k}, v{vTA}')
            for k in range(4):
                p += I(f'v_accvgpr_read_b32 v{vTB}, a{aL+4*t+k}\nv_mul_f32 v{vTB}, v{vTB}, v{vTA}\nv_accvgpr_write_b32 a{aL+4*t+k}, v{vTB}')
            for k in range(4):
                r = Preg(t) + k
                p += I(f'''v_lshlrev_b32 v{vTB}, 16, v{r}
                v_and_b32 v{vMX1}, 0xffff0000, v{r}
                v_mul_f32 v{vTB}, v{vTB}, v{vTA}
                v_mul_f32 v{vMX1}, v{vMX1}, v{vTA}
                v_cvt_pk_bf16_f32 v{r}, v{vTB}, v{vMX1}''')
        p += I(f's_nop 1\ns_setpc_b64 {sRET}')
        return p
    def own(self, ks, t): return self.ownmap[(ks, t)]
    def acc(self, p, t, nt): return 32*t + 16*(p % 2) + 4*nt
    def norm_units(self, t):
        us = [I(f'v_accvgpr_read_b32 v{vRL+t}, a{aL+4*t}'), I(f'v_rcp_f32 v{vRL+t}, v{vRL+t}')]
        for ks in range(4):
            b = O(t, 2*ks)
            for k in range(8): us.append(I(f'v_mul_f32 v{b+k}, v{b+k}, v{vRL+t}'))
            for k in range(4): us.append(I(f'v_cvt_pk_bf16_f32 v{self.own(ks, t) + k}, v{b+2*k}, v{b+2*k+1}'))
            f = ks*5 + t
            adr, off = (vEX1, f*1024) if f < 16 else (vEX2, (f-16)*1024)
            us.append(I(f'ds_write_b128 v{adr}, {vr(self.own(ks, t))} offset:{off}', tag='exw'))
        return us
    def af_units(self, j, dst):
        us = [I(f'v_add_u32 v{vOEs}, {WOSLOT[j]*SLOT}, v{vOE}\nv_xor_b32 v{vOOs}, 32, v{vOEs}')]
        for ks in range(4):
            for nt in range(4):
                d = dst(ks*4 + nt)
                us.append([I(f'ds_read_b64_tr_b16 {ar(d + 2*h, 2)}, v{vOEs if nt % 2 == 0 else vOOs} offset:{ks*4096 + h*2048 + (nt >> 1)*512}', tag=f'af{j}')[0] for h in range(2)])
        return us
    def store_units(self, p):
        us = [I(f's_add_u32 {sT3}, {sPW}, {sPC}'), I(f's_add_u32 {sPC}, {sPC}, 10240'), I(f's_cmp_eq_u32 {sPC}, 40960\ns_cselect_b32 {sPC}, 0, {sPC}')]
        for t in range(5):
            for m in range(2):
                b = self.acc(p, t, 2*m)
                for k in range(4): us.append(I(f'v_cvt_pk_bf16_f32 v{b+k}, v{b+2*k}, v{b+2*k+1}'))
                us.append(I(f's_add_u32 {sT1}, {sT3}, {(t*2+m)*1024}') +
                          I(f'buffer_store_dwordx4 {vr(b)}, v{vL16}, {SWS}, {sT1} offen{self.pol(self.c.stpol)}', tag='st'))
        return us
    def tail(self):
        e = self.e; L = f'v{vLANE}'
        regs = {0: [220, 224, 228, 232], 1: [236, 160, 164, 168], 2: [172, 176, 180, 184], 3: [188, 192, 196, 200], 4: [204, 208, 212, 216]}
        self.ownmap = {(ks, t): regs[t][ks] for t in range(5) for ks in range(4)}
        o0 = []
        for t in range(5):
            for ks in range(4):
                for nt in range(4):
                    o0 += I(f'{MF} {vr(self.acc(0, t, nt))}, {ar(aA0 + (ks*4+nt)*4)}, {vr(self.own(ks, t))}, {vr(self.acc(0, t, nt)) if ks else "0"}')
        pv15 = self.pv_mfmas(vf=aKF, ones_first=False)
        pv15[0] = waittag('vr') + [pv15[0]]
        o0[0] = waittag('af0') + [o0[0]]
        main = self.pv_mfmas() + pv15 + o0
        sm = self.softmax_streams(15, 11, lambda t: 43 + 9*t, lambda t: 12 + 8*t)
        pre, vu = self.v_reads(0, dst=aKF)
        rd = FS(pre + [u for _, u in vu], -1, 30) + FS(self.af_units(0, lambda f: aA0 + 4*f), -1, 70)
        setup = [I(x) for x in (f'v_lshlrev_b32 v{vL16}, 4, {L}', f's_lshl_b32 {sT1}, {sW}, 14', f's_add_u32 {sT1}, {sT1}, 98304',
                 f'v_add_u32 v{vEX1}, {sT1}, v{vL16}', f'v_xor_b32 v{vEXR1}, 0x4000, v{vEX1}', f's_lshl_b32 {sT1}, {sW}, 12',
                 f'v_add_u32 v{vEX2}, {sT1}, v{vL16}', f'v_xor_b32 v{vEXR2}, 0x1000, v{vEX2}')]
        rd += FS(setup, 12, 52)
        rd += [F(waittag('af0') + I('s_barrier'), 72, 80, cost=2)] + self.dma_stream(self.wo_units(2), 74, 100)
        nl = self.c.normlast
        nm = []
        for t in range(5):
            nm += FS(self.norm_units(t), 45 + 9*t + 10, min(89 + 16*t, nl))
        exr = []
        for f in range(20):
            adr, off = (vEXR1, f*1024) if f < 16 else (vEXR2, (f-16)*1024)
            exr.append(I(f'ds_read_b128 {ar(aPART + 4*f)}, v{adr} offset:{off}', tag='exr'))
        nm += [F(waittag('exw') + I('s_barrier'), -1, nl + 6, cost=2)] + FS(exr, -1, 160)
        PD = 4
        af = []
        for j in range(1, 8): af += [(j, k, u) for k, u in enumerate(self.af_units(j, lambda f, j=j: aAF + ((j*16 + f) % 6)*4))]
        def take():
            j, k, u = af.pop(0)
            if k == 0:
                j, k, u2 = af.pop(0)
                return [F(waittag(f'wo{j}') + I('s_barrier'), cost=2), F(u), F(u2)]
            return [F(u)]
        first = []
        for _ in range(PD): first += take()
        for f in first: f.lo = 150; f.hi = 166
        self.sch('tail', main, [sm, rd, nm, first])
        self.stamp('main', 'o')
        for j in range(1, 8):
            p = j // 2; sub = j % 2
            main = []; rs = []
            for ks in range(4):
                for nt in range(4):
                    f = j*16 + ks*4 + nt
                    for t in range(5):
                        B = vr(self.own(ks, t)) if sub == 0 else ar(aPART + (ks*5+t)*4)
                        c = '0' if (sub == 0 and ks == 0) else vr(self.acc(p, t, nt))
                        main += I(f'{MF} {vr(self.acc(p, t, nt))}, {ar(aAF + (f % 6)*4)}, {B}, {c}')
                    if af:
                        g = (ks*4 + nt)*5
                        for x in take(): x.lo = g; x.hi = g + 3; rs.append(x)
            streams = [rs]
            if j == 1:
                main[0] = waittag('exr') + [main[0]]
                streams.append([F(I('s_barrier'), 0, 2)] + self.dma_stream(self.wo_units(3) + self.wo_units(4), 3, 76, slack=1))
            nd = 0
            if j in (2, 3, 4): streams.append(self.dma_stream(self.wo_units(j + 3), 2, 33 if sub == 0 else 60, slack=1)); nd = 34
            if sub == 0:
                su = self.store_units(p - 1)
                fs = FS(su, 2, 79); k = 0
                for f in fs:
                    if any(x.kind == 'vst' for x in f.ins):
                        f.lo = nd + (k * (78 - nd)) // 10; k += 1
                streams.append(fs)
            self.sch(f'o{j}', main, streams)
            self.stamp('o')
        for u in self.store_units(3): e(u)
    def peephole(self, prog):
        out = []; prev = {}
        for x in prog:
            if x.kind in ('label', 'branch'): prev = {}
            if x.kind == 'salu' and x.op == 's_add_u32' and len(x.writes) == 1:
                w = next(iter(x.writes))
                if w in ('m0', sT0, sT2) and prev.get(w) == x.text and w not in x.reads: continue
            for w in x.writes:
                prev.pop(w, None)
                for k in [k for k, v in prev.items() if re.search(rf'\b{w}\b', v.split(',', 1)[1])]: prev.pop(k)
            if x.kind == 'salu' and x.op == 's_add_u32' and len(x.writes) == 1: prev[next(iter(x.writes))] = x.text
            out.append(x)
        return out
    def fold(self, prog):
        idx = {x.text: k for k, x in enumerate(prog) if x.kind == 'label'}
        its = [i for i in range(16) if f'L_loopmark{i}:' in idx]
        norm = lambda x: re.sub(r'(L_stub|L_ret)\d+', r'\1', x.text)
        body = {i: [norm(x) for x in prog[idx[f'L_loopmark{i}:'] + 1: idx[f'L_loopend{i}:']]] for i in its}
        last = its[-1]; first = last
        while first - 1 in body and body[first - 1] == body[last]: first -= 1
        self.log.append(('loop', first, last, len(body[last])))
        for i in range(first + 1, last + 1): self.stubs.remove(i)
        a = idx[f'L_loopmark{first}:']; b = idx[f'L_loopend{first}:']; c = idx[f'L_loopend{last}:']
        return prog[:a] + I(f's_add_u32 {sIT}, {sKVOFF}, {(last + 6)*8192}') + prog[a:b] + \
            I(f's_cmp_lg_u32 {sIT}, {sKO}\ns_cbranch_scc1 L_loopmark{first}') + prog[c + 1:]
    def build(self):
        self.prologue(); self.q_phase(); self.q_to_attn(); self.stamp('main', 'q', 'a')
        for i in range(1, 16):
            if i == 15: self.stamp('o')
            self.iteration(i)
            if i in (3, 10, 12): self.stamp('main')
            if i < 15 and not (self.c.loop and 4 <= i < self.c.lend): self.stamp('a')
        e = self.e
        if self.c.stamps:
            e('s_waitcnt vmcnt(0)'); self.stamp()
            if self.c.dbgwg >= 0:
                e(f'''s_load_dwordx2 s[24:25], s[0:1], 88
                s_mov_b32 s26, 256
                s_cmp_lg_u32 s2, {self.c.dbgwg}
                s_cbranch_scc1 L_end
                s_cmp_lg_u32 {sW}, 0
                s_cbranch_scc1 L_end
                v_readfirstlane_b32 {sT1}, v255
                v_lshlrev_b32 v2, 2, v{vLANE}
                v_subrev_u32 v4, {sT1}, v255
                buffer_store_dword v4, v2, {SWS}, 0 offen
                s_endpgm''')
            e(f'''s_mov_b64 s[24:25], s[56:57]
            s_mov_b32 s26, 0x10000000
            s_mul_i32 {sT1}, s2, {self.nst*8}
            s_add_u32 {sT1}, {sT1}, {STAMP_OFF}
            s_cmp_lg_u32 {sW}, 0
            s_cbranch_scc1 L_end
            v_lshlrev_b32 v2, 3, v{vLANE}
            v_mov_b32 v4, v255
            v_mov_b32 v5, 0
            v_cmp_gt_u32 vcc, {self.nst}, v{vLANE}
            s_and_saveexec_b64 s[58:59], vcc
            buffer_store_dwordx2 v[4:5], v2, {SWS}, {sT1} offen''')
        e('L_end:\ns_endpgm')
        if self.c.nomem:
            def drop(x):
                if x.kind not in ('dma', 'vld', 'vst'): return False
                t = x.text
                if 'buffer_load_dword a' in t: return 'p' in self.c.nomem and 's[84:87]' not in t
                if SX in t or SWQ in t: return 'q' in self.c.nomem
                if SK in t or SV in t: return 'k' in self.c.nomem
                if SWO in t: return 'o' in self.c.nomem
                if x.tag == 'st': return 's' in self.c.nomem
                return False
            self.p = [x for x in self.p if not drop(x)]
        prog = finalize(self.peephole(self.p))
        if self.c.loop: prog = self.fold(prog)
        for i in self.stubs: prog += I(f'L_stub{i}:\ns_call_b64 {sRET}, L_rare\ns_branch L_ret{i}')
        prog += finalize(self.rare())
        prog += I('L_codeend:')
        return prog

from gen2 import reduce_kernel

def generate(cfg, path):
    g = Gen(cfg)
    main = g.build()
    if cfg.kpolB != '=' or cfg.vpolB != '=':
        import copy
        c2 = copy.copy(cfg)
        if cfg.kpolB != '=': c2.kpol = cfg.kpolB
        if cfg.vpolB != '=': c2.vpol = cfg.vpolB
        m2 = Gen(c2).build()
        for x in m2: x.text = re.sub(r'\bL_(\w+)', r'LB_\1', x.text)
        main = I('s_bitcmp1_b32 s2, 2\ns_cbranch_scc1 LB_entry') + main + I('LB_entry:') + m2
    red = reduce_kernel(cfg)
    s = make_file([(KN, 256, 256, 163840), ('reduce_heads_kernel', 640, 256, 0)],
                  [(KN, text_of(main), 512, 102, 256), ('reduce_heads_kernel', text_of(red), 96, 32, 96)])
    open(path, 'w').write(s)
    open(path[:-2] + '.nst', 'w').write(str(g.nst))
    return g, main

if __name__ == '__main__':
    cfg = Cfg()
    out = sys.argv[1]
    for kv in sys.argv[2:]:
        k, v = kv.split('=')
        cur = getattr(cfg, k)
        setattr(cfg, k, type(cur)(int(v)) if isinstance(cur, (bool, int)) and not isinstance(cur, float) else type(cur)(v.replace('+', ' ')))
    g, main = generate(cfg, out)
    from collections import Counter
    print(out, 'stamps', g.nst, dict(Counter(i.kind for i in main)))
    if cfg.verbose:
        for l in g.log: print(*l)
```

```python
import sys, math, struct, re
from asmlib import *
from gen_common import make_file, KN

class Cfg:
    kpol = 'nt'; vpol = 'nt'; kpolB = '='; vpolB = '='; wpol = ''; stpol = 'sc1'; rdpol = ''; pfpol = ''
    stamps = False; stset = 'main'; clk = 0
    codepf = 1
    kv_pro = 4
    kv_end = 13
    l2pf = 1; pfit = 11; l2pfq = 0
    nstg = 3
    late = 1
    early5 = 1
    rot = 2
    vsp = 4
    kveven = 1
    thr = 8.0
    loop = 1
    nomem = ''
    verbose = 0
    dbgwg = -1
    normlast = 140
    lend = 10
    dlo = 24
    dhi = 80
STAMP_OFF = 0x8000000
PART_BYTES = 163840
def f32(x): return '0x%08x' % struct.unpack('<I', struct.pack('<f', x))[0]

SX, SWQ, SK, SV, SWO, SWS = 's[4:7]', 's[8:11]', 's[12:15]', 's[16:19]', 's[20:23]', 's[24:27]'
sW, sHH, sQH = 's3', 's28', 's29'
sKVOFF, sKVLDS, sWQOFF, sXOFF, sXLDS, sWO0, sWO1, sWOLDS, sPW = 's30', 's31', 's32', 's33', 's34', 's35', 's36', 's37', 's38'
sC, sT = 's40', 's41'
sT0, sT1, sT2, sT3 = 's42', 's43', 's44', 's45'
sRET = 's[60:61]'
sRB, sDB, sKO, sVO, sIT = 's46', 's47', 's52', 's53', 's50'
sB, sHP, sH0 = 's48', 's49', 's51'
sWQC, sXC, sWQB, sXB, sOC, sOB, sPC = 's88', 's89', 's90', 's91', 's92', 's93', 's94'
STAMP0 = 62
def O(t, dt): return (t * 8 + dt) * 4
S0 = 160; P0 = 200; NM4 = 220
def Sreg(t, kt): return S0 + (t * 2 + kt) * 4
def Preg(t): return P0 + 4 * t
vMX0, vMX1, vTA, vTB = 240, 241, 242, 243
vK, vVE, vVO, aK, aVE = 244, 245, 246, 247, 248
vKVA, vKVB, vLANE, vWOV, vOE = 249, 250, 251, 252, 253
vWQA, vWQB, vX0, vX1 = 200, 201, 202, 203
vQE = [204, 205, 206]; vQO = [207, 208, 209]; vXR = [210, 211]
vWA = [212, 213]
vWA1 = 254
vRL = 240
vOEs, vOOs = 245, 246
vEX1, vEX2, vEXR1, vEXR2, vL16 = 247, 248, 249, 250, 254
aVF, aAF, aKF, aL, aONE, aQ = 0, 80, 104, 136, 156, 160
aPART = 0; aA0 = 160
def Qf(ks, t): return aQ + (t * 4 + ks) * 4
def vr(b, n=4): return f'v[{b}:{b+n-1}]'
def ar(b, n=4): return f'a[{b}:{b+n-1}]'
SLOT = 32768
WQBUF = [147456, 65536, 102400]
XBUF = [81920, 126976]
WOSLOT = [1, 2, 1, 3, 4, 0, 2, 1]
MF = 'v_mfma_f32_16x16x32_bf16'

def FS(units, lo=-1, hi=10**6, step=None):
    return [F(u, lo if step is None else int(lo + k * step), hi) for k, u in enumerate(units)]

class Gen:
    def __init__(self, cfg):
        self.c = cfg; self.p = []; self.nst = 0; self.stubs = []; self.log = []
    def e(self, x, tag=None):
        self.p += I(x, tag) if isinstance(x, str) else x
    def stamp_i(self, grp='all'):
        if self.c.stamps and grp in ('all', self.c.stset):
            self.nst += 1
            return I(f's_mem{"" if self.c.clk else "real"}time s[62:63]\ns_waitcnt lgkmcnt(0)\nv_writelane_b32 v255, s62, {self.nst - 1}')
        return []
    def stamp(self, *grps):
        for g in grps or ('all',): self.e(self.stamp_i(g))
    def sch(self, name, main, streams, **kw):
        v = []
        self.e(sched(main, streams, verbose=v, **kw))
        self.log.append((name,) + v[0])
    @staticmethod
    def pol(p): return (' ' + p) if p else ''
    def kvp(self, srd): return self.pol(self.c.kpol if srd == SK else self.c.vpol)
    def kv_dma(self, srd, tile, lds, tag):
        us = []
        for k in range(4):
            u = I(f's_add_u32 m0, {sKVLDS}, {lds}\ns_add_u32 {sT2}, {sKVOFF}, {tile*8192}')
            u += I(f'buffer_load_dwordx4 v{vKVA if k % 2 == 0 else vKVB}, {srd}, {sT2} offen offset:{k*1024}{self.kvp(srd)} lds', tag=tag)
            us.append(u)
        return us
    def kv_stage(self, st):
        b = (st % 5) * SLOT
        return (self.kv_dma(SK, st + 1, b, f'kv{st}') if st < 15 else []) + self.kv_dma(SV, st, b + 16384, f'kv{st}')
    def kv_stage_dyn(self, st):
        us = []
        for part in range(2):
            for k in range(4):
                u = I(f's_add_u32 m0, {sDB}, {part*16384}') if k == 0 else []
                if k == 0: us.append(u); u = []
                u += I(f'buffer_load_dwordx4 v{vKVA if k % 2 == 0 else vKVB}, {SK if part == 0 else SV}, {sKO if part == 0 else sVO} offen offset:{k*1024}{self.kvp(SK if part == 0 else SV)} lds', tag=f'kv{st}')
                us.append(u)
        return us
    def stg(self, st, part, k):
        if st >= 6: return ar(32 + ((st - 6)*8 + part*4 + k)*4)
        return ar(160 + ((st - 2)*8 + part*4 + k)*4)
    def kv_reg(self, st, parts=(0, 1)):
        us = []
        for part in parts:
            srd, tile = (SK, st + 1) if part == 0 else (SV, st)
            for k in range(4):
                us.append(I(f's_add_u32 {sT2}, {sKVOFF}, {tile*8192}') +
                          I(f'buffer_load_dwordx4 {self.stg(st, part, k)}, v{vKVA if k % 2 == 0 else vKVB}, {srd}, {sT2} offen offset:{k*1024}{self.kvp(srd)}'))
        return us
    def kv_drain(self, st, parts=(0, 1)):
        us = []
        for part in parts:
            for k in range(4):
                adr, off = {2: (vWA[0], 0), 3: (vWA[0], SLOT), 4: (vWA[1], 0), 6: (vWA1, 0), 7: (vWA1, SLOT)}[st]
                off += part*16384
                us.append(I(f'ds_write_b128 v{adr}, {self.stg(st, part, k)} offset:{off + k*1024}', tag=f'kv{st}'))
        return us
    def wq_next(self, j):
        if self.c.rot == 2 and j < 2: return I(f's_add_u32 {sWQB}, {sWQOFF}, {j*262144}')
        wrap = f's_cmp_eq_u32 {sWQC}, 0x400000\ns_cselect_b32 {sWQC}, 0x80000, {sWQC}' if self.c.rot == 2 else f's_and_b32 {sWQC}, {sWQC}, 0x3fffff'
        return I(f's_add_u32 {sWQB}, {sWQC}, {sWQOFF}\ns_add_u32 {sWQC}, {sWQC}, 262144\n{wrap}')
    def x_next(self, J):
        if self.c.rot == 2 and J < 1: return I(f's_add_u32 {sXB}, {sXOFF}, 0')
        wrap = f's_cmp_eq_u32 {sXC}, 1024\ns_cselect_b32 {sXC}, 128, {sXC}' if self.c.rot == 2 else f's_and_b32 {sXC}, {sXC}, 1023'
        return I(f's_add_u32 {sXB}, {sXC}, {sXOFF}\ns_add_u32 {sXC}, {sXC}, 128\n{wrap}')
    def wo_next(self, j):
        u = I(f's_add_u32 {sOB}, {sOC}, {sWO0 if j % 2 == 0 else sWO1}')
        if j % 2 == 1: u += I(f's_add_u32 {sOC}, {sOC}, 128\ns_and_b32 {sOC}, {sOC}, 511')
        return u
    def wq_units(self, j):
        us = []
        for k in range(4):
            u = I(f's_add_u32 m0, {sKVLDS}, {WQBUF[j % 3]}\ns_add_u32 {sT0}, {sWQB}, {k*32768 - k*1024}')
            u += I(f'buffer_load_dwordx4 v{vWQA if k < 2 else vWQB}, {SWQ}, {sT0} offen offset:{k*1024}{self.pol(self.c.wpol)} lds', tag=f'wq{j}')
            us.append(u)
        if j == 0: us[0] = self.wq_next(0) + us[0]
        if j < 15: us[-1] += self.wq_next(j + 1)
        return us
    def x_units(self, J):
        us = []
        for k in range(5):
            im = (k % 4) * 1024
            u = I(f's_add_u32 m0, {sXLDS}, {XBUF[J % 2] + (k // 4)*4096}\ns_add_u32 {sT0}, {sXB}, {k*8192 - im}')
            u += I(f'buffer_load_dwordx4 v{vX0 if k % 2 == 0 else vX1}, {SX}, {sT0} offen offset:{im}{self.pol(self.c.wpol)} lds', tag=f'x{J}')
            us.append(u)
        if J == 0: us[0] = self.x_next(0) + us[0]
        if J < 7: us[-1] += self.x_next(J + 1)
        return us
    def wo_units(self, j):
        us = []
        for k in range(8):
            im = (k % 4) * 1024
            u = I(f's_add_u32 m0, {sWOLDS}, {WOSLOT[j]*SLOT + (k // 4)*4096}\ns_add_u32 {sT0}, {sOB}, {k*8192 - im}')
            u += I(f'buffer_load_dwordx4 v{vWOV}, {SWO}, {sT0} offen offset:{im}{self.pol(self.c.wpol)} lds', tag=f'wo{j}')
            us.append(u)
        if j == 0: us[0] = self.wo_next(0) + us[0]
        if j < 7: us[-1] += self.wo_next(j + 1)
        return us
    def l2pf_q(self):
        pol = self.pol(self.c.pfpol); L = f'v{vLANE}'
        return [I(f'v_lshrrev_b32 v214, 3, {L}\nv_and_b32 v215, 7, {L}'),
                I(f'v_lshlrev_b32 v214, 13, v214\nv_lshl_add_u32 v214, v215, 6, v214'),
                I(f's_lshl_b32 {sT3}, {sB}, 19\ns_lshl_b32 {sT1}, {sW}, 17'),
                I(f's_add_u32 {sT3}, {sT3}, {sT1}\ns_lshl_b32 {sT1}, {sH0}, 8'),
                I(f's_add_u32 {sT3}, {sT3}, {sT1}\nbuffer_load_dword a138, v214, {SWQ}, {sT3} offen{pol}'),
                I(f's_add_u32 {sT3}, {sT3}, 65536\nbuffer_load_dword a139, v214, {SWQ}, {sT3} offen{pol}'),
                I(f'v_lshlrev_b32 v215, 6, {L}\ns_mul_i32 {sT3}, {sHP}, 40960'),
                I(f's_mul_i32 {sT1}, {sW}, 10240\ns_add_u32 {sT3}, {sT3}, {sT1}'),
                I(f'buffer_load_dword a140, v215, {SX}, {sT3} offen{pol}'),
                I(f's_add_u32 {sT3}, {sT3}, 4096\nbuffer_load_dword a141, v215, {SX}, {sT3} offen{pol}'),
                I(f's_add_u32 {sT3}, {sT3}, 4096\nbuffer_load_dword a142, v215, {SX}, {sT3} offen{pol}')]
    def l2pf_wo(self):
        pol = self.pol(self.c.pfpol)
        return [I(f'v_lshlrev_b32 v{vTA}, 6, v{vLANE}\ns_lshl_b32 {sT3}, {sH0}, 17'),
                I(f's_lshl_b32 {sT1}, {sB}, 15\ns_add_u32 {sT3}, {sT3}, {sT1}'),
                I(f's_lshl_b32 {sT1}, {sW}, 13\ns_add_u32 {sT3}, {sT3}, {sT1}'),
                I(f'buffer_load_dword a240, v{vTA}, {SWO}, {sT3} offen{pol}'),
                I(f's_add_u32 {sT3}, {sT3}, 4096\nbuffer_load_dword a241, v{vTA}, {SWO}, {sT3} offen{pol}')]
    def dma_stream(self, units, lo, hi, slack=4):
        fs = []; n = len(units); prev = {}
        for k, u in enumerate(units):
            l = lo + (k * (hi - lo + 1)) // n
            after = False
            for x in u:
                c = 1
                if x.op == 's_cselect_b32':
                    fs[-1].ins.append(x); fs[-1].cost += 1; continue
                if x.kind == 'salu' and x.op == 's_add_u32' and len(x.writes) == 1:
                    w = next(iter(x.writes))
                    if prev.get(w) == x.text and w not in x.reads: c = 0
                    prev[w] = x.text
                if x.kind != 'salu': fs.append(F([x], l, l + slack, cost=c)); after = True
                elif after: fs.append(F([x], l, 10**6, cost=c))
                else: fs.append(F([x], l - 3, l, cost=c))
        return fs
    def rot_setup(self):
        if self.c.rot != 2: return f's_and_b32 {sXC}, {sXC}, {7 if self.c.rot else 0}'
        return f's_cmp_ge_u32 {sXC}, 7\ns_cselect_b32 {sWQC}, 7, 0\ns_sub_u32 {sXC}, {sXC}, {sWQC}\ns_add_u32 {sXC}, {sXC}, 1'
    def prologue(self):
        e = self.e; L = f'v{vLANE}'
        e(f'''
        s_cmp_ge_u32 s2, 256
        s_cbranch_scc1 L_end
        s_load_dwordx16 s[64:79], s[0:1], 0
        s_load_dwordx4 s[80:83], s[0:1], 64
        s_load_dwordx2 s[24:25], s[0:1], 96
        v_lshrrev_b32 v1, 6, v0
        v_and_b32 {L}, 63, v0
        v_readfirstlane_b32 {sW}, v1
        s_and_b32 s46, s2, 7
        s_lshr_b32 s47, s2, 3
        s_lshr_b32 {sB}, s47, 2
        s_and_b32 {sHP}, s47, 3
        s_and_b32 s50, s46, 3
        s_lshl_b32 s50, s50, 2
        s_add_u32 s50, s50, {sHP}
        s_lshl_b32 {sH0}, s50, 1
        s_lshr_b32 s52, s46, 2            ; branch
        s_and_b32 {sHH}, {sW}, 1
        s_lshr_b32 {sQH}, {sW}, 1
        v_and_b32 v2, 3, {L}
        v_lshlrev_b32 v2, 4, v2           ; cc*16
        v_lshrrev_b32 v3, 4, {L}          ; g
        v_bfe_u32 v4, {L}, 2, 2           ; r
        v_lshl_add_u32 v5, v3, 6, v2
        v_lshl_add_u32 v{vKVA}, v4, 8, v5
        v_xor_b32 v{vKVB}, 32, v{vKVA}
        v_lshl_add_u32 v{vWQA}, v4, 13, v5
        v_xor_b32 v{vWQB}, 32, v{vWQA}
        v_lshrrev_b32 v6, 5, {L}
        v_bfe_u32 v7, {L}, 2, 3
        v_lshl_add_u32 v8, v6, 6, v2
        v_lshl_add_u32 v8, v7, 10, v8
        s_lshl_b32 {sT0}, {sHH}, 5
        v_xor_b32 v{vX0}, {sT0}, v8
        v_xor_b32 v{vX1}, 32, v{vX0}
        s_lshl_b32 {sT0}, {sQH}, 12
        s_lshl_b32 {sKVLDS}, {sHH}, 13
        s_add_u32 {sKVLDS}, {sKVLDS}, {sT0}
        s_lshl_b32 {sKVOFF}, {sHH}, 17
        s_add_u32 {sKVOFF}, {sKVOFF}, {sT0}
        s_add_u32 {sT1}, {sH0}, {sHH}
        s_lshl_b32 {sWQOFF}, {sT1}, 8
        s_lshl_b32 {sT0}, {sQH}, 17
        s_add_u32 {sWQOFF}, {sWQOFF}, {sT0}
        s_mul_i32 {sXOFF}, {sW}, {5*8192}
        s_mul_i32 {sXLDS}, {sW}, {5*1024}
        s_lshl_b32 {sXC}, {sHP}, 1
        s_add_u32 {sXC}, {sXC}, {sB}
        {self.rot_setup()}
        s_lshl_b32 {sWQC}, {sXC}, 19
        s_lshl_b32 {sXC}, {sXC}, 7
        s_mul_i32 s53, {sB}, 163840
        s_lshl_b32 s54, {sB}, 5
        s_add_u32 s54, s54, {sH0}
        s_lshl_b32 s54, s54, 17
        s_mov_b32 s6, 163840
        s_mov_b32 s7, 0x20000
        s_mov_b32 s10, 0x400000
        s_mov_b32 s11, 0x20000
        s_mov_b32 s14, 0x40000
        s_mov_b32 s15, 0x20000
        s_mov_b32 s18, 0x40000
        s_mov_b32 s19, 0x20000
        s_cmp_eq_u32 s52, 0
        s_cselect_b64 s[4:5], s[64:65], s[74:75]
        s_cselect_b64 s[8:9], s[70:71], s[80:81]
        s_cselect_b64 s[12:13], s[66:67], s[76:77]
        s_cselect_b64 s[16:17], s[68:69], s[78:79]
        s_cselect_b64 s[20:21], s[72:73], s[82:83]
        s_add_u32 s4, s4, s53
        s_addc_u32 s5, s5, 0
        ''')
        self.stamp()
        for u in self.x_units(0) + self.wq_units(0) + self.wq_units(1): e(u)
        e(f'''
        s_add_u32 s12, s12, s54
        s_addc_u32 s13, s13, 0
        s_add_u32 s16, s16, s54
        s_addc_u32 s17, s17, 0
        ''')
        self.kvq = self.kv_dma(SK, 0, SLOT + 16384, 'k0') + self.kv_stage(0) + self.kv_dma(SK, 2, SLOT, 'kv1')
        for st in (2, 3, 4)[:self.c.nstg]: self.kvq += self.kv_reg(st)
        for u in self.x_units(1) + self.wq_units(2): e(u)
        for _ in range(self.c.kv_pro): e(self.kvq.pop(0))
        if self.c.codepf:
            e(f'''s_getpc_b64 s[84:85]
            L_pc0:
            s_mov_b32 s86, L_codeend-L_pc0
            s_mov_b32 s87, 0x20000
            v_lshlrev_b32 v22, 7, v0
            buffer_load_dword a136, v22, s[84:87], 0 offen
            s_mov_b32 {sT0}, 32768
            buffer_load_dword a137, v22, s[84:87], {sT0} offen''')
        e(f'''
        s_lshl_b32 {sT0}, {sQH}, 16
        s_lshl_b32 {sT2}, {sHH}, 9
        s_add_u32 {sT0}, {sT0}, {sT2}
        s_lshl_b32 {sWO0}, {sT1}, 17
        s_add_u32 {sWO0}, {sWO0}, {sT0}
        s_xor_b32 {sWO1}, {sWO0}, 0x20000
        s_lshl_b32 {sWOLDS}, {sHH}, 14
        s_lshl_b32 {sT0}, {sQH}, 13
        s_add_u32 {sWOLDS}, {sWOLDS}, {sT0}
        s_mul_i32 {sPW}, {sW}, 40960
        s_and_b32 {sPC}, {sB}, {3 if self.c.rot else 0}
        s_lshl_b32 {sOC}, {sPC}, 7
        s_mul_i32 {sPC}, {sPC}, 10240
        s_mov_b32 {sC}, {f32(128 ** -0.5 * math.log2(math.e))}
        s_mov_b32 {sT}, {f32(self.c.thr)}
        s_lshl_b32 s55, s52, 3
        s_add_u32 s55, s55, {sB}
        s_lshl_b32 s55, s55, 4
        s_add_u32 s55, s55, s50
        s_mul_i32 s55, s55, {PART_BYTES}
        s_mov_b32 s22, 0x400000
        s_mov_b32 s23, 0x20000
        s_mov_b64 s[56:57], s[24:25]
        s_add_u32 s24, s24, s55
        s_addc_u32 s25, s25, 0
        s_mov_b32 s26, {PART_BYTES}
        s_mov_b32 s27, 0x20000
        v_and_b32 v9, 1, v3
        v_lshlrev_b32 v9, 5, v9           ; 32*(g&1)
        v_xor_b32 v{vWOV}, v9, v8
        v_and_b32 v10, 15, {L}
        v_and_b32 v11, 3, {L}
        v_lshrrev_b32 v12, 2, v10
        v_and_b32 v13, 1, v12
        v_lshlrev_b32 v13, 5, v13
        v_lshlrev_b32 v14, 4, v3
        v_xor_b32 v13, v13, v14
        v_lshl_add_u32 v13, v11, 6, v13
        v_lshl_add_u32 v13, v12, 10, v13
        s_lshl_b32 {sT1}, {sHH}, 13
        v_add_u32 v{aK}, {sT1}, v13
        v_lshl_add_u32 v15, v11, 3, v9
        v_lshl_add_u32 v15, v4, 6, v15
        v_lshl_add_u32 v16, v3, 10, v15
        v_add_u32 v{aVE}, {sT1}, v16
        v_lshl_add_u32 v16, v3, 11, v15
        v_add_u32 v16, {sT1}, v16
        v_add_u32 v{vQE[0]}, {WQBUF[0]}, v16
        v_add_u32 v{vQE[1]}, {WQBUF[1]}, v16
        v_add_u32 v{vQE[2]}, {WQBUF[2]}, v16
        v_xor_b32 v{vQO[0]}, 32, v{vQE[0]}
        v_xor_b32 v{vQO[1]}, 32, v{vQE[1]}
        v_xor_b32 v{vQO[2]}, 32, v{vQE[2]}
        v_lshrrev_b32 v17, 3, v10
        v_lshlrev_b32 v18, 5, v17
        v_xor_b32 v18, v18, v14
        v_and_b32 v19, 7, {L}
        v_lshl_add_u32 v18, v19, 6, v18
        v_lshl_add_u32 v18, v17, 10, v18
        s_mul_i32 {sT2}, {sQH}, 10240
        v_add_u32 v18, {sT2}, v18
        v_add_u32 v{vXR[0]}, {XBUF[0]}, v18
        v_add_u32 v{vXR[1]}, {XBUF[1]}, v18
        v_lshrrev_b32 v19, 1, v3
        v_lshl_add_u32 v20, v9, 3, v15
        v_lshl_add_u32 v20, v19, 10, v20
        s_lshl_b32 {sT2}, {sHH}, 14
        v_add_u32 v{vOE}, {sT2}, v20
        v_lshlrev_b32 v{vWA1}, 4, {L}
        v_add_u32 v{vWA1}, {sKVLDS}, v{vWA1}
        v_add_u32 v{vWA[0]}, 65536, v{vWA1}
        v_add_u32 v{vWA[1]}, 131072, v{vWA1}
        v_add_u32 v{vWA1}, {SLOT}, v{vWA1}
        v_mov_b32 v21, 0x3f803f80
        v_accvgpr_write_b32 a{aONE}, v21
        v_accvgpr_write_b32 a{aONE+1}, v21
        v_accvgpr_write_b32 a{aONE+2}, v21
        v_accvgpr_write_b32 a{aONE+3}, v21
        ''')
    def q_reads(self, j):
        st = (j & 1) * 52
        xr = [I(f'ds_read_b128 {ar(st + 32 + 4*t)}, v{vXR[(j >> 1) & 1]} offset:{t*2048 + (j & 1)*512}') for t in range(5)]
        aa = []
        for dt in range(8):
            for u in range(2):
                adr = (vQE if dt % 2 == 0 else vQO)[j % 3]
                aa.append(I(f'ds_read_b64_tr_b16 {ar(st + 4*dt + 2*u, 2)}, v{adr} offset:{u*1024 + (dt >> 1)*256}'))
        return aa[:2] + xr + aa[2:]
    def k_reads(self, base, tag='kr'):
        us = [I(f'v_add_u32 v{vK}, {base}, v{aK}')]
        for ks in range(4):
            for kt in range(2):
                us.append(I(f'ds_read_b128 {ar(aKF + (kt*4+ks)*4)}, v{vK} offset:{kt*4096 + ks*256}', tag=tag))
        return us
    def v_reads(self, base, dst=aVF, tag='vr'):
        pre = [I(f'v_add_u32 v{vVE}, {base}, v{aVE}'), I(f'v_xor_b32 v{vVO}, 32, v{vVE}')]
        us = []
        for dt in range(8):
            for h in range(2):
                us.append((dt, I(f'ds_read_b64_tr_b16 {ar(dst + 4*dt + 2*h, 2)}, v{vVE if dt % 2 == 0 else vVO} offset:{16384 + h*4096 + (dt >> 1)*256}', tag=tag)))
        return pre, us
    def q_mfmas(self, j, touter=False):
        st = (j & 1) * 52; m = []
        order = [(t, dt) for t in range(5) for dt in range(8)] if touter else [(t, dt) for dt in range(8) for t in range(5)]
        for t, dt in order:
            m += I(f'{MF} {vr(O(t, dt))}, {ar(st + 4*dt)}, {ar(st + 32 + 4*t)}, {vr(O(t, dt)) if j else "0"}')
        return m
    def s_mfmas(self, zero=False):
        m = []
        for t in range(5):
            for ks in range(4):
                for kt in range(2):
                    c = vr(Sreg(t, kt)) if ks else ('0' if zero else vr(NM4 + 4*t))
                    m += I(f'{MF} {vr(Sreg(t, kt))}, {ar(aKF + (kt*4+ks)*4)}, {ar(Qf(ks, t))}, {c}')
        m[0] = waittag('kr') + [m[0]]
        return m
    def pv_mfmas(self, first=False, vf=aVF, ones_first=True):
        ones = [I(f'{MF} {ar(aL + 4*t)}, {ar(aONE)}, {vr(Preg(t))}, {"0" if first else ar(aL + 4*t)}')[0] for t in range(5)]
        m = list(ones) if ones_first else []
        for t in range(5):
            if not ones_first: m.append(ones[t])
            for dt in range(8):
                m += I(f'{MF} {vr(O(t, dt))}, {ar(vf + 4*dt)}, {vr(Preg(t))}, {"0" if first else vr(O(t, dt))}')
        return m
    def q_convert(self, t):
        us = []
        for ks in range(4):
            x = O(t, 2*ks); y = x + 4
            for k in range(8): us.append(I(f'v_mul_f32 v{x+k}, {sC}, v{x+k}'))
        for ks in range(4):
            x = O(t, 2*ks); y = x + 4
            for s in (f'v{x}, v{x}, v{x+1}', f'v{y}, v{y}, v{y+1}', f'v{x+1}, v{x+2}, v{x+3}', f'v{y+1}, v{y+2}, v{y+3}'):
                us.append(I('v_cvt_pk_bf16_f32 ' + s))
        for op in ('32', '16'):
            for ks in range(4):
                x = O(t, 2*ks); y = x + 4
                for k in range(2):
                    u = I(f'v_permlane{op}_swap_b32 v{x+k}, v{y+k}'); u[0].cost = 2; us.append(u)
        for ks in range(4):
            x = O(t, 2*ks); y = x + 4
            for k, r in enumerate((x, x+1, y, y+1)): us.append(I(f'v_accvgpr_write_b32 a{Qf(ks, t)+k}, v{r}'))
        return us
    def exp_units(self, t):
        b = Sreg(t, 0)
        return [I(f'v_exp_f32 v{b+k}, v{b+k}') for k in range(8)], [I(f'v_cvt_pk_bf16_f32 v{Preg(t)+k}, v{b+2*k}, v{b+2*k+1}') for k in range(4)]
    def rowmax(self, m, c, b):
        return I(f'''v_max3_f32 v{m}, v{b}, v{b+1}, v{b+2}
        v_max3_f32 v{c}, v{b+3}, v{b+4}, v{b+5}
        v_max3_f32 v{m}, v{m}, v{b+6}, v{b+7}
        v_max_f32 v{m}, v{m}, v{c}
        v_mov_b32 v{c}, v{m}
        v_permlane32_swap_b32 v{m}, v{c}
        v_max_f32 v{m}, v{m}, v{c}
        v_mov_b32 v{c}, v{m}
        v_permlane16_swap_b32 v{m}, v{c}
        v_max_f32 v{m}, v{m}, v{c}''')
    def softmax_streams(self, i, ck, exp_dead, cvt_lo):
        mx = []
        for t in range(5):
            b = Sreg(t, 0)
            for k in range(4):
                m = vMX0 if k % 2 == 0 else vMX1
                if t == 0 and k < 2: mx.append(I(f'v_max_f32 v{m}, v{b+2*k}, v{b+2*k+1}'))
                else: mx.append(I(f'v_max3_f32 v{m}, v{b+2*k}, v{b+2*k+1}, v{m}'))
        mx.append(I(f'v_max_f32 v{vMX0}, v{vMX0}, v{vMX1}'))
        st = FS(mx + [I(f'v_cmp_lt_f32 vcc, {sT}, v{vMX0}')], -1, ck - 1)
        st.append(F(I(f's_cbranch_vccnz L_stub{i}\nL_ret{i}:'), ck, ck, cost=1))
        self.stubs.append(i)
        for t in range(5):
            ex, cv = self.exp_units(t)
            st += FS(ex, -1, exp_dead(t)) + FS(cv, cvt_lo(t), exp_dead(t))
        return st
    def q_phase(self):
        e = self.e
        e(waittag('x0', 'wq0')); e('s_barrier'); self.stamp('q')
        for u in self.q_reads(0): e(u)
        e(waittag('wq1')); e('s_waitcnt lgkmcnt(0)\ns_barrier')
        for j in range(15):
            d = []
            if j + 3 < 16: d += self.wq_units(j + 3)
            if j % 2 == 1 and (j - 1) // 2 + 2 < 8: d += self.x_units((j - 1) // 2 + 2)
            ke = self.c.kv_end
            if self.c.kveven:
                left = len([k for k in range(j, ke) if k % 2 == 0 or k >= 13])
                n = 0 if (j % 2 == 1 and j < 13) else (-(-len(self.kvq) // max(1, left)))
            else:
                n = -(-len(self.kvq) // max(1, ke - j)) if j < ke else len(self.kvq)
            d += [self.kvq.pop(0) for _ in range(min(n, len(self.kvq)))]
            ds = self.dma_stream(d, 1, min(39, self.c.vsp * len(d)), slack=1) if d else []
            streams = [FS(self.q_reads(j + 1), 0, 30), ds]
            if j == 0 and self.c.l2pfq: streams.append(FS(self.l2pf_q(), 22, 39))
            if j == 14 and self.c.nstg >= 1: streams.append(FS(self.kv_drain(2), 20, 39, step=2))
            if j == 13 and self.c.nstg < 1: streams.append(self.dma_stream(self.kv_stage(2), 4, 36))
            self.sch(f'q{j}', self.q_mfmas(j), streams)
            tags = []
            if j + 2 < 16:
                tags.append(f'wq{j+2}')
                if (j + 2) % 2 == 0: tags.append(f'x{(j+2)//2}')
            if j == 14: tags += ['k0', 'kv0']
            e(waittag(*tags)); e('s_waitcnt lgkmcnt(0)\ns_barrier'); self.stamp('q')
    def q_to_attn(self):
        main = self.q_mfmas(15, touter=True) + self.s_mfmas(zero=True) + self.s_mfmas()
        conv = []
        for t in range(5):
            cu = self.q_convert(t)
            conv += FS(cu, 8*t + 9, 39 + 8*t)
        drains = FS(self.kv_drain(3), 8, 24, step=2) if self.c.nstg >= 2 else []
        if self.c.nstg >= 3: drains += FS(self.kv_drain(4), 24, 40, step=2)
        for f in conv:
            w = [r for x in f.ins for r in x.writes if r[0] == 'a']
            if w and int(w[0][1:]) >= 192: f.lo = max(f.lo, 26 if int(w[0][1:]) < 224 else 42)
        init = []
        for t in range(5):
            b = Sreg(t, 0); lo = 40 + 8*t + 9; hi = 79 + 8*t
            u = [[x] for x in self.rowmax(vMX0, vMX1, b)]
            u += [I(f'v_sub_f32 v{NM4+4*t+k}, 0, v{vMX0}') for k in range(4)]
            u += [I(f'v_sub_f32 v{b+k}, v{b+k}, v{vMX0}') for k in range(8)]
            ex, cv = self.exp_units(t)
            init += FS(u + ex + cv, lo, hi)
        k0 = FS(self.k_reads(SLOT + 16384), -1, 12)
        k1 = self.k_reads(0)
        k1s = [F(k1[0], 60, 79)] + [F(u, 72 + k, 79) for k, u in enumerate(k1[1:])]
        pre, vu = self.v_reads(0)
        vs = FS(pre, 44, 70) + [F(u, 44, 84) for _, u in vu]
        d0 = (self.kv_stage(3) if self.c.nstg < 2 else []) + (self.kv_stage(4) if self.c.nstg < 3 else [])
        v1 = self.dma_stream(d0, 0, 40) if d0 else []
        if self.c.late and not d0: v1 += self.dma_stream(self.kv_reg(6, (0,)), 4, 40)
        v1 += [F(I('s_barrier'), 46, 50)] + self.dma_stream(self.kv_dma(SV, 1, SLOT + 16384, 'kv1'), 50, 64)
        if self.c.late: v1 += self.dma_stream(self.kv_reg(6, (1,) if not d0 else (0, 1)), 66, 86)
        if self.c.early5:
            v1 += [F(waittag('vr') + I('s_barrier'), 88, 90, cost=2)] + self.dma_stream(self.kv_stage(5), 92, 116)
        self.sch('q15..s1', main, [k0, drains, conv + init, k1s, vs, v1], pre_cap=9)
    def iteration(self, i):
        e = self.e
        L0 = 4 if self.c.late else 2
        dyn = self.c.loop and L0 <= i <= self.c.lend
        if dyn and i == L0:
            e(f's_mov_b32 {sRB}, {(L0 % 5)*SLOT}\ns_add_u32 {sDB}, {sKVLDS}, {((L0 - 1) % 5)*SLOT}\ns_add_u32 {sKO}, {sKVOFF}, {(L0 + 5)*8192}\ns_add_u32 {sVO}, {sKVOFF}, {(L0 + 4)*8192}')
        if dyn: e(f'L_loopmark{i}:')
        tags = [f'kv{i}', 'vr'] + (['wo0'] if i == 15 else [])
        if dyn: e('s_waitcnt vmcnt(24) lgkmcnt(0)')
        e(waittag(*tags)); e('s_barrier')
        if i == 15: return self.tail()
        if dyn: dma = self.kv_stage_dyn(i + 4)
        elif i == 1 and self.c.early5: dma = self.kv_reg(7) if self.c.late else []
        elif i in (2, 3) and self.c.late: dma = self.kv_drain(i + 4)
        elif i <= 11: dma = self.kv_stage(i + 4)
        elif i <= 13: dma = self.wo_units(i - 12)
        else: dma = []
        main = self.pv_mfmas(first=(i == 1)) + self.s_mfmas()
        base = sRB if dyn else (i % 5) * SLOT
        sm = self.softmax_streams(i, 11, lambda t: 44 + 8*t, lambda t: 12 + 8*t)
        ks = FS(self.k_reads(base), -1, 36)
        pre, vu = self.v_reads(base)
        vs = FS(pre, 20, 60) + [F(u, 37 + dt, 80) for dt, u in vu]
        streams = [sm, ks, vs]
        ds = self.dma_stream(dma, self.c.dlo, self.c.dhi) if dma else []
        if self.c.l2pf and i == self.c.pfit: ds += FS(self.l2pf_wo(), 77, 84)
        if dyn:
            ds += FS([I(x) for x in (f's_add_u32 {sDB}, {sRB}, {sKVLDS}', f's_add_u32 {sRB}, {sRB}, {SLOT}',
                      f's_cmp_eq_u32 {sRB}, {5*SLOT}\ns_cselect_b32 {sRB}, 0, {sRB}', f's_mov_b32 {sVO}, {sKO}', f's_add_u32 {sKO}, {sKO}, 8192')], 61, 84)
        streams.append(ds)
        self.sch(f'it{i}', main, streams)
        if dyn: e(f'L_loopend{i}:')
    def rare(self):
        p = I('L_rare:\ns_nop 7\ns_nop 1')
        for t in range(5):
            b = Sreg(t, 0)
            p += self.rowmax(vMX0, vMX1, b)
            p += I(f'v_max_f32 v{vMX0}, 0, v{vMX0}')
            for k in range(4): p += I(f'v_sub_f32 v{NM4+4*t+k}, v{NM4+4*t+k}, v{vMX0}')
            for k in range(8): p += I(f'v_sub_f32 v{b+k}, v{b+k}, v{vMX0}')
            p += I(f'v_sub_f32 v{vTA}, 0, v{vMX0}\nv_exp_f32 v{vTA}, v{vTA}')
            for k in range(32): p += I(f'v_mul_f32 v{O(t,0)+k}, v{O(t,0)+k}, v{vTA}')
            for k in range(4):
                p += I(f'v_accvgpr_read_b32 v{vTB}, a{aL+4*t+k}\nv_mul_f32 v{vTB}, v{vTB}, v{vTA}\nv_accvgpr_write_b32 a{aL+4*t+k}, v{vTB}')
            for k in range(4):
                r = Preg(t) + k
                p += I(f'''v_lshlrev_b32 v{vTB}, 16, v{r}
                v_and_b32 v{vMX1}, 0xffff0000, v{r}
                v_mul_f32 v{vTB}, v{vTB}, v{vTA}
                v_mul_f32 v{vMX1}, v{vMX1}, v{vTA}
                v_cvt_pk_bf16_f32 v{r}, v{vTB}, v{vMX1}''')
        p += I(f's_nop 1\ns_setpc_b64 {sRET}')
        return p
    def own(self, ks, t): return self.ownmap[(ks, t)]
    def acc(self, p, t, nt): return 32*t + 16*(p % 2) + 4*nt
    def norm_units(self, t):
        us = [I(f'v_accvgpr_read_b32 v{vRL+t}, a{aL+4*t}'), I(f'v_rcp_f32 v{vRL+t}, v{vRL+t}')]
        for ks in range(4):
            b = O(t, 2*ks)
            for k in range(8): us.append(I(f'v_mul_f32 v{b+k}, v{b+k}, v{vRL+t}'))
            for k in range(4): us.append(I(f'v_cvt_pk_bf16_f32 v{self.own(ks, t) + k}, v{b+2*k}, v{b+2*k+1}'))
            f = ks*5 + t
            adr, off = (vEX1, f*1024) if f < 16 else (vEX2, (f-16)*1024)
            us.append(I(f'ds_write_b128 v{adr}, {vr(self.own(ks, t))} offset:{off}', tag='exw'))
        return us
    def af_units(self, j, dst):
        us = [I(f'v_add_u32 v{vOEs}, {WOSLOT[j]*SLOT}, v{vOE}\nv_xor_b32 v{vOOs}, 32, v{vOEs}')]
        for ks in range(4):
            for nt in range(4):
                d = dst(ks*4 + nt)
                us.append([I(f'ds_read_b64_tr_b16 {ar(d + 2*h, 2)}, v{vOEs if nt % 2 == 0 else vOOs} offset:{ks*4096 + h*2048 + (nt >> 1)*512}', tag=f'af{j}')[0] for h in range(2)])
        return us
    def store_units(self, p):
        us = [I(f's_add_u32 {sT3}, {sPW}, {sPC}'), I(f's_add_u32 {sPC}, {sPC}, 10240'), I(f's_cmp_eq_u32 {sPC}, 40960\ns_cselect_b32 {sPC}, 0, {sPC}')]
        for t in range(5):
            for m in range(2):
                b = self.acc(p, t, 2*m)
                for k in range(4): us.append(I(f'v_cvt_pk_bf16_f32 v{b+k}, v{b+2*k}, v{b+2*k+1}'))
                us.append(I(f's_add_u32 {sT1}, {sT3}, {(t*2+m)*1024}') +
                          I(f'buffer_store_dwordx4 {vr(b)}, v{vL16}, {SWS}, {sT1} offen{self.pol(self.c.stpol)}', tag='st'))
        return us
    def tail(self):
        e = self.e; L = f'v{vLANE}'
        regs = {0: [220, 224, 228, 232], 1: [236, 160, 164, 168], 2: [172, 176, 180, 184], 3: [188, 192, 196, 200], 4: [204, 208, 212, 216]}
        self.ownmap = {(ks, t): regs[t][ks] for t in range(5) for ks in range(4)}
        o0 = []
        for t in range(5):
            for ks in range(4):
                for nt in range(4):
                    o0 += I(f'{MF} {vr(self.acc(0, t, nt))}, {ar(aA0 + (ks*4+nt)*4)}, {vr(self.own(ks, t))}, {vr(self.acc(0, t, nt)) if ks else "0"}')
        pv15 = self.pv_mfmas(vf=aKF, ones_first=False)
        pv15[0] = waittag('vr') + [pv15[0]]
        o0[0] = waittag('af0') + [o0[0]]
        main = self.pv_mfmas() + pv15 + o0
        sm = self.softmax_streams(15, 11, lambda t: 43 + 9*t, lambda t: 12 + 8*t)
        pre, vu = self.v_reads(0, dst=aKF)
        rd = FS(pre + [u for _, u in vu], -1, 30) + FS(self.af_units(0, lambda f: aA0 + 4*f), -1, 70)
        setup = [I(x) for x in (f'v_lshlrev_b32 v{vL16}, 4, {L}', f's_lshl_b32 {sT1}, {sW}, 14', f's_add_u32 {sT1}, {sT1}, 98304',
                 f'v_add_u32 v{vEX1}, {sT1}, v{vL16}', f'v_xor_b32 v{vEXR1}, 0x4000, v{vEX1}', f's_lshl_b32 {sT1}, {sW}, 12',
                 f'v_add_u32 v{vEX2}, {sT1}, v{vL16}', f'v_xor_b32 v{vEXR2}, 0x1000, v{vEX2}')]
        rd += FS(setup, 12, 52)
        rd += [F(waittag('af0') + I('s_barrier'), 72, 80, cost=2)] + self.dma_stream(self.wo_units(2), 74, 100)
        nl = self.c.normlast
        nm = []
        for t in range(5):
            nm += FS(self.norm_units(t), 45 + 9*t + 10, min(89 + 16*t, nl))
        exr = []
        for f in range(20):
            adr, off = (vEXR1, f*1024) if f < 16 else (vEXR2, (f-16)*1024)
            exr.append(I(f'ds_read_b128 {ar(aPART + 4*f)}, v{adr} offset:{off}', tag='exr'))
        nm += [F(waittag('exw') + I('s_barrier'), -1, nl + 6, cost=2)] + FS(exr, -1, 160)
        PD = 4
        af = []
        for j in range(1, 8): af += [(j, k, u) for k, u in enumerate(self.af_units(j, lambda f, j=j: aAF + ((j*16 + f) % 6)*4))]
        def take():
            j, k, u = af.pop(0)
            if k == 0:
                j, k, u2 = af.pop(0)
                return [F(waittag(f'wo{j}') + I('s_barrier'), cost=2), F(u), F(u2)]
            return [F(u)]
        first = []
        for _ in range(PD): first += take()
        for f in first: f.lo = 150; f.hi = 166
        self.sch('tail', main, [sm, rd, nm, first])
        self.stamp('main', 'o')
        for j in range(1, 8):
            p = j // 2; sub = j % 2
            main = []; rs = []
            for ks in range(4):
                for nt in range(4):
                    f = j*16 + ks*4 + nt
                    for t in range(5):
                        B = vr(self.own(ks, t)) if sub == 0 else ar(aPART + (ks*5+t)*4)
                        c = '0' if (sub == 0 and ks == 0) else vr(self.acc(p, t, nt))
                        main += I(f'{MF} {vr(self.acc(p, t, nt))}, {ar(aAF + (f % 6)*4)}, {B}, {c}')
                    if af:
                        g = (ks*4 + nt)*5
                        for x in take(): x.lo = g; x.hi = g + 3; rs.append(x)
            streams = [rs]
            if j == 1:
                main[0] = waittag('exr') + [main[0]]
                streams.append([F(I('s_barrier'), 0, 2)] + self.dma_stream(self.wo_units(3) + self.wo_units(4), 3, 76, slack=1))
            nd = 0
            if j in (2, 3, 4): streams.append(self.dma_stream(self.wo_units(j + 3), 2, 33 if sub == 0 else 60, slack=1)); nd = 34
            if sub == 0:
                su = self.store_units(p - 1)
                fs = FS(su, 2, 79); k = 0
                for f in fs:
                    if any(x.kind == 'vst' for x in f.ins):
                        f.lo = nd + (k * (78 - nd)) // 10; k += 1
                streams.append(fs)
            self.sch(f'o{j}', main, streams)
            self.stamp('o')
        for u in self.store_units(3): e(u)
    def peephole(self, prog):
        out = []; prev = {}
        for x in prog:
            if x.kind in ('label', 'branch'): prev = {}
            if x.kind == 'salu' and x.op == 's_add_u32' and len(x.writes) == 1:
                w = next(iter(x.writes))
                if w in ('m0', sT0, sT2) and prev.get(w) == x.text and w not in x.reads: continue
            for w in x.writes:
                prev.pop(w, None)
                for k in [k for k, v in prev.items() if re.search(rf'\b{w}\b', v.split(',', 1)[1])]: prev.pop(k)
            if x.kind == 'salu' and x.op == 's_add_u32' and len(x.writes) == 1: prev[next(iter(x.writes))] = x.text
            out.append(x)
        return out
    def fold(self, prog):
        idx = {x.text: k for k, x in enumerate(prog) if x.kind == 'label'}
        its = [i for i in range(16) if f'L_loopmark{i}:' in idx]
        norm = lambda x: re.sub(r'(L_stub|L_ret)\d+', r'\1', x.text)
        body = {i: [norm(x) for x in prog[idx[f'L_loopmark{i}:'] + 1: idx[f'L_loopend{i}:']]] for i in its}
        last = its[-1]; first = last
        while first - 1 in body and body[first - 1] == body[last]: first -= 1
        self.log.append(('loop', first, last, len(body[last])))
        for i in range(first + 1, last + 1): self.stubs.remove(i)
        a = idx[f'L_loopmark{first}:']; b = idx[f'L_loopend{first}:']; c = idx[f'L_loopend{last}:']
        return prog[:a] + I(f's_add_u32 {sIT}, {sKVOFF}, {(last + 6)*8192}') + prog[a:b] + \
            I(f's_cmp_lg_u32 {sIT}, {sKO}\ns_cbranch_scc1 L_loopmark{first}') + prog[c + 1:]
    def build(self):
        self.prologue(); self.q_phase(); self.q_to_attn(); self.stamp('main', 'q', 'a')
        for i in range(1, 16):
            if i == 15: self.stamp('o')
            self.iteration(i)
            if i in (3, 10, 12): self.stamp('main')
            if i < 15 and not (self.c.loop and 4 <= i < self.c.lend): self.stamp('a')
        e = self.e
        if self.c.stamps:
            e('s_waitcnt vmcnt(0)'); self.stamp()
            if self.c.dbgwg >= 0:
                e(f'''s_mov_b64 s[24:25], s[56:57]
                s_mov_b32 s26, 0x10000000
                s_mov_b32 {sT2}, {STAMP_OFF}
                s_cmp_lg_u32 s2, {self.c.dbgwg}
                s_cbranch_scc1 L_end
                s_cmp_lg_u32 {sW}, 0
                s_cbranch_scc1 L_end
                v_readfirstlane_b32 {sT1}, v255
                v_lshlrev_b32 v2, 2, v{vLANE}
                v_subrev_u32 v4, {sT1}, v255
                buffer_store_dword v4, v2, {SWS}, {sT2} offen
                s_endpgm''')
            e(f'''s_mov_b64 s[24:25], s[56:57]
            s_mov_b32 s26, 0x10000000
            s_mul_i32 {sT1}, s2, {self.nst*8}
            s_add_u32 {sT1}, {sT1}, {STAMP_OFF}
            s_cmp_lg_u32 {sW}, 0
            s_cbranch_scc1 L_end
            v_lshlrev_b32 v2, 3, v{vLANE}
            v_mov_b32 v4, v255
            v_mov_b32 v5, 0
            v_cmp_gt_u32 vcc, {self.nst}, v{vLANE}
            s_and_saveexec_b64 s[58:59], vcc
            buffer_store_dwordx2 v[4:5], v2, {SWS}, {sT1} offen''')
        e('L_end:\ns_endpgm')
        if self.c.nomem:
            def drop(x):
                if x.kind not in ('dma', 'vld', 'vst'): return False
                t = x.text
                if 'buffer_load_dword a' in t: return 'p' in self.c.nomem and 's[84:87]' not in t
                if SX in t or SWQ in t: return 'q' in self.c.nomem
                if SK in t or SV in t: return 'k' in self.c.nomem
                if SWO in t: return 'o' in self.c.nomem
                if x.tag == 'st': return 's' in self.c.nomem
                return False
            self.p = [x for x in self.p if not drop(x)]
        prog = finalize(self.peephole(self.p))
        if self.c.loop: prog = self.fold(prog)
        for i in self.stubs: prog += I(f'L_stub{i}:\ns_call_b64 {sRET}, L_rare\ns_branch L_ret{i}')
        prog += finalize(self.rare())
        prog += I('L_codeend:')
        return prog

from gen2 import reduce_kernel

def generate(cfg, path):
    g = Gen(cfg)
    main = g.build()
    if cfg.kpolB != '=' or cfg.vpolB != '=':
        import copy
        c2 = copy.copy(cfg)
        if cfg.kpolB != '=': c2.kpol = cfg.kpolB
        if cfg.vpolB != '=': c2.vpol = cfg.vpolB
        m2 = Gen(c2).build()
        for x in m2: x.text = re.sub(r'\bL_(\w+)', r'LB_\1', x.text)
        main = I('s_bitcmp1_b32 s2, 2\ns_cbranch_scc1 LB_entry') + main + I('LB_entry:') + m2
    red = reduce_kernel(cfg)
    if cfg.dbgwg >= 0:
        k = [i for i, x in enumerate(red) if x.text == 'L_rend:'][0]
        red[k:k] = finalize(I(f'''s_cmp_lg_u32 s2, 0
        s_cbranch_scc1 L_rend
        s_load_dwordx2 s[8:9], s[0:1], 88
        s_mov_b32 s10, 256
        s_mov_b32 s6, 0x10000000
        s_mov_b32 s16, {STAMP_OFF}
        v_lshlrev_b32 v2, 2, v0
        buffer_load_dword v3, v2, s[4:7], s16 offen
        buffer_store_dword v3, v2, s[8:11], 0 offen'''))
    s = make_file([(KN, 256, 256, 163840), ('reduce_heads_kernel', 640, 256, 0)],
                  [(KN, text_of(main), 512, 102, 256), ('reduce_heads_kernel', text_of(red), 96, 32, 96)])
    open(path, 'w').write(s)
    open(path[:-2] + '.nst', 'w').write(str(g.nst))
    return g, main

if __name__ == '__main__':
    cfg = Cfg()
    out = sys.argv[1]
    for kv in sys.argv[2:]:
        k, v = kv.split('=')
        cur = getattr(cfg, k)
        setattr(cfg, k, type(cur)(int(v)) if isinstance(cur, (bool, int)) and not isinstance(cur, float) else type(cur)(v.replace('+', ' ')))
    g, main = generate(cfg, out)
    from collections import Counter
    print(out, 'stamps', g.nst, dict(Counter(i.kind for i in main)))
    if cfg.verbose:
        for l in g.log: print(*l)
```

```python
import sys, math, struct, re
from asmlib import *
from gen_common import make_file, KN

class Cfg:
    kpol = 'nt'; vpol = 'nt'; kpolB = '='; vpolB = '='; wpol = ''; stpol = 'sc1'; rdpol = ''; pfpol = ''
    stamps = False; stset = 'main'; clk = 0
    codepf = 1
    kv_pro = 4
    kv_end = 13
    l2pf = 1; pfit = 11; l2pfq = 0
    nstg = 3
    late = 1
    early5 = 1
    rot = 2
    vsp = 4
    kveven = 1
    thr = 8.0
    loop = 1
    nomem = ''
    verbose = 0
    dbgwg = -1
    normlast = 118
    opol = 'sc1'
    zgap = 10
    pgap = 40
    maxpoll = 200000
    krot = 0
    ccap = 2
    tcap = 2
    lend = 10
    dlo = 24
    dhi = 80
STAMP_OFF = 0x8000000
PART_BYTES = 40960
PART_OFF = 0x2000000
OX_BYTES = 327680
FLAG_OFF = 0x3000000
def f32(x): return '0x%08x' % struct.unpack('<I', struct.pack('<f', x))[0]

SX, SWQ, SK, SV, SWO, SWS = 's[4:7]', 's[8:11]', 's[12:15]', 's[16:19]', 's[20:23]', 's[24:27]'
sW, sHH, sQH = 's3', 's28', 's29'
sKVOFF, sKVLDS, sWQOFF, sXOFF, sXLDS, sWO0, sWO1, sWOLDS, sPW = 's30', 's31', 's32', 's33', 's34', 's35', 's36', 's37', 's38'
sC, sT = 's40', 's41'
sT0, sT1, sT2, sT3 = 's42', 's43', 's44', 's45'
sRET = 's[60:61]'
sRB, sDB, sKO, sVO, sIT = 's46', 's47', 's52', 's53', 's50'
sB, sHP, sH0 = 's48', 's49', 's51'
sWQC, sXC, sWQB, sXB = 's88', 's89', 's90', 's91'
SOX, SDB = 's[76:79]', 's[80:83]'
sCL, sXCC, sRDY, sOW, sOCT = 's92', 's93', 's94', 's95', 's39'
sPO = ['s64', 's65', 's66', 's67']; sPWo = ['s68', 's69', 's70', 's71']
sW4K, sW5K, sCNT, sWB = 's96', 's97', 's98', 's99'
sKR, sKC = 's35', 's36'
sOLD = ['s72', 's73', 's74', 's75']
vFOFF = 215
STAMP0 = 62
def O(t, dt): return (t * 8 + dt) * 4
S0 = 160; P0 = 200; NM4 = 220
def Sreg(t, kt): return S0 + (t * 2 + kt) * 4
def Preg(t): return P0 + 4 * t
vMX0, vMX1, vTA, vTB = 240, 241, 242, 243
vK, vVE, vVO, aK, aVE = 244, 245, 246, 247, 248
vKVA, vKVB, vLANE, vWOV, vOE = 249, 250, 251, 252, 253
vWQA, vWQB, vX0, vX1 = 200, 201, 202, 203
vQE = [204, 205, 206]; vQO = [207, 208, 209]; vXR = [210, 211]
vWA = [212, 213]
vWA1 = 254
vRL = 240
vOEs, vOOs = 245, 246
vEX1, vEX2, vL16 = 247, 248, 254
vEXR1, vEXR2, vOB0, vOB1, vPOLL, vFLAG, vWEr, vWOr, vPOFF = 16, 17, 18, 19, 20, 21, 22, 23, 24
aVF, aAF, aKF, aL, aONE, aQ = 0, 80, 104, 136, 156, 160
aPART = 0; aA0 = 160
def Qf(ks, t): return aQ + (t * 4 + ks) * 4
def vr(b, n=4): return f'v[{b}:{b+n-1}]'
def ar(b, n=4): return f'a[{b}:{b+n-1}]'
SLOT = 32768
WQBUF = [147456, 65536, 102400]
XBUF = [81920, 126976]
WOB = [16384, 0, 32768, 49152]
OB = [65536, 86016, 106496, 126976]
aA1 = 80
aSET = [160, 196]
MF = 'v_mfma_f32_16x16x32_bf16'

def FS(units, lo=-1, hi=10**6, step=None):
    return [F(u, lo if step is None else int(lo + k * step), hi) for k, u in enumerate(units)]

class Gen:
    def __init__(self, cfg):
        self.c = cfg; self.p = []; self.nst = 0; self.stubs = []; self.log = []
    def e(self, x, tag=None):
        self.p += I(x, tag) if isinstance(x, str) else x
    def stamp_i(self, grp='all'):
        if self.c.stamps and grp in ('all', self.c.stset):
            self.nst += 1
            return I(f's_mem{"" if self.c.clk else "real"}time s[62:63]\ns_waitcnt lgkmcnt(0)\nv_writelane_b32 v255, s62, {self.nst - 1}')
        return []
    def stamp(self, *grps):
        for g in grps or ('all',): self.e(self.stamp_i(g))
    def sch(self, name, main, streams, **kw):
        v = []
        self.e(sched(main, streams, verbose=v, **kw))
        self.log.append((name,) + v[0])
    @staticmethod
    def pol(p): return (' ' + p) if p else ''
    def kvoff(self, tile, dst=sT2):
        if not self.c.krot: return f's_add_u32 {dst}, {sKVOFF}, {tile*8192}'
        return f's_add_u32 {dst}, {sKR}, {tile*8192}\ns_and_b32 {dst}, {dst}, 0x1e000\ns_or_b32 {dst}, {dst}, {sKVOFF}'
    def kvo(self, tile):
        u = I(self.kvoff(tile))
        for x in u: x.tag = ('kvo', tile)
        return u
    def kvp(self, srd): return self.pol(self.c.kpol if srd == SK else self.c.vpol)
    def kv_dma(self, srd, tile, lds, tag):
        us = []
        for k in range(4):
            u = I(f's_add_u32 m0, {sKVLDS}, {lds}') + self.kvo(tile)
            u += I(f'buffer_load_dwordx4 v{vKVA if k % 2 == 0 else vKVB}, {srd}, {sT2} offen offset:{k*1024}{self.kvp(srd)} lds', tag=tag)
            us.append(u)
        return us
    def kv_stage(self, st):
        b = (st % 5) * SLOT
        return (self.kv_dma(SK, st + 1, b, f'kv{st}') if st < 15 else []) + self.kv_dma(SV, st, b + 16384, f'kv{st}')
    def kv_stage_dyn(self, st):
        us = []
        for part in range(2):
            for k in range(4):
                u = I(f's_add_u32 m0, {sDB}, {part*16384}') if k == 0 else []
                if k == 0: us.append(u); u = []
                u += I(f'buffer_load_dwordx4 v{vKVA if k % 2 == 0 else vKVB}, {SK if part == 0 else SV}, {sKO if part == 0 else sVO} offen offset:{k*1024}{self.kvp(SK if part == 0 else SV)} lds', tag=f'kv{st}')
                us.append(u)
        return us
    def stg(self, st, part, k):
        if st >= 6: return ar(32 + ((st - 6)*8 + part*4 + k)*4)
        return ar(160 + ((st - 2)*8 + part*4 + k)*4)
    def kv_reg(self, st, parts=(0, 1)):
        us = []
        for part in parts:
            srd, tile = (SK, st + 1) if part == 0 else (SV, st)
            for k in range(4):
                us.append(self.kvo(tile) +
                          I(f'buffer_load_dwordx4 {self.stg(st, part, k)}, v{vKVA if k % 2 == 0 else vKVB}, {srd}, {sT2} offen offset:{k*1024}{self.kvp(srd)}'))
        return us
    def kv_drain(self, st, parts=(0, 1)):
        us = []
        for part in parts:
            for k in range(4):
                adr, off = {2: (vWA[0], 0), 3: (vWA[0], SLOT), 4: (vWA[1], 0), 6: (vWA1, 0), 7: (vWA1, SLOT)}[st]
                off += part*16384
                us.append(I(f'ds_write_b128 v{adr}, {self.stg(st, part, k)} offset:{off + k*1024}', tag=f'kv{st}'))
        return us
    def wq_next(self, j):
        if self.c.rot == 2 and j < 2: return I(f's_add_u32 {sWQB}, {sWQOFF}, {j*262144}')
        wrap = f's_cmp_eq_u32 {sWQC}, 0x400000\ns_cselect_b32 {sWQC}, 0x80000, {sWQC}' if self.c.rot == 2 else f's_and_b32 {sWQC}, {sWQC}, 0x3fffff'
        return I(f's_add_u32 {sWQB}, {sWQC}, {sWQOFF}\ns_add_u32 {sWQC}, {sWQC}, 262144\n{wrap}')
    def x_next(self, J):
        if self.c.rot == 2 and J < 1: return I(f's_add_u32 {sXB}, {sXOFF}, 0')
        wrap = f's_cmp_eq_u32 {sXC}, 1024\ns_cselect_b32 {sXC}, 128, {sXC}' if self.c.rot == 2 else f's_and_b32 {sXC}, {sXC}, 1023'
        return I(f's_add_u32 {sXB}, {sXC}, {sXOFF}\ns_add_u32 {sXC}, {sXC}, 128\n{wrap}')
    def wq_units(self, j):
        us = []
        for k in range(4):
            u = I(f's_add_u32 m0, {sKVLDS}, {WQBUF[j % 3]}\ns_add_u32 {sT0}, {sWQB}, {k*32768 - k*1024}')
            u += I(f'buffer_load_dwordx4 v{vWQA if k < 2 else vWQB}, {SWQ}, {sT0} offen offset:{k*1024}{self.pol(self.c.wpol)} lds', tag=f'wq{j}')
            us.append(u)
        if j == 0: us[0] = self.wq_next(0) + us[0]
        if j < 15: us[-1] += self.wq_next(j + 1)
        return us
    def x_units(self, J):
        us = []
        for k in range(5):
            im = (k % 4) * 1024
            u = I(f's_add_u32 m0, {sXLDS}, {XBUF[J % 2] + (k // 4)*4096}\ns_add_u32 {sT0}, {sXB}, {k*8192 - im}')
            u += I(f'buffer_load_dwordx4 v{vX0 if k % 2 == 0 else vX1}, {SX}, {sT0} offen offset:{im}{self.pol(self.c.wpol)} lds', tag=f'x{J}')
            us.append(u)
        if J == 0: us[0] = self.x_next(0) + us[0]
        if J < 7: us[-1] += self.x_next(J + 1)
        return us
    def wo_half(self, base, const, lds, tag):
        us = []
        for k in range(4):
            u = I(f's_add_u32 m0, {sW4K}, {lds}\ns_add_u32 {sT0}, {base}, {const + k*3072}')
            u += I(f'buffer_load_dwordx4 v{vKVA if k % 2 == 0 else vKVB}, {SWO}, {sT0} offen offset:{k*1024}{self.pol(self.c.wpol)} lds', tag=tag)
            us.append(u)
        return us
    def wo_own(self, h):
        us = self.wo_half(sPWo[0], h*131072, (1 + h)*SLOT, 'wown') + self.wo_half(sPWo[0], h*131072 + 65536, (1 + h)*SLOT + 16384, 'wown')
        if h == 0: us[0] = I(f'v_mov_b32 v{vKVA}, v{vWOV}\nv_xor_b32 v{vKVB}, 32, v{vWOV}') + us[0]
        return us
    def wo_rem(self, u):
        return self.wo_half(sPWo[1 + u // 4], ((u >> 1) & 1)*131072 + (u & 1)*65536, WOB[u % 4], f'u{u}')
    def o_rem(self, u):
        us = []
        for k in range(5):
            x = I(f's_add_u32 m0, {sW5K}, {OB[u % 4] + (k // 4)*4096}\ns_add_u32 {sT2}, {sPO[1 + u // 4]}, {((u >> 1) & 1)*40960 + (u & 1)*20480 + (k // 4)*4096}')
            x += I(f'buffer_load_dwordx4 v{vL16}, {SOX}, {sT2} offen offset:{(k % 4)*1024} sc1 lds', tag=f'u{u}')
            us.append(x)
        return us
    def l2pf_q(self):
        pol = self.pol(self.c.pfpol); L = f'v{vLANE}'
        return [I(f'v_lshrrev_b32 v214, 3, {L}\nv_and_b32 v215, 7, {L}'),
                I(f'v_lshlrev_b32 v214, 13, v214\nv_lshl_add_u32 v214, v215, 6, v214'),
                I(f's_lshl_b32 {sT3}, {sB}, 19\ns_lshl_b32 {sT1}, {sW}, 17'),
                I(f's_add_u32 {sT3}, {sT3}, {sT1}\ns_lshl_b32 {sT1}, {sH0}, 8'),
                I(f's_add_u32 {sT3}, {sT3}, {sT1}\nbuffer_load_dword a138, v214, {SWQ}, {sT3} offen{pol}'),
                I(f's_add_u32 {sT3}, {sT3}, 65536\nbuffer_load_dword a139, v214, {SWQ}, {sT3} offen{pol}'),
                I(f'v_lshlrev_b32 v215, 6, {L}\ns_mul_i32 {sT3}, {sHP}, 40960'),
                I(f's_mul_i32 {sT1}, {sW}, 10240\ns_add_u32 {sT3}, {sT3}, {sT1}'),
                I(f'buffer_load_dword a140, v215, {SX}, {sT3} offen{pol}'),
                I(f's_add_u32 {sT3}, {sT3}, 4096\nbuffer_load_dword a141, v215, {SX}, {sT3} offen{pol}'),
                I(f's_add_u32 {sT3}, {sT3}, 4096\nbuffer_load_dword a142, v215, {SX}, {sT3} offen{pol}')]
    def l2pf_wo(self):
        pol = self.pol(self.c.pfpol)
        return [I(f'v_lshrrev_b32 v{vTA}, 2, v{vLANE}\nv_and_b32 v{vTB}, 3, v{vLANE}'),
                I(f'v_lshlrev_b32 v{vTA}, 10, v{vTA}\nv_lshl_add_u32 v{vTA}, v{vTB}, 6, v{vTA}'),
                I(f's_lshl_b32 {sT3}, {sOCT}, 20\ns_lshl_b32 {sT1}, {sB}, 17'),
                I(f's_add_u32 {sT3}, {sT3}, {sT1}\ns_lshl_b32 {sT1}, {sW}, 15'),
                I(f's_add_u32 {sT3}, {sT3}, {sT1}\ns_lshl_b32 {sT1}, {sHP}, 8'),
                I(f's_add_u32 {sT3}, {sT3}, {sT1}\nbuffer_load_dword a240, v{vTA}, {SWO}, {sT3} offen{pol}'),
                I(f's_add_u32 {sT3}, {sT3}, 16384\nbuffer_load_dword a241, v{vTA}, {SWO}, {sT3} offen{pol}')]
    def dma_stream(self, units, lo, hi, slack=4):
        fs = []; n = len(units); prev = {}
        for k, u in enumerate(units):
            l = lo + (k * (hi - lo + 1)) // n
            after = False
            for x in u:
                c = 1
                if x.op == 's_cselect_b32' or x.kind in ('branch', 'label'):
                    fs[-1].ins.append(x); fs[-1].cost += x.cost; continue
                if isinstance(x.tag, tuple) and self.c.krot:
                    if prev.get('kvo') == x.tag: c = 0
                    if x.op == 's_or_b32': prev['kvo'] = x.tag
                elif x.kind == 'salu' and x.op == 's_add_u32' and len(x.writes) == 1:
                    w = next(iter(x.writes))
                    if prev.get(w) == x.text and w not in x.reads: c = 0
                    prev[w] = x.text
                if x.kind not in ('salu', 'valu'): fs.append(F([x], l, l + slack, cost=c)); after = True
                elif after: fs.append(F([x], l, 10**6, cost=c))
                else: fs.append(F([x], l - 3, l, cost=c))
        return fs
    def peer_setup(self):
        o = [f's_lshl_b32 {sT3}, {sOCT}, 20', f's_lshl_b32 {sT2}, {sHP}, 8', f's_add_u32 {sT3}, {sT3}, {sT2}',
             f's_lshl_b32 {sT2}, {sW}, 14', f's_add_u32 {sT3}, {sT3}, {sT2}']
        for r in range(4):
            o += [f's_add_u32 {sT2}, {sHP}, {r}', f's_and_b32 {sT2}, {sT2}, 3', f's_mul_i32 {sPO[r]}, {sT2}, 81920', f's_add_u32 {sPO[r]}, {sPO[r]}, {sW5K}',
                  f's_lshl_b32 {sPWo[r]}, {sT2}, 18', f's_add_u32 {sPWo[r]}, {sPWo[r]}, {sT3}']
        o += [f's_getreg_b32 {sXCC}, hwreg(HW_REG_XCC_ID)', f's_and_b32 {sXCC}, {sXCC}, 15', f's_add_u32 {sXCC}, {sXCC}, 1']
        return '\n'.join(o)
    def rot_setup(self):
        if self.c.rot != 2: return f's_and_b32 {sXC}, {sXC}, {7 if self.c.rot else 0}'
        return f's_cmp_ge_u32 {sXC}, 7\ns_cselect_b32 {sWQC}, 7, 0\ns_sub_u32 {sXC}, {sXC}, {sWQC}\ns_add_u32 {sXC}, {sXC}, 1'
    def prologue(self):
        e = self.e; L = f'v{vLANE}'
        e(f'''
        s_cmp_ge_u32 s2, 256
        s_cbranch_scc1 L_end
        s_load_dwordx16 s[64:79], s[0:1], 0
        s_load_dwordx4 s[80:83], s[0:1], 64
        s_load_dwordx2 s[24:25], s[0:1], 96
        v_lshrrev_b32 v1, 6, v0
        v_and_b32 {L}, 63, v0
        v_readfirstlane_b32 {sW}, v1
        s_and_b32 s46, s2, 7
        s_lshr_b32 s47, s2, 3
        s_lshr_b32 {sB}, s47, 2
        s_and_b32 {sHP}, s47, 3
        s_and_b32 {sOCT}, s46, 3
        s_lshl_b32 s50, {sOCT}, 2
        s_add_u32 s50, s50, {sHP}
        s_lshl_b32 {sH0}, s50, 1
        s_lshr_b32 s52, s46, 2            ; branch
        s_and_b32 {sHH}, {sW}, 1
        s_lshr_b32 {sQH}, {sW}, 1
        v_and_b32 v2, 3, {L}
        v_lshlrev_b32 v2, 4, v2           ; cc*16
        v_lshrrev_b32 v3, 4, {L}          ; g
        v_bfe_u32 v4, {L}, 2, 2           ; r
        v_lshl_add_u32 v5, v3, 6, v2
        v_lshl_add_u32 v{vKVA}, v4, 8, v5
        v_xor_b32 v{vKVB}, 32, v{vKVA}
        v_lshl_add_u32 v{vWQA}, v4, 13, v5
        v_xor_b32 v{vWQB}, 16, v{vWQA}
        v_lshrrev_b32 v6, 5, {L}
        v_bfe_u32 v7, {L}, 2, 3
        v_lshl_add_u32 v8, v6, 6, v2
        v_lshl_add_u32 v8, v7, 10, v8
        s_lshl_b32 {sT0}, {sHH}, 5
        v_xor_b32 v{vX0}, {sT0}, v8
        v_xor_b32 v{vX1}, 32, v{vX0}
        s_lshl_b32 {sT0}, {sQH}, 12
        s_lshl_b32 {sKVLDS}, {sHH}, 13
        s_add_u32 {sKVLDS}, {sKVLDS}, {sT0}
        s_lshl_b32 {sKVOFF}, {sHH}, 17
        s_add_u32 {sKVOFF}, {sKVOFF}, {sT0}
        s_add_u32 {sT1}, {sH0}, {sHH}
        s_lshl_b32 {sWQOFF}, {sT1}, 8
        s_lshl_b32 {sT0}, {sQH}, 17
        s_add_u32 {sWQOFF}, {sWQOFF}, {sT0}
        s_mul_i32 {sXOFF}, {sW}, {5*8192}
        s_mul_i32 {sXLDS}, {sW}, {5*1024}
        s_lshl_b32 {sXC}, {sHP}, 1
        s_add_u32 {sXC}, {sXC}, {sB}
        {self.rot_setup()}
        s_lshl_b32 {sWQC}, {sXC}, 19
        s_lshl_b32 {sXC}, {sXC}, 7
        s_mul_i32 {sKR}, s2, {self.c.krot}
        s_add_u32 {sKR}, {sKR}, s47
        s_lshl_b32 {sKR}, {sKR}, 13
        s_mul_i32 s53, {sB}, 163840
        s_lshl_b32 s54, {sB}, 5
        s_add_u32 s54, s54, {sH0}
        s_lshl_b32 s54, s54, 17
        s_mov_b32 s6, 163840
        s_mov_b32 s7, 0x20000
        s_mov_b32 s10, 0x400000
        s_mov_b32 s11, 0x20000
        s_mov_b32 s14, 0x40000
        s_mov_b32 s15, 0x20000
        s_mov_b32 s18, 0x40000
        s_mov_b32 s19, 0x20000
        s_cmp_eq_u32 s52, 0
        s_cselect_b64 s[4:5], s[64:65], s[74:75]
        s_cselect_b64 s[8:9], s[70:71], s[80:81]
        s_cselect_b64 s[12:13], s[66:67], s[76:77]
        s_cselect_b64 s[16:17], s[68:69], s[78:79]
        s_cselect_b64 s[20:21], s[72:73], s[82:83]
        s_add_u32 s4, s4, s53
        s_addc_u32 s5, s5, 0
        ''')
        self.stamp()
        for u in self.x_units(0) + self.wq_units(0) + self.wq_units(1): e(u)
        e(f'''
        s_add_u32 s12, s12, s54
        s_addc_u32 s13, s13, 0
        s_add_u32 s16, s16, s54
        s_addc_u32 s17, s17, 0
        ''')
        self.kvq = self.kv_dma(SK, 0, SLOT + 16384, 'k0') + self.kv_stage(0) + self.kv_dma(SK, 2, SLOT, 'kv1')
        for st in (2, 3, 4)[:self.c.nstg]: self.kvq += self.kv_reg(st)
        for u in self.x_units(1) + self.wq_units(2): e(u)
        for _ in range(self.c.kv_pro): e(self.kvq.pop(0))
        if self.c.codepf:
            e(f'''s_getpc_b64 s[84:85]
            L_pc0:
            s_mov_b32 s86, L_codeend-L_pc0
            s_mov_b32 s87, 0x20000
            v_lshlrev_b32 v22, 7, v0
            buffer_load_dword a136, v22, s[84:87], 0 offen
            s_mov_b32 {sT0}, 32768
            buffer_load_dword a137, v22, s[84:87], {sT0} offen''')
        e(f'''
        s_mul_i32 {sPW}, {sW}, 10240
        s_lshl_b32 {sW4K}, {sW}, 12
        s_mul_i32 {sW5K}, {sW}, 5120
        s_mov_b32 {sC}, {f32(128 ** -0.5 * math.log2(math.e))}
        s_mov_b32 {sT}, {f32(self.c.thr)}
        s_lshl_b32 s55, s52, 3
        s_add_u32 s55, s55, {sB}          ; group = branch*8 + b
        s_lshl_b32 {sCL}, s55, 2
        s_add_u32 {sT2}, {sCL}, {sHP}
        s_add_u32 {sCL}, {sCL}, {sOCT}    ; cluster = group*4 + octet
        s_lshl_b32 {sT2}, {sT2}, 2
        s_add_u32 {sT2}, {sT2}, {sOCT}
        s_mul_i32 {sT2}, {sT2}, {PART_BYTES}
        s_add_u32 {sT2}, {sT2}, {PART_OFF}
        s_mul_i32 s55, {sCL}, {OX_BYTES}
        s_mov_b32 s22, 0x400000
        s_mov_b32 s23, 0x20000
        s_mov_b64 s[56:57], s[24:25]
        s_add_u32 s76, s24, s55
        s_addc_u32 s77, s25, 0
        s_mov_b32 s78, {OX_BYTES}
        s_mov_b32 s79, 0x20000
        s_add_u32 s24, s24, {sT2}
        s_addc_u32 s25, s25, 0
        s_mov_b32 s26, {PART_BYTES}
        s_mov_b32 s27, 0x20000
        s_lshl_b32 {sCL}, {sCL}, 7
        s_add_u32 {sCL}, {sCL}, {FLAG_OFF}
        s_add_u32 s80, s56, {sCL}
        s_addc_u32 s81, s57, 0
        s_mov_b32 s82, 16
        s_mov_b32 s83, 0x20000
        v_add_u32 v24, {sHP}, {L}
        v_and_b32 v24, 3, v24
        v_lshlrev_b32 v24, 2, v24
        buffer_load_dword v{vFOFF}, v24, {SDB}, 0 offen sc0 sc1
        s_lshl_b32 {sCL}, {sHP}, 2
        s_mov_b32 {sWB}, 0
        s_mul_i32 {sOW}, {sHP}, 81920
        s_mul_i32 {sT2}, {sHH}, 40960
        s_add_u32 {sOW}, {sOW}, {sT2}
        s_mul_i32 {sT2}, {sQH}, 10240
        s_add_u32 {sOW}, {sOW}, {sT2}
        {self.peer_setup()}
        v_and_b32 v9, 1, v3
        v_lshlrev_b32 v9, 5, v9           ; 32*(g&1)
        v_lshl_add_u32 v{vWOV}, v4, 10, v5
        v_and_b32 v10, 15, {L}
        v_and_b32 v11, 3, {L}
        v_lshrrev_b32 v12, 2, v10
        v_and_b32 v13, 1, v12
        v_lshlrev_b32 v13, 5, v13
        v_lshlrev_b32 v14, 4, v3
        v_xor_b32 v13, v13, v14
        v_lshl_add_u32 v13, v11, 6, v13
        v_lshl_add_u32 v13, v12, 10, v13
        s_lshl_b32 {sT1}, {sHH}, 13
        v_add_u32 v{aK}, {sT1}, v13
        v_lshl_add_u32 v15, v11, 3, v9
        v_lshl_add_u32 v15, v4, 6, v15
        v_lshl_add_u32 v16, v3, 10, v15
        v_add_u32 v{aVE}, {sT1}, v16
        v_lshrrev_b32 v16, 1, v9          ; 16*(g&1)
        v_lshlrev_b32 v22, 4, v11         ; 16*c4
        v_xor_b32 v16, v16, v22
        v_and_b32 v22, 1, v11
        v_lshl_add_u32 v16, v22, 3, v16   ; + 8*(c4&1)
        v_lshl_add_u32 v16, v4, 6, v16    ; + r*64
        v_lshl_add_u32 v16, v3, 11, v16   ; + g*2048
        v_add_u32 v16, {sT1}, v16
        v_add_u32 v{vQE[0]}, {WQBUF[0]}, v16
        v_add_u32 v{vQE[1]}, {WQBUF[1]}, v16
        v_add_u32 v{vQE[2]}, {WQBUF[2]}, v16
        v_xor_b32 v{vQO[0]}, 8, v{vQE[0]}
        v_xor_b32 v{vQO[1]}, 8, v{vQE[1]}
        v_xor_b32 v{vQO[2]}, 8, v{vQE[2]}
        s_mov_b32 vcc_lo, 0xffff0000
        s_mov_b32 vcc_hi, 0xffff0000
        v_lshrrev_b32 v17, 3, v10
        v_lshlrev_b32 v18, 5, v17
        v_xor_b32 v18, v18, v14
        v_and_b32 v19, 7, {L}
        v_lshl_add_u32 v18, v19, 6, v18
        v_lshl_add_u32 v18, v17, 10, v18
        s_mul_i32 {sT2}, {sQH}, 10240
        v_add_u32 v18, {sT2}, v18
        v_add_u32 v{vXR[0]}, {XBUF[0]}, v18
        v_add_u32 v{vXR[1]}, {XBUF[1]}, v18
        v_lshl_add_u32 v20, v3, 10, v15
        s_lshl_b32 {sT2}, {sHH}, 9
        v_add_u32 v{vOE}, {sT2}, v20
        v_lshlrev_b32 v{vWA1}, 4, {L}
        v_add_u32 v{vWA1}, {sKVLDS}, v{vWA1}
        v_add_u32 v{vWA[0]}, 65536, v{vWA1}
        v_add_u32 v{vWA[1]}, 131072, v{vWA1}
        v_add_u32 v{vWA1}, {SLOT}, v{vWA1}
        v_mov_b32 v21, 0x3f803f80
        v_accvgpr_write_b32 a{aONE}, v21
        v_accvgpr_write_b32 a{aONE+1}, v21
        v_accvgpr_write_b32 a{aONE+2}, v21
        v_accvgpr_write_b32 a{aONE+3}, v21
        ''')
    def q_reads(self, j):
        st = (j & 1) * 52
        xr = [I(f'ds_read_b128 {ar(st + 32 + 4*t)}, v{vXR[(j >> 1) & 1]} offset:{t*2048 + (j & 1)*512}') for t in range(5)]
        aa = []
        for dt in range(8):
            for u in range(2):
                adr = (vQE if dt % 2 == 0 else vQO)[j % 3]
                aa.append(I(f'ds_read_b64_tr_b16 {ar(st + 4*dt + 2*u, 2)}, v{adr} offset:{u*1024 + (dt >> 1)*256}'))
        return aa[:2] + xr + aa[2:]
    def k_reads(self, base, tag='kr'):
        us = [I(f'v_add_u32 v{vK}, {base}, v{aK}')]
        for ks in range(4):
            for kt in range(2):
                us.append(I(f'ds_read_b128 {ar(aKF + (kt*4+ks)*4)}, v{vK} offset:{kt*4096 + ks*256}', tag=tag))
        return us
    def v_reads(self, base, dst=aVF, tag='vr'):
        pre = [I(f'v_add_u32 v{vVE}, {base}, v{aVE}'), I(f'v_xor_b32 v{vVO}, 32, v{vVE}')]
        us = []
        for dt in range(8):
            for h in range(2):
                us.append((dt, I(f'ds_read_b64_tr_b16 {ar(dst + 4*dt + 2*h, 2)}, v{vVE if dt % 2 == 0 else vVO} offset:{16384 + h*4096 + (dt >> 1)*256}', tag=tag)))
        return pre, us
    def q_mfmas(self, j, touter=False):
        st = (j & 1) * 52; m = []
        order = [(t, dt) for t in range(5) for dt in range(8)] if touter else [(t, dt) for dt in range(8) for t in range(5)]
        for t, dt in order:
            m += I(f'{MF} {vr(O(t, dt))}, {ar(st + 4*dt)}, {ar(st + 32 + 4*t)}, {vr(O(t, dt)) if j else "0"}')
        return m
    def s_mfmas(self, zero=False):
        m = []
        for t in range(5):
            for ks in range(4):
                for kt in range(2):
                    c = vr(Sreg(t, kt)) if ks else ('0' if zero else vr(NM4 + 4*t))
                    m += I(f'{MF} {vr(Sreg(t, kt))}, {ar(aKF + (kt*4+ks)*4)}, {ar(Qf(ks, t))}, {c}')
        m[0] = waittag('kr') + [m[0]]
        return m
    def pv_mfmas(self, first=False, vf=aVF, ones_first=True):
        ones = [I(f'{MF} {ar(aL + 4*t)}, {ar(aONE)}, {vr(Preg(t))}, {"0" if first else ar(aL + 4*t)}')[0] for t in range(5)]
        m = list(ones) if ones_first else []
        for t in range(5):
            if not ones_first: m.append(ones[t])
            for dt in range(8):
                m += I(f'{MF} {vr(O(t, dt))}, {ar(vf + 4*dt)}, {vr(Preg(t))}, {"0" if first else vr(O(t, dt))}')
        return m
    def q_convert(self, t):
        us = []
        for ks in range(4):
            x = O(t, 2*ks); y = x + 4
            for k in range(8): us.append(I(f'v_mul_f32 v{x+k}, {sC}, v{x+k}'))
        for ks in range(4):
            x = O(t, 2*ks); y = x + 4
            for s in (f'v{x}, v{x}, v{x+1}', f'v{y}, v{y}, v{y+1}', f'v{x+1}, v{x+2}, v{x+3}', f'v{y+1}, v{y+2}, v{y+3}'):
                us.append(I('v_cvt_pk_bf16_f32 ' + s))
        for ks in range(4):
            x = O(t, 2*ks); y = x + 4
            for k in range(2):
                us.append(I(f'v_cndmask_b32 v{x+2+k}, v{x+k}, v{y+k}, vcc'))
                us.append(I(f'v_cndmask_b32 v{y+2+k}, v{y+k}, v{x+k}, vcc'))
        for ks in range(4):
            x = O(t, 2*ks); y = x + 4
            for k, r in enumerate((x+2, x+3, y+2, y+3)): us.append(I(f'v_accvgpr_write_b32 a{Qf(ks, t)+k}, v{r}'))
        return us
    def exp_units(self, t):
        b = Sreg(t, 0)
        return [I(f'v_exp_f32 v{b+k}, v{b+k}') for k in range(8)], [I(f'v_cvt_pk_bf16_f32 v{Preg(t)+k}, v{b+2*k}, v{b+2*k+1}') for k in range(4)]
    def rowmax(self, m, c, b):
        return I(f'''v_max3_f32 v{m}, v{b}, v{b+1}, v{b+2}
        v_max3_f32 v{c}, v{b+3}, v{b+4}, v{b+5}
        v_max3_f32 v{m}, v{m}, v{b+6}, v{b+7}
        v_max_f32 v{m}, v{m}, v{c}
        v_mov_b32 v{c}, v{m}
        v_permlane32_swap_b32 v{m}, v{c}
        v_max_f32 v{m}, v{m}, v{c}
        v_mov_b32 v{c}, v{m}
        v_permlane16_swap_b32 v{m}, v{c}
        v_max_f32 v{m}, v{m}, v{c}''')
    def softmax_streams(self, i, ck, exp_dead, cvt_lo):
        mx = []
        for t in range(5):
            b = Sreg(t, 0)
            for k in range(4):
                m = vMX0 if k % 2 == 0 else vMX1
                if t == 0 and k < 2: mx.append(I(f'v_max_f32 v{m}, v{b+2*k}, v{b+2*k+1}'))
                else: mx.append(I(f'v_max3_f32 v{m}, v{b+2*k}, v{b+2*k+1}, v{m}'))
        mx.append(I(f'v_max_f32 v{vMX0}, v{vMX0}, v{vMX1}'))
        st = FS(mx + [I(f'v_cmp_lt_f32 vcc, {sT}, v{vMX0}')], -1, ck - 1)
        st.append(F(I(f's_cbranch_vccnz L_stub{i}\nL_ret{i}:'), ck, ck, cost=1))
        self.stubs.append(i)
        for t in range(5):
            ex, cv = self.exp_units(t)
            st += FS(ex, -1, exp_dead(t)) + FS(cv, cvt_lo(t), exp_dead(t))
        return st
    def q_phase(self):
        e = self.e
        e(waittag('x0', 'wq0')); e('s_barrier'); self.stamp('q')
        for u in self.q_reads(0): e(u)
        e(waittag('wq1')); e('s_waitcnt lgkmcnt(0)\ns_barrier')
        for j in range(15):
            d = []
            if j + 3 < 16: d += self.wq_units(j + 3)
            if j % 2 == 1 and (j - 1) // 2 + 2 < 8: d += self.x_units((j - 1) // 2 + 2)
            ke = self.c.kv_end
            if self.c.kveven:
                left = len([k for k in range(j, ke) if k % 2 == 0 or k >= 13])
                n = 0 if (j % 2 == 1 and j < 13) else (-(-len(self.kvq) // max(1, left)))
            else:
                n = -(-len(self.kvq) // max(1, ke - j)) if j < ke else len(self.kvq)
            d += [self.kvq.pop(0) for _ in range(min(n, len(self.kvq)))]
            ds = self.dma_stream(d, 1, min(39, self.c.vsp * len(d)), slack=1) if d else []
            streams = [FS(self.q_reads(j + 1), 0, 30), ds]
            if j == 0 and self.c.l2pfq: streams.append(FS(self.l2pf_q(), 22, 39))
            if j == 3: streams.append(FS([I(f'v_readlane_b32 {sOLD[r]}, v{vFOFF}, {r}') for r in range(4)], 30, 39))
            if j == 14 and self.c.nstg >= 1: streams.append(FS(self.kv_drain(2), 20, 39, step=2))
            if j == 13 and self.c.nstg < 1: streams.append(self.dma_stream(self.kv_stage(2), 4, 36))
            self.sch(f'q{j}', self.q_mfmas(j), streams)
            tags = []
            if j + 2 < 16:
                tags.append(f'wq{j+2}')
                if (j + 2) % 2 == 0: tags.append(f'x{(j+2)//2}')
            if j == 14: tags += ['k0', 'kv0']
            e(waittag(*tags)); e('s_waitcnt lgkmcnt(0)\ns_barrier'); self.stamp('q')
    def q_to_attn(self):
        main = self.q_mfmas(15, touter=True) + self.s_mfmas(zero=True) + self.s_mfmas()
        conv = []
        for t in range(5):
            cu = self.q_convert(t)
            conv += FS(cu, 8*t + 9, 39 + 8*t)
        drains = FS(self.kv_drain(3), 8, 24, step=2) if self.c.nstg >= 2 else []
        if self.c.nstg >= 3: drains += FS(self.kv_drain(4), 24, 40, step=2)
        for f in conv:
            w = [r for x in f.ins for r in x.writes if r[0] == 'a']
            if w and int(w[0][1:]) >= 192: f.lo = max(f.lo, 26 if int(w[0][1:]) < 224 else 42)
        init = []
        for t in range(5):
            b = Sreg(t, 0); lo = 40 + 8*t + 9; hi = 79 + 8*t
            u = [[x] for x in self.rowmax(vMX0, vMX1, b)]
            u += [I(f'v_sub_f32 v{NM4+4*t+k}, 0, v{vMX0}') for k in range(4)]
            u += [I(f'v_sub_f32 v{b+k}, v{b+k}, v{vMX0}') for k in range(8)]
            ex, cv = self.exp_units(t)
            init += FS(u + ex + cv, lo, hi)
        k0 = FS(self.k_reads(SLOT + 16384), -1, 12)
        k1 = self.k_reads(0)
        k1s = [F(k1[0], 60, 79)] + [F(u, 72 + k, 79) for k, u in enumerate(k1[1:])]
        pre, vu = self.v_reads(0)
        vs = FS(pre, 44, 70) + [F(u, 44, 84) for _, u in vu]
        d0 = (self.kv_stage(3) if self.c.nstg < 2 else []) + (self.kv_stage(4) if self.c.nstg < 3 else [])
        v1 = self.dma_stream(d0, 0, 40) if d0 else []
        if self.c.late and not d0: v1 += self.dma_stream(self.kv_reg(6, (0,)), 4, 40)
        v1 += [F(I('s_barrier'), 46, 50)] + self.dma_stream(self.kv_dma(SV, 1, SLOT + 16384, 'kv1'), 50, 64)
        if self.c.late: v1 += self.dma_stream(self.kv_reg(6, (1,) if not d0 else (0, 1)), 66, 86)
        if self.c.early5:
            v1 += [F(waittag('vr') + I('s_barrier'), 88, 90, cost=2)] + self.dma_stream(self.kv_stage(5), 92, 116)
        self.sch('q15..s1', main, [k0, drains, conv + init, k1s, vs, v1], pre_cap=9, cap=self.c.ccap)
    def iteration(self, i):
        e = self.e
        L0 = 4 if self.c.late else 2
        dyn = self.c.loop and L0 <= i <= self.c.lend
        if dyn and i == L0:
            e(f's_mov_b32 {sRB}, {(L0 % 5)*SLOT}\ns_add_u32 {sDB}, {sKVLDS}, {((L0 - 1) % 5)*SLOT}\n{self.kvoff(L0 + 5, sKO)}\n{self.kvoff(L0 + 4, sVO)}\ns_mov_b32 {sKC}, 0')
        if dyn: e(f'L_loopmark{i}:')
        tags = [f'kv{i}', 'vr'] + (['wown'] if i == 15 else [])
        if dyn: e('s_waitcnt vmcnt(24) lgkmcnt(0)')
        e(waittag(*tags)); e('s_barrier')
        if i == 15: return self.tail()
        if dyn: dma = self.kv_stage_dyn(i + 4)
        elif i == 1 and self.c.early5: dma = self.kv_reg(7) if self.c.late else []
        elif i in (2, 3) and self.c.late: dma = self.kv_drain(i + 4)
        elif i <= 11: dma = self.kv_stage(i + 4)
        elif i <= 13: dma = self.wo_own(i - 12)
        else: dma = []
        main = self.pv_mfmas(first=(i == 1)) + self.s_mfmas()
        base = sRB if dyn else (i % 5) * SLOT
        sm = self.softmax_streams(i, 11, lambda t: 44 + 8*t, lambda t: 12 + 8*t)
        ks = FS(self.k_reads(base), -1, 36)
        pre, vu = self.v_reads(base)
        vs = FS(pre, 20, 60) + [F(u, 37 + dt, 80) for dt, u in vu]
        streams = [sm, ks, vs]
        ds = self.dma_stream(dma, self.c.dlo, self.c.dhi) if dma else []
        if self.c.l2pf and i == self.c.pfit: ds += FS(self.l2pf_wo(), 72, 84)
        if dyn:
            ds += FS([I(x) for x in (f's_add_u32 {sDB}, {sRB}, {sKVLDS}', f's_add_u32 {sRB}, {sRB}, {SLOT}',
                      f's_cmp_eq_u32 {sRB}, {5*SLOT}\ns_cselect_b32 {sRB}, 0, {sRB}', f's_mov_b32 {sVO}, {sKO}', f's_add_u32 {sKO}, {sKO}, 8192') + ((f's_and_b32 {sKO}, {sKO}, 0x1e000', f's_or_b32 {sKO}, {sKO}, {sKVOFF}') if self.c.krot else ())], 61, 84)
        streams.append(ds)
        self.sch(f'it{i}', main, streams)
        if dyn: e(f'L_loopend{i}:')
    def rare(self):
        p = I('L_rare:\ns_nop 7\ns_nop 1')
        for t in range(5):
            b = Sreg(t, 0)
            p += self.rowmax(vMX0, vMX1, b)
            p += I(f'v_max_f32 v{vMX0}, 0, v{vMX0}')
            for k in range(4): p += I(f'v_sub_f32 v{NM4+4*t+k}, v{NM4+4*t+k}, v{vMX0}')
            for k in range(8): p += I(f'v_sub_f32 v{b+k}, v{b+k}, v{vMX0}')
            p += I(f'v_sub_f32 v{vTA}, 0, v{vMX0}\nv_exp_f32 v{vTA}, v{vTA}')
            for k in range(32): p += I(f'v_mul_f32 v{O(t,0)+k}, v{O(t,0)+k}, v{vTA}')
            for k in range(4):
                p += I(f'v_accvgpr_read_b32 v{vTB}, a{aL+4*t+k}\nv_mul_f32 v{vTB}, v{vTB}, v{vTA}\nv_accvgpr_write_b32 a{aL+4*t+k}, v{vTB}')
            for k in range(4):
                r = Preg(t) + k
                p += I(f'''v_lshlrev_b32 v{vTB}, 16, v{r}
                v_and_b32 v{vMX1}, 0xffff0000, v{r}
                v_mul_f32 v{vTB}, v{vTB}, v{vTA}
                v_mul_f32 v{vMX1}, v{vMX1}, v{vTA}
                v_cvt_pk_bf16_f32 v{r}, v{vTB}, v{vMX1}''')
        p += I(f's_nop 1\ns_setpc_b64 {sRET}')
        return p
    def own(self, ks, t): return self.ownmap[(ks, t)]
    def acc(self, t, nt): return 32*t + 4*nt
    def norm_units(self, t):
        us = [I(f'v_accvgpr_read_b32 v{vRL+t}, a{aL+4*t}'), I(f'v_rcp_f32 v{vRL+t}, v{vRL+t}')]
        for ks in range(4):
            b = O(t, 2*ks)
            for k in range(8): us.append(I(f'v_mul_f32 v{b+k}, v{b+k}, v{vRL+t}'))
            for k in range(4): us.append(I(f'v_cvt_pk_bf16_f32 v{self.own(ks, t) + k}, v{b+2*k}, v{b+2*k+1}'))
            f = ks*5 + t
            adr, off = (vEX1, f*1024) if f < 16 else (vEX2, (f-16)*1024)
            us.append(I(f's_add_u32 {sT1}, {sOW}, {(ks >> 1)*20480 + ((ks & 1)*5 + t)*1024}') +
                      I(f'buffer_store_dwordx4 {vr(self.own(ks, t))}, v{vL16}, {SOX}, {sT1} offen{self.pol(self.c.opol)}', tag='ost'))
            us.append(I(f'ds_write_b128 v{adr}, {vr(self.own(ks, t))} offset:{off}', tag='exw'))
        return us
    def a_reads(self, e, o, base, nks, dst, tag):
        us = []
        for ks in range(nks):
            for nt in range(4):
                for h in range(2):
                    us.append(I(f'ds_read_b64_tr_b16 {ar(dst + (ks*4 + nt)*4 + 2*h, 2)}, v{e if nt % 2 == 0 else o} offset:{base + ks*8192 + h*4096 + (nt >> 1)*256}', tag=tag))
        return us
    def rem_reads(self, kp):
        u = kp // 2; ksl = kp % 2; st = aSET[kp % 2]
        aa = self.a_reads(vWEr, vWOr, WOB[u % 4] + ksl*8192, 1, st, 'rr')
        adr, off = (vOB0, OB[u % 4] - OB[0]) if u % 4 < 2 else (vOB1, OB[u % 4] - OB[2])
        bb = [I(f'ds_read_b128 {ar(st + 16 + 4*t)}, v{adr} offset:{off + (ksl*5 + t)*1024}', tag='rr') for t in range(5)]
        return aa[:2] + bb + aa[2:]
    def check(self, r):
        self.chk.append(r)
        return I(f'v_readlane_b32 {sRDY}, v{vPOLL}, {r}\ns_sub_u32 {sRDY}, {sRDY}, {sOLD[r]}\ns_cmp_eq_u32 {sRDY}, {sXCC if self.c.opol != "sc1" else 32}\ns_cbranch_scc0 L_cstub{r}\nL_cret{r}:')
    def store_units(self):
        us = []
        for t in range(5):
            for m in range(2):
                b = self.acc(t, 2*m)
                for k in range(4): us.append(I(f'v_cvt_pk_bf16_f32 v{b+k}, v{b+2*k}, v{b+2*k+1}'))
                us.append(I(f's_add_u32 {sT1}, {sPW}, {(t*2+m)*1024}') +
                          I(f'buffer_store_dwordx4 {vr(b)}, v{vL16}, {SWS}, {sT1} offen{self.pol(self.c.stpol)}', tag='st'))
        return us
    def tail(self):
        e = self.e; L = f'v{vLANE}'; self.chk = []
        regs = {0: [220, 224, 228, 232], 1: [236, 160, 164, 168], 2: [172, 176, 180, 184], 3: [188, 192, 196, 200], 4: [204, 208, 212, 216]}
        self.ownmap = {(ks, t): regs[t][ks] for t in range(5) for ks in range(4)}
        o0 = []
        for t in range(5):
            for ks in range(4):
                for nt in range(4):
                    o0 += I(f'{MF} {vr(self.acc(t, nt))}, {ar(aA0 + (ks*4+nt)*4)}, {vr(self.own(ks, t))}, {vr(self.acc(t, nt)) if ks else "0"}')
        pv15 = self.pv_mfmas(vf=aKF, ones_first=False)
        pv15[0] = waittag('vr') + [pv15[0]]
        o0[0] = waittag('af0') + [o0[0]]
        main = self.pv_mfmas() + pv15 + o0
        sm = self.softmax_streams(15, 11, lambda t: 43 + 9*t, lambda t: 12 + 8*t)
        pre, vu = self.v_reads(0, dst=aKF)
        rd = FS(pre + [u for _, u in vu], -1, 30)
        rd += FS([I(f's_lshl_b32 {sT1}, {sHH}, 15'), I(f's_add_u32 {sT1}, {sT1}, {SLOT}'), I(f'v_add_u32 v{vOEs}, {sT1}, v{vOE}'), I(f'v_xor_b32 v{vOOs}, 32, v{vOEs}')] +
                 self.a_reads(vOEs, vOOs, 0, 4, aA0, 'af0'), -1, 70)
        setup = [I(x) for x in (f'v_lshlrev_b32 v{vL16}, 4, {L}', f's_lshl_b32 {sT1}, {sW}, 14', f's_add_u32 {sT1}, {sT1}, 98304',
                 f'v_add_u32 v{vEX1}, {sT1}, v{vL16}', f'v_add_u32 v{vEX2}, {sW4K}, v{vL16}')]
        st0 = FS(setup, 12, 52)
        rd += [F(waittag('vr') + I('s_barrier'), 72, 80, cost=2)] + self.dma_stream(self.wo_rem(0), 74, 90)
        rd += FS([I(f'v_xor_b32 v{vOEs}, 0x18000, v{vOEs}'), I(f'v_xor_b32 v{vOOs}, 0x18000, v{vOOs}')] + self.a_reads(vOEs, vOOs, 0, 4, aA1, 'af1'), self.c.normlast - 40, 164)
        nl = self.c.normlast
        nm = []
        for t in range(5):
            nm += FS(self.norm_units(t), 45 + 9*t + 10, min(89 + 16*t, nl))
            if t == 0:
                nm += FS([I(x) for x in (f'v_xor_b32 v{vEXR1}, 0x4000, v{vEX1}', f'v_xor_b32 v{vEXR2}, 0x1000, v{vEX2}', f's_mul_i32 {sT1}, {sQH}, 10240',
                          f's_add_u32 {sT1}, {sT1}, {OB[0]}', f'v_add_u32 v{vOB0}, {sT1}, v{vL16}', f'v_add_u32 v{vOB1}, {OB[2] - OB[0]}, v{vOB0}',
                          f'v_mov_b32 v{vWEr}, v{vOE}', f'v_xor_b32 v{vWOr}, 32, v{vOE}', f's_add_u32 {sT1}, {sOLD[0]}, {sXCC if self.c.opol != "sc1" else 32}\nv_mov_b32 v{vFLAG}, {sT1}', f'v_add_u32 v{vPOFF}, {sHP}, {L}', f'v_and_b32 v{vPOFF}, 3, v{vPOFF}', f'v_lshlrev_b32 v{vPOFF}, 2, v{vPOFF}')], -1, 89)
        l4 = [f for f in nm if any(f'a{aL+16}' in x.reads for x in f.ins)][0]
        for f in rd:
            if any(x.tag == 'af1' for x in f.ins): f.lo = max(f.lo, 100)
        l4.hi = min(l4.hi, 99)
        exr = []
        for f in range(20):
            adr, off = (vEXR1, f*1024) if f < 16 else (vEXR2, (f-16)*1024)
            exr.append(I(f'ds_read_b128 {ar(aPART + 4*f)}, v{adr} offset:{off}', tag='exr'))
        nm += [F(waittag('exw') + I('s_barrier'), -1, nl + 6, cost=2)] + FS(exr, -1, 164)
        self.sch('tail', main, [sm, rd, st0, nm], cap=self.c.tcap)
        self.stamp('main', 'o')
        main = []
        for ks in range(4):
            for nt in range(4):
                for t in range(5):
                    main += I(f'{MF} {vr(self.acc(t, nt))}, {ar(aA1 + (ks*4+nt)*4)}, {ar(aPART + (ks*5+t)*4)}, {vr(self.acc(t, nt))}')
        main[0] = waittag('exr', 'af1') + I('s_barrier') + [main[0]]
        Z, Pg = self.c.zgap, self.c.pgap
        sig = waittag('ost') + I(f's_barrier\ns_cmp_lg_u32 {sW}, 0\ns_cbranch_scc1 L_nosig')
        sig += I(f's_mov_b64 exec, 1\nbuffer_store_dword v{vFLAG}, off, {SDB}, {sCL} sc0 sc1\ns_mov_b64 exec, -1\nL_nosig:')
        for x in sig:
            if x.kind == 'vst' or x.kind == 'wait': x.kind = 'opaque'
        ds = [F(sig, Z, Z, cost=4)] + self.dma_stream(self.wo_rem(1) + self.wo_rem(2) + self.wo_rem(3), 0, 0)[:0]
        w13 = self.dma_stream(self.wo_rem(1) + self.wo_rem(2) + self.wo_rem(3), Z + 2, Pg - 12)
        ds += w13 + [F(I(f'buffer_load_dword v{vPOLL}, v{vPOFF}, {SDB}, 0 offen sc0 sc1'), Pg - 10, Pg - 10),
                     F(self.check(1), Pg, Pg, cost=4)]
        ds += self.dma_stream(self.o_rem(0) + self.o_rem(1) + self.o_rem(2) + self.o_rem(3), Pg + 1, 79, slack=0)
        c0 = [F(waittag('u0') + I('s_barrier'), 66, 66, cost=2)] + FS(self.rem_reads(0), 66, 76)
        self.sch('s1', main, [ds, c0])
        self.stamp('o')
        pend = []
        for kp in range(24):
            u = kp // 2; st = aSET[kp % 2]
            main = []
            for nt in range(4):
                for t in range(5):
                    main += I(f'{MF} {vr(self.acc(t, nt))}, {ar(st + 4*nt)}, {ar(st + 16 + 4*t)}, {vr(self.acc(t, nt))}')
            head = waittag('rr')
            if kp % 2 == 1 and u + 1 < 12:
                head = waittag('rr', f'u{u+1}') + I('s_barrier')
                if u + 4 < 12:
                    pend = self.wo_rem(u + 4) + self.o_rem(u + 4)
                    if (u + 4) % 4 == 0: head += self.check(1 + (u + 4) // 4)
            main[0] = head + [main[0]]
            streams = []
            if kp + 1 < 24: streams.append(FS(self.rem_reads(kp + 1), 0, 14))
            if pend:
                n = 4 if kp % 2 == 1 else len(pend)
                streams.append(self.dma_stream(pend[:n], 1, 18, slack=1)); pend = pend[n:]
            self.sch(f'r{kp}', main, streams)
            if kp % 4 == 3: self.stamp('o')
        for u in self.store_units(): e(u)
    def poll_code(self):
        p = []
        for r in self.chk:
            p += I(f'''L_cstub{r}:
            s_mov_b32 {sCNT}, {self.c.maxpoll}
            L_cloop{r}:
            buffer_load_dword v{vPOLL}, v{vPOFF}, {SDB}, 0 offen sc0 sc1
            s_waitcnt vmcnt(0)
            v_readlane_b32 {sRDY}, v{vPOLL}, {r}
            s_sub_u32 {sCNT}, {sCNT}, 1
            s_cmp_eq_u32 {sCNT}, 0
            s_cbranch_scc1 L_cret{r}
            s_sub_u32 {sRDY}, {sRDY}, {sOLD[r]}
            s_cmp_eq_u32 {sRDY}, 0
            s_cbranch_scc1 L_cloop{r}''')
            if self.c.opol != 'sc1':
                p += I(f'''s_cmp_eq_u32 {sRDY}, {sXCC}
                s_cbranch_scc1 L_cret{r}
                s_cmp_lg_u32 {sWB}, 0
                s_cbranch_scc1 L_cwb{r}
                s_mov_b32 {sWB}, 1
                s_cmp_lg_u32 {sW}, 0
                s_cbranch_scc1 L_cwb{r}
                buffer_wbl2 sc1
                s_waitcnt vmcnt(0)
                s_add_u32 {sT3}, {sOLD[0]}, 32
                v_mov_b32 v{vFLAG}, {sT3}
                s_mov_b64 exec, 1
                buffer_store_dword v{vFLAG}, off, {SDB}, {sCL} sc0 sc1
                s_mov_b64 exec, -1
                L_cwb{r}:
                s_cmp_lt_u32 {sRDY}, 32
                s_cbranch_scc1 L_cloop{r}''')
            p += I(f's_nop 4\ns_branch L_cret{r}')
        return p
    def peephole(self, prog):
        out = []; prev = {}
        for x in prog:
            if x.kind in ('label', 'branch'): prev = {}; self.curkvo = None
            if isinstance(x.tag, tuple) and x.tag[0] == 'kvo' and self.c.krot:
                if getattr(self, 'curkvo', None) == x.tag: continue
                if x.op == 's_or_b32': self.curkvo = x.tag
                out.append(x); prev.pop(sT2, None); continue
            if sT2 in x.writes: self.curkvo = None
            if x.kind == 'salu' and x.op == 's_add_u32' and len(x.writes) == 1:
                w = next(iter(x.writes))
                if w in ('m0', sT0, sT2) and prev.get(w) == x.text and w not in x.reads: continue
            for w in x.writes:
                prev.pop(w, None)
                for k in [k for k, v in prev.items() if re.search(rf'\b{w}\b', v.split(',', 1)[1])]: prev.pop(k)
            if x.kind == 'salu' and x.op == 's_add_u32' and len(x.writes) == 1: prev[next(iter(x.writes))] = x.text
            out.append(x)
        return out
    def fold(self, prog):
        idx = {x.text: k for k, x in enumerate(prog) if x.kind == 'label'}
        its = [i for i in range(16) if f'L_loopmark{i}:' in idx]
        norm = lambda x: re.sub(r'(L_stub|L_ret)\d+', r'\1', x.text)
        body = {i: [norm(x) for x in prog[idx[f'L_loopmark{i}:'] + 1: idx[f'L_loopend{i}:']]] for i in its}
        last = its[-1]; first = last
        while first - 1 in body and body[first - 1] == body[last]: first -= 1
        self.log.append(('loop', first, last, len(body[last])))
        for i in range(first + 1, last + 1): self.stubs.remove(i)
        a = idx[f'L_loopmark{first}:']; b = idx[f'L_loopend{first}:']; c = idx[f'L_loopend{last}:']
        return prog[:a] + I(self.kvoff(last + 6, sIT)) + prog[a:b] + \
            I(f's_cmp_lg_u32 {sIT}, {sKO}\ns_cbranch_scc1 L_loopmark{first}') + prog[c + 1:]
    def build(self):
        self.prologue(); self.q_phase(); self.q_to_attn(); self.stamp('main', 'q', 'a')
        for i in range(1, 16):
            if i == 15: self.stamp('o')
            self.iteration(i)
            if i in (3, 10, 12): self.stamp('main')
            if i < 15 and not (self.c.loop and 4 <= i < self.c.lend): self.stamp('a')
        e = self.e
        if self.c.stamps:
            e('s_waitcnt vmcnt(0)'); self.stamp()
            if self.c.dbgwg >= 0:
                e(f'''s_mov_b64 s[24:25], s[56:57]
                s_mov_b32 s26, 0x10000000
                s_mov_b32 {sT2}, {STAMP_OFF}
                s_cmp_lg_u32 s2, {self.c.dbgwg}
                s_cbranch_scc1 L_end
                s_cmp_lg_u32 {sW}, 0
                s_cbranch_scc1 L_end
                v_readfirstlane_b32 {sT1}, v255
                v_lshlrev_b32 v2, 2, v{vLANE}
                v_subrev_u32 v4, {sT1}, v255
                buffer_store_dword v4, v2, {SWS}, {sT2} offen
                s_endpgm''')
            e(f'''s_mov_b64 s[24:25], s[56:57]
            s_mov_b32 s26, 0x10000000
            s_mul_i32 {sT1}, s2, {self.nst*8}
            s_add_u32 {sT1}, {sT1}, {STAMP_OFF}
            s_cmp_lg_u32 {sW}, 0
            s_cbranch_scc1 L_end
            v_lshlrev_b32 v2, 3, v{vLANE}
            v_mov_b32 v4, v255
            v_mov_b32 v5, 0
            v_cmp_gt_u32 vcc, {self.nst}, v{vLANE}
            s_and_saveexec_b64 s[58:59], vcc
            buffer_store_dwordx2 v[4:5], v2, {SWS}, {sT1} offen''')
        e('L_end:\ns_endpgm')
        if self.c.nomem:
            def drop(x):
                if x.kind not in ('dma', 'vld', 'vst'): return False
                t = x.text
                if 'buffer_load_dword a' in t: return 'p' in self.c.nomem and 's[84:87]' not in t
                if SX in t or SWQ in t: return 'q' in self.c.nomem
                if SK in t or SV in t: return 'k' in self.c.nomem
                if SWO in t or SOX in t: return 'o' in self.c.nomem
                if x.tag == 'st': return 's' in self.c.nomem
                return False
            self.p = [x for x in self.p if not drop(x)]
        prog = finalize(self.peephole(self.p))
        if self.c.loop: prog = self.fold(prog)
        for i in self.stubs: prog += I(f'L_stub{i}:\ns_call_b64 {sRET}, L_rare\ns_branch L_ret{i}')
        prog += finalize(self.rare())
        prog += self.poll_code()
        prog += I('L_codeend:')
        return prog

def reduce_kernel(cfg):
    pol = (' ' + cfg.rdpol) if cfg.rdpol else ''
    p = I(f'''
    s_cmp_ge_u32 s2, 640
    s_cbranch_scc1 L_rend
    s_load_dwordx2 s[4:5], s[0:1], 96
    s_load_dwordx2 s[8:9], s[0:1], 80
    v_lshrrev_b32 v1, 6, v0
    v_and_b32 v2, 63, v0
    v_readfirstlane_b32 s3, v1
    v_lshlrev_b32 v3, 4, v2
    s_mul_i32 s12, s2, 6554
    s_lshr_b32 s12, s12, 16
    s_mul_i32 s13, s12, 10
    s_sub_u32 s13, s2, s13
    s_lshl_b32 s13, s13, 2
    s_add_u32 s13, s13, s3           ; piece 0..39
    s_mul_i32 s16, s12, {4*PART_BYTES}
    s_lshl_b32 s17, s13, 10
    s_add_u32 s16, s16, s17
    s_add_u32 s16, s16, {PART_OFF}
    s_mov_b32 s6, {PART_OFF + 256*PART_BYTES}
    s_mov_b32 s7, 0x20000
    s_mov_b32 s10, {8*160*1024*2}
    s_mov_b32 s11, 0x20000
    ''')
    for i in range(4):
        p += I(f'buffer_load_dwordx4 v[{8+4*i}:{11+4*i}], v3, s[4:7], s16 offen{pol}')
        if i < 3: p += I(f's_add_u32 s16, s16, {PART_BYTES}')
    p += I(f'''
    s_mul_i32 s14, s13, 6554
    s_lshr_b32 s14, s14, 16          ; w
    s_mul_i32 s15, s14, 10
    s_sub_u32 s19, s13, s15          ; idx
    s_lshr_b32 s20, s19, 1           ; t
    s_and_b32 s21, s19, 1            ; m
    s_lshr_b32 s22, s12, 2
    s_and_b32 s22, s22, 7            ; b
    s_lshr_b32 s23, s12, 5           ; branch
    s_and_b32 s18, s12, 3            ; hp
    s_mul_i32 s24, s22, 160
    s_lshr_b32 s25, s14, 1
    s_mul_i32 s25, s25, 80
    s_add_u32 s24, s24, s25
    s_lshl_b32 s25, s20, 4
    s_add_u32 s24, s24, s25
    s_lshl_b32 s24, s24, 11
    s_lshl_b32 s25, s23, 10
    s_add_u32 s24, s24, s25
    s_lshl_b32 s25, s18, 8
    s_add_u32 s24, s24, s25
    s_and_b32 s25, s14, 1
    s_lshl_b32 s25, s25, 7
    s_add_u32 s24, s24, s25
    s_lshl_b32 s25, s21, 6
    s_add_u32 s24, s24, s25
    v_and_b32 v4, 15, v2
    v_lshlrev_b32 v4, 11, v4
    v_lshrrev_b32 v5, 4, v2
    v_lshl_add_u32 v4, v5, 3, v4
    ''')
    for i in range(4):
        for j in range(4):
            r = 8 + 4*i + j
            if i == 0: p += I(f'v_lshlrev_b32 v{32+2*j}, 16, v{r}\nv_and_b32 v{33+2*j}, 0xffff0000, v{r}')
            else: p += I(f'v_lshlrev_b32 v6, 16, v{r}\nv_and_b32 v7, 0xffff0000, v{r}\nv_add_f32 v{32+2*j}, v{32+2*j}, v6\nv_add_f32 v{33+2*j}, v{33+2*j}, v7')
    for j in range(4): p += I(f'v_cvt_pk_bf16_f32 v{40+j}, v{32+2*j}, v{33+2*j}')
    p += I('''buffer_store_dwordx2 v[40:41], v4, s[8:11], s24 offen
    buffer_store_dwordx2 v[42:43], v4, s[8:11], s24 offen offset:32
    L_rend:
    s_endpgm''')
    return finalize(p)

def generate(cfg, path):
    g = Gen(cfg)
    main = g.build()
    if cfg.kpolB != '=' or cfg.vpolB != '=':
        import copy
        c2 = copy.copy(cfg)
        if cfg.kpolB != '=': c2.kpol = cfg.kpolB
        if cfg.vpolB != '=': c2.vpol = cfg.vpolB
        m2 = Gen(c2).build()
        for x in m2: x.text = re.sub(r'\bL_(\w+)', r'LB_\1', x.text)
        main = I('s_bitcmp1_b32 s2, 2\ns_cbranch_scc1 LB_entry') + main + I('LB_entry:') + m2
    red = reduce_kernel(cfg)
    if cfg.dbgwg >= 0:
        k = [i for i, x in enumerate(red) if x.text == 'L_rend:'][0]
        red[k:k] = finalize(I(f'''s_cmp_lg_u32 s2, 0
        s_cbranch_scc1 L_rend
        s_load_dwordx2 s[8:9], s[0:1], 88
        s_mov_b32 s10, 256
        s_mov_b32 s6, 0x10000000
        s_mov_b32 s16, {STAMP_OFF}
        v_lshlrev_b32 v2, 2, v0
        buffer_load_dword v3, v2, s[4:7], s16 offen
        buffer_store_dword v3, v2, s[8:11], 0 offen'''))
    s = make_file([(KN, 256, 256, 163840), ('reduce_heads_kernel', 640, 256, 0)],
                  [(KN, text_of(main), 512, 102, 256), ('reduce_heads_kernel', text_of(red), 48, 32, 48)])
    open(path, 'w').write(s)
    open(path[:-2] + '.nst', 'w').write(str(g.nst))
    return g, main

if __name__ == '__main__':
    cfg = Cfg()
    out = sys.argv[1]
    for kv in sys.argv[2:]:
        k, v = kv.split('=')
        cur = getattr(cfg, k)
        setattr(cfg, k, type(cur)(int(v)) if isinstance(cur, (bool, int)) and not isinstance(cur, float) else type(cur)(v.replace('+', ' ')))
    g, main = generate(cfg, out)
    from collections import Counter
    print(out, 'stamps', g.nst, dict(Counter(i.kind for i in main)))
    if cfg.verbose:
        for l in g.log: print(*l)
```

```python
import sys, math, struct, re
from asmlib import *
from gen_common import make_file, KN

class Cfg:
    kpol = 'nt'; vpol = 'nt'; kpolB = '='; vpolB = '='; wpol = ''; stpol = 'sc1'; rdpol = ''; pfpol = ''
    stamps = False; stset = 'main'; clk = 0
    codepf = 1
    kv_pro = 4
    kv_end = 13
    l2pf = 1; pfit = 11; l2pfq = 0
    nstg = 3
    late = 1
    early5 = 1
    rot = 2
    vsp = 4
    kveven = 1
    thr = 8.0
    loop = 1
    nomem = ''
    verbose = 0
    dbgwg = -1
    normlast = 105
    fuse = 1
    outpol = ''
    opol = 'sc1'
    zgap = 2
    pgap = 30
    maxpoll = 200000
    krot = 0
    ccap = 2
    tcap = 2
    lend = 10
    dlo = 24
    dhi = 80
STAMP_OFF = 0x8000000
PART_BYTES = 40960
PART_OFF = 0x2000000
OX_BYTES = 327680
FLAG_OFF = 0x3000000
def f32(x): return '0x%08x' % struct.unpack('<I', struct.pack('<f', x))[0]

SX, SWQ, SK, SV, SWO, SWS = 's[4:7]', 's[8:11]', 's[12:15]', 's[16:19]', 's[20:23]', 's[24:27]'
sW, sHH, sQH = 's3', 's28', 's29'
sKVOFF, sKVLDS, sWQOFF, sXOFF, sXLDS, sWO0, sWO1, sWOLDS, sPW = 's30', 's31', 's32', 's33', 's34', 's35', 's36', 's37', 's38'
sC, sT = 's40', 's41'
sT0, sT1, sT2, sT3 = 's42', 's43', 's44', 's45'
sRET = 's[60:61]'
sRB, sDB, sKO, sVO, sIT = 's46', 's47', 's52', 's53', 's50'
sB, sHP, sH0 = 's48', 's49', 's51'
sWQC, sXC, sWQB, sXB = 's88', 's89', 's90', 's91'
SOX, SDB = 's[76:79]', 's[80:83]'
sCL, sXCC, sRDY, sOW, sOCT = 's92', 's93', 's94', 's95', 's39'
sPO = ['s64', 's65', 's66', 's67']; sPWo = ['s68', 's69', 's70', 's71']
sW4K, sW5K, sCNT, sWB = 's96', 's97', 's98', 's99'
sKR, sKC = 's35', 's36'
sOLD = ['s72', 's73', 's74', 's75']
vFOFF = 215; vFOFF2 = 214
SD2 = 's[84:87]'; sOLD2 = ['s37', 's54', 's55', 's100']; sBLK = 's101'; SOUT = 's[12:15]'
STAMP0 = 62
def O(t, dt): return (t * 8 + dt) * 4
S0 = 160; P0 = 200; NM4 = 220
def Sreg(t, kt): return S0 + (t * 2 + kt) * 4
def Preg(t): return P0 + 4 * t
vMX0, vMX1, vTA, vTB = 240, 241, 242, 243
vK, vVE, vVO, aK, aVE = 244, 245, 246, 247, 248
vKVA, vKVB, vLANE, vWOV, vOE = 249, 250, 251, 252, 253
vWQA, vWQB, vX0, vX1 = 200, 201, 202, 203
vQE = [204, 205, 206]; vQO = [207, 208, 209]; vXR = [210, 211]
vWA = [212, 213]
vWA1 = 254
vRL = 240
vOEs, vOOs = 245, 246
vEX1, vEX2, vL16 = 247, 248, 254
vEXR1, vEXR2, vOB0, vOB1, vPOLL, vFLAG, vWEr, vWOr, vPOFF = 16, 17, 18, 19, 20, 21, 22, 23, 24
aVF, aAF, aKF, aL, aONE, aQ = 0, 80, 104, 136, 156, 160
aPART = 0; aA0 = 160
def Qf(ks, t): return aQ + (t * 4 + ks) * 4
def vr(b, n=4): return f'v[{b}:{b+n-1}]'
def ar(b, n=4): return f'a[{b}:{b+n-1}]'
SLOT = 32768
WQBUF = [147456, 65536, 102400]
XBUF = [81920, 126976]
WOB = [16384, 0, 32768, 49152]
OB = [65536, 86016, 106496, 126976]
aA1 = 80
aSET = [160, 196]
MF = 'v_mfma_f32_16x16x32_bf16'

def FS(units, lo=-1, hi=10**6, step=None):
    return [F(u, lo if step is None else int(lo + k * step), hi) for k, u in enumerate(units)]

class Gen:
    def __init__(self, cfg):
        self.c = cfg; self.p = []; self.nst = 0; self.stubs = []; self.log = []
    def e(self, x, tag=None):
        self.p += I(x, tag) if isinstance(x, str) else x
    def stamp_i(self, grp='all'):
        if self.c.stamps and grp in ('all', self.c.stset):
            self.nst += 1
            return I(f's_mem{"" if self.c.clk else "real"}time s[62:63]\ns_waitcnt lgkmcnt(0)\nv_writelane_b32 v255, s62, {self.nst - 1}')
        return []
    def stamp(self, *grps):
        for g in grps or ('all',): self.e(self.stamp_i(g))
    def sch(self, name, main, streams, **kw):
        v = []
        self.e(sched(main, streams, verbose=v, **kw))
        self.log.append((name,) + v[0])
    @staticmethod
    def pol(p): return (' ' + p) if p else ''
    def kvoff(self, tile, dst=sT2):
        if not self.c.krot: return f's_add_u32 {dst}, {sKVOFF}, {tile*8192}'
        return f's_add_u32 {dst}, {sKR}, {tile*8192}\ns_and_b32 {dst}, {dst}, 0x1e000\ns_or_b32 {dst}, {dst}, {sKVOFF}'
    def kvo(self, tile):
        u = I(self.kvoff(tile))
        for x in u: x.tag = ('kvo', tile)
        return u
    def kvp(self, srd): return self.pol(self.c.kpol if srd == SK else self.c.vpol)
    def kv_dma(self, srd, tile, lds, tag):
        us = []
        for k in range(4):
            u = I(f's_add_u32 m0, {sKVLDS}, {lds}') + self.kvo(tile)
            u += I(f'buffer_load_dwordx4 v{vKVA if k % 2 == 0 else vKVB}, {srd}, {sT2} offen offset:{k*1024}{self.kvp(srd)} lds', tag=tag)
            us.append(u)
        return us
    def kv_stage(self, st):
        b = (st % 5) * SLOT
        return (self.kv_dma(SK, st + 1, b, f'kv{st}') if st < 15 else []) + self.kv_dma(SV, st, b + 16384, f'kv{st}')
    def kv_stage_dyn(self, st):
        us = []
        for part in range(2):
            for k in range(4):
                u = I(f's_add_u32 m0, {sDB}, {part*16384}') if k == 0 else []
                if k == 0: us.append(u); u = []
                u += I(f'buffer_load_dwordx4 v{vKVA if k % 2 == 0 else vKVB}, {SK if part == 0 else SV}, {sKO if part == 0 else sVO} offen offset:{k*1024}{self.kvp(SK if part == 0 else SV)} lds', tag=f'kv{st}')
                us.append(u)
        return us
    def stg(self, st, part, k):
        if st >= 6: return ar(32 + ((st - 6)*8 + part*4 + k)*4)
        return ar(160 + ((st - 2)*8 + part*4 + k)*4)
    def kv_reg(self, st, parts=(0, 1)):
        us = []
        for part in parts:
            srd, tile = (SK, st + 1) if part == 0 else (SV, st)
            for k in range(4):
                us.append(self.kvo(tile) +
                          I(f'buffer_load_dwordx4 {self.stg(st, part, k)}, v{vKVA if k % 2 == 0 else vKVB}, {srd}, {sT2} offen offset:{k*1024}{self.kvp(srd)}'))
        return us
    def kv_drain(self, st, parts=(0, 1)):
        us = []
        for part in parts:
            for k in range(4):
                adr, off = {2: (vWA[0], 0), 3: (vWA[0], SLOT), 4: (vWA[1], 0), 6: (vWA1, 0), 7: (vWA1, SLOT)}[st]
                off += part*16384
                us.append(I(f'ds_write_b128 v{adr}, {self.stg(st, part, k)} offset:{off + k*1024}', tag=f'kv{st}'))
        return us
    def wq_next(self, j):
        if self.c.rot == 2 and j < 2: return I(f's_add_u32 {sWQB}, {sWQOFF}, {j*262144}')
        wrap = f's_cmp_eq_u32 {sWQC}, 0x400000\ns_cselect_b32 {sWQC}, 0x80000, {sWQC}' if self.c.rot == 2 else f's_and_b32 {sWQC}, {sWQC}, 0x3fffff'
        return I(f's_add_u32 {sWQB}, {sWQC}, {sWQOFF}\ns_add_u32 {sWQC}, {sWQC}, 262144\n{wrap}')
    def x_next(self, J):
        if self.c.rot == 2 and J < 1: return I(f's_add_u32 {sXB}, {sXOFF}, 0')
        wrap = f's_cmp_eq_u32 {sXC}, 1024\ns_cselect_b32 {sXC}, 128, {sXC}' if self.c.rot == 2 else f's_and_b32 {sXC}, {sXC}, 1023'
        return I(f's_add_u32 {sXB}, {sXC}, {sXOFF}\ns_add_u32 {sXC}, {sXC}, 128\n{wrap}')
    def wq_units(self, j):
        us = []
        for k in range(4):
            u = I(f's_add_u32 m0, {sKVLDS}, {WQBUF[j % 3]}\ns_add_u32 {sT0}, {sWQB}, {k*32768 - k*1024}')
            u += I(f'buffer_load_dwordx4 v{vWQA if k < 2 else vWQB}, {SWQ}, {sT0} offen offset:{k*1024}{self.pol(self.c.wpol)} lds', tag=f'wq{j}')
            us.append(u)
        if j == 0: us[0] = self.wq_next(0) + us[0]
        if j < 15: us[-1] += self.wq_next(j + 1)
        return us
    def x_units(self, J):
        us = []
        for k in range(5):
            im = (k % 4) * 1024
            u = I(f's_add_u32 m0, {sXLDS}, {XBUF[J % 2] + (k // 4)*4096}\ns_add_u32 {sT0}, {sXB}, {k*8192 - im}')
            u += I(f'buffer_load_dwordx4 v{vX0 if k % 2 == 0 else vX1}, {SX}, {sT0} offen offset:{im}{self.pol(self.c.wpol)} lds', tag=f'x{J}')
            us.append(u)
        if J == 0: us[0] = self.x_next(0) + us[0]
        if J < 7: us[-1] += self.x_next(J + 1)
        return us
    def wo_half(self, base, const, lds, tag):
        us = []
        for k in range(4):
            u = I(f's_add_u32 m0, {sW4K}, {lds}\ns_add_u32 {sT0}, {base}, {const + k*3072}')
            u += I(f'buffer_load_dwordx4 v{vKVA if k % 2 == 0 else vKVB}, {SWO}, {sT0} offen offset:{k*1024}{self.pol(self.c.wpol)} lds', tag=tag)
            us.append(u)
        return us
    def wo_own(self, h):
        us = self.wo_half(sPWo[0], h*131072, (1 + h)*SLOT, 'wown') + self.wo_half(sPWo[0], h*131072 + 65536, (1 + h)*SLOT + 16384, 'wown')
        if h == 0: us[0] = I(f'v_mov_b32 v{vKVA}, v{vWOV}\nv_xor_b32 v{vKVB}, 32, v{vWOV}') + us[0]
        return us
    def wo_rem(self, u):
        return self.wo_half(sPWo[1 + u // 4], ((u >> 1) & 1)*131072 + (u & 1)*65536, WOB[u % 4], f'u{u}')
    def o_rem(self, u):
        us = []
        for k in range(5):
            x = I(f's_add_u32 m0, {sW5K}, {OB[u % 4] + (k // 4)*4096}\ns_add_u32 {sT2}, {sPO[1 + u // 4]}, {((u >> 1) & 1)*40960 + (u & 1)*20480 + (k // 4)*4096}')
            x += I(f'buffer_load_dwordx4 v{vL16}, {SOX}, {sT2} offen offset:{(k % 4)*1024} sc1 lds', tag=f'u{u}')
            us.append(x)
        return us
    def l2pf_q(self):
        pol = self.pol(self.c.pfpol); L = f'v{vLANE}'
        return [I(f'v_lshrrev_b32 v214, 3, {L}\nv_and_b32 v215, 7, {L}'),
                I(f'v_lshlrev_b32 v214, 13, v214\nv_lshl_add_u32 v214, v215, 6, v214'),
                I(f's_lshl_b32 {sT3}, {sB}, 19\ns_lshl_b32 {sT1}, {sW}, 17'),
                I(f's_add_u32 {sT3}, {sT3}, {sT1}\ns_lshl_b32 {sT1}, {sH0}, 8'),
                I(f's_add_u32 {sT3}, {sT3}, {sT1}\nbuffer_load_dword a138, v214, {SWQ}, {sT3} offen{pol}'),
                I(f's_add_u32 {sT3}, {sT3}, 65536\nbuffer_load_dword a139, v214, {SWQ}, {sT3} offen{pol}'),
                I(f'v_lshlrev_b32 v215, 6, {L}\ns_mul_i32 {sT3}, {sHP}, 40960'),
                I(f's_mul_i32 {sT1}, {sW}, 10240\ns_add_u32 {sT3}, {sT3}, {sT1}'),
                I(f'buffer_load_dword a140, v215, {SX}, {sT3} offen{pol}'),
                I(f's_add_u32 {sT3}, {sT3}, 4096\nbuffer_load_dword a141, v215, {SX}, {sT3} offen{pol}'),
                I(f's_add_u32 {sT3}, {sT3}, 4096\nbuffer_load_dword a142, v215, {SX}, {sT3} offen{pol}')]
    def l2pf_wo(self):
        pol = self.pol(self.c.pfpol)
        return [I(f'v_lshrrev_b32 v{vTA}, 2, v{vLANE}\nv_and_b32 v{vTB}, 3, v{vLANE}'),
                I(f'v_lshlrev_b32 v{vTA}, 10, v{vTA}\nv_lshl_add_u32 v{vTA}, v{vTB}, 6, v{vTA}'),
                I(f's_lshl_b32 {sT3}, {sOCT}, 20\ns_lshl_b32 {sT1}, {sB}, 17'),
                I(f's_add_u32 {sT3}, {sT3}, {sT1}\ns_lshl_b32 {sT1}, {sW}, 15'),
                I(f's_add_u32 {sT3}, {sT3}, {sT1}\ns_lshl_b32 {sT1}, {sHP}, 8'),
                I(f's_add_u32 {sT3}, {sT3}, {sT1}\nbuffer_load_dword a240, v{vTA}, {SWO}, {sT3} offen{pol}'),
                I(f's_add_u32 {sT3}, {sT3}, 16384\nbuffer_load_dword a241, v{vTA}, {SWO}, {sT3} offen{pol}')]
    def dma_stream(self, units, lo, hi, slack=4):
        fs = []; n = len(units); prev = {}
        for k, u in enumerate(units):
            l = lo + (k * (hi - lo + 1)) // n
            after = False
            for x in u:
                c = 1
                if x.op == 's_cselect_b32' or x.kind in ('branch', 'label'):
                    fs[-1].ins.append(x); fs[-1].cost += x.cost; continue
                if isinstance(x.tag, tuple) and self.c.krot:
                    if prev.get('kvo') == x.tag: c = 0
                    if x.op == 's_or_b32': prev['kvo'] = x.tag
                elif x.kind == 'salu' and x.op == 's_add_u32' and len(x.writes) == 1:
                    w = next(iter(x.writes))
                    if prev.get(w) == x.text and w not in x.reads: c = 0
                    prev[w] = x.text
                if x.kind not in ('salu', 'valu'): fs.append(F([x], l, l + slack, cost=c)); after = True
                elif after: fs.append(F([x], l, 10**6, cost=c))
                else: fs.append(F([x], l - 3, l, cost=c))
        return fs
    def peer_setup(self):
        o = [f's_lshl_b32 {sT3}, {sOCT}, 20', f's_lshl_b32 {sT2}, {sHP}, 8', f's_add_u32 {sT3}, {sT3}, {sT2}',
             f's_lshl_b32 {sT2}, {sW}, 14', f's_add_u32 {sT3}, {sT3}, {sT2}']
        for r in range(4):
            o += [f's_add_u32 {sT2}, {sHP}, {r}', f's_and_b32 {sT2}, {sT2}, 3', f's_mul_i32 {sPO[r]}, {sT2}, 81920', f's_add_u32 {sPO[r]}, {sPO[r]}, {sW5K}',
                  f's_lshl_b32 {sPWo[r]}, {sT2}, 18', f's_add_u32 {sPWo[r]}, {sPWo[r]}, {sT3}']
        o += [f's_getreg_b32 {sXCC}, hwreg(HW_REG_XCC_ID)', f's_and_b32 {sXCC}, {sXCC}, 15', f's_add_u32 {sXCC}, {sXCC}, 1']
        return '\n'.join(o)
    def rot_setup(self):
        if self.c.rot != 2: return f's_and_b32 {sXC}, {sXC}, {7 if self.c.rot else 0}'
        return f's_cmp_ge_u32 {sXC}, 7\ns_cselect_b32 {sWQC}, 7, 0\ns_sub_u32 {sXC}, {sXC}, {sWQC}\ns_add_u32 {sXC}, {sXC}, 1'
    def prologue(self):
        e = self.e; L = f'v{vLANE}'
        e(f'''
        s_cmp_ge_u32 s2, 256
        s_cbranch_scc1 L_end
        s_load_dwordx16 s[64:79], s[0:1], 0
        s_load_dwordx4 s[80:83], s[0:1], 64
        s_load_dwordx2 s[24:25], s[0:1], 96
        v_lshrrev_b32 v1, 6, v0
        v_and_b32 {L}, 63, v0
        v_readfirstlane_b32 {sW}, v1
        s_and_b32 s46, s2, 7
        s_lshr_b32 s47, s2, 3
        s_lshr_b32 {sB}, s47, 2
        s_and_b32 {sHP}, s47, 3
        s_and_b32 {sOCT}, s46, 3
        s_lshl_b32 s50, {sOCT}, 2
        s_add_u32 s50, s50, {sHP}
        s_lshl_b32 {sH0}, s50, 1
        s_lshr_b32 s52, s46, 2            ; branch
        s_and_b32 {sHH}, {sW}, 1
        s_lshr_b32 {sQH}, {sW}, 1
        v_and_b32 v2, 3, {L}
        v_lshlrev_b32 v2, 4, v2           ; cc*16
        v_lshrrev_b32 v3, 4, {L}          ; g
        v_bfe_u32 v4, {L}, 2, 2           ; r
        v_lshl_add_u32 v5, v3, 6, v2
        v_lshl_add_u32 v{vKVA}, v4, 8, v5
        v_xor_b32 v{vKVB}, 32, v{vKVA}
        v_lshl_add_u32 v{vWQA}, v4, 13, v5
        v_xor_b32 v{vWQB}, 16, v{vWQA}
        v_lshrrev_b32 v6, 5, {L}
        v_bfe_u32 v7, {L}, 2, 3
        v_lshl_add_u32 v8, v6, 6, v2
        v_lshl_add_u32 v8, v7, 10, v8
        s_lshl_b32 {sT0}, {sHH}, 5
        v_xor_b32 v{vX0}, {sT0}, v8
        v_xor_b32 v{vX1}, 32, v{vX0}
        s_lshl_b32 {sT0}, {sQH}, 12
        s_lshl_b32 {sKVLDS}, {sHH}, 13
        s_add_u32 {sKVLDS}, {sKVLDS}, {sT0}
        s_lshl_b32 {sKVOFF}, {sHH}, 17
        s_add_u32 {sKVOFF}, {sKVOFF}, {sT0}
        s_add_u32 {sT1}, {sH0}, {sHH}
        s_lshl_b32 {sWQOFF}, {sT1}, 8
        s_lshl_b32 {sT0}, {sQH}, 17
        s_add_u32 {sWQOFF}, {sWQOFF}, {sT0}
        s_mul_i32 {sXOFF}, {sW}, {5*8192}
        s_mul_i32 {sXLDS}, {sW}, {5*1024}
        s_lshl_b32 {sXC}, {sHP}, 1
        s_add_u32 {sXC}, {sXC}, {sB}
        {self.rot_setup()}
        s_lshl_b32 {sWQC}, {sXC}, 19
        s_lshl_b32 {sXC}, {sXC}, 7
        s_mul_i32 {sKR}, s2, {self.c.krot}
        s_add_u32 {sKR}, {sKR}, s47
        s_lshl_b32 {sKR}, {sKR}, 13
        s_mul_i32 s53, {sB}, 163840
        s_lshl_b32 s54, {sB}, 5
        s_add_u32 s54, s54, {sH0}
        s_lshl_b32 s54, s54, 17
        s_mov_b32 s6, 163840
        s_mov_b32 s7, 0x20000
        s_mov_b32 s10, 0x400000
        s_mov_b32 s11, 0x20000
        s_mov_b32 s14, 0x40000
        s_mov_b32 s15, 0x20000
        s_mov_b32 s18, 0x40000
        s_mov_b32 s19, 0x20000
        s_cmp_eq_u32 s52, 0
        s_cselect_b64 s[4:5], s[64:65], s[74:75]
        s_cselect_b64 s[8:9], s[70:71], s[80:81]
        s_cselect_b64 s[12:13], s[66:67], s[76:77]
        s_cselect_b64 s[16:17], s[68:69], s[78:79]
        s_cselect_b64 s[20:21], s[72:73], s[82:83]
        s_add_u32 s4, s4, s53
        s_addc_u32 s5, s5, 0
        ''')
        self.stamp()
        for u in self.x_units(0) + self.wq_units(0) + self.wq_units(1): e(u)
        e(f'''
        s_add_u32 s12, s12, s54
        s_addc_u32 s13, s13, 0
        s_add_u32 s16, s16, s54
        s_addc_u32 s17, s17, 0
        ''')
        self.kvq = self.kv_dma(SK, 0, SLOT + 16384, 'k0') + self.kv_stage(0) + self.kv_dma(SK, 2, SLOT, 'kv1')
        for st in (2, 3, 4)[:self.c.nstg]: self.kvq += self.kv_reg(st)
        for u in self.x_units(1) + self.wq_units(2): e(u)
        for _ in range(self.c.kv_pro): e(self.kvq.pop(0))
        if self.c.codepf:
            e(f'''s_getpc_b64 s[84:85]
            L_pc0:
            s_mov_b32 s86, L_codeend-L_pc0
            s_mov_b32 s87, 0x20000
            v_lshlrev_b32 v22, 7, v0
            buffer_load_dword a136, v22, s[84:87], 0 offen
            s_mov_b32 {sT0}, 32768
            buffer_load_dword a137, v22, s[84:87], {sT0} offen''')
        e(f'''
        s_mul_i32 {sPW}, {sW}, 10240
        s_lshl_b32 {sW4K}, {sW}, 12
        s_mul_i32 {sW5K}, {sW}, 5120
        s_mov_b32 {sC}, {f32(128 ** -0.5 * math.log2(math.e))}
        s_mov_b32 {sT}, {f32(self.c.thr)}
        s_lshl_b32 s55, s52, 3
        s_add_u32 s55, s55, {sB}          ; group = branch*8 + b
        s_lshl_b32 {sCL}, s55, 2
        s_add_u32 {sT2}, {sCL}, {sHP}
        s_mov_b32 {sBLK}, {sT2}
        s_add_u32 {sCL}, {sCL}, {sOCT}    ; cluster = group*4 + octet
        s_lshl_b32 {sT2}, {sT2}, 2
        s_add_u32 {sT2}, {sT2}, {sOCT}
        s_mul_i32 {sT2}, {sT2}, {PART_BYTES}
        s_add_u32 {sT2}, {sT2}, {PART_OFF}
        s_mul_i32 s55, {sCL}, {OX_BYTES}
        s_mov_b32 s22, 0x400000
        s_mov_b32 s23, 0x20000
        s_mov_b64 s[56:57], s[24:25]
        s_add_u32 s76, s24, s55
        s_addc_u32 s77, s25, 0
        s_mov_b32 s78, {OX_BYTES}
        s_mov_b32 s79, 0x20000
        s_add_u32 s24, s24, {sT2}
        s_addc_u32 s25, s25, 0
        s_mov_b32 s26, {PART_BYTES}
        s_mov_b32 s27, 0x20000
        s_lshl_b32 {sCL}, {sCL}, 7
        s_add_u32 {sCL}, {sCL}, {FLAG_OFF}
        s_add_u32 s80, s56, {sCL}
        s_addc_u32 s81, s57, 0
        s_mov_b32 s82, 16
        s_mov_b32 s83, 0x20000
        v_add_u32 v24, {sHP}, {L}
        v_and_b32 v24, 3, v24
        v_lshlrev_b32 v24, 2, v24
        buffer_load_dword v{vFOFF}, v24, {SDB}, 0 offen sc0 sc1
        s_lshl_b32 {sCL}, {sHP}, 2
        s_mov_b32 {sWB}, 0
        s_lshl_b32 {sT2}, {sBLK}, 7
        s_add_u32 {sT2}, {sT2}, {FLAG_OFF + 8192}
        s_add_u32 s84, s56, {sT2}
        s_addc_u32 s85, s57, 0
        s_mov_b32 s86, 16
        s_mov_b32 s87, 0x20000
        v_and_b32 v24, 3, {L}
        v_lshlrev_b32 v24, 2, v24
        buffer_load_dword v{vFOFF2}, v24, {SD2}, 0 offen sc0 sc1
        s_mul_i32 {sOW}, {sHP}, 81920
        s_mul_i32 {sT2}, {sHH}, 40960
        s_add_u32 {sOW}, {sOW}, {sT2}
        s_mul_i32 {sT2}, {sQH}, 10240
        s_add_u32 {sOW}, {sOW}, {sT2}
        {self.peer_setup()}
        v_and_b32 v9, 1, v3
        v_lshlrev_b32 v9, 5, v9           ; 32*(g&1)
        v_lshl_add_u32 v{vWOV}, v4, 10, v5
        v_and_b32 v10, 15, {L}
        v_and_b32 v11, 3, {L}
        v_lshrrev_b32 v12, 2, v10
        v_and_b32 v13, 1, v12
        v_lshlrev_b32 v13, 5, v13
        v_lshlrev_b32 v14, 4, v3
        v_xor_b32 v13, v13, v14
        v_lshl_add_u32 v13, v11, 6, v13
        v_lshl_add_u32 v13, v12, 10, v13
        s_lshl_b32 {sT1}, {sHH}, 13
        v_add_u32 v{aK}, {sT1}, v13
        v_lshl_add_u32 v15, v11, 3, v9
        v_lshl_add_u32 v15, v4, 6, v15
        v_lshl_add_u32 v16, v3, 10, v15
        v_add_u32 v{aVE}, {sT1}, v16
        v_lshrrev_b32 v16, 1, v9          ; 16*(g&1)
        v_lshlrev_b32 v22, 4, v11         ; 16*c4
        v_xor_b32 v16, v16, v22
        v_and_b32 v22, 1, v11
        v_lshl_add_u32 v16, v22, 3, v16   ; + 8*(c4&1)
        v_lshl_add_u32 v16, v4, 6, v16    ; + r*64
        v_lshl_add_u32 v16, v3, 11, v16   ; + g*2048
        v_add_u32 v16, {sT1}, v16
        v_add_u32 v{vQE[0]}, {WQBUF[0]}, v16
        v_add_u32 v{vQE[1]}, {WQBUF[1]}, v16
        v_add_u32 v{vQE[2]}, {WQBUF[2]}, v16
        v_xor_b32 v{vQO[0]}, 8, v{vQE[0]}
        v_xor_b32 v{vQO[1]}, 8, v{vQE[1]}
        v_xor_b32 v{vQO[2]}, 8, v{vQE[2]}
        s_mov_b32 vcc_lo, 0xffff0000
        s_mov_b32 vcc_hi, 0xffff0000
        v_lshrrev_b32 v17, 3, v10
        v_lshlrev_b32 v18, 5, v17
        v_xor_b32 v18, v18, v14
        v_and_b32 v19, 7, {L}
        v_lshl_add_u32 v18, v19, 6, v18
        v_lshl_add_u32 v18, v17, 10, v18
        s_mul_i32 {sT2}, {sQH}, 10240
        v_add_u32 v18, {sT2}, v18
        v_add_u32 v{vXR[0]}, {XBUF[0]}, v18
        v_add_u32 v{vXR[1]}, {XBUF[1]}, v18
        v_lshl_add_u32 v20, v3, 10, v15
        s_lshl_b32 {sT2}, {sHH}, 9
        v_add_u32 v{vOE}, {sT2}, v20
        v_lshlrev_b32 v{vWA1}, 4, {L}
        v_add_u32 v{vWA1}, {sKVLDS}, v{vWA1}
        v_add_u32 v{vWA[0]}, 65536, v{vWA1}
        v_add_u32 v{vWA[1]}, 131072, v{vWA1}
        v_add_u32 v{vWA1}, {SLOT}, v{vWA1}
        v_mov_b32 v21, 0x3f803f80
        v_accvgpr_write_b32 a{aONE}, v21
        v_accvgpr_write_b32 a{aONE+1}, v21
        v_accvgpr_write_b32 a{aONE+2}, v21
        v_accvgpr_write_b32 a{aONE+3}, v21
        ''')
    def q_reads(self, j):
        st = (j & 1) * 52
        xr = [I(f'ds_read_b128 {ar(st + 32 + 4*t)}, v{vXR[(j >> 1) & 1]} offset:{t*2048 + (j & 1)*512}') for t in range(5)]
        aa = []
        for dt in range(8):
            for u in range(2):
                adr = (vQE if dt % 2 == 0 else vQO)[j % 3]
                aa.append(I(f'ds_read_b64_tr_b16 {ar(st + 4*dt + 2*u, 2)}, v{adr} offset:{u*1024 + (dt >> 1)*256}'))
        return aa[:2] + xr + aa[2:]
    def k_reads(self, base, tag='kr'):
        us = [I(f'v_add_u32 v{vK}, {base}, v{aK}')]
        for ks in range(4):
            for kt in range(2):
                us.append(I(f'ds_read_b128 {ar(aKF + (kt*4+ks)*4)}, v{vK} offset:{kt*4096 + ks*256}', tag=tag))
        return us
    def v_reads(self, base, dst=aVF, tag='vr'):
        pre = [I(f'v_add_u32 v{vVE}, {base}, v{aVE}'), I(f'v_xor_b32 v{vVO}, 32, v{vVE}')]
        us = []
        for dt in range(8):
            for h in range(2):
                us.append((dt, I(f'ds_read_b64_tr_b16 {ar(dst + 4*dt + 2*h, 2)}, v{vVE if dt % 2 == 0 else vVO} offset:{16384 + h*4096 + (dt >> 1)*256}', tag=tag)))
        return pre, us
    def q_mfmas(self, j, touter=False):
        st = (j & 1) * 52; m = []
        order = [(t, dt) for t in range(5) for dt in range(8)] if touter else [(t, dt) for dt in range(8) for t in range(5)]
        for t, dt in order:
            m += I(f'{MF} {vr(O(t, dt))}, {ar(st + 4*dt)}, {ar(st + 32 + 4*t)}, {vr(O(t, dt)) if j else "0"}')
        return m
    def s_mfmas(self, zero=False):
        m = []
        for t in range(5):
            for ks in range(4):
                for kt in range(2):
                    c = vr(Sreg(t, kt)) if ks else ('0' if zero else vr(NM4 + 4*t))
                    m += I(f'{MF} {vr(Sreg(t, kt))}, {ar(aKF + (kt*4+ks)*4)}, {ar(Qf(ks, t))}, {c}')
        m[0] = waittag('kr') + [m[0]]
        return m
    def pv_mfmas(self, first=False, vf=aVF, ones_first=True):
        ones = [I(f'{MF} {ar(aL + 4*t)}, {ar(aONE)}, {vr(Preg(t))}, {"0" if first else ar(aL + 4*t)}')[0] for t in range(5)]
        m = list(ones) if ones_first else []
        for t in range(5):
            if not ones_first: m.append(ones[t])
            for dt in range(8):
                m += I(f'{MF} {vr(O(t, dt))}, {ar(vf + 4*dt)}, {vr(Preg(t))}, {"0" if first else vr(O(t, dt))}')
        return m
    def q_convert(self, t):
        us = []
        for ks in range(4):
            x = O(t, 2*ks); y = x + 4
            for k in range(8): us.append(I(f'v_mul_f32 v{x+k}, {sC}, v{x+k}'))
        for ks in range(4):
            x = O(t, 2*ks); y = x + 4
            for s in (f'v{x}, v{x}, v{x+1}', f'v{y}, v{y}, v{y+1}', f'v{x+1}, v{x+2}, v{x+3}', f'v{y+1}, v{y+2}, v{y+3}'):
                us.append(I('v_cvt_pk_bf16_f32 ' + s))
        for ks in range(4):
            x = O(t, 2*ks); y = x + 4
            for k in range(2):
                us.append(I(f'v_cndmask_b32 v{x+2+k}, v{x+k}, v{y+k}, vcc'))
                us.append(I(f'v_cndmask_b32 v{y+2+k}, v{y+k}, v{x+k}, vcc'))
        for ks in range(4):
            x = O(t, 2*ks); y = x + 4
            for k, r in enumerate((x+2, x+3, y+2, y+3)): us.append(I(f'v_accvgpr_write_b32 a{Qf(ks, t)+k}, v{r}'))
        return us
    def exp_units(self, t):
        b = Sreg(t, 0)
        return [I(f'v_exp_f32 v{b+k}, v{b+k}') for k in range(8)], [I(f'v_cvt_pk_bf16_f32 v{Preg(t)+k}, v{b+2*k}, v{b+2*k+1}') for k in range(4)]
    def rowmax(self, m, c, b):
        return I(f'''v_max3_f32 v{m}, v{b}, v{b+1}, v{b+2}
        v_max3_f32 v{c}, v{b+3}, v{b+4}, v{b+5}
        v_max3_f32 v{m}, v{m}, v{b+6}, v{b+7}
        v_max_f32 v{m}, v{m}, v{c}
        v_mov_b32 v{c}, v{m}
        v_permlane32_swap_b32 v{m}, v{c}
        v_max_f32 v{m}, v{m}, v{c}
        v_mov_b32 v{c}, v{m}
        v_permlane16_swap_b32 v{m}, v{c}
        v_max_f32 v{m}, v{m}, v{c}''')
    def softmax_streams(self, i, ck, exp_dead, cvt_lo):
        mx = []
        for t in range(5):
            b = Sreg(t, 0)
            for k in range(4):
                m = vMX0 if k % 2 == 0 else vMX1
                if t == 0 and k < 2: mx.append(I(f'v_max_f32 v{m}, v{b+2*k}, v{b+2*k+1}'))
                else: mx.append(I(f'v_max3_f32 v{m}, v{b+2*k}, v{b+2*k+1}, v{m}'))
        mx.append(I(f'v_max_f32 v{vMX0}, v{vMX0}, v{vMX1}'))
        st = FS(mx + [I(f'v_cmp_lt_f32 vcc, {sT}, v{vMX0}')], -1, ck - 1)
        st.append(F(I(f's_cbranch_vccnz L_stub{i}\nL_ret{i}:'), ck, ck, cost=1))
        self.stubs.append(i)
        for t in range(5):
            ex, cv = self.exp_units(t)
            st += FS(ex, -1, exp_dead(t)) + FS(cv, cvt_lo(t), exp_dead(t))
        return st
    def q_phase(self):
        e = self.e
        e(waittag('x0', 'wq0')); e('s_barrier'); self.stamp('q')
        for u in self.q_reads(0): e(u)
        e(waittag('wq1')); e('s_waitcnt lgkmcnt(0)\ns_barrier')
        for j in range(15):
            d = []
            if j + 3 < 16: d += self.wq_units(j + 3)
            if j % 2 == 1 and (j - 1) // 2 + 2 < 8: d += self.x_units((j - 1) // 2 + 2)
            ke = self.c.kv_end
            if self.c.kveven:
                left = len([k for k in range(j, ke) if k % 2 == 0 or k >= 13])
                n = 0 if (j % 2 == 1 and j < 13) else (-(-len(self.kvq) // max(1, left)))
            else:
                n = -(-len(self.kvq) // max(1, ke - j)) if j < ke else len(self.kvq)
            d += [self.kvq.pop(0) for _ in range(min(n, len(self.kvq)))]
            ds = self.dma_stream(d, 1, min(39, self.c.vsp * len(d)), slack=1) if d else []
            streams = [FS(self.q_reads(j + 1), 0, 30), ds]
            if j == 0 and self.c.l2pfq: streams.append(FS(self.l2pf_q(), 22, 39))
            if j == 3: streams.append(FS([I(f'v_readlane_b32 {sOLD[r]}, v{vFOFF}, {r}') for r in range(4)] + [I(f'v_readlane_b32 {sOLD2[r]}, v{vFOFF2}, {r}') for r in range(4)], 30, 39))
            if j == 14 and self.c.nstg >= 1: streams.append(FS(self.kv_drain(2), 20, 39, step=2))
            if j == 13 and self.c.nstg < 1: streams.append(self.dma_stream(self.kv_stage(2), 4, 36))
            self.sch(f'q{j}', self.q_mfmas(j), streams)
            tags = []
            if j + 2 < 16:
                tags.append(f'wq{j+2}')
                if (j + 2) % 2 == 0: tags.append(f'x{(j+2)//2}')
            if j == 14: tags += ['k0', 'kv0']
            e(waittag(*tags)); e('s_waitcnt lgkmcnt(0)\ns_barrier'); self.stamp('q')
    def q_to_attn(self):
        main = self.q_mfmas(15, touter=True) + self.s_mfmas(zero=True) + self.s_mfmas()
        conv = []
        for t in range(5):
            cu = self.q_convert(t)
            conv += FS(cu, 8*t + 9, 39 + 8*t)
        drains = FS(self.kv_drain(3), 8, 24, step=2) if self.c.nstg >= 2 else []
        if self.c.nstg >= 3: drains += FS(self.kv_drain(4), 24, 40, step=2)
        for f in conv:
            w = [r for x in f.ins for r in x.writes if r[0] == 'a']
            if w and int(w[0][1:]) >= 192: f.lo = max(f.lo, 26 if int(w[0][1:]) < 224 else 42)
        init = []
        for t in range(5):
            b = Sreg(t, 0); lo = 40 + 8*t + 9; hi = 79 + 8*t
            u = [[x] for x in self.rowmax(vMX0, vMX1, b)]
            u += [I(f'v_sub_f32 v{NM4+4*t+k}, 0, v{vMX0}') for k in range(4)]
            u += [I(f'v_sub_f32 v{b+k}, v{b+k}, v{vMX0}') for k in range(8)]
            ex, cv = self.exp_units(t)
            init += FS(u + ex + cv, lo, hi)
        k0 = FS(self.k_reads(SLOT + 16384), -1, 12)
        k1 = self.k_reads(0)
        k1s = [F(k1[0], 60, 79)] + [F(u, 72 + k, 79) for k, u in enumerate(k1[1:])]
        pre, vu = self.v_reads(0)
        vs = FS(pre, 44, 70) + [F(u, 44, 84) for _, u in vu]
        d0 = (self.kv_stage(3) if self.c.nstg < 2 else []) + (self.kv_stage(4) if self.c.nstg < 3 else [])
        v1 = self.dma_stream(d0, 0, 40) if d0 else []
        if self.c.late and not d0: v1 += self.dma_stream(self.kv_reg(6, (0,)), 4, 40)
        v1 += [F(I('s_barrier'), 46, 50)] + self.dma_stream(self.kv_dma(SV, 1, SLOT + 16384, 'kv1'), 50, 64)
        if self.c.late: v1 += self.dma_stream(self.kv_reg(6, (1,) if not d0 else (0, 1)), 66, 86)
        if self.c.early5:
            v1 += [F(waittag('vr') + I('s_barrier'), 88, 90, cost=2)] + self.dma_stream(self.kv_stage(5), 92, 116)
        self.sch('q15..s1', main, [k0, drains, conv + init, k1s, vs, v1], pre_cap=9, cap=self.c.ccap)
    def iteration(self, i):
        e = self.e
        L0 = 4 if self.c.late else 2
        dyn = self.c.loop and L0 <= i <= self.c.lend
        if dyn and i == L0:
            e(f's_mov_b32 {sRB}, {(L0 % 5)*SLOT}\ns_add_u32 {sDB}, {sKVLDS}, {((L0 - 1) % 5)*SLOT}\n{self.kvoff(L0 + 5, sKO)}\n{self.kvoff(L0 + 4, sVO)}\ns_mov_b32 {sKC}, 0')
        if dyn: e(f'L_loopmark{i}:')
        tags = [f'kv{i}', 'vr'] + (['wown'] if i == 15 else [])
        if dyn: e('s_waitcnt vmcnt(24) lgkmcnt(0)')
        e(waittag(*tags)); e('s_barrier')
        if i == 15: return self.tail()
        if dyn: dma = self.kv_stage_dyn(i + 4)
        elif i == 1 and self.c.early5: dma = self.kv_reg(7) if self.c.late else []
        elif i in (2, 3) and self.c.late: dma = self.kv_drain(i + 4)
        elif i <= 11: dma = self.kv_stage(i + 4)
        elif i <= 13: dma = self.wo_own(i - 12)
        else: dma = []
        main = self.pv_mfmas(first=(i == 1)) + self.s_mfmas()
        base = sRB if dyn else (i % 5) * SLOT
        sm = self.softmax_streams(i, 11, lambda t: 44 + 8*t, lambda t: 12 + 8*t)
        ks = FS(self.k_reads(base), -1, 36)
        pre, vu = self.v_reads(base)
        vs = FS(pre, 20, 60) + [F(u, 37 + dt, 80) for dt, u in vu]
        streams = [sm, ks, vs]
        ds = self.dma_stream(dma, self.c.dlo, self.c.dhi) if dma else []
        if self.c.l2pf and i == self.c.pfit: ds += FS(self.l2pf_wo(), 72, 84)
        if dyn:
            ds += FS([I(x) for x in (f's_add_u32 {sDB}, {sRB}, {sKVLDS}', f's_add_u32 {sRB}, {sRB}, {SLOT}',
                      f's_cmp_eq_u32 {sRB}, {5*SLOT}\ns_cselect_b32 {sRB}, 0, {sRB}', f's_mov_b32 {sVO}, {sKO}', f's_add_u32 {sKO}, {sKO}, 8192') + ((f's_and_b32 {sKO}, {sKO}, 0x1e000', f's_or_b32 {sKO}, {sKO}, {sKVOFF}') if self.c.krot else ())], 61, 84)
        streams.append(ds)
        self.sch(f'it{i}', main, streams)
        if dyn: e(f'L_loopend{i}:')
    def rare(self):
        p = I('L_rare:\ns_nop 7\ns_nop 1')
        for t in range(5):
            b = Sreg(t, 0)
            p += self.rowmax(vMX0, vMX1, b)
            p += I(f'v_max_f32 v{vMX0}, 0, v{vMX0}')
            for k in range(4): p += I(f'v_sub_f32 v{NM4+4*t+k}, v{NM4+4*t+k}, v{vMX0}')
            for k in range(8): p += I(f'v_sub_f32 v{b+k}, v{b+k}, v{vMX0}')
            p += I(f'v_sub_f32 v{vTA}, 0, v{vMX0}\nv_exp_f32 v{vTA}, v{vTA}')
            for k in range(32): p += I(f'v_mul_f32 v{O(t,0)+k}, v{O(t,0)+k}, v{vTA}')
            for k in range(4):
                p += I(f'v_accvgpr_read_b32 v{vTB}, a{aL+4*t+k}\nv_mul_f32 v{vTB}, v{vTB}, v{vTA}\nv_accvgpr_write_b32 a{aL+4*t+k}, v{vTB}')
            for k in range(4):
                r = Preg(t) + k
                p += I(f'''v_lshlrev_b32 v{vTB}, 16, v{r}
                v_and_b32 v{vMX1}, 0xffff0000, v{r}
                v_mul_f32 v{vTB}, v{vTB}, v{vTA}
                v_mul_f32 v{vMX1}, v{vMX1}, v{vTA}
                v_cvt_pk_bf16_f32 v{r}, v{vTB}, v{vMX1}''')
        p += I(f's_nop 1\ns_setpc_b64 {sRET}')
        return p
    def own(self, ks, t): return self.ownmap[(ks, t)]
    def acc(self, t, nt): return 32*t + 4*nt
    def norm_units(self, t):
        us = [I(f'v_accvgpr_read_b32 v{vRL+t}, a{aL+4*t}'), I(f'v_rcp_f32 v{vRL+t}, v{vRL+t}')]
        for ks in range(4):
            b = O(t, 2*ks)
            for k in range(8): us.append(I(f'v_mul_f32 v{b+k}, v{b+k}, v{vRL+t}'))
            for k in range(4): us.append(I(f'v_cvt_pk_bf16_f32 v{self.own(ks, t) + k}, v{b+2*k}, v{b+2*k+1}'))
            f = ks*5 + t
            adr, off = (vEX1, f*1024) if f < 16 else (vEX2, (f-16)*1024)
            us.append(I(f's_add_u32 {sT1}, {sOW}, {(ks >> 1)*20480 + ((ks & 1)*5 + t)*1024}') +
                      I(f'buffer_store_dwordx4 {vr(self.own(ks, t))}, v{vL16}, {SOX}, {sT1} offen{self.pol(self.c.opol)}', tag='ost'))
            us.append(I(f'ds_write_b128 v{adr}, {vr(self.own(ks, t))} offset:{off}', tag='exw'))
        return us
    def a_reads(self, e, o, base, nks, dst, tag):
        us = []
        for ks in range(nks):
            for nt in range(4):
                for h in range(2):
                    us.append(I(f'ds_read_b64_tr_b16 {ar(dst + (ks*4 + nt)*4 + 2*h, 2)}, v{e if nt % 2 == 0 else o} offset:{base + ks*8192 + h*4096 + (nt >> 1)*256}', tag=tag))
        return us
    def rem_reads(self, kp):
        u = kp // 2; ksl = kp % 2; st = aSET[kp % 2]
        aa = self.a_reads(vWEr, vWOr, WOB[u % 4] + ksl*8192, 1, st, 'rr')
        adr, off = (vOB0, OB[u % 4] - OB[0]) if u % 4 < 2 else (vOB1, OB[u % 4] - OB[2])
        bb = [I(f'ds_read_b128 {ar(st + 16 + 4*t)}, v{adr} offset:{off + (ksl*5 + t)*1024}', tag='rr') for t in range(5)]
        return aa[:2] + bb + aa[2:]
    def check(self, r):
        self.chk.append(r)
        return I(f'v_readlane_b32 {sRDY}, v{vPOLL}, {r}\ns_sub_u32 {sRDY}, {sRDY}, {sOLD[r]}\ns_cmp_eq_u32 {sRDY}, {sXCC if self.c.opol != "sc1" else 32}\ns_cbranch_scc0 L_cstub{r}\nL_cret{r}:')
    def store_units(self):
        us = []
        for t in range(5):
            for m in range(2):
                b = self.acc(t, 2*m)
                for k in range(4): us.append(I(f'v_cvt_pk_bf16_f32 v{b+k}, v{b+2*k}, v{b+2*k+1}'))
                us.append(I(f's_add_u32 {sT1}, {sPW}, {(t*2+m)*1024}') +
                          I(f'buffer_store_dwordx4 {vr(b)}, v{vL16}, {SWS}, {sT1} offen{self.pol(self.c.stpol)}', tag='st'))
        return us
    def tail(self):
        e = self.e; L = f'v{vLANE}'; self.chk = []
        regs = {0: [220, 224, 228, 232], 1: [236, 160, 164, 168], 2: [172, 176, 180, 184], 3: [188, 192, 196, 200], 4: [204, 208, 212, 216]}
        self.ownmap = {(ks, t): regs[t][ks] for t in range(5) for ks in range(4)}
        o0 = []
        for t in range(5):
            for ks in range(4):
                for nt in range(4):
                    o0 += I(f'{MF} {vr(self.acc(t, nt))}, {ar(aA0 + (ks*4+nt)*4)}, {vr(self.own(ks, t))}, {vr(self.acc(t, nt)) if ks else "0"}')
        pv15 = self.pv_mfmas(vf=aKF, ones_first=False)
        pv15[0] = waittag('vr') + [pv15[0]]
        o0[0] = waittag('af0') + [o0[0]]
        main = self.pv_mfmas() + pv15 + o0
        sm = self.softmax_streams(15, 11, lambda t: 43 + 9*t, lambda t: 12 + 8*t)
        pre, vu = self.v_reads(0, dst=aKF)
        rd = FS(pre + [u for _, u in vu], -1, 30)
        rd += FS([I(f's_lshl_b32 {sT1}, {sHH}, 15'), I(f's_add_u32 {sT1}, {sT1}, {SLOT}'), I(f'v_add_u32 v{vOEs}, {sT1}, v{vOE}'), I(f'v_xor_b32 v{vOOs}, 32, v{vOEs}')] +
                 self.a_reads(vOEs, vOOs, 0, 4, aA0, 'af0'), -1, 70)
        setup = [I(x) for x in (f'v_lshlrev_b32 v{vL16}, 4, {L}', f's_lshl_b32 {sT1}, {sW}, 14', f's_add_u32 {sT1}, {sT1}, 98304',
                 f'v_add_u32 v{vEX1}, {sT1}, v{vL16}', f'v_add_u32 v{vEX2}, {sW4K}, v{vL16}')]
        st0 = FS(setup, 12, 52)
        rd += [F(waittag('vr') + I('s_barrier'), 72, 80, cost=2)] + self.dma_stream(self.wo_rem(0), 74, 90)
        rd += FS([I(f'v_xor_b32 v{vOEs}, 0x18000, v{vOEs}'), I(f'v_xor_b32 v{vOOs}, 0x18000, v{vOOs}')] + self.a_reads(vOEs, vOOs, 0, 4, aA1, 'af1'), self.c.normlast - 40, 164)
        nl = self.c.normlast
        nm = []
        for t in range(5):
            nm += FS(self.norm_units(t), 45 + 9*t + 10, min(89 + 16*t, nl))
            if t == 0:
                nm += FS([I(x) for x in (f'v_xor_b32 v{vEXR1}, 0x4000, v{vEX1}', f'v_xor_b32 v{vEXR2}, 0x1000, v{vEX2}', f's_mul_i32 {sT1}, {sQH}, 10240',
                          f's_add_u32 {sT1}, {sT1}, {OB[0]}', f'v_add_u32 v{vOB0}, {sT1}, v{vL16}', f'v_add_u32 v{vOB1}, {OB[2] - OB[0]}, v{vOB0}',
                          f'v_mov_b32 v{vWEr}, v{vOE}', f'v_xor_b32 v{vWOr}, 32, v{vOE}', f's_add_u32 {sT1}, {sOLD[0]}, {sXCC if self.c.opol != "sc1" else 32}\nv_mov_b32 v{vFLAG}, {sT1}', f'v_add_u32 v{vPOFF}, {sHP}, {L}', f'v_and_b32 v{vPOFF}, 3, v{vPOFF}', f'v_lshlrev_b32 v{vPOFF}, 2, v{vPOFF}')], -1, 89)
        l4 = [f for f in nm if any(f'a{aL+16}' in x.reads for x in f.ins)][0]
        for f in rd:
            if any(x.tag == 'af1' for x in f.ins): f.lo = max(f.lo, 100)
        l4.hi = min(l4.hi, 99)
        exr = []
        for f in range(20):
            adr, off = (vEXR1, f*1024) if f < 16 else (vEXR2, (f-16)*1024)
            exr.append(I(f'ds_read_b128 {ar(aPART + 4*f)}, v{adr} offset:{off}', tag='exr'))
        nm += [F(waittag('exw') + I('s_barrier'), -1, nl + 6, cost=2)] + FS(exr, -1, 164)
        self.sch('tail', main, [sm, rd, st0, nm], cap=self.c.tcap)
        self.stamp('main', 'o')
        main = []
        for ks in range(4):
            for nt in range(4):
                for t in range(5):
                    main += I(f'{MF} {vr(self.acc(t, nt))}, {ar(aA1 + (ks*4+nt)*4)}, {ar(aPART + (ks*5+t)*4)}, {vr(self.acc(t, nt))}')
        main[0] = waittag('exr', 'af1') + I('s_barrier') + [main[0]]
        Z, Pg = self.c.zgap, self.c.pgap
        sig = waittag('ost') + I(f's_barrier\ns_cmp_lg_u32 {sW}, 0\ns_cbranch_scc1 L_nosig')
        sig += I(f's_mov_b64 exec, 1\nbuffer_store_dword v{vFLAG}, off, {SDB}, {sCL} sc0 sc1\ns_mov_b64 exec, -1\nL_nosig:')
        for x in sig:
            if x.kind == 'vst' or x.kind == 'wait': x.kind = 'opaque'
        ds = [F(sig, Z, Z, cost=4)] + self.dma_stream(self.wo_rem(1) + self.wo_rem(2) + self.wo_rem(3), 0, 0)[:0]
        w13 = self.dma_stream(self.wo_rem(1) + self.wo_rem(2) + self.wo_rem(3), Z + 2, Pg - 12)
        ds += w13 + [F(I(f'buffer_load_dword v{vPOLL}, v{vPOFF}, {SDB}, 0 offen sc0 sc1'), Pg - 10, Pg - 10),
                     F(self.check(1), Pg, Pg, cost=4)]
        ds += self.dma_stream(self.o_rem(0) + self.o_rem(1) + self.o_rem(2) + self.o_rem(3), Pg + 1, 79, slack=0)
        c0 = [F(waittag('u0') + I('s_barrier'), 66, 66, cost=2)] + FS(self.rem_reads(0), 66, 76)
        self.sch('s1', main, [ds, c0])
        self.stamp('o')
        pend = []
        for kp in range(24):
            u = kp // 2; st = aSET[kp % 2]
            main = []
            for nt in range(4):
                for t in range(5):
                    main += I(f'{MF} {vr(self.acc(t, nt))}, {ar(st + 4*nt)}, {ar(st + 16 + 4*t)}, {vr(self.acc(t, nt))}')
            head = waittag('rr')
            if kp % 2 == 1 and u + 1 < 12:
                head = waittag('rr', f'u{u+1}') + I('s_barrier')
                if u + 4 < 12:
                    pend = self.wo_rem(u + 4) + self.o_rem(u + 4)
                    if (u + 4) % 4 == 0: head += self.check(1 + (u + 4) // 4)
            main[0] = head + [main[0]]
            streams = []
            if kp + 1 < 24: streams.append(FS(self.rem_reads(kp + 1), 0, 14))
            if pend:
                n = 4 if kp % 2 == 1 else len(pend)
                streams.append(self.dma_stream(pend[:n], 1, 18, slack=1)); pend = pend[n:]
            self.sch(f'r{kp}', main, streams)
            if kp % 4 == 3: self.stamp('o')
        for u in self.store_units(): e(u)
        if self.c.fuse: self.final_reduce()
    def final_reduce(self):
        e = self.e; L = f'v{vLANE}'
        e(f'''s_load_dwordx2 s[12:13], s[0:1], 80
        s_mov_b32 s14, {8*160*1024*2}
        s_mov_b32 s15, 0x20000
        s_mul_i32 {sT0}, {sOCT}, {PART_BYTES}
        s_sub_u32 s24, s24, {sT0}
        s_subb_u32 s25, s25, 0
        s_mov_b32 s26, {4*PART_BYTES}
        s_mul_i32 {sT0}, {sOCT}, 2560
        s_add_u32 {sT0}, {sT0}, {sPW}
        s_mul_i32 {sT2}, {sOCT}, 160
        s_lshr_b32 {sT3}, {sBLK}, 2
        s_and_b32 {sT3}, {sT3}, 7
        s_mul_i32 {sT3}, {sT3}, 160
        s_mul_i32 {sT1}, {sQH}, 80
        s_add_u32 {sT3}, {sT3}, {sT1}
        s_lshl_b32 {sT3}, {sT3}, 11
        s_lshr_b32 {sT1}, {sBLK}, 5
        s_lshl_b32 {sT1}, {sT1}, 10
        s_add_u32 {sT3}, {sT3}, {sT1}
        s_lshl_b32 {sT1}, {sHP}, 8
        s_add_u32 {sT3}, {sT3}, {sT1}
        s_lshl_b32 {sT1}, {sHH}, 7
        s_add_u32 {sT3}, {sT3}, {sT1}
        v_and_b32 v25, 3, {L}
        v_lshlrev_b32 v25, 2, v25
        s_lshl_b32 {sCL}, {sOCT}, 2''')
        for k in range(3):
            e(f'''v_add_u32 v26, {sT2}, {L}
            v_add_u32 v26, {64*k}, v26
            v_lshrrev_b32 v27, 7, v26
            v_lshlrev_b32 v{28+k}, 15, v27
            v_bfe_u32 v27, v26, 6, 1
            v_lshl_add_u32 v{28+k}, v27, 6, v{28+k}
            v_and_b32 v27, 15, v26
            v_lshl_add_u32 v{28+k}, v27, 11, v{28+k}
            v_bfe_u32 v27, v26, 4, 2
            v_lshl_add_u32 v{28+k}, v27, 3, v{28+k}''')
        sel = ''.join(f's_cmp_eq_u32 {sOCT}, {r}\ns_cselect_b32 {sRDY}, {sOLD2[r]}, {sRDY}\n' for r in range(4))
        e(sel + f's_add_u32 {sRDY}, {sRDY}, 1\nv_mov_b32 v{vFLAG}, {sRDY}\ns_add_u32 {sRDY}, {sRDY}, 1')
        e(''.join(f's_cmp_eq_u32 {sOCT}, {r}\ns_cselect_b32 {sOLD2[r]}, {sRDY}, {sOLD2[r]}\n' for r in range(4)))
        sig = I(f's_waitcnt vmcnt(0)\ns_barrier\ns_cmp_lg_u32 {sW}, 0\ns_cbranch_scc1 L_nosig2\ns_mov_b64 exec, 1\nbuffer_store_dword v{vFLAG}, off, {SD2}, {sCL} sc0 sc1\ns_mov_b64 exec, -1\nL_nosig2:')
        e(sig)
        self.stamp('o')
        poll = f's_mov_b32 {sCNT}, {self.c.maxpoll}\nL_floop:\nbuffer_load_dword v{vPOLL}, v25, {SD2}, 0 offen sc0 sc1\ns_waitcnt vmcnt(0)\ns_mov_b32 {sWB}, 0\n'
        for r in range(4):
            poll += f'v_readlane_b32 {sRDY}, v{vPOLL}, {r}\ns_cmp_lg_u32 {sRDY}, {sOLD2[r]}\ns_addc_u32 {sWB}, {sWB}, 0\n'
        poll += f's_sub_u32 {sCNT}, {sCNT}, 1\ns_cmp_eq_u32 {sCNT}, 0\ns_cbranch_scc1 L_fgo\ns_cmp_lg_u32 {sWB}, 4\ns_cbranch_scc1 L_floop\nL_fgo:'
        e(poll)
        self.stamp('o')
        for k in range(3):
            for i in range(4):
                e(f's_add_u32 {sT1}, {sT0}, {i*PART_BYTES}\nbuffer_load_dwordx4 {vr(32 + (k*4+i)*4)}, v{vL16}, {SWS}, {sT1} offen offset:{k*1024} sc1')
        for k in range(3):
            for i in range(4):
                for j in range(4):
                    r = 32 + (k*4+i)*4 + j
                    if i == 0: e(f'v_lshlrev_b32 v{96+2*j}, 16, v{r}\nv_and_b32 v{97+2*j}, 0xffff0000, v{r}')
                    else: e(f'v_lshlrev_b32 v26, 16, v{r}\nv_and_b32 v27, 0xffff0000, v{r}\nv_add_f32 v{96+2*j}, v{96+2*j}, v26\nv_add_f32 v{97+2*j}, v{97+2*j}, v27')
            for j in range(4): e(f'v_cvt_pk_bf16_f32 v{104+4*k+j}, v{96+2*j}, v{97+2*j}')
            if k == 2: e('s_mov_b32 exec_hi, 0')
            e(f'buffer_store_dwordx2 v[{104+4*k}:{105+4*k}], v{28+k}, {SOUT}, {sT3} offen{self.pol(self.c.outpol)}')
            e(f'buffer_store_dwordx2 v[{106+4*k}:{107+4*k}], v{28+k}, {SOUT}, {sT3} offen offset:32{self.pol(self.c.outpol)}')
        e('s_mov_b64 exec, -1')
    def poll_code(self):
        p = []
        for r in self.chk:
            p += I(f'''L_cstub{r}:
            s_mov_b32 {sCNT}, {self.c.maxpoll}
            L_cloop{r}:
            buffer_load_dword v{vPOLL}, v{vPOFF}, {SDB}, 0 offen sc0 sc1
            s_waitcnt vmcnt(0)
            v_readlane_b32 {sRDY}, v{vPOLL}, {r}
            s_sub_u32 {sCNT}, {sCNT}, 1
            s_cmp_eq_u32 {sCNT}, 0
            s_cbranch_scc1 L_cret{r}
            s_sub_u32 {sRDY}, {sRDY}, {sOLD[r]}
            s_cmp_eq_u32 {sRDY}, 0
            s_cbranch_scc1 L_cloop{r}''')
            if self.c.opol != 'sc1':
                p += I(f'''s_cmp_eq_u32 {sRDY}, {sXCC}
                s_cbranch_scc1 L_cret{r}
                s_cmp_lg_u32 {sWB}, 0
                s_cbranch_scc1 L_cwb{r}
                s_mov_b32 {sWB}, 1
                s_cmp_lg_u32 {sW}, 0
                s_cbranch_scc1 L_cwb{r}
                buffer_wbl2 sc1
                s_waitcnt vmcnt(0)
                s_add_u32 {sT3}, {sOLD[0]}, 32
                v_mov_b32 v{vFLAG}, {sT3}
                s_mov_b64 exec, 1
                buffer_store_dword v{vFLAG}, off, {SDB}, {sCL} sc0 sc1
                s_mov_b64 exec, -1
                L_cwb{r}:
                s_cmp_lt_u32 {sRDY}, 32
                s_cbranch_scc1 L_cloop{r}''')
            p += I(f's_nop 4\ns_branch L_cret{r}')
        return p
    def peephole(self, prog):
        out = []; prev = {}
        for x in prog:
            if x.kind in ('label', 'branch'): prev = {}; self.curkvo = None
            if isinstance(x.tag, tuple) and x.tag[0] == 'kvo' and self.c.krot:
                if getattr(self, 'curkvo', None) == x.tag: continue
                if x.op == 's_or_b32': self.curkvo = x.tag
                out.append(x); prev.pop(sT2, None); continue
            if sT2 in x.writes: self.curkvo = None
            if x.kind == 'salu' and x.op == 's_add_u32' and len(x.writes) == 1:
                w = next(iter(x.writes))
                if w in ('m0', sT0, sT2) and prev.get(w) == x.text and w not in x.reads: continue
            for w in x.writes:
                prev.pop(w, None)
                for k in [k for k, v in prev.items() if re.search(rf'\b{w}\b', v.split(',', 1)[1])]: prev.pop(k)
            if x.kind == 'salu' and x.op == 's_add_u32' and len(x.writes) == 1: prev[next(iter(x.writes))] = x.text
            out.append(x)
        return out
    def fold(self, prog):
        idx = {x.text: k for k, x in enumerate(prog) if x.kind == 'label'}
        its = [i for i in range(16) if f'L_loopmark{i}:' in idx]
        norm = lambda x: re.sub(r'(L_stub|L_ret)\d+', r'\1', x.text)
        body = {i: [norm(x) for x in prog[idx[f'L_loopmark{i}:'] + 1: idx[f'L_loopend{i}:']]] for i in its}
        last = its[-1]; first = last
        while first - 1 in body and body[first - 1] == body[last]: first -= 1
        self.log.append(('loop', first, last, len(body[last])))
        for i in range(first + 1, last + 1): self.stubs.remove(i)
        a = idx[f'L_loopmark{first}:']; b = idx[f'L_loopend{first}:']; c = idx[f'L_loopend{last}:']
        return prog[:a] + I(self.kvoff(last + 6, sIT)) + prog[a:b] + \
            I(f's_cmp_lg_u32 {sIT}, {sKO}\ns_cbranch_scc1 L_loopmark{first}') + prog[c + 1:]
    def build(self):
        self.prologue(); self.q_phase(); self.q_to_attn(); self.stamp('main', 'q', 'a')
        for i in range(1, 16):
            if i == 15: self.stamp('o')
            self.iteration(i)
            if i in (3, 10, 12): self.stamp('main')
            if i < 15 and not (self.c.loop and 4 <= i < self.c.lend): self.stamp('a')
        e = self.e
        if self.c.stamps:
            e('s_waitcnt vmcnt(0)'); self.stamp()
            if self.c.dbgwg >= 0:
                e(f'''s_mov_b64 s[24:25], s[56:57]
                s_mov_b32 s26, 0x10000000
                s_mov_b32 {sT2}, {STAMP_OFF}
                s_cmp_lg_u32 s2, {self.c.dbgwg}
                s_cbranch_scc1 L_end
                s_cmp_lg_u32 {sW}, 0
                s_cbranch_scc1 L_end
                v_readfirstlane_b32 {sT1}, v255
                v_lshlrev_b32 v2, 2, v{vLANE}
                v_subrev_u32 v4, {sT1}, v255
                buffer_store_dword v4, v2, {SWS}, {sT2} offen
                s_endpgm''')
            e(f'''s_mov_b64 s[24:25], s[56:57]
            s_mov_b32 s26, 0x10000000
            s_mul_i32 {sT1}, s2, {self.nst*8}
            s_add_u32 {sT1}, {sT1}, {STAMP_OFF}
            s_cmp_lg_u32 {sW}, 0
            s_cbranch_scc1 L_end
            v_lshlrev_b32 v2, 3, v{vLANE}
            v_mov_b32 v4, v255
            v_mov_b32 v5, 0
            v_cmp_gt_u32 vcc, {self.nst}, v{vLANE}
            s_and_saveexec_b64 s[58:59], vcc
            buffer_store_dwordx2 v[4:5], v2, {SWS}, {sT1} offen''')
        e('L_end:\ns_endpgm')
        if self.c.nomem:
            def drop(x):
                if x.kind not in ('dma', 'vld', 'vst'): return False
                t = x.text
                if 'buffer_load_dword a' in t: return 'p' in self.c.nomem and 's[84:87]' not in t
                if SX in t or SWQ in t: return 'q' in self.c.nomem
                if SK in t or SV in t: return 'k' in self.c.nomem
                if SWO in t or SOX in t: return 'o' in self.c.nomem
                if x.tag == 'st': return 's' in self.c.nomem
                return False
            self.p = [x for x in self.p if not drop(x)]
        prog = finalize(self.peephole(self.p))
        if self.c.loop: prog = self.fold(prog)
        for i in self.stubs: prog += I(f'L_stub{i}:\ns_call_b64 {sRET}, L_rare\ns_branch L_ret{i}')
        prog += finalize(self.rare())
        prog += self.poll_code()
        prog += I('L_codeend:')
        return prog

def reduce_kernel(cfg):
    pol = (' ' + cfg.rdpol) if cfg.rdpol else ''
    p = I(f'''
    s_cmp_ge_u32 s2, 640
    s_cbranch_scc1 L_rend
    s_load_dwordx2 s[4:5], s[0:1], 96
    s_load_dwordx2 s[8:9], s[0:1], 80
    v_lshrrev_b32 v1, 6, v0
    v_and_b32 v2, 63, v0
    v_readfirstlane_b32 s3, v1
    v_lshlrev_b32 v3, 4, v2
    s_mul_i32 s12, s2, 6554
    s_lshr_b32 s12, s12, 16
    s_mul_i32 s13, s12, 10
    s_sub_u32 s13, s2, s13
    s_lshl_b32 s13, s13, 2
    s_add_u32 s13, s13, s3           ; piece 0..39
    s_mul_i32 s16, s12, {4*PART_BYTES}
    s_lshl_b32 s17, s13, 10
    s_add_u32 s16, s16, s17
    s_add_u32 s16, s16, {PART_OFF}
    s_mov_b32 s6, {PART_OFF + 256*PART_BYTES}
    s_mov_b32 s7, 0x20000
    s_mov_b32 s10, {8*160*1024*2}
    s_mov_b32 s11, 0x20000
    ''')
    for i in range(4):
        p += I(f'buffer_load_dwordx4 v[{8+4*i}:{11+4*i}], v3, s[4:7], s16 offen{pol}')
        if i < 3: p += I(f's_add_u32 s16, s16, {PART_BYTES}')
    p += I(f'''
    s_mul_i32 s14, s13, 6554
    s_lshr_b32 s14, s14, 16          ; w
    s_mul_i32 s15, s14, 10
    s_sub_u32 s19, s13, s15          ; idx
    s_lshr_b32 s20, s19, 1           ; t
    s_and_b32 s21, s19, 1            ; m
    s_lshr_b32 s22, s12, 2
    s_and_b32 s22, s22, 7            ; b
    s_lshr_b32 s23, s12, 5           ; branch
    s_and_b32 s18, s12, 3            ; hp
    s_mul_i32 s24, s22, 160
    s_lshr_b32 s25, s14, 1
    s_mul_i32 s25, s25, 80
    s_add_u32 s24, s24, s25
    s_lshl_b32 s25, s20, 4
    s_add_u32 s24, s24, s25
    s_lshl_b32 s24, s24, 11
    s_lshl_b32 s25, s23, 10
    s_add_u32 s24, s24, s25
    s_lshl_b32 s25, s18, 8
    s_add_u32 s24, s24, s25
    s_and_b32 s25, s14, 1
    s_lshl_b32 s25, s25, 7
    s_add_u32 s24, s24, s25
    s_lshl_b32 s25, s21, 6
    s_add_u32 s24, s24, s25
    v_and_b32 v4, 15, v2
    v_lshlrev_b32 v4, 11, v4
    v_lshrrev_b32 v5, 4, v2
    v_lshl_add_u32 v4, v5, 3, v4
    ''')
    for i in range(4):
        for j in range(4):
            r = 8 + 4*i + j
            if i == 0: p += I(f'v_lshlrev_b32 v{32+2*j}, 16, v{r}\nv_and_b32 v{33+2*j}, 0xffff0000, v{r}')
            else: p += I(f'v_lshlrev_b32 v6, 16, v{r}\nv_and_b32 v7, 0xffff0000, v{r}\nv_add_f32 v{32+2*j}, v{32+2*j}, v6\nv_add_f32 v{33+2*j}, v{33+2*j}, v7')
    for j in range(4): p += I(f'v_cvt_pk_bf16_f32 v{40+j}, v{32+2*j}, v{33+2*j}')
    p += I('''buffer_store_dwordx2 v[40:41], v4, s[8:11], s24 offen
    buffer_store_dwordx2 v[42:43], v4, s[8:11], s24 offen offset:32
    L_rend:
    s_endpgm''')
    return finalize(p)

def generate(cfg, path):
    g = Gen(cfg)
    main = g.build()
    if cfg.kpolB != '=' or cfg.vpolB != '=':
        import copy
        c2 = copy.copy(cfg)
        if cfg.kpolB != '=': c2.kpol = cfg.kpolB
        if cfg.vpolB != '=': c2.vpol = cfg.vpolB
        m2 = Gen(c2).build()
        for x in m2: x.text = re.sub(r'\bL_(\w+)', r'LB_\1', x.text)
        main = I('s_bitcmp1_b32 s2, 2\ns_cbranch_scc1 LB_entry') + main + I('LB_entry:') + m2
    red = reduce_kernel(cfg)
    if cfg.dbgwg >= 0:
        k = [i for i, x in enumerate(red) if x.text == 'L_rend:'][0]
        red[k:k] = finalize(I(f'''s_cmp_lg_u32 s2, 0
        s_cbranch_scc1 L_rend
        s_load_dwordx2 s[8:9], s[0:1], 88
        s_mov_b32 s10, 256
        s_mov_b32 s6, 0x10000000
        s_mov_b32 s16, {STAMP_OFF}
        v_lshlrev_b32 v2, 2, v0
        buffer_load_dword v3, v2, s[4:7], s16 offen
        buffer_store_dword v3, v2, s[8:11], 0 offen'''))
    if cfg.fuse:
        s = make_file([(KN, 256, 256, 163840)], [(KN, text_of(main), 512, 102, 256)])
        s = s.replace(f'; @launch kernel={KN} grid', '; @launch grid')
    else:
        s = make_file([(KN, 256, 256, 163840), ('reduce_heads_kernel', 640, 256, 0)],
                      [(KN, text_of(main), 512, 102, 256), ('reduce_heads_kernel', text_of(red), 48, 32, 48)])
    open(path, 'w').write(s)
    open(path[:-2] + '.nst', 'w').write(str(g.nst))
    return g, main

if __name__ == '__main__':
    cfg = Cfg()
    out = sys.argv[1]
    for kv in sys.argv[2:]:
        k, v = kv.split('=')
        cur = getattr(cfg, k)
        setattr(cfg, k, type(cur)(int(v)) if isinstance(cur, (bool, int)) and not isinstance(cur, float) else type(cur)(v.replace('+', ' ')))
    g, main = generate(cfg, out)
    from collections import Counter
    print(out, 'stamps', g.nst, dict(Counter(i.kind for i in main)))
    if cfg.verbose:
        for l in g.log: print(*l)
```

```python
import sys, math, struct, re
from asmlib import *
from gen_common import make_file, KN

class Cfg:
    kpol = 'nt'; vpol = 'nt'; kpolB = '='; vpolB = '='; wpol = ''; stpol = 'sc1'; rdpol = ''; pfpol = ''
    stamps = False; stset = 'main'; clk = 0
    codepf = 1
    kv_pro = 4
    kv_end = 13
    l2pf = 1; pfit = 11; l2pfq = 0
    nstg = 3
    late = 1
    early5 = 1
    rot = 2
    vsp = 4
    kveven = 1
    thr = 8.0
    loop = 1
    nomem = ''
    verbose = 0
    dbgwg = -1
    normlast = 105
    fuse = 1
    outpol = ''
    oldpol = 'sc1'
    slp = 2
    dot = 0
    wpol0 = ''
    nwq0 = 4
    nx0 = 3
    pearly = 0
    c0gap = 66
    pdist = 10
    lastn = 2
    opol = 'sc1'
    zgap = 2
    pgap = 30
    maxpoll = 200000
    krot = 0
    ccap = 2
    tcap = 2
    lend = 10
    dlo = 24
    dhi = 80
STAMP_OFF = 0x8000000
PART_BYTES = 40960
PART_OFF = 0x2000000
OX_BYTES = 327680
FLAG_OFF = 0x3000000
def f32(x): return '0x%08x' % struct.unpack('<I', struct.pack('<f', x))[0]

SX, SWQ, SK, SV, SWO, SWS = 's[4:7]', 's[8:11]', 's[12:15]', 's[16:19]', 's[20:23]', 's[24:27]'
sW, sHH, sQH = 's3', 's28', 's29'
sKVOFF, sKVLDS, sWQOFF, sXOFF, sXLDS, sWO0, sWO1, sWOLDS, sPW = 's30', 's31', 's32', 's33', 's34', 's35', 's36', 's37', 's38'
sC, sT = 's40', 's41'
sT0, sT1, sT2, sT3 = 's42', 's43', 's44', 's45'
sRET = 's[60:61]'
sRB, sDB, sKO, sVO, sIT = 's46', 's47', 's52', 's53', 's50'
sB, sHP, sH0 = 's48', 's49', 's51'
sWQC, sXC, sWQB, sXB = 's88', 's89', 's90', 's91'
SOX, SDB = 's[76:79]', 's[80:83]'
sCL, sXCC, sRDY, sOW, sOCT = 's92', 's93', 's94', 's95', 's39'
sPO = ['s64', 's65', 's66', 's67']; sPWo = ['s68', 's69', 's70', 's71']
sW4K, sW5K, sCNT, sWB = 's96', 's97', 's98', 's99'
sKR, sKC = 's35', 's36'
sOLD = ['s72', 's73', 's74', 's75']
vFOFF = 215; vFOFF2 = 214
SD2 = 's[84:87]'; aOLD2 = 243; sIDX2 = 's59'; vOLD = 25; sBLK = 's58'; SOUT = 's[12:15]'
STAMP0 = 62
def O(t, dt): return (t * 8 + dt) * 4
S0 = 160; P0 = 200; NM4 = 220
def Sreg(t, kt): return S0 + (t * 2 + kt) * 4
def Preg(t): return P0 + 4 * t
vMX0, vMX1, vTA, vTB = 240, 241, 242, 243
vK, vVE, vVO, aK, aVE = 244, 245, 246, 247, 248
vKVA, vKVB, vLANE, vWOV, vOE = 249, 250, 251, 252, 253
vWQA, vWQB, vX0, vX1 = 200, 201, 202, 203
vQE = [204, 205, 206]; vQO = [207, 208, 209]; vXR = [210, 211]
vWA = [212, 213]
vWA1 = 254
vRL = 240
vOEs, vOOs = 245, 246
vEX1, vEX2, vL16 = 247, 248, 254
vEXR1, vEXR2, vOB0, vOB1, vPOLL, vFLAG, vWEr, vWOr, vPOFF = 16, 17, 18, 19, 20, 21, 22, 23, 24
aVF, aAF, aKF, aL, aONE, aQ = 0, 80, 104, 136, 156, 160
aPART = 0; aA0 = 160
def Qf(ks, t): return aQ + (t * 4 + ks) * 4
def vr(b, n=4): return f'v[{b}:{b+n-1}]'
def ar(b, n=4): return f'a[{b}:{b+n-1}]'
SLOT = 32768
WQBUF = [147456, 65536, 102400]
XBUF = [81920, 126976]
WOB = [16384, 0, 32768, 49152]
OB = [65536, 86016, 106496, 126976]
aA1 = 80
aSET = [160, 196]
MF = 'v_mfma_f32_16x16x32_bf16'

def FS(units, lo=-1, hi=10**6, step=None):
    return [F(u, lo if step is None else int(lo + k * step), hi) for k, u in enumerate(units)]

class Gen:
    def __init__(self, cfg):
        self.c = cfg; self.p = []; self.nst = 0; self.stubs = []; self.log = []
    def e(self, x, tag=None):
        self.p += I(x, tag) if isinstance(x, str) else x
    def stamp_i(self, grp='all'):
        if self.c.stamps and grp in ('all', self.c.stset):
            self.nst += 1
            return I(f's_mem{"" if self.c.clk else "real"}time s[62:63]\ns_waitcnt lgkmcnt(0)\nv_writelane_b32 v255, s62, {self.nst - 1}')
        return []
    def stamp(self, *grps):
        for g in grps or ('all',): self.e(self.stamp_i(g))
    def sch(self, name, main, streams, **kw):
        v = []
        self.e(sched(main, streams, verbose=v, **kw))
        self.log.append((name,) + v[0])
    @staticmethod
    def pol(p): return (' ' + p) if p else ''
    def kvoff(self, tile, dst=sT2):
        if not self.c.krot: return f's_add_u32 {dst}, {sKVOFF}, {tile*8192}'
        return f's_add_u32 {dst}, {sKR}, {tile*8192}\ns_and_b32 {dst}, {dst}, 0x1e000\ns_or_b32 {dst}, {dst}, {sKVOFF}'
    def kvo(self, tile):
        u = I(self.kvoff(tile))
        for x in u: x.tag = ('kvo', tile)
        return u
    def kvp(self, srd): return self.pol(self.c.kpol if srd == SK else self.c.vpol)
    def kv_dma(self, srd, tile, lds, tag):
        us = []
        for k in range(4):
            u = I(f's_add_u32 m0, {sKVLDS}, {lds}') + self.kvo(tile)
            u += I(f'buffer_load_dwordx4 v{vKVA if k % 2 == 0 else vKVB}, {srd}, {sT2} offen offset:{k*1024}{self.kvp(srd)} lds', tag=tag)
            us.append(u)
        return us
    def kv_stage(self, st):
        b = (st % 5) * SLOT
        return (self.kv_dma(SK, st + 1, b, f'kv{st}') if st < 15 else []) + self.kv_dma(SV, st, b + 16384, f'kv{st}')
    def kv_stage_dyn(self, st):
        us = []
        for part in range(2):
            for k in range(4):
                u = I(f's_add_u32 m0, {sDB}, {part*16384}') if k == 0 else []
                if k == 0: us.append(u); u = []
                u += I(f'buffer_load_dwordx4 v{vKVA if k % 2 == 0 else vKVB}, {SK if part == 0 else SV}, {sKO if part == 0 else sVO} offen offset:{k*1024}{self.kvp(SK if part == 0 else SV)} lds', tag=f'kv{st}')
                us.append(u)
        return us
    def stg(self, st, part, k):
        if st >= 6: return ar(32 + ((st - 6)*8 + part*4 + k)*4)
        return ar(160 + ((st - 2)*8 + part*4 + k)*4)
    def kv_reg(self, st, parts=(0, 1)):
        us = []
        for part in parts:
            srd, tile = (SK, st + 1) if part == 0 else (SV, st)
            for k in range(4):
                us.append(self.kvo(tile) +
                          I(f'buffer_load_dwordx4 {self.stg(st, part, k)}, v{vKVA if k % 2 == 0 else vKVB}, {srd}, {sT2} offen offset:{k*1024}{self.kvp(srd)}'))
        return us
    def kv_drain(self, st, parts=(0, 1)):
        us = []
        for part in parts:
            for k in range(4):
                adr, off = {2: (vWA[0], 0), 3: (vWA[0], SLOT), 4: (vWA[1], 0), 6: (vWA1, 0), 7: (vWA1, SLOT)}[st]
                off += part*16384
                us.append(I(f'ds_write_b128 v{adr}, {self.stg(st, part, k)} offset:{off + k*1024}', tag=f'kv{st}'))
        return us
    def wq_next(self, j):
        if self.c.rot == 2 and j < 2: return I(f's_add_u32 {sWQB}, {sWQOFF}, {j*262144}')
        wrap = f's_cmp_eq_u32 {sWQC}, 0x400000\ns_cselect_b32 {sWQC}, 0x80000, {sWQC}' if self.c.rot == 2 else f's_and_b32 {sWQC}, {sWQC}, 0x3fffff'
        return I(f's_add_u32 {sWQB}, {sWQC}, {sWQOFF}\ns_add_u32 {sWQC}, {sWQC}, 262144\n{wrap}')
    def x_next(self, J):
        if self.c.rot == 2 and J < 1: return I(f's_add_u32 {sXB}, {sXOFF}, 0')
        wrap = f's_cmp_eq_u32 {sXC}, 1024\ns_cselect_b32 {sXC}, 128, {sXC}' if self.c.rot == 2 else f's_and_b32 {sXC}, {sXC}, 1023'
        return I(f's_add_u32 {sXB}, {sXC}, {sXOFF}\ns_add_u32 {sXC}, {sXC}, 128\n{wrap}')
    def wq_units(self, j):
        us = []
        for k in range(4):
            u = I(f's_add_u32 m0, {sKVLDS}, {WQBUF[j % 3]}\ns_add_u32 {sT0}, {sWQB}, {k*32768 - k*1024}')
            u += I(f'buffer_load_dwordx4 v{vWQA if k < 2 else vWQB}, {SWQ}, {sT0} offen offset:{k*1024}{self.pol(self.c.wpol0 if j < self.c.nwq0 else self.c.wpol)} lds', tag=f'wq{j}')
            us.append(u)
        if j == 0: us[0] = self.wq_next(0) + us[0]
        if j < 15: us[-1] += self.wq_next(j + 1)
        return us
    def x_units(self, J):
        us = []
        for k in range(5):
            im = (k % 4) * 1024
            u = I(f's_add_u32 m0, {sXLDS}, {XBUF[J % 2] + (k // 4)*4096}\ns_add_u32 {sT0}, {sXB}, {k*8192 - im}')
            u += I(f'buffer_load_dwordx4 v{vX0 if k % 2 == 0 else vX1}, {SX}, {sT0} offen offset:{im}{self.pol(self.c.wpol0 if J < self.c.nx0 else self.c.wpol)} lds', tag=f'x{J}')
            us.append(u)
        if J == 0: us[0] = self.x_next(0) + us[0]
        if J < 7: us[-1] += self.x_next(J + 1)
        return us
    def wo_half(self, base, const, lds, tag):
        us = []
        for k in range(4):
            u = I(f's_add_u32 m0, {sW4K}, {lds}\ns_add_u32 {sT0}, {base}, {const + k*3072}')
            u += I(f'buffer_load_dwordx4 v{vKVA if k % 2 == 0 else vKVB}, {SWO}, {sT0} offen offset:{k*1024}{self.pol(self.c.wpol)} lds', tag=tag)
            us.append(u)
        return us
    def wo_own(self, h):
        us = self.wo_half(sPWo[0], h*131072, (1 + h)*SLOT, 'wown') + self.wo_half(sPWo[0], h*131072 + 65536, (1 + h)*SLOT + 16384, 'wown')
        if h == 0: us[0] = I(f'v_mov_b32 v{vKVA}, v{vWOV}\nv_xor_b32 v{vKVB}, 32, v{vWOV}') + us[0]
        return us
    def wo_rem(self, u):
        return self.wo_half(sPWo[1 + u // 4], ((u >> 1) & 1)*131072 + (u & 1)*65536, WOB[u % 4], f'u{u}')
    def o_rem(self, u):
        us = []
        for k in range(5):
            x = I(f's_add_u32 m0, {sW5K}, {OB[u % 4] + (k // 4)*4096}\ns_add_u32 {sT2}, {sPO[1 + u // 4]}, {((u >> 1) & 1)*40960 + (u & 1)*20480 + (k // 4)*4096}')
            x += I(f'buffer_load_dwordx4 v{vL16}, {SOX}, {sT2} offen offset:{(k % 4)*1024}{self.pol(self.c.oldpol)} lds', tag=f'u{u}')
            us.append(x)
        return us
    def l2pf_q(self):
        pol = self.pol(self.c.pfpol); L = f'v{vLANE}'
        return [I(f'v_lshrrev_b32 v214, 3, {L}\nv_and_b32 v215, 7, {L}'),
                I(f'v_lshlrev_b32 v214, 13, v214\nv_lshl_add_u32 v214, v215, 6, v214'),
                I(f's_lshl_b32 {sT3}, {sB}, 19\ns_lshl_b32 {sT1}, {sW}, 17'),
                I(f's_add_u32 {sT3}, {sT3}, {sT1}\ns_lshl_b32 {sT1}, {sH0}, 8'),
                I(f's_add_u32 {sT3}, {sT3}, {sT1}\nbuffer_load_dword a138, v214, {SWQ}, {sT3} offen{pol}'),
                I(f's_add_u32 {sT3}, {sT3}, 65536\nbuffer_load_dword a139, v214, {SWQ}, {sT3} offen{pol}'),
                I(f'v_lshlrev_b32 v215, 6, {L}\ns_mul_i32 {sT3}, {sHP}, 40960'),
                I(f's_mul_i32 {sT1}, {sW}, 10240\ns_add_u32 {sT3}, {sT3}, {sT1}'),
                I(f'buffer_load_dword a140, v215, {SX}, {sT3} offen{pol}'),
                I(f's_add_u32 {sT3}, {sT3}, 4096\nbuffer_load_dword a141, v215, {SX}, {sT3} offen{pol}'),
                I(f's_add_u32 {sT3}, {sT3}, 4096\nbuffer_load_dword a142, v215, {SX}, {sT3} offen{pol}')]
    def l2pf_wo(self):
        pol = self.pol(self.c.pfpol)
        return [I(f'v_lshrrev_b32 v{vTA}, 2, v{vLANE}\nv_and_b32 v{vTB}, 3, v{vLANE}'),
                I(f'v_lshlrev_b32 v{vTA}, 10, v{vTA}\nv_lshl_add_u32 v{vTA}, v{vTB}, 6, v{vTA}'),
                I(f's_lshl_b32 {sT3}, {sOCT}, 20\ns_lshl_b32 {sT1}, {sB}, 17'),
                I(f's_add_u32 {sT3}, {sT3}, {sT1}\ns_lshl_b32 {sT1}, {sW}, 15'),
                I(f's_add_u32 {sT3}, {sT3}, {sT1}\ns_lshl_b32 {sT1}, {sHP}, 8'),
                I(f's_add_u32 {sT3}, {sT3}, {sT1}\nbuffer_load_dword a240, v{vTA}, {SWO}, {sT3} offen{pol}'),
                I(f's_add_u32 {sT3}, {sT3}, 16384\nbuffer_load_dword a241, v{vTA}, {SWO}, {sT3} offen{pol}')]
    def dma_stream(self, units, lo, hi, slack=4):
        fs = []; n = len(units); prev = {}
        for k, u in enumerate(units):
            l = lo + (k * (hi - lo + 1)) // n
            after = False
            for x in u:
                c = 1
                if x.op == 's_cselect_b32' or x.kind in ('branch', 'label'):
                    fs[-1].ins.append(x); fs[-1].cost += x.cost; continue
                if isinstance(x.tag, tuple) and self.c.krot:
                    if prev.get('kvo') == x.tag: c = 0
                    if x.op == 's_or_b32': prev['kvo'] = x.tag
                elif x.kind == 'salu' and x.op == 's_add_u32' and len(x.writes) == 1:
                    w = next(iter(x.writes))
                    if prev.get(w) == x.text and w not in x.reads: c = 0
                    prev[w] = x.text
                if x.kind not in ('salu', 'valu'): fs.append(F([x], l, l + slack, cost=c)); after = True
                elif after: fs.append(F([x], l, 10**6, cost=c))
                else: fs.append(F([x], l - 3, l, cost=c))
        return fs
    def peer_setup(self):
        o = [f's_lshl_b32 {sT3}, {sOCT}, 20', f's_lshl_b32 {sT2}, {sHP}, 8', f's_add_u32 {sT3}, {sT3}, {sT2}',
             f's_lshl_b32 {sT2}, {sW}, 14', f's_add_u32 {sT3}, {sT3}, {sT2}']
        for r in range(4):
            o += [f's_add_u32 {sT2}, {sHP}, {r}', f's_and_b32 {sT2}, {sT2}, 3', f's_mul_i32 {sPO[r]}, {sT2}, 81920', f's_add_u32 {sPO[r]}, {sPO[r]}, {sW5K}',
                  f's_lshl_b32 {sPWo[r]}, {sT2}, 18', f's_add_u32 {sPWo[r]}, {sPWo[r]}, {sT3}']
        o += [f's_getreg_b32 {sXCC}, hwreg(HW_REG_XCC_ID)', f's_and_b32 {sXCC}, {sXCC}, 15', f's_add_u32 {sXCC}, {sXCC}, 1']
        return '\n'.join(o)
    def rot_setup(self):
        if self.c.rot != 2: return f's_and_b32 {sXC}, {sXC}, {7 if self.c.rot else 0}'
        return f's_cmp_ge_u32 {sXC}, 7\ns_cselect_b32 {sWQC}, 7, 0\ns_sub_u32 {sXC}, {sXC}, {sWQC}\ns_add_u32 {sXC}, {sXC}, 1'
    def prologue(self):
        e = self.e; L = f'v{vLANE}'
        e(f'''
        s_cmp_ge_u32 s2, 256
        s_cbranch_scc1 L_end
        s_load_dwordx16 s[64:79], s[0:1], 0
        s_load_dwordx4 s[80:83], s[0:1], 64
        s_load_dwordx2 s[24:25], s[0:1], 96
        s_load_dwordx2 s[100:101], s[0:1], 80
        v_lshrrev_b32 v1, 6, v0
        v_and_b32 {L}, 63, v0
        v_readfirstlane_b32 {sW}, v1
        s_and_b32 s46, s2, 7
        s_lshr_b32 s47, s2, 3
        s_lshr_b32 {sB}, s47, 2
        s_and_b32 {sHP}, s47, 3
        s_and_b32 {sOCT}, s46, 3
        s_lshl_b32 s50, {sOCT}, 2
        s_add_u32 s50, s50, {sHP}
        s_lshl_b32 {sH0}, s50, 1
        s_lshr_b32 s52, s46, 2            ; branch
        s_and_b32 {sHH}, {sW}, 1
        s_lshr_b32 {sQH}, {sW}, 1
        v_and_b32 v2, 3, {L}
        v_lshlrev_b32 v2, 4, v2           ; cc*16
        v_lshrrev_b32 v3, 4, {L}          ; g
        v_bfe_u32 v4, {L}, 2, 2           ; r
        v_lshl_add_u32 v5, v3, 6, v2
        v_lshl_add_u32 v{vKVA}, v4, 8, v5
        v_xor_b32 v{vKVB}, 32, v{vKVA}
        v_lshl_add_u32 v{vWQA}, v4, 13, v5
        v_xor_b32 v{vWQB}, 16, v{vWQA}
        v_lshrrev_b32 v6, 5, {L}
        v_bfe_u32 v7, {L}, 2, 3
        v_lshl_add_u32 v8, v6, 6, v2
        v_lshl_add_u32 v8, v7, 10, v8
        s_lshl_b32 {sT0}, {sHH}, 5
        v_xor_b32 v{vX0}, {sT0}, v8
        v_xor_b32 v{vX1}, 32, v{vX0}
        s_lshl_b32 {sT0}, {sQH}, 12
        s_lshl_b32 {sKVLDS}, {sHH}, 13
        s_add_u32 {sKVLDS}, {sKVLDS}, {sT0}
        s_lshl_b32 {sKVOFF}, {sHH}, 17
        s_add_u32 {sKVOFF}, {sKVOFF}, {sT0}
        s_add_u32 {sT1}, {sH0}, {sHH}
        s_lshl_b32 {sWQOFF}, {sT1}, 8
        s_lshl_b32 {sT0}, {sQH}, 17
        s_add_u32 {sWQOFF}, {sWQOFF}, {sT0}
        s_mul_i32 {sXOFF}, {sW}, {5*8192}
        s_mul_i32 {sXLDS}, {sW}, {5*1024}
        s_lshl_b32 {sXC}, {sHP}, 1
        s_add_u32 {sXC}, {sXC}, {sB}
        {self.rot_setup()}
        s_lshl_b32 {sWQC}, {sXC}, 19
        s_lshl_b32 {sXC}, {sXC}, 7
        s_mul_i32 {sKR}, s2, {self.c.krot}
        s_add_u32 {sKR}, {sKR}, s47
        s_lshl_b32 {sKR}, {sKR}, 13
        s_mul_i32 s53, {sB}, 163840
        s_lshl_b32 s54, {sB}, 5
        s_add_u32 s54, s54, {sH0}
        s_lshl_b32 s54, s54, 17
        s_mov_b32 s6, 163840
        s_mov_b32 s7, 0x20000
        s_mov_b32 s10, 0x400000
        s_mov_b32 s11, 0x20000
        s_mov_b32 s14, 0x40000
        s_mov_b32 s15, 0x20000
        s_mov_b32 s18, 0x40000
        s_mov_b32 s19, 0x20000
        s_cmp_eq_u32 s52, 0
        s_cselect_b64 s[4:5], s[64:65], s[74:75]
        s_cselect_b64 s[8:9], s[70:71], s[80:81]
        s_cselect_b64 s[12:13], s[66:67], s[76:77]
        s_cselect_b64 s[16:17], s[68:69], s[78:79]
        s_cselect_b64 s[20:21], s[72:73], s[82:83]
        s_add_u32 s4, s4, s53
        s_addc_u32 s5, s5, 0
        ''')
        self.stamp()
        for u in self.x_units(0) + self.wq_units(0) + self.wq_units(1): e(u)
        e(f'''
        s_add_u32 s12, s12, s54
        s_addc_u32 s13, s13, 0
        s_add_u32 s16, s16, s54
        s_addc_u32 s17, s17, 0
        ''')
        self.kvq = self.kv_dma(SK, 0, SLOT + 16384, 'k0') + self.kv_stage(0) + self.kv_dma(SK, 2, SLOT, 'kv1')
        for st in (2, 3, 4)[:self.c.nstg]: self.kvq += self.kv_reg(st)
        for u in self.x_units(1) + self.wq_units(2): e(u)
        for _ in range(self.c.kv_pro): e(self.kvq.pop(0))
        if self.c.codepf:
            e(f'''s_getpc_b64 s[84:85]
            L_pc0:
            s_mov_b32 s86, L_codeend-L_pc0
            s_mov_b32 s87, 0x20000
            v_lshlrev_b32 v22, 7, v0
            buffer_load_dword a136, v22, s[84:87], 0 offen
            s_mov_b32 {sT0}, 32768
            buffer_load_dword a137, v22, s[84:87], {sT0} offen''')
        e(f'''
        s_mul_i32 {sPW}, {sW}, 10240
        s_lshl_b32 {sW4K}, {sW}, 12
        s_mul_i32 {sW5K}, {sW}, 5120
        s_mov_b32 {sC}, {f32(128 ** -0.5 * math.log2(math.e))}
        s_mov_b32 {sT}, {f32(self.c.thr)}
        s_lshl_b32 s55, s52, 3
        s_add_u32 s55, s55, {sB}          ; group = branch*8 + b
        s_lshl_b32 {sCL}, s55, 2
        s_add_u32 {sT2}, {sCL}, {sHP}
        s_mov_b32 {sBLK}, {sT2}
        s_add_u32 {sCL}, {sCL}, {sOCT}    ; cluster = group*4 + octet
        s_lshl_b32 {sT2}, {sT2}, 2
        s_add_u32 {sT2}, {sT2}, {sOCT}
        s_mul_i32 {sT2}, {sT2}, {PART_BYTES}
        s_add_u32 {sT2}, {sT2}, {PART_OFF}
        s_mul_i32 s55, {sCL}, {OX_BYTES}
        s_mov_b32 s22, 0x400000
        s_mov_b32 s23, 0x20000
        s_mov_b64 s[56:57], s[24:25]
        s_add_u32 s76, s24, s55
        s_addc_u32 s77, s25, 0
        s_mov_b32 s78, {OX_BYTES}
        s_mov_b32 s79, 0x20000
        s_add_u32 s24, s24, {sT2}
        s_addc_u32 s25, s25, 0
        s_mov_b32 s26, {PART_BYTES}
        s_mov_b32 s27, 0x20000
        s_lshl_b32 {sCL}, {sCL}, 7
        s_add_u32 {sCL}, {sCL}, {FLAG_OFF}
        s_add_u32 s80, s56, {sCL}
        s_addc_u32 s81, s57, 0
        s_mov_b32 s82, 16
        s_mov_b32 s83, 0x20000
        v_add_u32 v24, {sHP}, {L}
        v_and_b32 v24, 3, v24
        v_lshlrev_b32 v24, 2, v24
        buffer_load_dword v{vFOFF}, v24, {SDB}, 0 offen sc0 sc1
        s_lshl_b32 {sCL}, {sHP}, 2
        s_mov_b32 {sWB}, 0
        s_lshl_b32 {sT2}, {sBLK}, 7
        s_add_u32 {sT2}, {sT2}, {FLAG_OFF + 8192}
        s_add_u32 s84, s56, {sT2}
        s_addc_u32 s85, s57, 0
        s_mov_b32 s86, 64
        s_mov_b32 s87, 0x20000
        v_lshlrev_b32 v24, 2, {L}
        buffer_load_dword a{aOLD2}, v24, {SD2}, 0 offen sc0 sc1
        s_lshl_b32 {sIDX2}, {sOCT}, 2
        s_add_u32 {sIDX2}, {sIDX2}, {sW}
        s_mul_i32 {sOW}, {sHP}, 81920
        s_mul_i32 {sT2}, {sHH}, 40960
        s_add_u32 {sOW}, {sOW}, {sT2}
        s_mul_i32 {sT2}, {sQH}, 10240
        s_add_u32 {sOW}, {sOW}, {sT2}
        {self.peer_setup()}
        v_and_b32 v9, 1, v3
        v_lshlrev_b32 v9, 5, v9           ; 32*(g&1)
        v_lshl_add_u32 v{vWOV}, v4, 10, v5
        v_and_b32 v10, 15, {L}
        v_and_b32 v11, 3, {L}
        v_lshrrev_b32 v12, 2, v10
        v_and_b32 v13, 1, v12
        v_lshlrev_b32 v13, 5, v13
        v_lshlrev_b32 v14, 4, v3
        v_xor_b32 v13, v13, v14
        v_lshl_add_u32 v13, v11, 6, v13
        v_lshl_add_u32 v13, v12, 10, v13
        s_lshl_b32 {sT1}, {sHH}, 13
        v_add_u32 v{aK}, {sT1}, v13
        v_lshl_add_u32 v15, v11, 3, v9
        v_lshl_add_u32 v15, v4, 6, v15
        v_lshl_add_u32 v16, v3, 10, v15
        v_add_u32 v{aVE}, {sT1}, v16
        v_lshrrev_b32 v16, 1, v9          ; 16*(g&1)
        v_lshlrev_b32 v22, 4, v11         ; 16*c4
        v_xor_b32 v16, v16, v22
        v_and_b32 v22, 1, v11
        v_lshl_add_u32 v16, v22, 3, v16   ; + 8*(c4&1)
        v_lshl_add_u32 v16, v4, 6, v16    ; + r*64
        v_lshl_add_u32 v16, v3, 11, v16   ; + g*2048
        v_add_u32 v16, {sT1}, v16
        v_add_u32 v{vQE[0]}, {WQBUF[0]}, v16
        v_add_u32 v{vQE[1]}, {WQBUF[1]}, v16
        v_add_u32 v{vQE[2]}, {WQBUF[2]}, v16
        v_xor_b32 v{vQO[0]}, 8, v{vQE[0]}
        v_xor_b32 v{vQO[1]}, 8, v{vQE[1]}
        v_xor_b32 v{vQO[2]}, 8, v{vQE[2]}
        s_mov_b32 vcc_lo, 0xffff0000
        s_mov_b32 vcc_hi, 0xffff0000
        v_lshrrev_b32 v17, 3, v10
        v_lshlrev_b32 v18, 5, v17
        v_xor_b32 v18, v18, v14
        v_and_b32 v19, 7, {L}
        v_lshl_add_u32 v18, v19, 6, v18
        v_lshl_add_u32 v18, v17, 10, v18
        s_mul_i32 {sT2}, {sQH}, 10240
        v_add_u32 v18, {sT2}, v18
        v_add_u32 v{vXR[0]}, {XBUF[0]}, v18
        v_add_u32 v{vXR[1]}, {XBUF[1]}, v18
        v_lshl_add_u32 v20, v3, 10, v15
        s_lshl_b32 {sT2}, {sHH}, 9
        v_add_u32 v{vOE}, {sT2}, v20
        v_lshlrev_b32 v{vWA1}, 4, {L}
        v_add_u32 v{vWA1}, {sKVLDS}, v{vWA1}
        v_add_u32 v{vWA[0]}, 65536, v{vWA1}
        v_add_u32 v{vWA[1]}, 131072, v{vWA1}
        v_add_u32 v{vWA1}, {SLOT}, v{vWA1}
        v_mov_b32 v21, 0x3f803f80
        v_accvgpr_write_b32 a{aONE}, v21
        v_accvgpr_write_b32 a{aONE+1}, v21
        v_accvgpr_write_b32 a{aONE+2}, v21
        v_accvgpr_write_b32 a{aONE+3}, v21
        ''')
    def q_reads(self, j):
        st = (j & 1) * 52
        xr = [I(f'ds_read_b128 {ar(st + 32 + 4*t)}, v{vXR[(j >> 1) & 1]} offset:{t*2048 + (j & 1)*512}') for t in range(5)]
        aa = []
        for dt in range(8):
            for u in range(2):
                adr = (vQE if dt % 2 == 0 else vQO)[j % 3]
                aa.append(I(f'ds_read_b64_tr_b16 {ar(st + 4*dt + 2*u, 2)}, v{adr} offset:{u*1024 + (dt >> 1)*256}'))
        return aa[:2] + xr + aa[2:]
    def k_reads(self, base, tag='kr'):
        us = [I(f'v_add_u32 v{vK}, {base}, v{aK}')]
        for ks in range(4):
            for kt in range(2):
                us.append(I(f'ds_read_b128 {ar(aKF + (kt*4+ks)*4)}, v{vK} offset:{kt*4096 + ks*256}', tag=tag))
        return us
    def v_reads(self, base, dst=aVF, tag='vr'):
        pre = [I(f'v_add_u32 v{vVE}, {base}, v{aVE}'), I(f'v_xor_b32 v{vVO}, 32, v{vVE}')]
        us = []
        for dt in range(8):
            for h in range(2):
                us.append((dt, I(f'ds_read_b64_tr_b16 {ar(dst + 4*dt + 2*h, 2)}, v{vVE if dt % 2 == 0 else vVO} offset:{16384 + h*4096 + (dt >> 1)*256}', tag=tag)))
        return pre, us
    def q_mfmas(self, j, touter=False):
        st = (j & 1) * 52; m = []
        order = [(t, dt) for t in range(5) for dt in range(8)] if touter else [(t, dt) for dt in range(8) for t in range(5)]
        for t, dt in order:
            m += I(f'{MF} {vr(O(t, dt))}, {ar(st + 4*dt)}, {ar(st + 32 + 4*t)}, {vr(O(t, dt)) if j else "0"}')
        return m
    def s_mfmas(self, zero=False):
        m = []
        for t in range(5):
            for ks in range(4):
                for kt in range(2):
                    c = vr(Sreg(t, kt)) if ks else ('0' if zero else vr(NM4 + 4*t))
                    m += I(f'{MF} {vr(Sreg(t, kt))}, {ar(aKF + (kt*4+ks)*4)}, {ar(Qf(ks, t))}, {c}')
        m[0] = waittag('kr') + [m[0]]
        return m
    def pv_mfmas(self, first=False, vf=aVF, ones_first=True):
        ones = [I(f'{MF} {ar(aL + 4*t)}, {ar(aONE)}, {vr(Preg(t))}, {"0" if first else ar(aL + 4*t)}')[0] for t in range(5)]
        m = list(ones) if ones_first else []
        for t in range(5):
            if not ones_first: m.append(ones[t])
            for dt in range(8):
                m += I(f'{MF} {vr(O(t, dt))}, {ar(vf + 4*dt)}, {vr(Preg(t))}, {"0" if first else vr(O(t, dt))}')
        return m
    def q_convert(self, t):
        us = []
        for ks in range(4):
            x = O(t, 2*ks); y = x + 4
            for k in range(8): us.append(I(f'v_mul_f32 v{x+k}, {sC}, v{x+k}'))
        for ks in range(4):
            x = O(t, 2*ks); y = x + 4
            for s in (f'v{x}, v{x}, v{x+1}', f'v{y}, v{y}, v{y+1}', f'v{x+1}, v{x+2}, v{x+3}', f'v{y+1}, v{y+2}, v{y+3}'):
                us.append(I('v_cvt_pk_bf16_f32 ' + s))
        for ks in range(4):
            x = O(t, 2*ks); y = x + 4
            for k in range(2):
                us.append(I(f'v_cndmask_b32 v{x+2+k}, v{x+k}, v{y+k}, vcc'))
                us.append(I(f'v_cndmask_b32 v{y+2+k}, v{y+k}, v{x+k}, vcc'))
        for ks in range(4):
            x = O(t, 2*ks); y = x + 4
            for k, r in enumerate((x+2, x+3, y+2, y+3)): us.append(I(f'v_accvgpr_write_b32 a{Qf(ks, t)+k}, v{r}'))
        return us
    def exp_units(self, t):
        b = Sreg(t, 0)
        return [I(f'v_exp_f32 v{b+k}, v{b+k}') for k in range(8)], [I(f'v_cvt_pk_bf16_f32 v{Preg(t)+k}, v{b+2*k}, v{b+2*k+1}') for k in range(4)]
    def rowmax(self, m, c, b):
        return I(f'''v_max3_f32 v{m}, v{b}, v{b+1}, v{b+2}
        v_max3_f32 v{c}, v{b+3}, v{b+4}, v{b+5}
        v_max3_f32 v{m}, v{m}, v{b+6}, v{b+7}
        v_max_f32 v{m}, v{m}, v{c}
        v_mov_b32 v{c}, v{m}
        v_permlane32_swap_b32 v{m}, v{c}
        v_max_f32 v{m}, v{m}, v{c}
        v_mov_b32 v{c}, v{m}
        v_permlane16_swap_b32 v{m}, v{c}
        v_max_f32 v{m}, v{m}, v{c}''')
    def softmax_streams(self, i, ck, exp_dead, cvt_lo):
        mx = []
        for t in range(5):
            b = Sreg(t, 0)
            for k in range(4):
                m = vMX0 if k % 2 == 0 else vMX1
                if t == 0 and k < 2: mx.append(I(f'v_max_f32 v{m}, v{b+2*k}, v{b+2*k+1}'))
                else: mx.append(I(f'v_max3_f32 v{m}, v{b+2*k}, v{b+2*k+1}, v{m}'))
        mx.append(I(f'v_max_f32 v{vMX0}, v{vMX0}, v{vMX1}'))
        st = FS(mx + [I(f'v_cmp_lt_f32 vcc, {sT}, v{vMX0}')], -1, ck - 1)
        st.append(F(I(f's_cbranch_vccnz L_stub{i}\nL_ret{i}:'), ck, ck, cost=1))
        self.stubs.append(i)
        for t in range(5):
            ex, cv = self.exp_units(t)
            st += FS(ex, -1, exp_dead(t)) + FS(cv, cvt_lo(t), exp_dead(t))
        return st
    def q_phase(self):
        e = self.e
        e(waittag('x0', 'wq0')); e('s_barrier'); self.stamp('q')
        for u in self.q_reads(0): e(u)
        e(waittag('wq1')); e('s_waitcnt lgkmcnt(0)\ns_barrier')
        for j in range(15):
            d = []
            if j + 3 < 16: d += self.wq_units(j + 3)
            if j % 2 == 1 and (j - 1) // 2 + 2 < 8: d += self.x_units((j - 1) // 2 + 2)
            ke = self.c.kv_end
            if self.c.kveven:
                left = len([k for k in range(j, ke) if k % 2 == 0 or k >= 13])
                n = 0 if (j % 2 == 1 and j < 13) else (-(-len(self.kvq) // max(1, left)))
            else:
                n = -(-len(self.kvq) // max(1, ke - j)) if j < ke else len(self.kvq)
            d += [self.kvq.pop(0) for _ in range(min(n, len(self.kvq)))]
            ds = self.dma_stream(d, 1, min(39, self.c.vsp * len(d)), slack=1) if d else []
            streams = [FS(self.q_reads(j + 1), 0, 30), ds]
            if j == 0 and self.c.l2pfq: streams.append(FS(self.l2pf_q(), 22, 39))
            if j == 3: streams.append(FS([I(f'v_readlane_b32 {sOLD[r]}, v{vFOFF}, {r}') for r in range(4)], 30, 39))
            if j == 14 and self.c.nstg >= 1: streams.append(FS(self.kv_drain(2), 20, 39, step=2))
            if j == 13 and self.c.nstg < 1: streams.append(self.dma_stream(self.kv_stage(2), 4, 36))
            self.sch(f'q{j}', self.q_mfmas(j), streams)
            tags = []
            if j + 2 < 16:
                tags.append(f'wq{j+2}')
                if (j + 2) % 2 == 0: tags.append(f'x{(j+2)//2}')
            if j == 14: tags += ['k0', 'kv0']
            e(waittag(*tags)); e('s_waitcnt lgkmcnt(0)\ns_barrier'); self.stamp('q')
    def q_to_attn(self):
        main = self.q_mfmas(15, touter=True) + self.s_mfmas(zero=True) + self.s_mfmas()
        conv = []
        for t in range(5):
            cu = self.q_convert(t)
            conv += FS(cu, 8*t + 9, 39 + 8*t)
        drains = FS(self.kv_drain(3), 8, 24, step=2) if self.c.nstg >= 2 else []
        if self.c.nstg >= 3: drains += FS(self.kv_drain(4), 24, 40, step=2)
        for f in conv:
            w = [r for x in f.ins for r in x.writes if r[0] == 'a']
            if w and int(w[0][1:]) >= 192: f.lo = max(f.lo, 26 if int(w[0][1:]) < 224 else 42)
        init = []
        for t in range(5):
            b = Sreg(t, 0); lo = 40 + 8*t + 9; hi = 79 + 8*t
            u = [[x] for x in self.rowmax(vMX0, vMX1, b)]
            u += [I(f'v_sub_f32 v{NM4+4*t+k}, 0, v{vMX0}') for k in range(4)]
            u += [I(f'v_sub_f32 v{b+k}, v{b+k}, v{vMX0}') for k in range(8)]
            ex, cv = self.exp_units(t)
            init += FS(u + ex + cv, lo, hi)
        k0 = FS(self.k_reads(SLOT + 16384), -1, 12)
        k1 = self.k_reads(0)
        k1s = [F(k1[0], 60, 79)] + [F(u, 72 + k, 79) for k, u in enumerate(k1[1:])]
        pre, vu = self.v_reads(0)
        vs = FS(pre, 44, 70) + [F(u, 44, 84) for _, u in vu]
        d0 = (self.kv_stage(3) if self.c.nstg < 2 else []) + (self.kv_stage(4) if self.c.nstg < 3 else [])
        v1 = self.dma_stream(d0, 0, 40) if d0 else []
        if self.c.late and not d0: v1 += self.dma_stream(self.kv_reg(6, (0,)), 4, 40)
        v1 += [F(I('s_barrier'), 46, 50)] + self.dma_stream(self.kv_dma(SV, 1, SLOT + 16384, 'kv1'), 50, 64)
        if self.c.late: v1 += self.dma_stream(self.kv_reg(6, (1,) if not d0 else (0, 1)), 66, 86)
        if self.c.early5:
            v1 += [F(waittag('vr') + I('s_barrier'), 88, 90, cost=2)] + self.dma_stream(self.kv_stage(5), 92, 116)
        self.sch('q15..s1', main, [k0, drains, conv + init, k1s, vs, v1], pre_cap=9, cap=self.c.ccap)
    def iteration(self, i):
        e = self.e
        L0 = 4 if self.c.late else 2
        dyn = self.c.loop and L0 <= i <= self.c.lend
        if dyn and i == L0:
            e(f's_mov_b32 {sRB}, {(L0 % 5)*SLOT}\ns_add_u32 {sDB}, {sKVLDS}, {((L0 - 1) % 5)*SLOT}\n{self.kvoff(L0 + 5, sKO)}\n{self.kvoff(L0 + 4, sVO)}\ns_mov_b32 {sKC}, 0')
        if dyn: e(f'L_loopmark{i}:')
        tags = [f'kv{i}', 'vr'] + (['wown'] if i == 15 else [])
        if dyn: e('s_waitcnt vmcnt(24) lgkmcnt(0)')
        e(waittag(*tags)); e('s_barrier')
        if i == 15: return self.tail()
        if dyn: dma = self.kv_stage_dyn(i + 4)
        elif i == 1 and self.c.early5: dma = self.kv_reg(7) if self.c.late else []
        elif i in (2, 3) and self.c.late: dma = self.kv_drain(i + 4)
        elif i <= 11: dma = self.kv_stage(i + 4)
        elif i <= 13: dma = self.wo_own(i - 12)
        else: dma = []
        main = self.pv_mfmas(first=(i == 1)) + self.s_mfmas()
        base = sRB if dyn else (i % 5) * SLOT
        sm = self.softmax_streams(i, 11, lambda t: 44 + 8*t, lambda t: 12 + 8*t)
        ks = FS(self.k_reads(base), -1, 36)
        pre, vu = self.v_reads(base)
        vs = FS(pre, 20, 60) + [F(u, 37 + dt, 80) for dt, u in vu]
        streams = [sm, ks, vs]
        ds = self.dma_stream(dma, self.c.dlo, self.c.dhi) if dma else []
        if self.c.l2pf and i == self.c.pfit: ds += FS(self.l2pf_wo(), 72, 84)
        if dyn:
            ds += FS([I(x) for x in (f's_add_u32 {sDB}, {sRB}, {sKVLDS}', f's_add_u32 {sRB}, {sRB}, {SLOT}',
                      f's_cmp_eq_u32 {sRB}, {5*SLOT}\ns_cselect_b32 {sRB}, 0, {sRB}', f's_mov_b32 {sVO}, {sKO}', f's_add_u32 {sKO}, {sKO}, 8192') + ((f's_and_b32 {sKO}, {sKO}, 0x1e000', f's_or_b32 {sKO}, {sKO}, {sKVOFF}') if self.c.krot else ())], 61, 84)
        streams.append(ds)
        self.sch(f'it{i}', main, streams)
        if dyn: e(f'L_loopend{i}:')
    def rare(self):
        p = I('L_rare:\ns_nop 7\ns_nop 1')
        for t in range(5):
            b = Sreg(t, 0)
            p += self.rowmax(vMX0, vMX1, b)
            p += I(f'v_max_f32 v{vMX0}, 0, v{vMX0}')
            for k in range(4): p += I(f'v_sub_f32 v{NM4+4*t+k}, v{NM4+4*t+k}, v{vMX0}')
            for k in range(8): p += I(f'v_sub_f32 v{b+k}, v{b+k}, v{vMX0}')
            p += I(f'v_sub_f32 v{vTA}, 0, v{vMX0}\nv_exp_f32 v{vTA}, v{vTA}')
            for k in range(32): p += I(f'v_mul_f32 v{O(t,0)+k}, v{O(t,0)+k}, v{vTA}')
            for k in range(4):
                p += I(f'v_accvgpr_read_b32 v{vTB}, a{aL+4*t+k}\nv_mul_f32 v{vTB}, v{vTB}, v{vTA}\nv_accvgpr_write_b32 a{aL+4*t+k}, v{vTB}')
            for k in range(4):
                r = Preg(t) + k
                p += I(f'''v_lshlrev_b32 v{vTB}, 16, v{r}
                v_and_b32 v{vMX1}, 0xffff0000, v{r}
                v_mul_f32 v{vTB}, v{vTB}, v{vTA}
                v_mul_f32 v{vMX1}, v{vMX1}, v{vTA}
                v_cvt_pk_bf16_f32 v{r}, v{vTB}, v{vMX1}''')
        p += I(f's_nop 1\ns_setpc_b64 {sRET}')
        return p
    def own(self, ks, t): return self.ownmap[(ks, t)]
    def acc(self, t, nt): return 32*t + 4*nt
    def norm_units(self, t):
        us = [I(f'v_accvgpr_read_b32 v{vRL+t}, a{aL+4*t}'), I(f'v_rcp_f32 v{vRL+t}, v{vRL+t}')]
        for ks in range(4):
            b = O(t, 2*ks)
            for k in range(8): us.append(I(f'v_mul_f32 v{b+k}, v{b+k}, v{vRL+t}'))
            for k in range(4): us.append(I(f'v_cvt_pk_bf16_f32 v{self.own(ks, t) + k}, v{b+2*k}, v{b+2*k+1}'))
            f = ks*5 + t
            adr, off = (vEX1, f*1024) if f < 16 else (vEX2, (f-16)*1024)
            us.append(I(f's_add_u32 {sT1}, {sOW}, {(ks >> 1)*20480 + ((ks & 1)*5 + t)*1024}') +
                      I(f'buffer_store_dwordx4 {vr(self.own(ks, t))}, v{vL16}, {SOX}, {sT1} offen{self.pol(self.c.opol)}', tag='ost'))
            us.append(I(f'ds_write_b128 v{adr}, {vr(self.own(ks, t))} offset:{off}', tag='exw'))
        return us
    def a_reads(self, e, o, base, nks, dst, tag):
        us = []
        for ks in range(nks):
            for nt in range(4):
                for h in range(2):
                    us.append(I(f'ds_read_b64_tr_b16 {ar(dst + (ks*4 + nt)*4 + 2*h, 2)}, v{e if nt % 2 == 0 else o} offset:{base + ks*8192 + h*4096 + (nt >> 1)*256}', tag=tag))
        return us
    def rem_reads(self, kp):
        u = kp // 2; ksl = kp % 2; st = self.aset(kp)
        aa = self.a_reads(vWEr, vWOr, WOB[u % 4] + ksl*8192, 1, st, 'rr')
        adr, off = (vOB0, OB[u % 4] - OB[0]) if u % 4 < 2 else (vOB1, OB[u % 4] - OB[2])
        bb = [I(f'ds_read_b128 {ar(st + 16 + 4*t)}, v{adr} offset:{off + (ksl*5 + t)*1024}', tag='rr') for t in range(5)]
        return aa[:2] + bb + aa[2:]
    def aset(self, kp):
        return aSET[kp % 2] if kp < 22 else (0, 40)[kp - 22]
    def check(self, r):
        self.chk.append(r)
        return I(f'v_readlane_b32 {sRDY}, v{vPOLL}, {r}\ns_sub_u32 {sRDY}, {sRDY}, {sOLD[r]}\ns_cmp_eq_u32 {sRDY}, {sXCC if self.c.opol != "sc1" else 32}\ns_cbranch_scc0 L_cstub{r}\nL_cret{r}:')
    def store_units(self, t):
        us = []
        for m in range(2):
            b = self.acc(t, 2*m)
            for k in range(4): us.append(I(f'v_cvt_pk_bf16_f32 v{b+k}, v{b+2*k}, v{b+2*k+1}'))
            us.append(I(f's_add_u32 {sT1}, {sPW}, {(t*2+m)*1024}') +
                      I(f'buffer_store_dwordx4 {vr(b)}, v{vL16}, {SWS}, {sT1} offen{self.pol(self.c.stpol)}', tag='st'))
        return us
    def tail(self):
        e = self.e; L = f'v{vLANE}'; self.chk = []
        e('s_mov_b64 s[16:17], s[100:101]')
        regs = {0: [220, 224, 228, 232], 1: [236, 160, 164, 168], 2: [172, 176, 180, 184], 3: [188, 192, 196, 200], 4: [204, 208, 212, 216]}
        self.ownmap = {(ks, t): regs[t][ks] for t in range(5) for ks in range(4)}
        o0 = []
        for t in range(5):
            for ks in range(4):
                for nt in range(4):
                    o0 += I(f'{MF} {vr(self.acc(t, nt))}, {ar(aA0 + (ks*4+nt)*4)}, {vr(self.own(ks, t))}, {vr(self.acc(t, nt)) if ks else "0"}')
        pv15 = self.pv_mfmas(vf=aKF, ones_first=False)
        pv15[0] = waittag('vr') + [pv15[0]]
        o0[0] = waittag('af0') + [o0[0]]
        main = self.pv_mfmas() + pv15 + o0
        sm = self.softmax_streams(15, 11, lambda t: 43 + 9*t, lambda t: 12 + 8*t)
        pre, vu = self.v_reads(0, dst=aKF)
        rd = FS(pre + [u for _, u in vu], -1, 30)
        rd += FS([I(f's_lshl_b32 {sT1}, {sHH}, 15'), I(f's_add_u32 {sT1}, {sT1}, {SLOT}'), I(f'v_add_u32 v{vOEs}, {sT1}, v{vOE}'), I(f'v_xor_b32 v{vOOs}, 32, v{vOEs}')] +
                 self.a_reads(vOEs, vOOs, 0, 4, aA0, 'af0'), -1, 70)
        setup = [I(x) for x in (f'v_lshlrev_b32 v{vL16}, 4, {L}', f's_lshl_b32 {sT1}, {sW}, 14', f's_add_u32 {sT1}, {sT1}, 98304',
                 f'v_add_u32 v{vEX1}, {sT1}, v{vL16}', f'v_add_u32 v{vEX2}, {sW4K}, v{vL16}')]
        st0 = FS(setup, 12, 52)
        rd += [F(waittag('vr') + I('s_barrier'), 72, 80, cost=2)] + self.dma_stream(self.wo_rem(0), 74, 90)
        rd += FS([I(f'v_xor_b32 v{vOEs}, 0x18000, v{vOEs}'), I(f'v_xor_b32 v{vOOs}, 0x18000, v{vOOs}')] + self.a_reads(vOEs, vOOs, 0, 4, aA1, 'af1'), self.c.normlast - 40, 164)
        nl = self.c.normlast
        nm = []
        for t in range(5):
            nm += FS(self.norm_units(t), 45 + 9*t + 10, min(89 + 16*t, nl))
            if t == 0:
                nm += FS([I(x) for x in (f'v_xor_b32 v{vEXR1}, 0x4000, v{vEX1}', f'v_xor_b32 v{vEXR2}, 0x1000, v{vEX2}', f's_mul_i32 {sT1}, {sQH}, 10240',
                          f's_add_u32 {sT1}, {sT1}, {OB[0]}', f'v_add_u32 v{vOB0}, {sT1}, v{vL16}', f'v_add_u32 v{vOB1}, {OB[2] - OB[0]}, v{vOB0}',
                          f'v_mov_b32 v{vWEr}, v{vOE}', f'v_xor_b32 v{vWOr}, 32, v{vOE}', f's_add_u32 {sT1}, {sOLD[0]}, {sXCC if self.c.opol != "sc1" else 32}\nv_mov_b32 v{vFLAG}, {sT1}', f'v_add_u32 v{vPOFF}, {sHP}, {L}', f'v_and_b32 v{vPOFF}, 3, v{vPOFF}', f'v_lshlrev_b32 v{vPOFF}, 2, v{vPOFF}')], -1, 89)
        l4 = [f for f in nm if any(f'a{aL+16}' in x.reads for x in f.ins)][0]
        for f in rd:
            if any(x.tag == 'af1' for x in f.ins): f.lo = max(f.lo, 100)
        l4.hi = min(l4.hi, 99)
        exr = []
        for f in range(20):
            adr, off = (vEXR1, f*1024) if f < 16 else (vEXR2, (f-16)*1024)
            exr.append(I(f'ds_read_b128 {ar(aPART + 4*f)}, v{adr} offset:{off}', tag='exr'))
        nm += [F(waittag('exw') + I('s_barrier'), -1, nl + 6, cost=2)] + FS(exr, -1, 164)
        pl = [F(I(f'buffer_load_dword v{vPOLL}, v{vPOFF}, {SDB}, 0 offen sc0 sc1'), self.c.pearly, self.c.pearly)] if self.c.pearly else []
        self.sch('tail', main, [sm, rd, st0, nm, pl], cap=self.c.tcap)
        self.stamp('main', 'o', 'h')
        main = []
        for ks in range(4):
            for nt in range(4):
                for t in range(5):
                    main += I(f'{MF} {vr(self.acc(t, nt))}, {ar(aA1 + (ks*4+nt)*4)}, {ar(aPART + (ks*5+t)*4)}, {vr(self.acc(t, nt))}')
        main[0] = waittag('exr', 'af1') + I('s_barrier') + [main[0]]
        Z, Pg = self.c.zgap, self.c.pgap
        sig = self.stamp_i('h') + waittag('ost') + self.stamp_i('h') + I(f's_barrier\ns_cmp_lg_u32 {sW}, 0\ns_cbranch_scc1 L_nosig')
        sig += I(f's_mov_b64 exec, 1\nbuffer_store_dword v{vFLAG}, off, {SDB}, {sCL} sc0 sc1\ns_mov_b64 exec, -1\nL_nosig:')
        for x in sig:
            if x.kind == 'vst': x.kind = 'opaque'
        ds = [F(sig, Z, Z, cost=4)] + self.dma_stream(self.wo_rem(1) + self.wo_rem(2) + self.wo_rem(3), 0, 0)[:0]
        if self.c.pearly:
            ds += [F(self.stamp_i('h') + self.check(1) + self.stamp_i('h'), Z, Z, cost=4)]
            un = self.o_rem(0)
            for u in range(1, 4): un += self.o_rem(u) + self.wo_rem(u)
            d2 = self.dma_stream(un, Z + 2, 78, slack=0)
            for f in d2: f.lo = max(f.lo, Z)
            ds += d2
        else:
            w13 = self.dma_stream(self.wo_rem(1) + self.wo_rem(2) + self.wo_rem(3), Z + 2, Pg - self.c.pdist - 2)
            ds += w13 + [F(I(f'buffer_load_dword v{vPOLL}, v{vPOFF}, {SDB}, 0 offen sc0 sc1'), Pg - self.c.pdist, Pg - self.c.pdist),
                         F(self.stamp_i('h') + self.check(1) + self.stamp_i('h'), Pg, Pg, cost=4)]
            ds += self.dma_stream(self.o_rem(0) + self.o_rem(1) + self.o_rem(2) + self.o_rem(3), Pg + 1, 79, slack=0)
        c0 = [F(self.stamp_i('h') + waittag('u0') + self.stamp_i('h') + I('s_barrier'), self.c.c0gap, self.c.c0gap, cost=2)] + FS(self.rem_reads(0), self.c.c0gap, 76)
        self.sch('s1', main, [ds, c0])
        self.stamp('o')
        pend = []
        NL = self.c.lastn
        for kp in range(24 - NL + 1):
            u = kp // 2; st = self.aset(kp)
            main = []
            if kp < 24 - NL:
                for nt in range(4):
                    for t in range(5):
                        main += I(f'{MF} {vr(self.acc(t, nt))}, {ar(st + 4*nt)}, {ar(st + 16 + 4*t)}, {vr(self.acc(t, nt))}')
            else:
                for t in range(5):
                    for k2 in range(kp, 24):
                        for nt in range(4):
                            main += I(f'{MF} {vr(self.acc(t, nt))}, {ar(self.aset(k2) + 4*nt)}, {ar(self.aset(k2) + 16 + 4*t)}, {vr(self.acc(t, nt))}')
            head = waittag('rr')
            if kp % 2 == 1 and u + 1 < 12:
                head = waittag('rr', f'u{u+1}') + I('s_barrier')
                if u + 4 < 12:
                    pend = self.wo_rem(u + 4) + self.o_rem(u + 4)
                    if (u + 4) % 4 == 0: head += self.check(1 + (u + 4) // 4)
            main[0] = head + [main[0]]
            streams = []
            if kp + 1 < 24 - NL: streams.append(FS(self.rem_reads(kp + 1), 0, 14))
            elif kp + 1 == 24 - NL:
                streams.append(FS([x for k2 in range(kp + 1, 24) for x in self.rem_reads(k2)], 0, 17))
            if pend:
                n = 4 if kp % 2 == 1 else len(pend)
                streams.append(self.dma_stream(pend[:n], 1, 18, slack=1)); pend = pend[n:]
            if kp == 24 - NL:
                su = []
                for t in range(4): su += FS(self.store_units(t), 4*NL*(t + 1) + 1, 10**6)
                streams.append(su)
            if self.c.fuse and 12 <= kp < 20:
                fs = self.final_setup(16) + self.final_setup(18); n = len(fs)
                streams.append(FS(fs[(kp - 12)*n//8:(kp - 11)*n//8], 8, 19))
            self.sch(f'r{kp}', main, streams, cap=(3 if kp >= 23 - NL else 2))
            if kp % 4 == 3: self.stamp('o')
        for u in self.store_units(4): e(u)
        if self.c.fuse: self.final_reduce()
    def final_setup(self, part):
        L = f'v{vLANE}'
        sA, sO, sQ = 's37', 's54', 's55'
        if part == 16:
            return [I(x) for x in f'''s_mov_b32 s14, {8*160*1024*2}
            s_mov_b64 s[12:13], s[16:17]
            s_mul_i32 {sA}, {sOCT}, 2560
            s_add_u32 {sA}, {sA}, {sPW}
            s_lshr_b32 {sO}, {sBLK}, 2
            s_and_b32 {sO}, {sO}, 7
            s_mul_i32 {sO}, {sO}, 160
            s_mul_i32 {sQ}, {sQH}, 80
            s_add_u32 {sO}, {sO}, {sQ}
            s_lshl_b32 {sO}, {sO}, 11
            s_lshr_b32 {sQ}, {sBLK}, 5
            s_lshl_b32 {sQ}, {sQ}, 10
            s_add_u32 {sO}, {sO}, {sQ}
            s_lshl_b32 {sQ}, {sHP}, 8
            s_add_u32 {sO}, {sO}, {sQ}
            s_lshl_b32 {sQ}, {sHH}, 7
            s_add_u32 {sO}, {sO}, {sQ}
            v_accvgpr_read_b32 v{vOLD}, a{aOLD2}
            s_lshl_b32 {sCL}, 0x1111, {sW}
            s_lshl_b32 {sQ}, 1, {sIDX2}
            s_andn2_b32 {sCL}, {sCL}, {sQ}
            v_readlane_b32 {sQ}, v{vOLD}, {sIDX2}
            s_add_u32 {sQ}, {sQ}, 1
            v_mov_b32 v{vFLAG}, {sQ}
            s_lshl_b32 {sIDX2}, {sIDX2}, 2
            s_mul_i32 {sQ}, {sOCT}, 160
            v_lshlrev_b32 v48, 2, {L}
            v_mov_b32 v49, 0x3f80
            v_mov_b32 v50, 0x3f800000'''.split('\n')]
        us = []
        for k in range(3):
            us += [I(x) for x in f'''v_add_u32 v26, {sQ}, {L}
            v_add_u32 v26, {64*k}, v26
            v_lshrrev_b32 v27, 7, v26
            v_lshlrev_b32 v{28+k}, 15, v27
            v_bfe_u32 v27, v26, 6, 1
            v_lshl_add_u32 v{28+k}, v27, 6, v{28+k}
            v_and_b32 v27, 15, v26
            v_lshl_add_u32 v{28+k}, v27, 11, v{28+k}
            v_bfe_u32 v27, v26, 4, 2
            v_lshl_add_u32 v{28+k}, v27, 3, v{28+k}'''.split('\n')]
        return us
    def final_reduce(self):
        e = self.e
        sA, sO = 's37', 's54'
        e(f'''s_mul_i32 {sT0}, {sOCT}, {PART_BYTES}
        s_sub_u32 s24, s24, {sT0}
        s_subb_u32 s25, s25, 0
        s_mov_b32 s26, {4*PART_BYTES}
        s_waitcnt vmcnt(0)
        s_mov_b64 exec, 1
        buffer_store_dword v{vFLAG}, off, {SD2}, {sIDX2} sc0 sc1
        s_mov_b64 exec, -1''')
        self.stamp('o')
        e(f'''s_mov_b32 {sWB}, {self.c.maxpoll}
        s_branch L_fpoll
        L_floop:
        s_sleep {self.c.slp}
        L_fpoll:
        buffer_load_dword v{vPOLL}, v48, {SD2}, 0 offen sc0 sc1
        s_waitcnt vmcnt(0)
        v_cmp_ne_u32 vcc, v{vPOLL}, v{vOLD}
        s_sub_u32 {sWB}, {sWB}, 1
        s_cmp_eq_u32 {sWB}, 0
        s_cbranch_scc1 L_fgo
        s_and_b32 {sCNT}, vcc_lo, {sCL}
        s_cmp_eq_u32 {sCNT}, {sCL}
        s_cbranch_scc0 L_floop
        L_fgo:''')
        self.stamp('o')
        R0 = 160
        for k in range(3):
            for i in range(4):
                e(f's_add_u32 {sT1}, {sA}, {i*PART_BYTES}\nbuffer_load_dwordx4 {vr(R0 + (k*4+i)*4)}, v{vL16}, {SWS}, {sT1} offen offset:{k*1024} sc1')
        for k in range(3):
            for i in range(4):
                for j in range(4):
                    r = R0 + (k*4+i)*4 + j
                    if i == 0: e(f'v_lshlrev_b32 v{96+2*j}, 16, v{r}\nv_and_b32 v{97+2*j}, 0xffff0000, v{r}')
                    elif self.c.dot: e(f'v_dot2c_f32_bf16 v{96+2*j}, v{r}, v49\nv_dot2c_f32_bf16 v{97+2*j}, v{r}, v50')
                    else: e(f'v_lshlrev_b32 v26, 16, v{r}\nv_and_b32 v27, 0xffff0000, v{r}\nv_add_f32 v{96+2*j}, v{96+2*j}, v26\nv_add_f32 v{97+2*j}, v{97+2*j}, v27')
            if self.c.dot: e('s_nop 2')
            for j in range(4): e(f'v_cvt_pk_bf16_f32 v{104+4*k+j}, v{96+2*j}, v{97+2*j}')
            if k == 2: e('s_mov_b32 exec_hi, 0')
            e(f'buffer_store_dwordx2 v[{104+4*k}:{105+4*k}], v{28+k}, {SOUT}, {sO} offen{self.pol(self.c.outpol)}')
            e(f'buffer_store_dwordx2 v[{106+4*k}:{107+4*k}], v{28+k}, {SOUT}, {sO} offen offset:32{self.pol(self.c.outpol)}')
        e('s_mov_b64 exec, -1')
    def poll_code(self):
        p = []
        for r in self.chk:
            p += I(f'''L_cstub{r}:
            s_mov_b32 {sCNT}, {self.c.maxpoll}
            L_cloop{r}:
            {f's_sleep {self.c.slp}' if self.c.slp else ''}
            buffer_load_dword v{vPOLL}, v{vPOFF}, {SDB}, 0 offen sc0 sc1
            s_waitcnt vmcnt(0)
            v_readlane_b32 {sRDY}, v{vPOLL}, {r}
            s_sub_u32 {sCNT}, {sCNT}, 1
            s_cmp_eq_u32 {sCNT}, 0
            s_cbranch_scc1 L_cret{r}
            s_sub_u32 {sRDY}, {sRDY}, {sOLD[r]}
            s_cmp_eq_u32 {sRDY}, 0
            s_cbranch_scc1 L_cloop{r}''')
            if self.c.opol != 'sc1':
                p += I(f'''s_cmp_eq_u32 {sRDY}, {sXCC}
                s_cbranch_scc1 L_cret{r}
                s_cmp_lg_u32 {sWB}, 0
                s_cbranch_scc1 L_cwb{r}
                s_mov_b32 {sWB}, 1
                s_cmp_lg_u32 {sW}, 0
                s_cbranch_scc1 L_cwb{r}
                buffer_wbl2 sc1
                s_waitcnt vmcnt(0)
                s_add_u32 {sT3}, {sOLD[0]}, 32
                v_mov_b32 v{vFLAG}, {sT3}
                s_mov_b64 exec, 1
                buffer_store_dword v{vFLAG}, off, {SDB}, {sCL} sc0 sc1
                s_mov_b64 exec, -1
                L_cwb{r}:
                s_cmp_lt_u32 {sRDY}, 32
                s_cbranch_scc1 L_cloop{r}
                buffer_inv sc1
                s_waitcnt vmcnt(0)''')
            p += I(f's_nop 4\ns_branch L_cret{r}')
        return p
    def peephole(self, prog):
        out = []; prev = {}
        for x in prog:
            if x.kind in ('label', 'branch'): prev = {}; self.curkvo = None
            if isinstance(x.tag, tuple) and x.tag[0] == 'kvo' and self.c.krot:
                if getattr(self, 'curkvo', None) == x.tag: continue
                if x.op == 's_or_b32': self.curkvo = x.tag
                out.append(x); prev.pop(sT2, None); continue
            if sT2 in x.writes: self.curkvo = None
            if x.kind == 'salu' and x.op == 's_add_u32' and len(x.writes) == 1:
                w = next(iter(x.writes))
                if w in ('m0', sT0, sT2) and prev.get(w) == x.text and w not in x.reads: continue
            for w in x.writes:
                prev.pop(w, None)
                for k in [k for k, v in prev.items() if re.search(rf'\b{w}\b', v.split(',', 1)[1])]: prev.pop(k)
            if x.kind == 'salu' and x.op == 's_add_u32' and len(x.writes) == 1: prev[next(iter(x.writes))] = x.text
            out.append(x)
        return out
    def fold(self, prog):
        idx = {x.text: k for k, x in enumerate(prog) if x.kind == 'label'}
        its = [i for i in range(16) if f'L_loopmark{i}:' in idx]
        norm = lambda x: re.sub(r'(L_stub|L_ret)\d+', r'\1', x.text)
        body = {i: [norm(x) for x in prog[idx[f'L_loopmark{i}:'] + 1: idx[f'L_loopend{i}:']]] for i in its}
        last = its[-1]; first = last
        while first - 1 in body and body[first - 1] == body[last]: first -= 1
        self.log.append(('loop', first, last, len(body[last])))
        for i in range(first + 1, last + 1): self.stubs.remove(i)
        a = idx[f'L_loopmark{first}:']; b = idx[f'L_loopend{first}:']; c = idx[f'L_loopend{last}:']
        return prog[:a] + I(self.kvoff(last + 6, sIT)) + prog[a:b] + \
            I(f's_cmp_lg_u32 {sIT}, {sKO}\ns_cbranch_scc1 L_loopmark{first}') + prog[c + 1:]
    def build(self):
        self.prologue(); self.q_phase(); self.q_to_attn(); self.stamp('main', 'q', 'a')
        for i in range(1, 16):
            if i == 15: self.stamp('o', 'h')
            self.iteration(i)
            if i in (3, 10, 12): self.stamp('main')
            if i < 15 and not (self.c.loop and 4 <= i < self.c.lend): self.stamp('a')
        e = self.e
        if self.c.stamps:
            e('s_waitcnt vmcnt(0)'); self.stamp()
            if self.c.dbgwg >= 0:
                e(f'''s_mov_b64 s[24:25], s[56:57]
                s_mov_b32 s26, 0x10000000
                s_mov_b32 {sT2}, {STAMP_OFF}
                s_cmp_lg_u32 s2, {self.c.dbgwg}
                s_cbranch_scc1 L_end
                s_cmp_lg_u32 {sW}, 0
                s_cbranch_scc1 L_end
                v_readfirstlane_b32 {sT1}, v255
                v_lshlrev_b32 v2, 2, v{vLANE}
                v_subrev_u32 v4, {sT1}, v255
                buffer_store_dword v4, v2, {SWS}, {sT2} offen
                s_endpgm''')
            e(f'''s_mov_b64 s[24:25], s[56:57]
            s_mov_b32 s26, 0x10000000
            s_mul_i32 {sT1}, s2, {self.nst*8}
            s_add_u32 {sT1}, {sT1}, {STAMP_OFF}
            s_cmp_lg_u32 {sW}, 0
            s_cbranch_scc1 L_end
            v_lshlrev_b32 v2, 3, v{vLANE}
            v_mov_b32 v4, v255
            v_mov_b32 v5, 0
            v_cmp_gt_u32 vcc, {self.nst}, v{vLANE}
            s_and_saveexec_b64 s[60:61], vcc
            buffer_store_dwordx2 v[4:5], v2, {SWS}, {sT1} offen''')
        e('L_end:\ns_endpgm')
        if self.c.nomem:
            def drop(x):
                if x.kind not in ('dma', 'vld', 'vst'): return False
                t = x.text
                if 'buffer_load_dword a' in t: return 'p' in self.c.nomem and 's[84:87]' not in t
                if SX in t or SWQ in t: return 'q' in self.c.nomem
                if SK in t or SV in t: return 'k' in self.c.nomem
                if SWO in t or SOX in t: return 'o' in self.c.nomem
                if x.tag == 'st': return 's' in self.c.nomem
                return False
            self.p = [x for x in self.p if not drop(x)]
        prog = finalize(self.peephole(self.p))
        if self.c.loop: prog = self.fold(prog)
        for i in self.stubs: prog += I(f'L_stub{i}:\ns_call_b64 {sRET}, L_rare\ns_branch L_ret{i}')
        prog += finalize(self.rare())
        prog += self.poll_code()
        prog += I('L_codeend:')
        return prog

def reduce_kernel(cfg):
    pol = (' ' + cfg.rdpol) if cfg.rdpol else ''
    p = I(f'''
    s_cmp_ge_u32 s2, 640
    s_cbranch_scc1 L_rend
    s_load_dwordx2 s[4:5], s[0:1], 96
    s_load_dwordx2 s[8:9], s[0:1], 80
    v_lshrrev_b32 v1, 6, v0
    v_and_b32 v2, 63, v0
    v_readfirstlane_b32 s3, v1
    v_lshlrev_b32 v3, 4, v2
    s_mul_i32 s12, s2, 6554
    s_lshr_b32 s12, s12, 16
    s_mul_i32 s13, s12, 10
    s_sub_u32 s13, s2, s13
    s_lshl_b32 s13, s13, 2
    s_add_u32 s13, s13, s3           ; piece 0..39
    s_mul_i32 s16, s12, {4*PART_BYTES}
    s_lshl_b32 s17, s13, 10
    s_add_u32 s16, s16, s17
    s_add_u32 s16, s16, {PART_OFF}
    s_mov_b32 s6, {PART_OFF + 256*PART_BYTES}
    s_mov_b32 s7, 0x20000
    s_mov_b32 s10, {8*160*1024*2}
    s_mov_b32 s11, 0x20000
    ''')
    for i in range(4):
        p += I(f'buffer_load_dwordx4 v[{8+4*i}:{11+4*i}], v3, s[4:7], s16 offen{pol}')
        if i < 3: p += I(f's_add_u32 s16, s16, {PART_BYTES}')
    p += I(f'''
    s_mul_i32 s14, s13, 6554
    s_lshr_b32 s14, s14, 16          ; w
    s_mul_i32 s15, s14, 10
    s_sub_u32 s19, s13, s15          ; idx
    s_lshr_b32 s20, s19, 1           ; t
    s_and_b32 s21, s19, 1            ; m
    s_lshr_b32 s22, s12, 2
    s_and_b32 s22, s22, 7            ; b
    s_lshr_b32 s23, s12, 5           ; branch
    s_and_b32 s18, s12, 3            ; hp
    s_mul_i32 s24, s22, 160
    s_lshr_b32 s25, s14, 1
    s_mul_i32 s25, s25, 80
    s_add_u32 s24, s24, s25
    s_lshl_b32 s25, s20, 4
    s_add_u32 s24, s24, s25
    s_lshl_b32 s24, s24, 11
    s_lshl_b32 s25, s23, 10
    s_add_u32 s24, s24, s25
    s_lshl_b32 s25, s18, 8
    s_add_u32 s24, s24, s25
    s_and_b32 s25, s14, 1
    s_lshl_b32 s25, s25, 7
    s_add_u32 s24, s24, s25
    s_lshl_b32 s25, s21, 6
    s_add_u32 s24, s24, s25
    v_and_b32 v4, 15, v2
    v_lshlrev_b32 v4, 11, v4
    v_lshrrev_b32 v5, 4, v2
    v_lshl_add_u32 v4, v5, 3, v4
    ''')
    for i in range(4):
        for j in range(4):
            r = 8 + 4*i + j
            if i == 0: p += I(f'v_lshlrev_b32 v{32+2*j}, 16, v{r}\nv_and_b32 v{33+2*j}, 0xffff0000, v{r}')
            else: p += I(f'v_lshlrev_b32 v6, 16, v{r}\nv_and_b32 v7, 0xffff0000, v{r}\nv_add_f32 v{32+2*j}, v{32+2*j}, v6\nv_add_f32 v{33+2*j}, v{33+2*j}, v7')
    for j in range(4): p += I(f'v_cvt_pk_bf16_f32 v{40+j}, v{32+2*j}, v{33+2*j}')
    p += I('''buffer_store_dwordx2 v[40:41], v4, s[8:11], s24 offen
    buffer_store_dwordx2 v[42:43], v4, s[8:11], s24 offen offset:32
    L_rend:
    s_endpgm''')
    return finalize(p)

def generate(cfg, path):
    g = Gen(cfg)
    main = g.build()
    if cfg.kpolB != '=' or cfg.vpolB != '=':
        import copy
        c2 = copy.copy(cfg)
        if cfg.kpolB != '=': c2.kpol = cfg.kpolB
        if cfg.vpolB != '=': c2.vpol = cfg.vpolB
        m2 = Gen(c2).build()
        for x in m2: x.text = re.sub(r'\bL_(\w+)', r'LB_\1', x.text)
        main = I('s_bitcmp1_b32 s2, 2\ns_cbranch_scc1 LB_entry') + main + I('LB_entry:') + m2
    red = reduce_kernel(cfg)
    if cfg.dbgwg >= 0:
        k = [i for i, x in enumerate(red) if x.text == 'L_rend:'][0]
        red[k:k] = finalize(I(f'''s_cmp_lg_u32 s2, 0
        s_cbranch_scc1 L_rend
        s_load_dwordx2 s[8:9], s[0:1], 88
        s_mov_b32 s10, 256
        s_mov_b32 s6, 0x10000000
        s_mov_b32 s16, {STAMP_OFF}
        v_lshlrev_b32 v2, 2, v0
        buffer_load_dword v3, v2, s[4:7], s16 offen
        buffer_store_dword v3, v2, s[8:11], 0 offen'''))
    if cfg.fuse:
        s = make_file([(KN, 256, 256, 163840)], [(KN, text_of(main), 512, 102, 256)])
        s = s.replace(f'; @launch kernel={KN} grid', '; @launch grid')
    else:
        s = make_file([(KN, 256, 256, 163840), ('reduce_heads_kernel', 640, 256, 0)],
                      [(KN, text_of(main), 512, 102, 256), ('reduce_heads_kernel', text_of(red), 48, 32, 48)])
    open(path, 'w').write(s)
    open(path[:-2] + '.nst', 'w').write(str(g.nst))
    return g, main

if __name__ == '__main__':
    cfg = Cfg()
    out = sys.argv[1]
    for kv in sys.argv[2:]:
        k, v = kv.split('=')
        cur = getattr(cfg, k)
        setattr(cfg, k, type(cur)(int(v)) if isinstance(cur, (bool, int)) and not isinstance(cur, float) else type(cur)(v.replace('+', ' ')))
    g, main = generate(cfg, out)
    from collections import Counter
    print(out, 'stamps', g.nst, dict(Counter(i.kind for i in main)))
    if cfg.verbose:
        for l in g.log: print(*l)
```

```python
import sys, math, struct, re
from asmlib import *
from gen_common import make_file, KN

class Cfg:
    kpol = 'nt'; vpol = 'nt'; kpolB = '='; vpolB = '='; wpol = ''; stpol = 'sc1'; rdpol = ''; pfpol = ''
    stamps = False; stset = 'main'; clk = 0
    codepf = 1
    kv_pro = 4
    kv_end = 13
    l2pf = 1; pfit = 11; l2pfq = 0
    nstg = 3
    late = 1
    early5 = 1
    rot = 2
    vsp = 4
    kveven = 1
    thr = 8.0
    loop = 1
    nomem = ''
    verbose = 0
    dbgwg = -1
    normlast = 105
    fuse = 1
    outpol = ''
    oldpol = 'sc1'
    slp = 2
    dot = 0
    v15gap = -1
    pkq = 1
    pkn = 1
    kv_start = 0
    kvw = 0.5
    wpol0 = ''
    nwq0 = 4
    nx0 = 3
    pearly = 0
    c0gap = 66
    pdist = 10
    lastn = 2
    opol = 'sc1'
    zgap = 2
    pgap = 30
    maxpoll = 200000
    krot = 0
    ccap = 6
    tcap = 4
    lend = 10
    dlo = 24
    dhi = 80
STAMP_OFF = 0x8000000
PART_BYTES = 40960
PART_OFF = 0x2000000
OX_BYTES = 327680
FLAG_OFF = 0x3000000
def f32(x): return '0x%08x' % struct.unpack('<I', struct.pack('<f', x))[0]

SX, SWQ, SK, SV, SWO, SWS = 's[4:7]', 's[8:11]', 's[12:15]', 's[16:19]', 's[20:23]', 's[24:27]'
sW, sHH, sQH = 's3', 's28', 's29'
sKVOFF, sKVLDS, sWQOFF, sXOFF, sXLDS, sWO0, sWO1, sWOLDS, sPW = 's30', 's31', 's32', 's33', 's34', 's35', 's36', 's37', 's38'
sC, sT = 's40', 's41'
sT0, sT1, sT2, sT3 = 's42', 's43', 's44', 's45'
sRET = 's[60:61]'
sRB, sDB, sKO, sVO, sIT = 's46', 's47', 's52', 's53', 's50'
sB, sHP, sH0 = 's48', 's49', 's51'
sWQC, sXC, sWQB, sXB = 's88', 's89', 's90', 's91'
SOX, SDB = 's[76:79]', 's[80:83]'
sCL, sXCC, sRDY, sOW, sOCT = 's92', 's93', 's94', 's95', 's39'
sPO = ['s64', 's65', 's66', 's67']; sPWo = ['s68', 's69', 's70', 's71']
sW4K, sW5K, sCNT, sWB = 's96', 's97', 's98', 's99'
sKR, sKC = 's35', 's36'
sOLD = ['s72', 's73', 's74', 's75']
vFOFF = 215; vFOFF2 = 214
SD2 = 's[84:87]'; sOLD2 = ['s0', 's1', 's93', 's36']; sIDX2 = 's59'; sBLK = 's58'; SOUT = 's[12:15]'
STAMP0 = 62
def O(t, dt): return (t * 8 + dt) * 4
S0 = 160; P0 = 200; NM4 = 220
def Sreg(t, kt): return S0 + (t * 2 + kt) * 4
def Preg(t): return P0 + 4 * t
vMX0, vMX1, vTA, vTB = 240, 241, 242, 243
vK, vVE, vVO, aK, aVE = 244, 245, 246, 247, 248
vKVA, vKVB, vLANE, vWOV, vOE = 249, 250, 251, 252, 253
vWQA, vWQB, vX0, vX1 = 200, 201, 202, 203
vQE = [204, 205, 206]; vQO = [207, 208, 209]; vXR = [210, 211]
vWA = [212, 213]
vWA1 = 254
vRL = 240
vOEs, vOOs = 245, 246
vEX1, vEX2, vL16 = 247, 248, 254
vEXR1, vEXR2, vOB0, vOB1, vPOLL, vFLAG, vWEr, vWOr, vPOFF = 16, 17, 18, 19, 20, 21, 22, 23, 24
aVF, aAF, aKF, aL, aONE, aQ = 0, 80, 104, 136, 156, 160
aPART = 0; aA0 = 160
def Qf(ks, t): return aQ + (t * 4 + ks) * 4
def vr(b, n=4): return f'v[{b}:{b+n-1}]'
def ar(b, n=4): return f'a[{b}:{b+n-1}]'
SLOT = 32768
WQBUF = [147456, 65536, 102400]
XBUF = [81920, 126976]
WOB = [16384, 0, 32768, 49152]
OB = [65536, 86016, 106496, 126976]
aA1 = 80
aSET = [160, 196]
MF = 'v_mfma_f32_16x16x32_bf16'

def FS(units, lo=-1, hi=10**6, step=None):
    return [F(u, lo if step is None else int(lo + k * step), hi) for k, u in enumerate(units)]

class Gen:
    def __init__(self, cfg):
        self.c = cfg; self.p = []; self.nst = 0; self.stubs = []; self.log = []
    def e(self, x, tag=None):
        self.p += I(x, tag) if isinstance(x, str) else x
    def stamp_i(self, grp='all'):
        if self.c.stamps and grp in ('all', self.c.stset):
            self.nst += 1
            return I(f's_mem{"" if self.c.clk else "real"}time s[62:63]\ns_waitcnt lgkmcnt(0)\nv_writelane_b32 v255, s62, {self.nst - 1}')
        return []
    def stamp(self, *grps):
        for g in grps or ('all',): self.e(self.stamp_i(g))
    def sch(self, name, main, streams, **kw):
        v = []
        self.e(sched(main, streams, verbose=v, **kw))
        self.log.append((name,) + v[0])
    @staticmethod
    def pol(p): return (' ' + p) if p else ''
    def kvoff(self, tile, dst=sT2):
        if not self.c.krot: return f's_add_u32 {dst}, {sKVOFF}, {tile*8192}'
        return f's_add_u32 {dst}, {sKR}, {tile*8192}\ns_and_b32 {dst}, {dst}, 0x1e000\ns_or_b32 {dst}, {dst}, {sKVOFF}'
    def kvo(self, tile):
        u = I(self.kvoff(tile))
        for x in u: x.tag = ('kvo', tile)
        return u
    def kvp(self, srd): return self.pol(self.c.kpol if srd == SK else self.c.vpol)
    def kv_dma(self, srd, tile, lds, tag):
        us = []
        for k in range(4):
            u = I(f's_add_u32 m0, {sKVLDS}, {lds}') + self.kvo(tile)
            u += I(f'buffer_load_dwordx4 v{vKVA if k % 2 == 0 else vKVB}, {srd}, {sT2} offen offset:{k*1024}{self.kvp(srd)} lds', tag=tag)
            us.append(u)
        return us
    def kv_stage(self, st):
        b = (st % 5) * SLOT
        return (self.kv_dma(SK, st + 1, b, f'kv{st}') if st < 15 else []) + self.kv_dma(SV, st, b + 16384, f'kv{st}')
    def kv_stage_dyn(self, st):
        us = []
        for part in range(2):
            for k in range(4):
                u = I(f's_add_u32 m0, {sDB}, {part*16384}') if k == 0 else []
                if k == 0: us.append(u); u = []
                u += I(f'buffer_load_dwordx4 v{vKVA if k % 2 == 0 else vKVB}, {SK if part == 0 else SV}, {sKO if part == 0 else sVO} offen offset:{k*1024}{self.kvp(SK if part == 0 else SV)} lds', tag=f'kv{st}')
                us.append(u)
        return us
    def stg(self, st, part, k):
        if st >= 6: return ar(32 + ((st - 6)*8 + part*4 + k)*4)
        return ar(160 + ((st - 2)*8 + part*4 + k)*4)
    def kv_reg(self, st, parts=(0, 1)):
        us = []
        for part in parts:
            srd, tile = (SK, st + 1) if part == 0 else (SV, st)
            for k in range(4):
                us.append(self.kvo(tile) +
                          I(f'buffer_load_dwordx4 {self.stg(st, part, k)}, v{vKVA if k % 2 == 0 else vKVB}, {srd}, {sT2} offen offset:{k*1024}{self.kvp(srd)}'))
        return us
    def kv_drain(self, st, parts=(0, 1)):
        us = []
        for part in parts:
            for k in range(4):
                adr, off = {2: (vWA[0], 0), 3: (vWA[0], SLOT), 4: (vWA[1], 0), 6: (vWA1, 0), 7: (vWA1, SLOT)}[st]
                off += part*16384
                us.append(I(f'ds_write_b128 v{adr}, {self.stg(st, part, k)} offset:{off + k*1024}', tag=f'kv{st}'))
        return us
    def wq_next(self, j):
        if self.c.rot == 2 and j < 2: return I(f's_add_u32 {sWQB}, {sWQOFF}, {j*262144}')
        wrap = f's_cmp_eq_u32 {sWQC}, 0x400000\ns_cselect_b32 {sWQC}, 0x80000, {sWQC}' if self.c.rot == 2 else f's_and_b32 {sWQC}, {sWQC}, 0x3fffff'
        return I(f's_add_u32 {sWQB}, {sWQC}, {sWQOFF}\ns_add_u32 {sWQC}, {sWQC}, 262144\n{wrap}')
    def x_next(self, J):
        if self.c.rot == 2 and J < 1: return I(f's_add_u32 {sXB}, {sXOFF}, 0')
        wrap = f's_cmp_eq_u32 {sXC}, 1024\ns_cselect_b32 {sXC}, 128, {sXC}' if self.c.rot == 2 else f's_and_b32 {sXC}, {sXC}, 1023'
        return I(f's_add_u32 {sXB}, {sXC}, {sXOFF}\ns_add_u32 {sXC}, {sXC}, 128\n{wrap}')
    def wq_units(self, j):
        us = []
        for k in range(4):
            u = I(f's_add_u32 m0, {sKVLDS}, {WQBUF[j % 3]}\ns_add_u32 {sT0}, {sWQB}, {k*32768 - k*1024}')
            u += I(f'buffer_load_dwordx4 v{vWQA if k < 2 else vWQB}, {SWQ}, {sT0} offen offset:{k*1024}{self.pol(self.c.wpol0 if j < self.c.nwq0 else self.c.wpol)} lds', tag=f'wq{j}')
            us.append(u)
        if j == 0: us[0] = self.wq_next(0) + us[0]
        if j < 15: us[-1] += self.wq_next(j + 1)
        return us
    def x_units(self, J):
        us = []
        for k in range(5):
            im = (k % 4) * 1024
            u = I(f's_add_u32 m0, {sXLDS}, {XBUF[J % 2] + (k // 4)*4096}\ns_add_u32 {sT0}, {sXB}, {k*8192 - im}')
            u += I(f'buffer_load_dwordx4 v{vX0 if k % 2 == 0 else vX1}, {SX}, {sT0} offen offset:{im}{self.pol(self.c.wpol0 if J < self.c.nx0 else self.c.wpol)} lds', tag=f'x{J}')
            us.append(u)
        if J == 0: us[0] = self.x_next(0) + us[0]
        if J < 7: us[-1] += self.x_next(J + 1)
        return us
    def wo_half(self, base, const, lds, tag):
        us = []
        for k in range(4):
            u = I(f's_add_u32 m0, {sW4K}, {lds}\ns_add_u32 {sT0}, {base}, {const + k*3072}')
            u += I(f'buffer_load_dwordx4 v{vKVA if k % 2 == 0 else vKVB}, {SWO}, {sT0} offen offset:{k*1024}{self.pol(self.c.wpol)} lds', tag=tag)
            us.append(u)
        return us
    def wo_own(self, h):
        us = self.wo_half(sPWo[0], h*131072, (1 + h)*SLOT, 'wown') + self.wo_half(sPWo[0], h*131072 + 65536, (1 + h)*SLOT + 16384, 'wown')
        if h == 0: us[0] = I(f'v_mov_b32 v{vKVA}, v{vWOV}\nv_xor_b32 v{vKVB}, 32, v{vWOV}') + us[0]
        return us
    def wo_rem(self, u):
        return self.wo_half(sPWo[1 + u // 4], ((u >> 1) & 1)*131072 + (u & 1)*65536, WOB[u % 4], f'u{u}')
    def o_rem(self, u):
        us = []
        for k in range(5):
            x = I(f's_add_u32 m0, {sW5K}, {OB[u % 4] + (k // 4)*4096}\ns_add_u32 {sT2}, {sPO[1 + u // 4]}, {((u >> 1) & 1)*40960 + (u & 1)*20480 + (k // 4)*4096}')
            x += I(f'buffer_load_dwordx4 v{vL16}, {SOX}, {sT2} offen offset:{(k % 4)*1024}{self.pol(self.c.oldpol)} lds', tag=f'u{u}')
            us.append(x)
        return us
    def l2pf_q(self):
        pol = self.pol(self.c.pfpol); L = f'v{vLANE}'
        return [I(f'v_lshrrev_b32 v214, 3, {L}\nv_and_b32 v215, 7, {L}'),
                I(f'v_lshlrev_b32 v214, 13, v214\nv_lshl_add_u32 v214, v215, 6, v214'),
                I(f's_lshl_b32 {sT3}, {sB}, 19\ns_lshl_b32 {sT1}, {sW}, 17'),
                I(f's_add_u32 {sT3}, {sT3}, {sT1}\ns_lshl_b32 {sT1}, {sH0}, 8'),
                I(f's_add_u32 {sT3}, {sT3}, {sT1}\nbuffer_load_dword a138, v214, {SWQ}, {sT3} offen{pol}'),
                I(f's_add_u32 {sT3}, {sT3}, 65536\nbuffer_load_dword a139, v214, {SWQ}, {sT3} offen{pol}'),
                I(f'v_lshlrev_b32 v215, 6, {L}\ns_mul_i32 {sT3}, {sHP}, 40960'),
                I(f's_mul_i32 {sT1}, {sW}, 10240\ns_add_u32 {sT3}, {sT3}, {sT1}'),
                I(f'buffer_load_dword a140, v215, {SX}, {sT3} offen{pol}'),
                I(f's_add_u32 {sT3}, {sT3}, 4096\nbuffer_load_dword a141, v215, {SX}, {sT3} offen{pol}'),
                I(f's_add_u32 {sT3}, {sT3}, 4096\nbuffer_load_dword a142, v215, {SX}, {sT3} offen{pol}')]
    def l2pf_wo(self):
        pol = self.pol(self.c.pfpol)
        return [I(f'v_lshrrev_b32 v{vTA}, 2, v{vLANE}\nv_and_b32 v{vTB}, 3, v{vLANE}'),
                I(f'v_lshlrev_b32 v{vTA}, 10, v{vTA}\nv_lshl_add_u32 v{vTA}, v{vTB}, 6, v{vTA}'),
                I(f's_lshl_b32 {sT3}, {sOCT}, 20\ns_lshl_b32 {sT1}, {sB}, 17'),
                I(f's_add_u32 {sT3}, {sT3}, {sT1}\ns_lshl_b32 {sT1}, {sW}, 15'),
                I(f's_add_u32 {sT3}, {sT3}, {sT1}\ns_lshl_b32 {sT1}, {sHP}, 8'),
                I(f's_add_u32 {sT3}, {sT3}, {sT1}\nbuffer_load_dword a240, v{vTA}, {SWO}, {sT3} offen{pol}'),
                I(f's_add_u32 {sT3}, {sT3}, 16384\nbuffer_load_dword a241, v{vTA}, {SWO}, {sT3} offen{pol}')]
    def dma_stream(self, units, lo, hi, slack=4):
        fs = []; n = len(units); prev = {}
        for k, u in enumerate(units):
            l = lo + (k * (hi - lo + 1)) // n
            after = False
            for x in u:
                c = 1
                if x.op == 's_cselect_b32' or x.kind in ('branch', 'label'):
                    fs[-1].ins.append(x); fs[-1].cost += x.cost; continue
                if isinstance(x.tag, tuple) and self.c.krot:
                    if prev.get('kvo') == x.tag: c = 0
                    if x.op == 's_or_b32': prev['kvo'] = x.tag
                elif x.kind == 'salu' and x.op == 's_add_u32' and len(x.writes) == 1:
                    w = next(iter(x.writes))
                    if prev.get(w) == x.text and w not in x.reads: c = 0
                    prev[w] = x.text
                if x.kind not in ('salu', 'valu'): fs.append(F([x], l, l + slack, cost=c)); after = True
                elif after: fs.append(F([x], l, 10**6, cost=c))
                else: fs.append(F([x], l - 3, l, cost=c))
        return fs
    def peer_setup(self):
        o = [f's_lshl_b32 {sT3}, {sOCT}, 20', f's_lshl_b32 {sT2}, {sHP}, 8', f's_add_u32 {sT3}, {sT3}, {sT2}',
             f's_lshl_b32 {sT2}, {sW}, 14', f's_add_u32 {sT3}, {sT3}, {sT2}']
        for r in range(4):
            o += [f's_add_u32 {sT2}, {sHP}, {r}', f's_and_b32 {sT2}, {sT2}, 3', f's_mul_i32 {sPO[r]}, {sT2}, 81920', f's_add_u32 {sPO[r]}, {sPO[r]}, {sW5K}',
                  f's_lshl_b32 {sPWo[r]}, {sT2}, 18', f's_add_u32 {sPWo[r]}, {sPWo[r]}, {sT3}']
        assert self.c.opol == 'sc1'
        return '\n'.join(o)
    def rot_setup(self):
        if self.c.rot != 2: return f's_and_b32 {sXC}, {sXC}, {7 if self.c.rot else 0}'
        return f's_cmp_ge_u32 {sXC}, 7\ns_cselect_b32 {sWQC}, 7, 0\ns_sub_u32 {sXC}, {sXC}, {sWQC}\ns_add_u32 {sXC}, {sXC}, 1'
    def prologue(self):
        e = self.e; L = f'v{vLANE}'
        e(f'''
        s_cmp_ge_u32 s2, 256
        s_cbranch_scc1 L_end
        s_load_dwordx16 s[64:79], s[0:1], 0
        s_load_dwordx4 s[80:83], s[0:1], 64
        s_load_dwordx2 s[24:25], s[0:1], 96
        s_load_dwordx2 s[100:101], s[0:1], 80
        v_lshrrev_b32 v1, 6, v0
        v_and_b32 {L}, 63, v0
        v_readfirstlane_b32 {sW}, v1
        s_and_b32 s46, s2, 7
        s_lshr_b32 s47, s2, 3
        s_lshr_b32 {sB}, s47, 2
        s_and_b32 {sHP}, s47, 3
        s_and_b32 {sOCT}, s46, 3
        s_lshl_b32 s50, {sOCT}, 2
        s_add_u32 s50, s50, {sHP}
        s_lshl_b32 {sH0}, s50, 1
        s_lshr_b32 s52, s46, 2            ; branch
        s_and_b32 {sHH}, {sW}, 1
        s_lshr_b32 {sQH}, {sW}, 1
        v_and_b32 v2, 3, {L}
        v_lshlrev_b32 v2, 4, v2           ; cc*16
        v_lshrrev_b32 v3, 4, {L}          ; g
        v_bfe_u32 v4, {L}, 2, 2           ; r
        v_lshl_add_u32 v5, v3, 6, v2
        v_lshl_add_u32 v{vKVA}, v4, 8, v5
        v_xor_b32 v{vKVB}, 32, v{vKVA}
        v_lshl_add_u32 v{vWQA}, v4, 13, v5
        v_xor_b32 v{vWQB}, 16, v{vWQA}
        v_lshrrev_b32 v6, 5, {L}
        v_bfe_u32 v7, {L}, 2, 3
        v_lshl_add_u32 v8, v6, 6, v2
        v_lshl_add_u32 v8, v7, 10, v8
        s_lshl_b32 {sT0}, {sHH}, 5
        v_xor_b32 v{vX0}, {sT0}, v8
        v_xor_b32 v{vX1}, 32, v{vX0}
        s_lshl_b32 {sT0}, {sQH}, 12
        s_lshl_b32 {sKVLDS}, {sHH}, 13
        s_add_u32 {sKVLDS}, {sKVLDS}, {sT0}
        s_lshl_b32 {sKVOFF}, {sHH}, 17
        s_add_u32 {sKVOFF}, {sKVOFF}, {sT0}
        s_add_u32 {sT1}, {sH0}, {sHH}
        s_lshl_b32 {sWQOFF}, {sT1}, 8
        s_lshl_b32 {sT0}, {sQH}, 17
        s_add_u32 {sWQOFF}, {sWQOFF}, {sT0}
        s_mul_i32 {sXOFF}, {sW}, {5*8192}
        s_mul_i32 {sXLDS}, {sW}, {5*1024}
        s_lshl_b32 {sXC}, {sHP}, 1
        s_add_u32 {sXC}, {sXC}, {sB}
        {self.rot_setup()}
        s_lshl_b32 {sWQC}, {sXC}, 19
        s_lshl_b32 {sXC}, {sXC}, 7
        s_mul_i32 {sKR}, s2, {self.c.krot}
        s_add_u32 {sKR}, {sKR}, s47
        s_lshl_b32 {sKR}, {sKR}, 13
        s_mul_i32 s53, {sB}, 163840
        s_lshl_b32 s54, {sB}, 5
        s_add_u32 s54, s54, {sH0}
        s_lshl_b32 s54, s54, 17
        s_mov_b32 s6, 163840
        s_mov_b32 s7, 0x20000
        s_mov_b32 s10, 0x400000
        s_mov_b32 s11, 0x20000
        s_mov_b32 s14, 0x40000
        s_mov_b32 s15, 0x20000
        s_mov_b32 s18, 0x40000
        s_mov_b32 s19, 0x20000
        s_cmp_eq_u32 s52, 0
        s_cselect_b64 s[4:5], s[64:65], s[74:75]
        s_cselect_b64 s[8:9], s[70:71], s[80:81]
        s_cselect_b64 s[12:13], s[66:67], s[76:77]
        s_cselect_b64 s[16:17], s[68:69], s[78:79]
        s_cselect_b64 s[20:21], s[72:73], s[82:83]
        s_add_u32 s4, s4, s53
        s_addc_u32 s5, s5, 0
        ''')
        self.stamp()
        for u in self.x_units(0) + self.wq_units(0) + self.wq_units(1): e(u)
        e(f'''
        s_add_u32 s12, s12, s54
        s_addc_u32 s13, s13, 0
        s_add_u32 s16, s16, s54
        s_addc_u32 s17, s17, 0
        ''')
        self.kvq = self.kv_dma(SK, 0, SLOT + 16384, 'k0') + self.kv_stage(0) + self.kv_dma(SK, 2, SLOT, 'kv1')
        for st in (2, 3, 4)[:self.c.nstg]: self.kvq += self.kv_reg(st)
        for u in self.x_units(1) + self.wq_units(2): e(u)
        for _ in range(self.c.kv_pro): e(self.kvq.pop(0))
        if self.c.codepf:
            e(f'''s_getpc_b64 s[84:85]
            L_pc0:
            s_mov_b32 s86, L_codeend-L_pc0
            s_mov_b32 s87, 0x20000
            v_lshlrev_b32 v22, 7, v0
            buffer_load_dword a136, v22, s[84:87], 0 offen
            s_mov_b32 {sT0}, 32768
            buffer_load_dword a137, v22, s[84:87], {sT0} offen''')
        e(f'''
        s_mul_i32 {sPW}, {sW}, 10240
        s_lshl_b32 {sW4K}, {sW}, 12
        s_mul_i32 {sW5K}, {sW}, 5120
        s_mov_b32 {sC}, {f32(128 ** -0.5 * math.log2(math.e))}
        s_mov_b32 {sT}, {f32(self.c.thr)}
        s_lshl_b32 s55, s52, 3
        s_add_u32 s55, s55, {sB}          ; group = branch*8 + b
        s_lshl_b32 {sCL}, s55, 2
        s_add_u32 {sT2}, {sCL}, {sHP}
        s_mov_b32 {sBLK}, {sT2}
        s_add_u32 {sCL}, {sCL}, {sOCT}    ; cluster = group*4 + octet
        s_lshl_b32 {sT2}, {sT2}, 2
        s_add_u32 {sT2}, {sT2}, {sOCT}
        s_mul_i32 {sT2}, {sT2}, {PART_BYTES}
        s_add_u32 {sT2}, {sT2}, {PART_OFF}
        s_mul_i32 s55, {sCL}, {OX_BYTES}
        s_mov_b32 s22, 0x400000
        s_mov_b32 s23, 0x20000
        s_mov_b64 s[56:57], s[24:25]
        s_add_u32 s76, s24, s55
        s_addc_u32 s77, s25, 0
        s_mov_b32 s78, {OX_BYTES}
        s_mov_b32 s79, 0x20000
        s_add_u32 s24, s24, {sT2}
        s_addc_u32 s25, s25, 0
        s_mov_b32 s26, {PART_BYTES}
        s_mov_b32 s27, 0x20000
        s_lshl_b32 {sCL}, {sCL}, 7
        s_add_u32 {sCL}, {sCL}, {FLAG_OFF}
        s_add_u32 s80, s56, {sCL}
        s_addc_u32 s81, s57, 0
        s_mov_b32 s82, 16
        s_mov_b32 s83, 0x20000
        v_add_u32 v24, {sHP}, {L}
        v_and_b32 v24, 3, v24
        v_lshlrev_b32 v24, 2, v24
        buffer_load_dword v{vFOFF}, v24, {SDB}, 0 offen sc0 sc1
        s_lshl_b32 {sCL}, {sHP}, 2
        s_mov_b32 {sWB}, 0
        s_lshl_b32 {sT2}, {sBLK}, 7
        s_add_u32 {sT2}, {sT2}, {FLAG_OFF + 8192}
        s_add_u32 s84, s56, {sT2}
        s_addc_u32 s85, s57, 0
        s_mov_b32 s86, 64
        s_mov_b32 s87, 0x20000
        s_lshl_b32 {sT2}, {sW}, 2
        v_lshlrev_b32 v24, 4, {L}
        buffer_load_dword v{vFOFF2}, v24, {SD2}, {sT2} offen sc0 sc1
        s_lshl_b32 {sIDX2}, {sOCT}, 2
        s_add_u32 {sIDX2}, {sIDX2}, {sW}
        s_mul_i32 {sOW}, {sHP}, 81920
        s_mul_i32 {sT2}, {sHH}, 40960
        s_add_u32 {sOW}, {sOW}, {sT2}
        s_mul_i32 {sT2}, {sQH}, 10240
        s_add_u32 {sOW}, {sOW}, {sT2}
        {self.peer_setup()}
        v_and_b32 v9, 1, v3
        v_lshlrev_b32 v9, 5, v9           ; 32*(g&1)
        v_lshl_add_u32 v{vWOV}, v4, 10, v5
        v_and_b32 v10, 15, {L}
        v_and_b32 v11, 3, {L}
        v_lshrrev_b32 v12, 2, v10
        v_and_b32 v13, 1, v12
        v_lshlrev_b32 v13, 5, v13
        v_lshlrev_b32 v14, 4, v3
        v_xor_b32 v13, v13, v14
        v_lshl_add_u32 v13, v11, 6, v13
        v_lshl_add_u32 v13, v12, 10, v13
        s_lshl_b32 {sT1}, {sHH}, 13
        v_add_u32 v{aK}, {sT1}, v13
        v_lshl_add_u32 v15, v11, 3, v9
        v_lshl_add_u32 v15, v4, 6, v15
        v_lshl_add_u32 v16, v3, 10, v15
        v_add_u32 v{aVE}, {sT1}, v16
        v_lshrrev_b32 v16, 1, v9          ; 16*(g&1)
        v_lshlrev_b32 v22, 4, v11         ; 16*c4
        v_xor_b32 v16, v16, v22
        v_and_b32 v22, 1, v11
        v_lshl_add_u32 v16, v22, 3, v16   ; + 8*(c4&1)
        v_lshl_add_u32 v16, v4, 6, v16    ; + r*64
        v_lshl_add_u32 v16, v3, 11, v16   ; + g*2048
        v_add_u32 v16, {sT1}, v16
        v_add_u32 v{vQE[0]}, {WQBUF[0]}, v16
        v_add_u32 v{vQE[1]}, {WQBUF[1]}, v16
        v_add_u32 v{vQE[2]}, {WQBUF[2]}, v16
        v_xor_b32 v{vQO[0]}, 8, v{vQE[0]}
        v_xor_b32 v{vQO[1]}, 8, v{vQE[1]}
        v_xor_b32 v{vQO[2]}, 8, v{vQE[2]}
        s_mov_b32 vcc_lo, 0xffff0000
        s_mov_b32 vcc_hi, 0xffff0000
        v_lshrrev_b32 v17, 3, v10
        v_lshlrev_b32 v18, 5, v17
        v_xor_b32 v18, v18, v14
        v_and_b32 v19, 7, {L}
        v_lshl_add_u32 v18, v19, 6, v18
        v_lshl_add_u32 v18, v17, 10, v18
        s_mul_i32 {sT2}, {sQH}, 10240
        v_add_u32 v18, {sT2}, v18
        v_add_u32 v{vXR[0]}, {XBUF[0]}, v18
        v_add_u32 v{vXR[1]}, {XBUF[1]}, v18
        v_lshl_add_u32 v20, v3, 10, v15
        s_lshl_b32 {sT2}, {sHH}, 9
        v_add_u32 v{vOE}, {sT2}, v20
        v_lshlrev_b32 v{vWA1}, 4, {L}
        v_add_u32 v{vWA1}, {sKVLDS}, v{vWA1}
        v_add_u32 v{vWA[0]}, 65536, v{vWA1}
        v_add_u32 v{vWA[1]}, 131072, v{vWA1}
        v_add_u32 v{vWA1}, {SLOT}, v{vWA1}
        v_mov_b32 v21, 0x3f803f80
        v_accvgpr_write_b32 a{aONE}, v21
        v_accvgpr_write_b32 a{aONE+1}, v21
        v_accvgpr_write_b32 a{aONE+2}, v21
        v_accvgpr_write_b32 a{aONE+3}, v21
        ''')
    def q_reads(self, j):
        st = (j & 1) * 52
        xr = [I(f'ds_read_b128 {ar(st + 32 + 4*t)}, v{vXR[(j >> 1) & 1]} offset:{t*2048 + (j & 1)*512}') for t in range(5)]
        aa = []
        for dt in range(8):
            for u in range(2):
                adr = (vQE if dt % 2 == 0 else vQO)[j % 3]
                aa.append(I(f'ds_read_b64_tr_b16 {ar(st + 4*dt + 2*u, 2)}, v{adr} offset:{u*1024 + (dt >> 1)*256}'))
        return aa[:2] + xr + aa[2:]
    def k_reads(self, base, tag='kr'):
        us = [I(f'v_add_u32 v{vK}, {base}, v{aK}')]
        for ks in range(4):
            for kt in range(2):
                us.append(I(f'ds_read_b128 {ar(aKF + (kt*4+ks)*4)}, v{vK} offset:{kt*4096 + ks*256}', tag=tag))
        return us
    def v_reads(self, base, dst=aVF, tag='vr'):
        pre = [I(f'v_add_u32 v{vVE}, {base}, v{aVE}'), I(f'v_xor_b32 v{vVO}, 32, v{vVE}')]
        us = []
        for dt in range(8):
            for h in range(2):
                us.append((dt, I(f'ds_read_b64_tr_b16 {ar(dst + 4*dt + 2*h, 2)}, v{vVE if dt % 2 == 0 else vVO} offset:{16384 + h*4096 + (dt >> 1)*256}', tag=tag)))
        return pre, us
    def q_mfmas(self, j, touter=False):
        st = (j & 1) * 52; m = []
        order = [(t, dt) for t in range(5) for dt in range(8)] if touter else [(t, dt) for dt in range(8) for t in range(5)]
        for t, dt in order:
            m += I(f'{MF} {vr(O(t, dt))}, {ar(st + 4*dt)}, {ar(st + 32 + 4*t)}, {vr(O(t, dt)) if j else "0"}')
        return m
    def s_mfmas(self, zero=False):
        m = []
        for t in range(5):
            for ks in range(4):
                for kt in range(2):
                    c = vr(Sreg(t, kt)) if ks else ('0' if zero else vr(NM4 + 4*t))
                    m += I(f'{MF} {vr(Sreg(t, kt))}, {ar(aKF + (kt*4+ks)*4)}, {ar(Qf(ks, t))}, {c}')
        m[0] = waittag('kr') + [m[0]]
        return m
    def pv_mfmas(self, first=False, vf=aVF, ones_first=True):
        ones = [I(f'{MF} {ar(aL + 4*t)}, {ar(aONE)}, {vr(Preg(t))}, {"0" if first else ar(aL + 4*t)}')[0] for t in range(5)]
        m = list(ones) if ones_first else []
        for t in range(5):
            if not ones_first: m.append(ones[t])
            for dt in range(8):
                m += I(f'{MF} {vr(O(t, dt))}, {ar(vf + 4*dt)}, {vr(Preg(t))}, {"0" if first else vr(O(t, dt))}')
        return m
    def q_convert(self, t):
        us = []
        for ks in range(4):
            x = O(t, 2*ks); y = x + 4
            if self.c.pkq:
                for k in range(0, 8, 2): us.append(I(f'v_pk_mul_f32 v[{x+k}:{x+k+1}], v[{x+k}:{x+k+1}], s[40:41] op_sel_hi:[1,0]'))
            else:
                for k in range(8): us.append(I(f'v_mul_f32 v{x+k}, {sC}, v{x+k}'))
        for ks in range(4):
            x = O(t, 2*ks); y = x + 4
            for s in (f'v{x}, v{x}, v{x+1}', f'v{y}, v{y}, v{y+1}', f'v{x+1}, v{x+2}, v{x+3}', f'v{y+1}, v{y+2}, v{y+3}'):
                us.append(I('v_cvt_pk_bf16_f32 ' + s))
        for ks in range(4):
            x = O(t, 2*ks); y = x + 4
            for k in range(2):
                us.append(I(f'v_cndmask_b32 v{x+2+k}, v{x+k}, v{y+k}, vcc'))
                us.append(I(f'v_cndmask_b32 v{y+2+k}, v{y+k}, v{x+k}, vcc'))
        for ks in range(4):
            x = O(t, 2*ks); y = x + 4
            for k, r in enumerate((x+2, x+3, y+2, y+3)): us.append(I(f'v_accvgpr_write_b32 a{Qf(ks, t)+k}, v{r}'))
        return us
    def exp_units(self, t):
        b = Sreg(t, 0)
        return [I(f'v_exp_f32 v{b+k}, v{b+k}') for k in range(8)], [I(f'v_cvt_pk_bf16_f32 v{Preg(t)+k}, v{b+2*k}, v{b+2*k+1}') for k in range(4)]
    def rowmax(self, m, c, b):
        return I(f'''v_max3_f32 v{m}, v{b}, v{b+1}, v{b+2}
        v_max3_f32 v{c}, v{b+3}, v{b+4}, v{b+5}
        v_max3_f32 v{m}, v{m}, v{b+6}, v{b+7}
        v_max_f32 v{m}, v{m}, v{c}
        v_mov_b32 v{c}, v{m}
        v_permlane32_swap_b32 v{m}, v{c}
        v_max_f32 v{m}, v{m}, v{c}
        v_mov_b32 v{c}, v{m}
        v_permlane16_swap_b32 v{m}, v{c}
        v_max_f32 v{m}, v{m}, v{c}''')
    def softmax_streams(self, i, ck, exp_dead, cvt_lo):
        mx = []
        for t in range(5):
            b = Sreg(t, 0)
            for k in range(4):
                m = vMX0 if k % 2 == 0 else vMX1
                if t == 0 and k < 2: mx.append(I(f'v_max_f32 v{m}, v{b+2*k}, v{b+2*k+1}'))
                else: mx.append(I(f'v_max3_f32 v{m}, v{b+2*k}, v{b+2*k+1}, v{m}'))
        mx.append(I(f'v_max_f32 v{vMX0}, v{vMX0}, v{vMX1}'))
        st = FS(mx + [I(f'v_cmp_lt_f32 vcc, {sT}, v{vMX0}')], -1, ck - 1)
        st.append(F(I(f's_cbranch_vccnz L_stub{i}\nL_ret{i}:'), ck, ck, cost=1))
        self.stubs.append(i)
        for t in range(5):
            ex, cv = self.exp_units(t)
            st += FS(ex, -1, exp_dead(t)) + FS(cv, cvt_lo(t), exp_dead(t))
        return st
    def q_phase(self):
        e = self.e
        e(waittag('x0', 'wq0')); e('s_barrier'); self.stamp('q')
        for u in self.q_reads(0): e(u)
        e(waittag('wq1')); e('s_waitcnt lgkmcnt(0)\ns_barrier')
        for j in range(15):
            d = []
            if j + 3 < 16: d += self.wq_units(j + 3)
            if j % 2 == 1 and (j - 1) // 2 + 2 < 8: d += self.x_units((j - 1) // 2 + 2)
            ke = self.c.kv_end
            if j < self.c.kv_start: n = 0
            elif self.c.kveven == 2:
                wts = [(1.0 if (k % 2 == 0 or k >= 13) else self.c.kvw) for k in range(j, ke)]
                n = round(len(self.kvq) * wts[0] / sum(wts)) if wts else len(self.kvq)
            elif self.c.kveven:
                left = len([k for k in range(j, ke) if k % 2 == 0 or k >= 13])
                n = 0 if (j % 2 == 1 and j < 13) else (-(-len(self.kvq) // max(1, left)))
            else:
                n = -(-len(self.kvq) // max(1, ke - j)) if j < ke else len(self.kvq)
            d += [self.kvq.pop(0) for _ in range(min(n, len(self.kvq)))]
            ds = self.dma_stream(d, 1, min(39, self.c.vsp * len(d)), slack=1) if d else []
            streams = [FS(self.q_reads(j + 1), 0, 30), ds]
            if j == 0 and self.c.l2pfq: streams.append(FS(self.l2pf_q(), 22, 39))
            if j == 3: streams.append(FS([I(f'v_readlane_b32 {sOLD[r]}, v{vFOFF}, {r}') for r in range(4)] + [I(f'v_readlane_b32 {sOLD2[r]}, v{vFOFF2}, {r}') for r in range(4)], 30, 39))
            if j == 14 and self.c.nstg >= 1: streams.append(FS(self.kv_drain(2), 20, 39, step=2))
            if j == 13 and self.c.nstg < 1: streams.append(self.dma_stream(self.kv_stage(2), 4, 36))
            self.sch(f'q{j}', self.q_mfmas(j), streams)
            tags = []
            if j + 2 < 16:
                tags.append(f'wq{j+2}')
                if (j + 2) % 2 == 0: tags.append(f'x{(j+2)//2}')
            if j == 14: tags += ['k0', 'kv0']
            e(waittag(*tags)); e('s_waitcnt lgkmcnt(0)\ns_barrier'); self.stamp('q')
    def q_to_attn(self):
        main = self.q_mfmas(15, touter=True) + self.s_mfmas(zero=True) + self.s_mfmas()
        conv = []
        for t in range(5):
            cu = self.q_convert(t)
            conv += FS(cu, 8*t + 9, 39 + 8*t)
        drains = FS(self.kv_drain(3), 8, 24, step=2) if self.c.nstg >= 2 else []
        if self.c.nstg >= 3: drains += FS(self.kv_drain(4), 24, 40, step=2)
        for f in conv:
            w = [r for x in f.ins for r in x.writes if r[0] == 'a']
            if w and int(w[0][1:]) >= 192: f.lo = max(f.lo, 26 if int(w[0][1:]) < 224 else 42)
        init = []
        for t in range(5):
            b = Sreg(t, 0); lo = 40 + 8*t + 9; hi = 79 + 8*t
            u = [[x] for x in self.rowmax(vMX0, vMX1, b)]
            u += [I(f'v_sub_f32 v{NM4+4*t+k}, 0, v{vMX0}') for k in range(4)]
            u += [I(f'v_sub_f32 v{b+k}, v{b+k}, v{vMX0}') for k in range(8)]
            ex, cv = self.exp_units(t)
            init += FS(u + ex + cv, lo, hi)
        k0 = FS(self.k_reads(SLOT + 16384), -1, 12)
        k1 = self.k_reads(0)
        k1s = [F(k1[0], 60, 79)] + [F(u, 72 + k, 79) for k, u in enumerate(k1[1:])]
        pre, vu = self.v_reads(0)
        vs = FS(pre, 44, 70) + [F(u, 44, 84) for _, u in vu]
        d0 = (self.kv_stage(3) if self.c.nstg < 2 else []) + (self.kv_stage(4) if self.c.nstg < 3 else [])
        v1 = self.dma_stream(d0, 0, 40) if d0 else []
        if self.c.late and not d0: v1 += self.dma_stream(self.kv_reg(6, (0,)), 4, 40)
        v1 += [F(I('s_barrier'), 46, 50)] + self.dma_stream(self.kv_dma(SV, 1, SLOT + 16384, 'kv1'), 50, 64)
        if self.c.late: v1 += self.dma_stream(self.kv_reg(6, (1,) if not d0 else (0, 1)), 66, 86)
        if self.c.early5:
            v1 += [F(waittag('vr') + I('s_barrier'), 88, 90, cost=2)] + self.dma_stream(self.kv_stage(5), 92, 116)
        self.sch('q15..s1', main, [k0, drains, conv + init, k1s, vs, v1], pre_cap=9, cap=self.c.ccap)
    def iteration(self, i):
        e = self.e
        L0 = 4 if self.c.late else 2
        dyn = self.c.loop and L0 <= i <= self.c.lend
        if dyn and i == L0:
            e(f's_mov_b32 {sRB}, {(L0 % 5)*SLOT}\ns_add_u32 {sDB}, {sKVLDS}, {((L0 - 1) % 5)*SLOT}\n{self.kvoff(L0 + 5, sKO)}\n{self.kvoff(L0 + 4, sVO)}')
        if dyn: e(f'L_loopmark{i}:')
        tags = [f'kv{i}', 'vr'] + (['wown'] if i == 15 else [])
        if i == 15 and self.c.v15gap >= 0: return self.tail()
        if dyn: e('s_waitcnt vmcnt(24) lgkmcnt(0)')
        e(waittag(*tags)); e('s_barrier')
        if i == 15: return self.tail()
        if dyn: dma = self.kv_stage_dyn(i + 4)
        elif i == 1 and self.c.early5: dma = self.kv_reg(7) if self.c.late else []
        elif i in (2, 3) and self.c.late: dma = self.kv_drain(i + 4)
        elif i <= 11: dma = self.kv_stage(i + 4)
        elif i <= 13: dma = self.wo_own(i - 12)
        else: dma = []
        main = self.pv_mfmas(first=(i == 1)) + self.s_mfmas()
        base = sRB if dyn else (i % 5) * SLOT
        sm = self.softmax_streams(i, 11, lambda t: 44 + 8*t, lambda t: 12 + 8*t)
        ks = FS(self.k_reads(base), -1, 36)
        pre, vu = self.v_reads(base)
        vs = FS(pre, 20, 60) + [F(u, 37 + dt, 80) for dt, u in vu]
        streams = [sm, ks, vs]
        ds = self.dma_stream(dma, self.c.dlo, self.c.dhi) if dma else []
        if self.c.l2pf and i == self.c.pfit: ds += FS(self.l2pf_wo(), 72, 84)
        if dyn:
            ds += FS([I(x) for x in (f's_add_u32 {sDB}, {sRB}, {sKVLDS}', f's_add_u32 {sRB}, {sRB}, {SLOT}',
                      f's_cmp_eq_u32 {sRB}, {5*SLOT}\ns_cselect_b32 {sRB}, 0, {sRB}', f's_mov_b32 {sVO}, {sKO}', f's_add_u32 {sKO}, {sKO}, 8192') + ((f's_and_b32 {sKO}, {sKO}, 0x1e000', f's_or_b32 {sKO}, {sKO}, {sKVOFF}') if self.c.krot else ())], 61, 84)
        streams.append(ds)
        self.sch(f'it{i}', main, streams)
        if dyn: e(f'L_loopend{i}:')
    def rare(self):
        p = I('L_rare:\ns_nop 7\ns_nop 1')
        for t in range(5):
            b = Sreg(t, 0)
            p += self.rowmax(vMX0, vMX1, b)
            p += I(f'v_max_f32 v{vMX0}, 0, v{vMX0}')
            for k in range(4): p += I(f'v_sub_f32 v{NM4+4*t+k}, v{NM4+4*t+k}, v{vMX0}')
            for k in range(8): p += I(f'v_sub_f32 v{b+k}, v{b+k}, v{vMX0}')
            p += I(f'v_sub_f32 v{vTA}, 0, v{vMX0}\nv_exp_f32 v{vTA}, v{vTA}')
            for k in range(32): p += I(f'v_mul_f32 v{O(t,0)+k}, v{O(t,0)+k}, v{vTA}')
            for k in range(4):
                p += I(f'v_accvgpr_read_b32 v{vTB}, a{aL+4*t+k}\nv_mul_f32 v{vTB}, v{vTB}, v{vTA}\nv_accvgpr_write_b32 a{aL+4*t+k}, v{vTB}')
            for k in range(4):
                r = Preg(t) + k
                p += I(f'''v_lshlrev_b32 v{vTB}, 16, v{r}
                v_and_b32 v{vMX1}, 0xffff0000, v{r}
                v_mul_f32 v{vTB}, v{vTB}, v{vTA}
                v_mul_f32 v{vMX1}, v{vMX1}, v{vTA}
                v_cvt_pk_bf16_f32 v{r}, v{vTB}, v{vMX1}''')
        p += I(f's_nop 1\ns_setpc_b64 {sRET}')
        return p
    def own(self, ks, t): return self.ownmap[(ks, t)]
    def acc(self, t, nt): return 32*t + 4*nt
    def norm_units(self, t):
        us = [I(f'v_accvgpr_read_b32 v{vRL+t}, a{aL+4*t}'), I(f'v_rcp_f32 v{vRL+t}, v{vRL+t}')]
        for ks in range(4):
            b = O(t, 2*ks)
            if self.c.pkn:
                r = vRL + t; pr = r & ~1; sel = r & 1
                for k in range(0, 8, 2): us.append(I(f'v_pk_mul_f32 v[{b+k}:{b+k+1}], v[{b+k}:{b+k+1}], v[{pr}:{pr+1}] op_sel:[0,{sel}] op_sel_hi:[1,{sel}]'))
            else:
                for k in range(8): us.append(I(f'v_mul_f32 v{b+k}, v{b+k}, v{vRL+t}'))
            for k in range(4): us.append(I(f'v_cvt_pk_bf16_f32 v{self.own(ks, t) + k}, v{b+2*k}, v{b+2*k+1}'))
            f = ks*5 + t
            adr, off = (vEX1, f*1024) if f < 16 else (vEX2, (f-16)*1024)
            us.append(I(f's_add_u32 {sT1}, {sOW}, {(ks >> 1)*20480 + ((ks & 1)*5 + t)*1024}') +
                      I(f'buffer_store_dwordx4 {vr(self.own(ks, t))}, v{vL16}, {SOX}, {sT1} offen{self.pol(self.c.opol)}', tag='ost'))
            us.append(I(f'ds_write_b128 v{adr}, {vr(self.own(ks, t))} offset:{off}', tag='exw'))
        return us
    def a_reads(self, e, o, base, nks, dst, tag):
        us = []
        for ks in range(nks):
            for nt in range(4):
                for h in range(2):
                    us.append(I(f'ds_read_b64_tr_b16 {ar(dst + (ks*4 + nt)*4 + 2*h, 2)}, v{e if nt % 2 == 0 else o} offset:{base + ks*8192 + h*4096 + (nt >> 1)*256}', tag=tag))
        return us
    def rem_reads(self, kp):
        u = kp // 2; ksl = kp % 2; st = self.aset(kp)
        aa = self.a_reads(vWEr, vWOr, WOB[u % 4] + ksl*8192, 1, st, 'rr')
        adr, off = (vOB0, OB[u % 4] - OB[0]) if u % 4 < 2 else (vOB1, OB[u % 4] - OB[2])
        bb = [I(f'ds_read_b128 {ar(st + 16 + 4*t)}, v{adr} offset:{off + (ksl*5 + t)*1024}', tag='rr') for t in range(5)]
        return aa[:2] + bb + aa[2:]
    def aset(self, kp):
        return aSET[kp % 2] if kp < 22 else (0, 40)[kp - 22]
    def check(self, r):
        self.chk.append(r)
        return I(f'v_readlane_b32 {sRDY}, v{vPOLL}, {r}\ns_sub_u32 {sRDY}, {sRDY}, {sOLD[r]}\ns_cmp_eq_u32 {sRDY}, {sXCC if self.c.opol != "sc1" else 32}\ns_cbranch_scc0 L_cstub{r}\nL_cret{r}:')
    def store_units(self, t):
        us = []
        for m in range(2):
            b = self.acc(t, 2*m)
            for k in range(4): us.append(I(f'v_cvt_pk_bf16_f32 v{b+k}, v{b+2*k}, v{b+2*k+1}'))
            us.append(I(f's_add_u32 {sT1}, {sPW}, {(t*2+m)*1024}') +
                      I(f'buffer_store_dwordx4 {vr(b)}, v{vL16}, {SWS}, {sT1} offen{self.pol(self.c.stpol)}', tag='st'))
        return us
    def tail(self):
        e = self.e; L = f'v{vLANE}'; self.chk = []
        e('s_mov_b64 s[16:17], s[100:101]')
        regs = {0: [220, 224, 228, 232], 1: [236, 160, 164, 168], 2: [172, 176, 180, 184], 3: [188, 192, 196, 200], 4: [204, 208, 212, 216]}
        self.ownmap = {(ks, t): regs[t][ks] for t in range(5) for ks in range(4)}
        o0 = []
        for t in range(5):
            for ks in range(4):
                for nt in range(4):
                    o0 += I(f'{MF} {vr(self.acc(t, nt))}, {ar(aA0 + (ks*4+nt)*4)}, {vr(self.own(ks, t))}, {vr(self.acc(t, nt)) if ks else "0"}')
        pv15 = self.pv_mfmas(vf=aKF, ones_first=False)
        pv15[0] = waittag('vr') + [pv15[0]]
        o0[0] = waittag('af0') + [o0[0]]
        main = self.pv_mfmas() + pv15 + o0
        sm = self.softmax_streams(15, 11, lambda t: 43 + 9*t, lambda t: 12 + 8*t)
        pre, vu = self.v_reads(0, dst=aKF)
        rd = FS(pre + [u for _, u in vu], -1, 30)
        if self.c.v15gap >= 0:
            G = self.c.v15gap
            rd = [F(waittag('kv15', 'wown') + I('s_barrier'), G, G, cost=2)] + FS(pre + [u for _, u in vu], G, 40)
            main[5] = waittag('vr') + [main[5]]
        rd += FS([I(f's_lshl_b32 {sT1}, {sHH}, 15'), I(f's_add_u32 {sT1}, {sT1}, {SLOT}'), I(f'v_add_u32 v{vOEs}, {sT1}, v{vOE}'), I(f'v_xor_b32 v{vOOs}, 32, v{vOEs}')] +
                 self.a_reads(vOEs, vOOs, 0, 4, aA0, 'af0'), -1, 70)
        setup = [I(x) for x in (f'v_lshlrev_b32 v{vL16}, 4, {L}', f's_lshl_b32 {sT1}, {sW}, 14', f's_add_u32 {sT1}, {sT1}, 98304',
                 f'v_add_u32 v{vEX1}, {sT1}, v{vL16}', f'v_add_u32 v{vEX2}, {sW4K}, v{vL16}')]
        st0 = []
        k0 = [i for i, f in enumerate(rd) if any(f'v{aVE}' in x.reads for x in f.ins)][0]
        rd[k0 + 2:k0 + 2] = FS(setup, -1, 52)
        rd += [F(waittag('vr') + I('s_barrier'), 72, 80, cost=2)] + self.dma_stream(self.wo_rem(0), 74, 90)
        rd += FS([I(f'v_xor_b32 v{vOEs}, 0x18000, v{vOEs}'), I(f'v_xor_b32 v{vOOs}, 0x18000, v{vOOs}')] + self.a_reads(vOEs, vOOs, 0, 4, aA1, 'af1'), self.c.normlast - 40, 164)
        nl = self.c.normlast
        nm = []
        for t in range(5):
            nm += FS(self.norm_units(t), 45 + 9*t + 10, min(89 + 16*t, nl))
            if t == 0:
                nm += FS([I(x) for x in (f'v_xor_b32 v{vEXR1}, 0x4000, v{vEX1}', f'v_xor_b32 v{vEXR2}, 0x1000, v{vEX2}', f's_mul_i32 {sT1}, {sQH}, 10240',
                          f's_add_u32 {sT1}, {sT1}, {OB[0]}', f'v_add_u32 v{vOB0}, {sT1}, v{vL16}', f'v_add_u32 v{vOB1}, {OB[2] - OB[0]}, v{vOB0}',
                          f'v_mov_b32 v{vWEr}, v{vOE}', f'v_xor_b32 v{vWOr}, 32, v{vOE}', f's_add_u32 {sT1}, {sOLD[0]}, {sXCC if self.c.opol != "sc1" else 32}\nv_mov_b32 v{vFLAG}, {sT1}', f'v_add_u32 v{vPOFF}, {sHP}, {L}', f'v_and_b32 v{vPOFF}, 3, v{vPOFF}', f'v_lshlrev_b32 v{vPOFF}, 2, v{vPOFF}')], -1, 89)
        l4 = [f for f in nm if any(f'a{aL+16}' in x.reads for x in f.ins)][0]
        for f in rd:
            if any(x.tag == 'af1' for x in f.ins): f.lo = max(f.lo, 100)
        l4.hi = min(l4.hi, 99)
        exr = []
        for f in range(20):
            adr, off = (vEXR1, f*1024) if f < 16 else (vEXR2, (f-16)*1024)
            exr.append(I(f'ds_read_b128 {ar(aPART + 4*f)}, v{adr} offset:{off}', tag='exr'))
        nm += [F(waittag('exw') + I('s_barrier'), -1, nl + 6, cost=2)] + FS(exr, -1, 164)
        pl = [F(I(f'buffer_load_dword v{vPOLL}, v{vPOFF}, {SDB}, 0 offen sc0 sc1'), self.c.pearly, self.c.pearly)] if self.c.pearly else []
        self.sch('tail', main, [sm, rd, st0, nm, pl], cap=self.c.tcap)
        self.stamp('main', 'o', 'h')
        main = []
        for ks in range(4):
            for nt in range(4):
                for t in range(5):
                    main += I(f'{MF} {vr(self.acc(t, nt))}, {ar(aA1 + (ks*4+nt)*4)}, {ar(aPART + (ks*5+t)*4)}, {vr(self.acc(t, nt))}')
        main[0] = waittag('exr', 'af1') + I('s_barrier') + [main[0]]
        Z, Pg = self.c.zgap, self.c.pgap
        sig = self.stamp_i('h') + waittag('ost') + self.stamp_i('h') + I(f's_barrier\ns_cmp_lg_u32 {sW}, 0\ns_cbranch_scc1 L_nosig')
        sig += I(f's_mov_b64 exec, 1\nbuffer_store_dword v{vFLAG}, off, {SDB}, {sCL} sc0 sc1\ns_mov_b64 exec, -1\nL_nosig:')
        for x in sig:
            if x.kind == 'vst': x.kind = 'opaque'
        ds = [F(sig, Z, Z, cost=4)] + self.dma_stream(self.wo_rem(1) + self.wo_rem(2) + self.wo_rem(3), 0, 0)[:0]
        if self.c.pearly:
            ds += [F(self.stamp_i('h') + self.check(1) + self.stamp_i('h'), Z, Z, cost=4)]
            un = self.o_rem(0)
            for u in range(1, 4): un += self.o_rem(u) + self.wo_rem(u)
            d2 = self.dma_stream(un, Z + 2, 78, slack=0)
            for f in d2: f.lo = max(f.lo, Z)
            ds += d2
        else:
            w13 = self.dma_stream(self.wo_rem(1) + self.wo_rem(2) + self.wo_rem(3), Z + 2, Pg - self.c.pdist - 2)
            ds += w13 + [F(I(f'buffer_load_dword v{vPOLL}, v{vPOFF}, {SDB}, 0 offen sc0 sc1'), Pg - self.c.pdist, Pg - self.c.pdist),
                         F(self.stamp_i('h') + self.check(1) + self.stamp_i('h'), Pg, Pg, cost=4)]
            ds += self.dma_stream(self.o_rem(0) + self.o_rem(1) + self.o_rem(2) + self.o_rem(3), Pg + 1, 79, slack=0)
        c0 = [F(self.stamp_i('h') + waittag('u0') + self.stamp_i('h') + I('s_barrier'), self.c.c0gap, self.c.c0gap, cost=2)] + FS(self.rem_reads(0), self.c.c0gap, 76)
        self.sch('s1', main, [ds, c0])
        self.stamp('o')
        pend = []
        NL = self.c.lastn
        for kp in range(24 - NL + 1):
            u = kp // 2; st = self.aset(kp)
            main = []
            if kp < 24 - NL:
                for nt in range(4):
                    for t in range(5):
                        main += I(f'{MF} {vr(self.acc(t, nt))}, {ar(st + 4*nt)}, {ar(st + 16 + 4*t)}, {vr(self.acc(t, nt))}')
            else:
                for t in range(5):
                    for k2 in range(kp, 24):
                        for nt in range(4):
                            main += I(f'{MF} {vr(self.acc(t, nt))}, {ar(self.aset(k2) + 4*nt)}, {ar(self.aset(k2) + 16 + 4*t)}, {vr(self.acc(t, nt))}')
            head = waittag('rr')
            if kp % 2 == 1 and u + 1 < 12:
                head = waittag('rr', f'u{u+1}') + I('s_barrier')
                if u + 4 < 12:
                    pend = self.wo_rem(u + 4) + self.o_rem(u + 4)
                    if (u + 4) % 4 == 0: head += self.check(1 + (u + 4) // 4)
            main[0] = head + [main[0]]
            streams = []
            if kp + 1 < 24 - NL: streams.append(FS(self.rem_reads(kp + 1), 0, 14))
            elif kp + 1 == 24 - NL:
                streams.append(FS([x for k2 in range(kp + 1, 24) for x in self.rem_reads(k2)], 0, 17))
            if pend:
                n = 4 if kp % 2 == 1 else len(pend)
                streams.append(self.dma_stream(pend[:n], 1, 18, slack=1)); pend = pend[n:]
            if kp == 24 - NL:
                su = []
                for t in range(4): su += FS(self.store_units(t), 4*NL*(t + 1) + 1, 10**6)
                streams.append(su)
            if self.c.fuse and 12 <= kp < 20:
                fs = self.final_setup(16) + self.final_setup(18); n = len(fs)
                streams.append(FS(fs[(kp - 12)*n//8:(kp - 11)*n//8], 8, 19))
            self.sch(f'r{kp}', main, streams, cap=(3 if kp >= 23 - NL else 2))
            if kp % 4 == 3: self.stamp('o')
        for u in self.store_units(4): e(u)
        if self.c.fuse: self.final_reduce()
    def final_setup(self, part):
        L = f'v{vLANE}'
        sA, sO, sQ = 's37', 's54', 's55'
        sel = '\n'.join(f's_cmp_eq_u32 {sOCT}, {r}|s_cselect_b32 {sQ}, {sOLD2[r]}, {sQ}' for r in range(4))
        sel2 = '\n'.join(f's_cmp_eq_u32 {sOCT}, {r}|s_cselect_b32 {sOLD2[r]}, {sQ}, {sOLD2[r]}' for r in range(4))
        if part == 16:
            return [I(x.replace('|', '\n')) for x in f'''s_mov_b32 s14, {8*160*1024*2}
            s_mov_b64 s[12:13], s[16:17]
            s_mul_i32 {sA}, {sOCT}, 2560
            s_add_u32 {sA}, {sA}, {sPW}
            s_lshr_b32 {sO}, {sBLK}, 2
            s_and_b32 {sO}, {sO}, 7
            s_mul_i32 {sO}, {sO}, 160
            s_mul_i32 {sQ}, {sQH}, 80
            s_add_u32 {sO}, {sO}, {sQ}
            s_lshl_b32 {sO}, {sO}, 11
            s_lshr_b32 {sQ}, {sBLK}, 5
            s_lshl_b32 {sQ}, {sQ}, 10
            s_add_u32 {sO}, {sO}, {sQ}
            s_lshl_b32 {sQ}, {sHP}, 8
            s_add_u32 {sO}, {sO}, {sQ}
            s_lshl_b32 {sQ}, {sHH}, 7
            s_add_u32 {sO}, {sO}, {sQ}
            {sel}
            s_add_u32 {sQ}, {sQ}, 1
            v_mov_b32 v{vFLAG}, {sQ}
            s_add_u32 {sQ}, {sQ}, 1
            {sel2}
            s_lshl_b32 {sCL}, {sW}, 2
            s_lshl_b32 {sIDX2}, {sIDX2}, 2
            s_mul_i32 {sQ}, {sOCT}, 160
            v_lshlrev_b32 v48, 4, {L}
            v_mov_b32 v49, 0x3f80
            v_mov_b32 v50, 0x3f800000'''.split('\n')]
        us = []
        for k in range(3):
            us += [I(x) for x in f'''v_add_u32 v26, {sQ}, {L}
            v_add_u32 v26, {64*k}, v26
            v_lshrrev_b32 v27, 7, v26
            v_lshlrev_b32 v{28+k}, 15, v27
            v_bfe_u32 v27, v26, 6, 1
            v_lshl_add_u32 v{28+k}, v27, 6, v{28+k}
            v_and_b32 v27, 15, v26
            v_lshl_add_u32 v{28+k}, v27, 11, v{28+k}
            v_bfe_u32 v27, v26, 4, 2
            v_lshl_add_u32 v{28+k}, v27, 3, v{28+k}'''.split('\n')]
        return us
    def final_reduce(self):
        e = self.e
        sA, sO = 's37', 's54'
        cmp4 = '\n'.join(f'v_readlane_b32 {sRDY}, v{vPOLL}, {r}\ns_cmp_lg_u32 {sRDY}, {sOLD2[r]}\ns_addc_u32 {sCNT}, {sCNT}, 0' for r in range(4))
        e(f'''s_mul_i32 {sT0}, {sOCT}, {PART_BYTES}
        s_sub_u32 s24, s24, {sT0}
        s_subb_u32 s25, s25, 0
        s_mov_b32 s26, {4*PART_BYTES}
        s_waitcnt vmcnt(0)
        s_mov_b64 exec, 1
        buffer_store_dword v{vFLAG}, off, {SD2}, {sIDX2} sc0 sc1
        s_mov_b64 exec, -1''')
        self.stamp('o')
        e(f'''s_mov_b32 {sWB}, {self.c.maxpoll}
        s_branch L_fpoll
        L_floop:
        s_sleep {self.c.slp}
        L_fpoll:
        buffer_load_dword v{vPOLL}, v48, {SD2}, {sCL} offen sc0 sc1
        s_waitcnt vmcnt(0)
        s_mov_b32 {sCNT}, 0
        {cmp4}
        s_sub_u32 {sWB}, {sWB}, 1
        s_cmp_eq_u32 {sWB}, 0
        s_cbranch_scc1 L_fgo
        s_cmp_lg_u32 {sCNT}, 4
        s_cbranch_scc1 L_floop
        L_fgo:''')
        self.stamp('o')
        R0 = 160
        for k in range(3):
            for i in range(4):
                e(f's_add_u32 {sT1}, {sA}, {i*PART_BYTES}\nbuffer_load_dwordx4 {vr(R0 + (k*4+i)*4)}, v{vL16}, {SWS}, {sT1} offen offset:{k*1024} sc1')
        for k in range(3):
            for i in range(4):
                for j in range(4):
                    r = R0 + (k*4+i)*4 + j
                    if i == 0: e(f'v_lshlrev_b32 v{96+2*j}, 16, v{r}\nv_and_b32 v{97+2*j}, 0xffff0000, v{r}')
                    elif self.c.dot: e(f'v_dot2c_f32_bf16 v{96+2*j}, v{r}, v49\nv_dot2c_f32_bf16 v{97+2*j}, v{r}, v50')
                    else: e(f'v_lshlrev_b32 v26, 16, v{r}\nv_and_b32 v27, 0xffff0000, v{r}\nv_add_f32 v{96+2*j}, v{96+2*j}, v26\nv_add_f32 v{97+2*j}, v{97+2*j}, v27')
            if self.c.dot: e('s_nop 2')
            for j in range(4): e(f'v_cvt_pk_bf16_f32 v{104+4*k+j}, v{96+2*j}, v{97+2*j}')
            if k == 2: e('s_mov_b32 exec_hi, 0')
            e(f'buffer_store_dwordx2 v[{104+4*k}:{105+4*k}], v{28+k}, {SOUT}, {sO} offen{self.pol(self.c.outpol)}')
            e(f'buffer_store_dwordx2 v[{106+4*k}:{107+4*k}], v{28+k}, {SOUT}, {sO} offen offset:32{self.pol(self.c.outpol)}')
        e('s_mov_b64 exec, -1')
    def poll_code(self):
        p = []
        for r in self.chk:
            p += I(f'''L_cstub{r}:
            s_mov_b32 {sCNT}, {self.c.maxpoll}
            L_cloop{r}:
            {f's_sleep {self.c.slp}' if self.c.slp else ''}
            buffer_load_dword v{vPOLL}, v{vPOFF}, {SDB}, 0 offen sc0 sc1
            s_waitcnt vmcnt(0)
            v_readlane_b32 {sRDY}, v{vPOLL}, {r}
            s_sub_u32 {sCNT}, {sCNT}, 1
            s_cmp_eq_u32 {sCNT}, 0
            s_cbranch_scc1 L_cret{r}
            s_sub_u32 {sRDY}, {sRDY}, {sOLD[r]}
            s_cmp_eq_u32 {sRDY}, 0
            s_cbranch_scc1 L_cloop{r}''')
            if self.c.opol != 'sc1':
                p += I(f'''s_cmp_eq_u32 {sRDY}, {sXCC}
                s_cbranch_scc1 L_cret{r}
                s_cmp_lg_u32 {sWB}, 0
                s_cbranch_scc1 L_cwb{r}
                s_mov_b32 {sWB}, 1
                s_cmp_lg_u32 {sW}, 0
                s_cbranch_scc1 L_cwb{r}
                buffer_wbl2 sc1
                s_waitcnt vmcnt(0)
                s_add_u32 {sT3}, {sOLD[0]}, 32
                v_mov_b32 v{vFLAG}, {sT3}
                s_mov_b64 exec, 1
                buffer_store_dword v{vFLAG}, off, {SDB}, {sCL} sc0 sc1
                s_mov_b64 exec, -1
                L_cwb{r}:
                s_cmp_lt_u32 {sRDY}, 32
                s_cbranch_scc1 L_cloop{r}
                buffer_inv sc1
                s_waitcnt vmcnt(0)''')
            p += I(f's_nop 4\ns_branch L_cret{r}')
        return p
    def peephole(self, prog):
        out = []; prev = {}
        for x in prog:
            if x.kind in ('label', 'branch'): prev = {}; self.curkvo = None
            if isinstance(x.tag, tuple) and x.tag[0] == 'kvo' and self.c.krot:
                if getattr(self, 'curkvo', None) == x.tag: continue
                if x.op == 's_or_b32': self.curkvo = x.tag
                out.append(x); prev.pop(sT2, None); continue
            if sT2 in x.writes: self.curkvo = None
            if x.kind == 'salu' and x.op == 's_add_u32' and len(x.writes) == 1:
                w = next(iter(x.writes))
                if w in ('m0', sT0, sT2) and prev.get(w) == x.text and w not in x.reads: continue
            for w in x.writes:
                prev.pop(w, None)
                for k in [k for k, v in prev.items() if re.search(rf'\b{w}\b', v.split(',', 1)[1])]: prev.pop(k)
            if x.kind == 'salu' and x.op == 's_add_u32' and len(x.writes) == 1: prev[next(iter(x.writes))] = x.text
            out.append(x)
        return out
    def fold(self, prog):
        idx = {x.text: k for k, x in enumerate(prog) if x.kind == 'label'}
        its = [i for i in range(16) if f'L_loopmark{i}:' in idx]
        norm = lambda x: re.sub(r'(L_stub|L_ret)\d+', r'\1', x.text)
        body = {i: [norm(x) for x in prog[idx[f'L_loopmark{i}:'] + 1: idx[f'L_loopend{i}:']]] for i in its}
        last = its[-1]; first = last
        while first - 1 in body and body[first - 1] == body[last]: first -= 1
        self.log.append(('loop', first, last, len(body[last])))
        for i in range(first + 1, last + 1): self.stubs.remove(i)
        a = idx[f'L_loopmark{first}:']; b = idx[f'L_loopend{first}:']; c = idx[f'L_loopend{last}:']
        return prog[:a] + I(self.kvoff(last + 6, sIT)) + prog[a:b] + \
            I(f's_cmp_lg_u32 {sIT}, {sKO}\ns_cbranch_scc1 L_loopmark{first}') + prog[c + 1:]
    def build(self):
        self.prologue(); self.q_phase(); self.q_to_attn(); self.stamp('main', 'q', 'a')
        for i in range(1, 16):
            if i == 15: self.stamp('o', 'h')
            self.iteration(i)
            if i in (3, 10, 12): self.stamp('main')
            if i < 15 and not (self.c.loop and 4 <= i < self.c.lend): self.stamp('a')
        e = self.e
        if self.c.stamps:
            e('s_waitcnt vmcnt(0)'); self.stamp()
            if self.c.dbgwg >= 0:
                e(f'''s_mov_b64 s[24:25], s[56:57]
                s_mov_b32 s26, 0x10000000
                s_mov_b32 {sT2}, {STAMP_OFF}
                s_cmp_lg_u32 s2, {self.c.dbgwg}
                s_cbranch_scc1 L_end
                s_cmp_lg_u32 {sW}, 0
                s_cbranch_scc1 L_end
                v_readfirstlane_b32 {sT1}, v255
                v_lshlrev_b32 v2, 2, v{vLANE}
                v_subrev_u32 v4, {sT1}, v255
                buffer_store_dword v4, v2, {SWS}, {sT2} offen
                s_endpgm''')
            e(f'''s_mov_b64 s[24:25], s[56:57]
            s_mov_b32 s26, 0x10000000
            s_mul_i32 {sT1}, s2, {self.nst*8}
            s_add_u32 {sT1}, {sT1}, {STAMP_OFF}
            s_cmp_lg_u32 {sW}, 0
            s_cbranch_scc1 L_end
            v_lshlrev_b32 v2, 3, v{vLANE}
            v_mov_b32 v4, v255
            v_mov_b32 v5, 0
            v_cmp_gt_u32 vcc, {self.nst}, v{vLANE}
            s_and_saveexec_b64 s[60:61], vcc
            buffer_store_dwordx2 v[4:5], v2, {SWS}, {sT1} offen''')
        e('L_end:\ns_endpgm')
        if self.c.nomem:
            def drop(x):
                if x.kind not in ('dma', 'vld', 'vst'): return False
                t = x.text
                if 'buffer_load_dword a' in t: return 'p' in self.c.nomem and 's[84:87]' not in t
                if SX in t or SWQ in t: return 'q' in self.c.nomem
                if SK in t or SV in t: return 'k' in self.c.nomem
                if SWO in t or SOX in t: return 'o' in self.c.nomem
                if x.tag == 'st': return 's' in self.c.nomem
                return False
            self.p = [x for x in self.p if not drop(x)]
        prog = finalize(self.peephole(self.p))
        if self.c.loop: prog = self.fold(prog)
        for i in self.stubs: prog += I(f'L_stub{i}:\ns_call_b64 {sRET}, L_rare\ns_branch L_ret{i}')
        prog += finalize(self.rare())
        prog += self.poll_code()
        prog += I('L_codeend:')
        return prog

def reduce_kernel(cfg):
    pol = (' ' + cfg.rdpol) if cfg.rdpol else ''
    p = I(f'''
    s_cmp_ge_u32 s2, 640
    s_cbranch_scc1 L_rend
    s_load_dwordx2 s[4:5], s[0:1], 96
    s_load_dwordx2 s[8:9], s[0:1], 80
    v_lshrrev_b32 v1, 6, v0
    v_and_b32 v2, 63, v0
    v_readfirstlane_b32 s3, v1
    v_lshlrev_b32 v3, 4, v2
    s_mul_i32 s12, s2, 6554
    s_lshr_b32 s12, s12, 16
    s_mul_i32 s13, s12, 10
    s_sub_u32 s13, s2, s13
    s_lshl_b32 s13, s13, 2
    s_add_u32 s13, s13, s3           ; piece 0..39
    s_mul_i32 s16, s12, {4*PART_BYTES}
    s_lshl_b32 s17, s13, 10
    s_add_u32 s16, s16, s17
    s_add_u32 s16, s16, {PART_OFF}
    s_mov_b32 s6, {PART_OFF + 256*PART_BYTES}
    s_mov_b32 s7, 0x20000
    s_mov_b32 s10, {8*160*1024*2}
    s_mov_b32 s11, 0x20000
    ''')
    for i in range(4):
        p += I(f'buffer_load_dwordx4 v[{8+4*i}:{11+4*i}], v3, s[4:7], s16 offen{pol}')
        if i < 3: p += I(f's_add_u32 s16, s16, {PART_BYTES}')
    p += I(f'''
    s_mul_i32 s14, s13, 6554
    s_lshr_b32 s14, s14, 16          ; w
    s_mul_i32 s15, s14, 10
    s_sub_u32 s19, s13, s15          ; idx
    s_lshr_b32 s20, s19, 1           ; t
    s_and_b32 s21, s19, 1            ; m
    s_lshr_b32 s22, s12, 2
    s_and_b32 s22, s22, 7            ; b
    s_lshr_b32 s23, s12, 5           ; branch
    s_and_b32 s18, s12, 3            ; hp
    s_mul_i32 s24, s22, 160
    s_lshr_b32 s25, s14, 1
    s_mul_i32 s25, s25, 80
    s_add_u32 s24, s24, s25
    s_lshl_b32 s25, s20, 4
    s_add_u32 s24, s24, s25
    s_lshl_b32 s24, s24, 11
    s_lshl_b32 s25, s23, 10
    s_add_u32 s24, s24, s25
    s_lshl_b32 s25, s18, 8
    s_add_u32 s24, s24, s25
    s_and_b32 s25, s14, 1
    s_lshl_b32 s25, s25, 7
    s_add_u32 s24, s24, s25
    s_lshl_b32 s25, s21, 6
    s_add_u32 s24, s24, s25
    v_and_b32 v4, 15, v2
    v_lshlrev_b32 v4, 11, v4
    v_lshrrev_b32 v5, 4, v2
    v_lshl_add_u32 v4, v5, 3, v4
    ''')
    for i in range(4):
        for j in range(4):
            r = 8 + 4*i + j
            if i == 0: p += I(f'v_lshlrev_b32 v{32+2*j}, 16, v{r}\nv_and_b32 v{33+2*j}, 0xffff0000, v{r}')
            else: p += I(f'v_lshlrev_b32 v6, 16, v{r}\nv_and_b32 v7, 0xffff0000, v{r}\nv_add_f32 v{32+2*j}, v{32+2*j}, v6\nv_add_f32 v{33+2*j}, v{33+2*j}, v7')
    for j in range(4): p += I(f'v_cvt_pk_bf16_f32 v{40+j}, v{32+2*j}, v{33+2*j}')
    p += I('''buffer_store_dwordx2 v[40:41], v4, s[8:11], s24 offen
    buffer_store_dwordx2 v[42:43], v4, s[8:11], s24 offen offset:32
    L_rend:
    s_endpgm''')
    return finalize(p)

def generate(cfg, path):
    g = Gen(cfg)
    main = g.build()
    if cfg.kpolB != '=' or cfg.vpolB != '=':
        import copy
        c2 = copy.copy(cfg)
        if cfg.kpolB != '=': c2.kpol = cfg.kpolB
        if cfg.vpolB != '=': c2.vpol = cfg.vpolB
        m2 = Gen(c2).build()
        for x in m2: x.text = re.sub(r'\bL_(\w+)', r'LB_\1', x.text)
        main = I('s_bitcmp1_b32 s2, 2\ns_cbranch_scc1 LB_entry') + main + I('LB_entry:') + m2
    red = reduce_kernel(cfg)
    if cfg.dbgwg >= 0:
        k = [i for i, x in enumerate(red) if x.text == 'L_rend:'][0]
        red[k:k] = finalize(I(f'''s_cmp_lg_u32 s2, 0
        s_cbranch_scc1 L_rend
        s_load_dwordx2 s[8:9], s[0:1], 88
        s_mov_b32 s10, 256
        s_mov_b32 s6, 0x10000000
        s_mov_b32 s16, {STAMP_OFF}
        v_lshlrev_b32 v2, 2, v0
        buffer_load_dword v3, v2, s[4:7], s16 offen
        buffer_store_dword v3, v2, s[8:11], 0 offen'''))
    if cfg.fuse:
        s = make_file([(KN, 256, 256, 163840)], [(KN, text_of(main), 512, 102, 256)])
        s = s.replace(f'; @launch kernel={KN} grid', '; @launch grid')
    else:
        s = make_file([(KN, 256, 256, 163840), ('reduce_heads_kernel', 640, 256, 0)],
                      [(KN, text_of(main), 512, 102, 256), ('reduce_heads_kernel', text_of(red), 48, 32, 48)])
    open(path, 'w').write(s)
    open(path[:-2] + '.nst', 'w').write(str(g.nst))
    return g, main

if __name__ == '__main__':
    cfg = Cfg()
    out = sys.argv[1]
    for kv in sys.argv[2:]:
        k, v = kv.split('=')
        cur = getattr(cfg, k)
        setattr(cfg, k, type(cur)(int(v)) if isinstance(cur, (bool, int)) and not isinstance(cur, float) else type(cur)(v.replace('+', ' ')))
    g, main = generate(cfg, out)
    from collections import Counter
    print(out, 'stamps', g.nst, dict(Counter(i.kind for i in main)))
    if cfg.verbose:
        for l in g.log: print(*l)
```

```python
import sys, math, struct, re
from asmlib import *
from gen_common import make_file, KN

class Cfg:
    kpol = 'nt'; vpol = 'nt'; kpolB = '='; vpolB = '='; wpol = ''; stpol = 'sc1'; rdpol = ''; pfpol = ''
    stamps = False; stset = 'main'; clk = 0
    codepf = 1
    kv_pro = 0
    kv_end = 13
    l2pf = 1; pfit = 11; l2pfq = 0
    nstg = 3
    late = 1
    early5 = 1
    rot = 2
    vsp = 4
    kveven = 1
    thr = 8.0
    loop = 1
    nomem = ''
    verbose = 0
    dbgwg = -1
    normlast = 105
    fuse = 1
    outpol = ''
    oldpol = 'sc1'
    slp = 0
    dot = 0
    lean = 1
    tlb = 0
    tlbs = 13
    alt = ''
    altbit = 0
    cpf2 = 0
    cpf1 = 0
    pfgran = 128
    hwid = 0
    v15gap = -1
    pkq = 1
    pkn = 1
    kv_start = 0
    kvw = 0.5
    wpol0 = ''
    nwq0 = 4
    nx0 = 3
    pearly = 0
    c0gap = 66
    pdist = 10
    lastn = 2
    opol = 'sc1'
    zgap = 2
    pgap = 30
    maxpoll = 200000
    krot = 0
    ccap = 6
    tcap = 4
    lend = 10
    dlo = 24
    dhi = 80
STAMP_OFF = 0x8000000
PART_BYTES = 40960
PART_OFF = 0x2000000
OX_BYTES = 327680
FLAG_OFF = 0x3000000
def f32(x): return '0x%08x' % struct.unpack('<I', struct.pack('<f', x))[0]

SX, SWQ, SK, SV, SWO, SWS = 's[4:7]', 's[8:11]', 's[12:15]', 's[16:19]', 's[20:23]', 's[24:27]'
sW, sHH, sQH = 's3', 's28', 's29'
sKVOFF, sKVLDS, sWQOFF, sXOFF, sXLDS, sWO0, sWO1, sWOLDS, sPW = 's30', 's31', 's32', 's33', 's34', 's35', 's36', 's37', 's38'
sC, sT = 's40', 's41'
sT0, sT1, sT2, sT3 = 's42', 's43', 's44', 's45'
sRET = 's[60:61]'
sRB, sDB, sKO, sVO, sIT = 's46', 's47', 's52', 's53', 's50'
sB, sHP, sH0 = 's48', 's49', 's51'
sWQC, sXC, sWQB, sXB = 's88', 's89', 's90', 's91'
SOX, SDB = 's[76:79]', 's[80:83]'
sCL, sXCC, sRDY, sOW, sOCT = 's92', 's93', 's94', 's95', 's39'
sPO = ['s64', 's65', 's66', 's67']; sPWo = ['s68', 's69', 's70', 's71']
sW4K, sW5K, sCNT, sWB = 's96', 's97', 's98', 's99'
sKR, sKC = 's35', 's36'
sOLD = ['s72', 's73', 's74', 's75']
vFOFF = 215; vFOFF2 = 214
SD2 = 's[84:87]'; sOLD2 = ['s0', 's1', 's93', 's36']; sIDX2 = 's59'; sBLK = 's58'; SOUT = 's[12:15]'
STAMP0 = 62
def O(t, dt): return (t * 8 + dt) * 4
S0 = 160; P0 = 200; NM4 = 220
def Sreg(t, kt): return S0 + (t * 2 + kt) * 4
def Preg(t): return P0 + 4 * t
vMX0, vMX1, vTA, vTB = 240, 241, 242, 243
vK, vVE, vVO, aK, aVE = 244, 245, 246, 247, 248
vKVA, vKVB, vLANE, vWOV, vOE = 249, 250, 251, 252, 253
vWQA, vWQB, vX0, vX1 = 200, 201, 202, 203
vQE = [204, 205, 206]; vQO = [207, 208, 209]; vXR = [210, 211]
vWA = [212, 213]
vWA1 = 254
vRL = 240
vOEs, vOOs = 245, 246
vEX1, vEX2, vL16 = 247, 248, 254
vEXR1, vEXR2, vOB0, vOB1, vPOLL, vFLAG, vWEr, vWOr, vPOFF = 16, 17, 18, 19, 20, 21, 22, 23, 24
aVF, aAF, aKF, aL, aONE, aQ = 0, 80, 104, 136, 156, 160
aPART = 0; aA0 = 160
def Qf(ks, t): return aQ + (t * 4 + ks) * 4
def vr(b, n=4): return f'v[{b}:{b+n-1}]'
def ar(b, n=4): return f'a[{b}:{b+n-1}]'
SLOT = 32768
WQBUF = [147456, 65536, 102400]
XBUF = [81920, 126976]
WOB = [16384, 0, 32768, 49152]
OB = [65536, 86016, 106496, 126976]
aA1 = 80
aSET = [160, 196]
MF = 'v_mfma_f32_16x16x32_bf16'

def FS(units, lo=-1, hi=10**6, step=None):
    return [F(u, lo if step is None else int(lo + k * step), hi) for k, u in enumerate(units)]

class Gen:
    def __init__(self, cfg):
        self.c = cfg; self.p = []; self.nst = 0; self.stubs = []; self.log = []
    def e(self, x, tag=None):
        self.p += I(x, tag) if isinstance(x, str) else x
    def stamp_i(self, grp='all'):
        if self.c.stamps and grp in ('all', self.c.stset):
            self.nst += 1
            if self.c.clk == 2:
                return I(f's_memrealtime s[62:63]\ns_waitcnt lgkmcnt(0)\nv_writelane_b32 v255, s62, {self.nst - 1}\ns_memtime s[62:63]\ns_waitcnt lgkmcnt(0)\nv_writelane_b32 v255, s62, {self.nst + 31}')
            return I(f's_mem{"" if self.c.clk else "real"}time s[62:63]\ns_waitcnt lgkmcnt(0)\nv_writelane_b32 v255, s62, {self.nst - 1}')
        return []
    def stamp(self, *grps):
        for g in grps or ('all',): self.e(self.stamp_i(g))
    def sch(self, name, main, streams, **kw):
        v = []
        self.e(sched(main, streams, verbose=v, **kw))
        self.log.append((name,) + v[0])
    @staticmethod
    def pol(p): return (' ' + p) if p else ''
    def kvoff(self, tile, dst=sT2):
        if not self.c.krot: return f's_add_u32 {dst}, {sKVOFF}, {tile*8192}'
        return f's_add_u32 {dst}, {sKR}, {tile*8192}\ns_and_b32 {dst}, {dst}, 0x1e000\ns_or_b32 {dst}, {dst}, {sKVOFF}'
    def kvo(self, tile):
        u = I(self.kvoff(tile))
        for x in u: x.tag = ('kvo', tile)
        return u
    def kvp(self, srd): return self.pol(self.c.kpol if srd == SK else self.c.vpol)
    def kv_dma(self, srd, tile, lds, tag):
        us = []
        for k in range(4):
            u = I(f's_add_u32 m0, {sKVLDS}, {lds}') + self.kvo(tile)
            u += I(f'buffer_load_dwordx4 v{vKVA if k % 2 == 0 else vKVB}, {srd}, {sT2} offen offset:{k*1024}{self.kvp(srd)} lds', tag=tag)
            us.append(u)
        return us
    def kv_stage(self, st):
        b = (st % 5) * SLOT
        return (self.kv_dma(SK, st + 1, b, f'kv{st}') if st < 15 else []) + self.kv_dma(SV, st, b + 16384, f'kv{st}')
    def kv_stage_dyn(self, st):
        us = []
        for part in range(2):
            for k in range(4):
                u = I(f's_add_u32 m0, {sDB}, {part*16384}') if k == 0 else []
                if k == 0: us.append(u); u = []
                u += I(f'buffer_load_dwordx4 v{vKVA if k % 2 == 0 else vKVB}, {SK if part == 0 else SV}, {sKO if part == 0 else sVO} offen offset:{k*1024}{self.kvp(SK if part == 0 else SV)} lds', tag=f'kv{st}')
                us.append(u)
        return us
    def stg(self, st, part, k):
        if st >= 6: return ar(32 + ((st - 6)*8 + part*4 + k)*4)
        return ar(160 + ((st - 2)*8 + part*4 + k)*4)
    def kv_reg(self, st, parts=(0, 1)):
        us = []
        for part in parts:
            srd, tile = (SK, st + 1) if part == 0 else (SV, st)
            for k in range(4):
                us.append(self.kvo(tile) +
                          I(f'buffer_load_dwordx4 {self.stg(st, part, k)}, v{vKVA if k % 2 == 0 else vKVB}, {srd}, {sT2} offen offset:{k*1024}{self.kvp(srd)}'))
        return us
    def kv_drain(self, st, parts=(0, 1)):
        us = []
        for part in parts:
            for k in range(4):
                adr, off = {2: (vWA[0], 0), 3: (vWA[0], SLOT), 4: (vWA[1], 0), 6: (vWA1, 0), 7: (vWA1, SLOT)}[st]
                off += part*16384
                us.append(I(f'ds_write_b128 v{adr}, {self.stg(st, part, k)} offset:{off + k*1024}', tag=f'kv{st}'))
        return us
    def wq_next(self, j):
        if self.c.rot == 2 and j < 2: return I(f's_add_u32 {sWQB}, {sWQOFF}, {j*262144}')
        wrap = f's_cmp_eq_u32 {sWQC}, 0x400000\ns_cselect_b32 {sWQC}, 0x80000, {sWQC}' if self.c.rot == 2 else f's_and_b32 {sWQC}, {sWQC}, 0x3fffff'
        return I(f's_add_u32 {sWQB}, {sWQC}, {sWQOFF}\ns_add_u32 {sWQC}, {sWQC}, 262144\n{wrap}')
    def x_next(self, J):
        if self.c.rot == 2 and J < 1: return I(f's_add_u32 {sXB}, {sXOFF}, 0')
        wrap = f's_cmp_eq_u32 {sXC}, 1024\ns_cselect_b32 {sXC}, 128, {sXC}' if self.c.rot == 2 else f's_and_b32 {sXC}, {sXC}, 1023'
        return I(f's_add_u32 {sXB}, {sXC}, {sXOFF}\ns_add_u32 {sXC}, {sXC}, 128\n{wrap}')
    def wq_units(self, j):
        us = []
        for k in range(4):
            u = I(f's_add_u32 m0, {sKVLDS}, {WQBUF[j % 3]}\ns_add_u32 {sT0}, {sWQB}, {k*32768 - k*1024}')
            u += I(f'buffer_load_dwordx4 v{vWQA if k < 2 else vWQB}, {SWQ}, {sT0} offen offset:{k*1024}{self.pol(self.c.wpol0 if j < self.c.nwq0 else self.c.wpol)} lds', tag=f'wq{j}')
            us.append(u)
        if j == 0: us[0] = self.wq_next(0) + us[0]
        if j < 15: us[-1] += self.wq_next(j + 1)
        return us
    def x_units(self, J):
        us = []
        for k in range(5):
            im = (k % 4) * 1024
            u = I(f's_add_u32 m0, {sXLDS}, {XBUF[J % 2] + (k // 4)*4096}\ns_add_u32 {sT0}, {sXB}, {k*8192 - im}')
            u += I(f'buffer_load_dwordx4 v{vX0 if k % 2 == 0 else vX1}, {SX}, {sT0} offen offset:{im}{self.pol(self.c.wpol0 if J < self.c.nx0 else self.c.wpol)} lds', tag=f'x{J}')
            us.append(u)
        if J == 0: us[0] = self.x_next(0) + us[0]
        if J < 7: us[-1] += self.x_next(J + 1)
        return us
    def wo_half(self, base, const, lds, tag):
        us = []
        for k in range(4):
            u = I(f's_add_u32 m0, {sW4K}, {lds}\ns_add_u32 {sT0}, {base}, {const + k*3072}')
            u += I(f'buffer_load_dwordx4 v{vKVA if k % 2 == 0 else vKVB}, {SWO}, {sT0} offen offset:{k*1024}{self.pol(self.c.wpol)} lds', tag=tag)
            us.append(u)
        return us
    def wo_own(self, h):
        us = self.wo_half(sPWo[0], h*131072, (1 + h)*SLOT, 'wown') + self.wo_half(sPWo[0], h*131072 + 65536, (1 + h)*SLOT + 16384, 'wown')
        if h == 0: us[0] = I(f'v_mov_b32 v{vKVA}, v{vWOV}\nv_xor_b32 v{vKVB}, 32, v{vWOV}') + us[0]
        return us
    def wo_rem(self, u):
        return self.wo_half(sPWo[1 + u // 4], ((u >> 1) & 1)*131072 + (u & 1)*65536, WOB[u % 4], f'u{u}')
    def o_rem(self, u):
        us = []
        for k in range(5):
            x = I(f's_add_u32 m0, {sW5K}, {OB[u % 4] + (k // 4)*4096}\ns_add_u32 {sT2}, {sPO[1 + u // 4]}, {((u >> 1) & 1)*40960 + (u & 1)*20480 + (k // 4)*4096}')
            x += I(f'buffer_load_dwordx4 v{vL16}, {SOX}, {sT2} offen offset:{(k % 4)*1024}{self.pol(self.c.oldpol)} lds', tag=f'u{u}')
            us.append(x)
        return us
    def l2pf_q(self):
        pol = self.pol(self.c.pfpol); L = f'v{vLANE}'
        return [I(f'v_lshrrev_b32 v214, 3, {L}\nv_and_b32 v215, 7, {L}'),
                I(f'v_lshlrev_b32 v214, 13, v214\nv_lshl_add_u32 v214, v215, 6, v214'),
                I(f's_lshl_b32 {sT3}, {sB}, 19\ns_lshl_b32 {sT1}, {sW}, 17'),
                I(f's_add_u32 {sT3}, {sT3}, {sT1}\ns_lshl_b32 {sT1}, {sH0}, 8'),
                I(f's_add_u32 {sT3}, {sT3}, {sT1}\nbuffer_load_dword a138, v214, {SWQ}, {sT3} offen{pol}'),
                I(f's_add_u32 {sT3}, {sT3}, 65536\nbuffer_load_dword a139, v214, {SWQ}, {sT3} offen{pol}'),
                I(f'v_lshlrev_b32 v215, 6, {L}\ns_mul_i32 {sT3}, {sHP}, 40960'),
                I(f's_mul_i32 {sT1}, {sW}, 10240\ns_add_u32 {sT3}, {sT3}, {sT1}'),
                I(f'buffer_load_dword a140, v215, {SX}, {sT3} offen{pol}'),
                I(f's_add_u32 {sT3}, {sT3}, 4096\nbuffer_load_dword a141, v215, {SX}, {sT3} offen{pol}'),
                I(f's_add_u32 {sT3}, {sT3}, 4096\nbuffer_load_dword a142, v215, {SX}, {sT3} offen{pol}')]
    def l2pf_wo(self):
        pol = self.pol(self.c.pfpol)
        g128 = self.c.pfgran == 128
        us = [I(f'v_lshrrev_b32 v{vTA}, {1 if g128 else 2}, v{vLANE}\nv_and_b32 v{vTB}, {1 if g128 else 3}, v{vLANE}'),
              I(f'v_lshlrev_b32 v{vTA}, 10, v{vTA}\nv_lshl_add_u32 v{vTA}, v{vTB}, {7 if g128 else 6}, v{vTA}'),
              I(f's_lshl_b32 {sT3}, {sOCT}, 20\ns_lshl_b32 {sT1}, {sB}, 17'),
              I(f's_add_u32 {sT3}, {sT3}, {sT1}\ns_lshl_b32 {sT1}, {sW}, 15'),
              I(f's_add_u32 {sT3}, {sT3}, {sT1}\ns_lshl_b32 {sT1}, {sHP}, 8'),
              I(f's_add_u32 {sT3}, {sT3}, {sT1}\nbuffer_load_dword a240, v{vTA}, {SWO}, {sT3} offen{pol}')]
        if not g128: us.append(I(f's_add_u32 {sT3}, {sT3}, 16384\nbuffer_load_dword a241, v{vTA}, {SWO}, {sT3} offen{pol}'))
        return us
    def tlb_touch(self):
        return [I(f'v_lshlrev_b32 v{vTB}, {self.c.tlbs}, v{vLANE}'),
                I(f'buffer_load_dword a245, v{vTB}, {SOX}, 0 offen sc0 sc1'),
                I(f'buffer_load_dword a246, v{vTB}, {SWS}, 0 offen sc0 sc1'),
                I(f's_mov_b64 s[4:5], s[100:101]\ns_mov_b32 s6, {8*160*1024*2}'),
                I(f's_mul_i32 {sT3}, {sB}, {160*2048}'),
                I(f'buffer_load_dword a247, v{vTB}, s[4:7], {sT3} offen')]
    def code_pf(self, label, srd, vt, dst):
        n = self.ncpf = getattr(self, 'ncpf', 0) + 1
        a = srd
        return [I(f's_getpc_b64 s[{a}:{a+1}]\nL_pcx{n}:\ns_add_u32 s{a}, s{a}, {label}-L_pcx{n}\ns_addc_u32 s{a+1}, s{a+1}, 0'),
                I(f's_mov_b32 s{a+2}, L_codeend-{label}\ns_mov_b32 s{a+3}, 0x20000'),
                I(f's_lshl_b32 {sT3}, {sW}, 13\nv_lshlrev_b32 v{vt}, 7, v{vLANE}'),
                I(f'buffer_load_dword a{dst}, v{vt}, s[{a}:{a+3}], {sT3} offen')]
    def dma_stream(self, units, lo, hi, slack=4):
        fs = []; n = len(units); prev = {}
        for k, u in enumerate(units):
            l = lo + (k * (hi - lo + 1)) // n
            after = False
            for x in u:
                c = 1
                if x.op == 's_cselect_b32' or x.kind in ('branch', 'label'):
                    fs[-1].ins.append(x); fs[-1].cost += x.cost; continue
                if isinstance(x.tag, tuple) and self.c.krot:
                    if prev.get('kvo') == x.tag: c = 0
                    if x.op == 's_or_b32': prev['kvo'] = x.tag
                elif x.kind == 'salu' and x.op == 's_add_u32' and len(x.writes) == 1:
                    w = next(iter(x.writes))
                    if prev.get(w) == x.text and w not in x.reads: c = 0
                    prev[w] = x.text
                if x.kind not in ('salu', 'valu'): fs.append(F([x], l, l + slack, cost=c)); after = True
                elif after: fs.append(F([x], l, 10**6, cost=c))
                else: fs.append(F([x], l - 3, l, cost=c))
        return fs
    def peer_setup(self):
        o = [f's_lshl_b32 {sT3}, {sOCT}, 20', f's_lshl_b32 {sT2}, {sHP}, 8', f's_add_u32 {sT3}, {sT3}, {sT2}',
             f's_lshl_b32 {sT2}, {sW}, 14', f's_add_u32 {sT3}, {sT3}, {sT2}']
        for r in range(4):
            o += [f's_add_u32 {sT2}, {sHP}, {r}', f's_and_b32 {sT2}, {sT2}, 3', f's_mul_i32 {sPO[r]}, {sT2}, 81920', f's_add_u32 {sPO[r]}, {sPO[r]}, {sW5K}',
                  f's_lshl_b32 {sPWo[r]}, {sT2}, 18', f's_add_u32 {sPWo[r]}, {sPWo[r]}, {sT3}']
        assert self.c.opol == 'sc1'
        return '\n'.join(o)
    def rot_setup(self):
        if self.c.rot != 2: return f's_and_b32 {sXC}, {sXC}, {7 if self.c.rot else 0}'
        return f's_cmp_ge_u32 {sXC}, 7\ns_cselect_b32 {sWQC}, 7, 0\ns_sub_u32 {sXC}, {sXC}, {sWQC}\ns_add_u32 {sXC}, {sXC}, 1'
    def prologue(self):
        e = self.e; L = f'v{vLANE}'
        self.stamp('e')
        e(f'''
        s_cmp_ge_u32 s2, 256
        s_cbranch_scc1 L_end
        s_load_dwordx16 s[64:79], s[0:1], 0
        s_load_dwordx4 s[80:83], s[0:1], 64
        s_load_dwordx2 s[24:25], s[0:1], 96
        s_load_dwordx2 s[100:101], s[0:1], 80
        v_lshrrev_b32 v1, 6, v0
        v_and_b32 {L}, 63, v0
        v_readfirstlane_b32 {sW}, v1
        s_and_b32 s46, s2, 7
        s_lshr_b32 s47, s2, 3
        s_lshr_b32 {sB}, s47, 2
        s_and_b32 {sHP}, s47, 3
        s_and_b32 {sOCT}, s46, 3
        s_lshl_b32 s50, {sOCT}, 2
        s_add_u32 s50, s50, {sHP}
        s_lshl_b32 {sH0}, s50, 1
        s_lshr_b32 s52, s46, 2            ; branch
        s_and_b32 {sHH}, {sW}, 1
        s_lshr_b32 {sQH}, {sW}, 1
        v_and_b32 v2, 3, {L}
        v_lshlrev_b32 v2, 4, v2           ; cc*16
        v_lshrrev_b32 v3, 4, {L}          ; g
        v_bfe_u32 v4, {L}, 2, 2           ; r
        v_lshl_add_u32 v5, v3, 6, v2
        v_lshl_add_u32 v{vKVA}, v4, 8, v5
        v_xor_b32 v{vKVB}, 32, v{vKVA}
        v_lshl_add_u32 v{vWQA}, v4, 13, v5
        v_xor_b32 v{vWQB}, 16, v{vWQA}
        v_lshrrev_b32 v6, 5, {L}
        v_bfe_u32 v7, {L}, 2, 3
        v_lshl_add_u32 v8, v6, 6, v2
        v_lshl_add_u32 v8, v7, 10, v8
        s_lshl_b32 {sT0}, {sHH}, 5
        v_xor_b32 v{vX0}, {sT0}, v8
        v_xor_b32 v{vX1}, 32, v{vX0}
        s_lshl_b32 {sT0}, {sQH}, 12
        s_lshl_b32 {sKVLDS}, {sHH}, 13
        s_add_u32 {sKVLDS}, {sKVLDS}, {sT0}
        s_lshl_b32 {sKVOFF}, {sHH}, 17
        s_add_u32 {sKVOFF}, {sKVOFF}, {sT0}
        s_add_u32 {sT1}, {sH0}, {sHH}
        s_lshl_b32 {sWQOFF}, {sT1}, 8
        s_lshl_b32 {sT0}, {sQH}, 17
        s_add_u32 {sWQOFF}, {sWQOFF}, {sT0}
        s_mul_i32 {sXOFF}, {sW}, {5*8192}
        s_mul_i32 {sXLDS}, {sW}, {5*1024}
        s_lshl_b32 {sXC}, {sHP}, 1
        s_add_u32 {sXC}, {sXC}, {sB}
        {self.rot_setup()}
        s_lshl_b32 {sWQC}, {sXC}, 19
        s_lshl_b32 {sXC}, {sXC}, 7
        s_mul_i32 {sKR}, s2, {self.c.krot}
        s_add_u32 {sKR}, {sKR}, s47
        s_lshl_b32 {sKR}, {sKR}, 13
        s_mul_i32 s53, {sB}, 163840
        s_lshl_b32 s54, {sB}, 5
        s_add_u32 s54, s54, {sH0}
        s_lshl_b32 s54, s54, 17
        s_mov_b32 s6, 163840
        s_mov_b32 s7, 0x20000
        s_mov_b32 s10, 0x400000
        s_mov_b32 s11, 0x20000
        s_mov_b32 s14, 0x40000
        s_mov_b32 s15, 0x20000
        s_mov_b32 s18, 0x40000
        s_mov_b32 s19, 0x20000
        s_cmp_eq_u32 s52, 0
        s_cselect_b64 s[4:5], s[64:65], s[74:75]
        s_cselect_b64 s[8:9], s[70:71], s[80:81]
        s_cselect_b64 s[12:13], s[66:67], s[76:77]
        s_cselect_b64 s[16:17], s[68:69], s[78:79]
        s_cselect_b64 s[20:21], s[72:73], s[82:83]
        s_add_u32 s4, s4, s53
        s_addc_u32 s5, s5, 0
        ''')
        self.stamp()
        for u in self.x_units(0) + self.wq_units(0) + self.wq_units(1): e(u)
        e(f'''
        s_add_u32 s12, s12, s54
        s_addc_u32 s13, s13, 0
        s_add_u32 s16, s16, s54
        s_addc_u32 s17, s17, 0
        ''')
        self.kvq = self.kv_dma(SK, 0, SLOT + 16384, 'k0') + self.kv_stage(0) + self.kv_dma(SK, 2, SLOT, 'kv1')
        for st in (2, 3, 4)[:self.c.nstg]: self.kvq += self.kv_reg(st)
        self.late_pro = self.x_units(1) + self.wq_units(2) + [self.kvq.pop(0) for _ in range(self.c.kv_pro)]
        if not self.c.lean:
            for u in self.late_pro: e(u)
            self.late_pro = []
        if self.c.codepf and self.c.lean:
            e(f'''s_getpc_b64 s[84:85]
            L_pc0:
            s_mov_b32 s86, L_codeend-L_pc0
            s_mov_b32 s87, 0x20000
            v_and_b32 v22, 15, {L}
            v_lshlrev_b32 v22, 7, v22
            s_and_b32 {sT0}, s47, 7
            s_lshl_b32 {sT0}, {sT0}, 2
            s_add_u32 {sT0}, {sT0}, {sW}
            s_lshl_b32 {sT0}, {sT0}, 11
            buffer_load_dword a136, v22, s[84:87], {sT0} offen''')
        elif self.c.codepf:
            e(f'''s_getpc_b64 s[84:85]
            L_pc0:
            s_mov_b32 s86, L_codeend-L_pc0
            s_mov_b32 s87, 0x20000
            v_lshlrev_b32 v22, 7, v0
            buffer_load_dword a136, v22, s[84:87], 0 offen
            s_mov_b32 {sT0}, 32768
            buffer_load_dword a137, v22, s[84:87], {sT0} offen''')
        e(f'''
        s_mul_i32 {sPW}, {sW}, 10240
        s_lshl_b32 {sW4K}, {sW}, 12
        s_mul_i32 {sW5K}, {sW}, 5120
        s_mov_b32 {sC}, {f32(128 ** -0.5 * math.log2(math.e))}
        s_mov_b32 {sT}, {f32(self.c.thr)}
        s_lshl_b32 s55, s52, 3
        s_add_u32 s55, s55, {sB}          ; group = branch*8 + b
        s_lshl_b32 {sCL}, s55, 2
        s_add_u32 {sT2}, {sCL}, {sHP}
        s_mov_b32 {sBLK}, {sT2}
        s_add_u32 {sCL}, {sCL}, {sOCT}    ; cluster = group*4 + octet
        s_lshl_b32 {sT2}, {sT2}, 2
        s_add_u32 {sT2}, {sT2}, {sOCT}
        s_mul_i32 {sT2}, {sT2}, {PART_BYTES}
        s_add_u32 {sT2}, {sT2}, {PART_OFF}
        s_mul_i32 s55, {sCL}, {OX_BYTES}
        s_mov_b32 s22, 0x400000
        s_mov_b32 s23, 0x20000
        s_mov_b64 s[56:57], s[24:25]
        s_add_u32 s76, s24, s55
        s_addc_u32 s77, s25, 0
        s_mov_b32 s78, {OX_BYTES}
        s_mov_b32 s79, 0x20000
        s_add_u32 s24, s24, {sT2}
        s_addc_u32 s25, s25, 0
        s_mov_b32 s26, {PART_BYTES}
        s_mov_b32 s27, 0x20000
        s_lshl_b32 {sCL}, {sCL}, 7
        s_add_u32 {sCL}, {sCL}, {FLAG_OFF}
        s_add_u32 s80, s56, {sCL}
        s_addc_u32 s81, s57, 0
        s_mov_b32 s82, 16
        s_mov_b32 s83, 0x20000
        v_add_u32 v24, {sHP}, {L}
        v_and_b32 v24, 3, v24
        v_lshlrev_b32 v24, 2, v24
        buffer_load_dword v{vFOFF}, v24, {SDB}, 0 offen sc0 sc1
        s_lshl_b32 {sCL}, {sHP}, 2
        s_mov_b32 {sWB}, 0
        s_lshl_b32 {sT2}, {sBLK}, 7
        s_add_u32 {sT2}, {sT2}, {FLAG_OFF + 8192}
        s_add_u32 s84, s56, {sT2}
        s_addc_u32 s85, s57, 0
        s_mov_b32 s86, 64
        s_mov_b32 s87, 0x20000
        s_lshl_b32 {sT2}, {sW}, 2
        v_lshlrev_b32 v24, 4, {L}
        buffer_load_dword v{vFOFF2}, v24, {SD2}, {sT2} offen sc0 sc1
        s_lshl_b32 {sIDX2}, {sOCT}, 2
        s_add_u32 {sIDX2}, {sIDX2}, {sW}
        s_mul_i32 {sOW}, {sHP}, 81920
        s_mul_i32 {sT2}, {sHH}, 40960
        s_add_u32 {sOW}, {sOW}, {sT2}
        s_mul_i32 {sT2}, {sQH}, 10240
        s_add_u32 {sOW}, {sOW}, {sT2}
        {self.peer_setup()}
        v_and_b32 v9, 1, v3
        v_lshlrev_b32 v9, 5, v9           ; 32*(g&1)
        v_lshl_add_u32 v{vWOV}, v4, 10, v5
        v_and_b32 v10, 15, {L}
        v_and_b32 v11, 3, {L}
        v_lshrrev_b32 v12, 2, v10
        v_and_b32 v13, 1, v12
        v_lshlrev_b32 v13, 5, v13
        v_lshlrev_b32 v14, 4, v3
        v_xor_b32 v13, v13, v14
        v_lshl_add_u32 v13, v11, 6, v13
        v_lshl_add_u32 v13, v12, 10, v13
        s_lshl_b32 {sT1}, {sHH}, 13
        v_add_u32 v{aK}, {sT1}, v13
        v_lshl_add_u32 v15, v11, 3, v9
        v_lshl_add_u32 v15, v4, 6, v15
        v_lshl_add_u32 v16, v3, 10, v15
        v_add_u32 v{aVE}, {sT1}, v16
        v_lshrrev_b32 v16, 1, v9          ; 16*(g&1)
        v_lshlrev_b32 v22, 4, v11         ; 16*c4
        v_xor_b32 v16, v16, v22
        v_and_b32 v22, 1, v11
        v_lshl_add_u32 v16, v22, 3, v16   ; + 8*(c4&1)
        v_lshl_add_u32 v16, v4, 6, v16    ; + r*64
        v_lshl_add_u32 v16, v3, 11, v16   ; + g*2048
        v_add_u32 v16, {sT1}, v16
        v_add_u32 v{vQE[0]}, {WQBUF[0]}, v16
        v_add_u32 v{vQE[1]}, {WQBUF[1]}, v16
        v_add_u32 v{vQE[2]}, {WQBUF[2]}, v16
        v_xor_b32 v{vQO[0]}, 8, v{vQE[0]}
        v_xor_b32 v{vQO[1]}, 8, v{vQE[1]}
        v_xor_b32 v{vQO[2]}, 8, v{vQE[2]}
        s_mov_b32 vcc_lo, 0xffff0000
        s_mov_b32 vcc_hi, 0xffff0000
        v_lshrrev_b32 v17, 3, v10
        v_lshlrev_b32 v18, 5, v17
        v_xor_b32 v18, v18, v14
        v_and_b32 v19, 7, {L}
        v_lshl_add_u32 v18, v19, 6, v18
        v_lshl_add_u32 v18, v17, 10, v18
        s_mul_i32 {sT2}, {sQH}, 10240
        v_add_u32 v18, {sT2}, v18
        v_add_u32 v{vXR[0]}, {XBUF[0]}, v18
        v_add_u32 v{vXR[1]}, {XBUF[1]}, v18
        v_lshl_add_u32 v20, v3, 10, v15
        s_lshl_b32 {sT2}, {sHH}, 9
        v_add_u32 v{vOE}, {sT2}, v20
        v_lshlrev_b32 v{vWA1}, 4, {L}
        v_add_u32 v{vWA1}, {sKVLDS}, v{vWA1}
        v_add_u32 v{vWA[0]}, 65536, v{vWA1}
        v_add_u32 v{vWA[1]}, 131072, v{vWA1}
        v_add_u32 v{vWA1}, {SLOT}, v{vWA1}
        v_mov_b32 v21, 0x3f803f80
        v_accvgpr_write_b32 a{aONE}, v21
        v_accvgpr_write_b32 a{aONE+1}, v21
        v_accvgpr_write_b32 a{aONE+2}, v21
        v_accvgpr_write_b32 a{aONE+3}, v21
        ''')
    def q_reads(self, j):
        st = (j & 1) * 52
        xr = [I(f'ds_read_b128 {ar(st + 32 + 4*t)}, v{vXR[(j >> 1) & 1]} offset:{t*2048 + (j & 1)*512}') for t in range(5)]
        aa = []
        for dt in range(8):
            for u in range(2):
                adr = (vQE if dt % 2 == 0 else vQO)[j % 3]
                aa.append(I(f'ds_read_b64_tr_b16 {ar(st + 4*dt + 2*u, 2)}, v{adr} offset:{u*1024 + (dt >> 1)*256}'))
        return aa[:2] + xr + aa[2:]
    def k_reads(self, base, tag='kr'):
        us = [I(f'v_add_u32 v{vK}, {base}, v{aK}')]
        for ks in range(4):
            for kt in range(2):
                us.append(I(f'ds_read_b128 {ar(aKF + (kt*4+ks)*4)}, v{vK} offset:{kt*4096 + ks*256}', tag=tag))
        return us
    def v_reads(self, base, dst=aVF, tag='vr'):
        pre = [I(f'v_add_u32 v{vVE}, {base}, v{aVE}'), I(f'v_xor_b32 v{vVO}, 32, v{vVE}')]
        us = []
        for dt in range(8):
            for h in range(2):
                us.append((dt, I(f'ds_read_b64_tr_b16 {ar(dst + 4*dt + 2*h, 2)}, v{vVE if dt % 2 == 0 else vVO} offset:{16384 + h*4096 + (dt >> 1)*256}', tag=tag)))
        return pre, us
    def q_mfmas(self, j, touter=False):
        st = (j & 1) * 52; m = []
        order = [(t, dt) for t in range(5) for dt in range(8)] if touter else [(t, dt) for dt in range(8) for t in range(5)]
        for t, dt in order:
            m += I(f'{MF} {vr(O(t, dt))}, {ar(st + 4*dt)}, {ar(st + 32 + 4*t)}, {vr(O(t, dt)) if j else "0"}')
        return m
    def s_mfmas(self, zero=False):
        m = []
        for t in range(5):
            for ks in range(4):
                for kt in range(2):
                    c = vr(Sreg(t, kt)) if ks else ('0' if zero else vr(NM4 + 4*t))
                    m += I(f'{MF} {vr(Sreg(t, kt))}, {ar(aKF + (kt*4+ks)*4)}, {ar(Qf(ks, t))}, {c}')
        m[0] = waittag('kr') + [m[0]]
        return m
    def pv_mfmas(self, first=False, vf=aVF, ones_first=True):
        ones = [I(f'{MF} {ar(aL + 4*t)}, {ar(aONE)}, {vr(Preg(t))}, {"0" if first else ar(aL + 4*t)}')[0] for t in range(5)]
        m = list(ones) if ones_first else []
        for t in range(5):
            if not ones_first: m.append(ones[t])
            for dt in range(8):
                m += I(f'{MF} {vr(O(t, dt))}, {ar(vf + 4*dt)}, {vr(Preg(t))}, {"0" if first else vr(O(t, dt))}')
        return m
    def q_convert(self, t):
        us = []
        for ks in range(4):
            x = O(t, 2*ks); y = x + 4
            if self.c.pkq:
                for k in range(0, 8, 2): us.append(I(f'v_pk_mul_f32 v[{x+k}:{x+k+1}], v[{x+k}:{x+k+1}], s[40:41] op_sel_hi:[1,0]'))
            else:
                for k in range(8): us.append(I(f'v_mul_f32 v{x+k}, {sC}, v{x+k}'))
        for ks in range(4):
            x = O(t, 2*ks); y = x + 4
            for s in (f'v{x}, v{x}, v{x+1}', f'v{y}, v{y}, v{y+1}', f'v{x+1}, v{x+2}, v{x+3}', f'v{y+1}, v{y+2}, v{y+3}'):
                us.append(I('v_cvt_pk_bf16_f32 ' + s))
        for ks in range(4):
            x = O(t, 2*ks); y = x + 4
            for k in range(2):
                us.append(I(f'v_cndmask_b32 v{x+2+k}, v{x+k}, v{y+k}, vcc'))
                us.append(I(f'v_cndmask_b32 v{y+2+k}, v{y+k}, v{x+k}, vcc'))
        for ks in range(4):
            x = O(t, 2*ks); y = x + 4
            for k, r in enumerate((x+2, x+3, y+2, y+3)): us.append(I(f'v_accvgpr_write_b32 a{Qf(ks, t)+k}, v{r}'))
        return us
    def exp_units(self, t):
        b = Sreg(t, 0)
        return [I(f'v_exp_f32 v{b+k}, v{b+k}') for k in range(8)], [I(f'v_cvt_pk_bf16_f32 v{Preg(t)+k}, v{b+2*k}, v{b+2*k+1}') for k in range(4)]
    def rowmax(self, m, c, b):
        return I(f'''v_max3_f32 v{m}, v{b}, v{b+1}, v{b+2}
        v_max3_f32 v{c}, v{b+3}, v{b+4}, v{b+5}
        v_max3_f32 v{m}, v{m}, v{b+6}, v{b+7}
        v_max_f32 v{m}, v{m}, v{c}
        v_mov_b32 v{c}, v{m}
        v_permlane32_swap_b32 v{m}, v{c}
        v_max_f32 v{m}, v{m}, v{c}
        v_mov_b32 v{c}, v{m}
        v_permlane16_swap_b32 v{m}, v{c}
        v_max_f32 v{m}, v{m}, v{c}''')
    def softmax_streams(self, i, ck, exp_dead, cvt_lo):
        mx = []
        for t in range(5):
            b = Sreg(t, 0)
            for k in range(4):
                m = vMX0 if k % 2 == 0 else vMX1
                if t == 0 and k < 2: mx.append(I(f'v_max_f32 v{m}, v{b+2*k}, v{b+2*k+1}'))
                else: mx.append(I(f'v_max3_f32 v{m}, v{b+2*k}, v{b+2*k+1}, v{m}'))
        mx.append(I(f'v_max_f32 v{vMX0}, v{vMX0}, v{vMX1}'))
        st = FS(mx + [I(f'v_cmp_lt_f32 vcc, {sT}, v{vMX0}')], -1, ck - 1)
        st.append(F(I(f's_cbranch_vccnz L_stub{i}\nL_ret{i}:'), ck, ck, cost=1))
        self.stubs.append(i)
        for t in range(5):
            ex, cv = self.exp_units(t)
            st += FS(ex, -1, exp_dead(t)) + FS(cv, cvt_lo(t), exp_dead(t))
        return st
    def q_phase(self):
        e = self.e
        self.stamp('e'); e(waittag('x0', 'wq0')); self.stamp('e'); e('s_barrier'); self.stamp('q', 'e')
        qr = self.q_reads(0)
        for k, u in enumerate(qr):
            e(u)
            if k < len(self.late_pro): e(self.late_pro[k])
        for u in self.late_pro[len(qr):]: e(u)
        e(waittag('wq1')); e('s_waitcnt lgkmcnt(0)\ns_barrier'); self.stamp('e')
        for j in range(15):
            d = []
            if j + 3 < 16: d += self.wq_units(j + 3)
            if j % 2 == 1 and (j - 1) // 2 + 2 < 8: d += self.x_units((j - 1) // 2 + 2)
            ke = self.c.kv_end
            if j < self.c.kv_start: n = 0
            elif self.c.kveven == 2:
                wts = [(1.0 if (k % 2 == 0 or k >= 13) else self.c.kvw) for k in range(j, ke)]
                n = round(len(self.kvq) * wts[0] / sum(wts)) if wts else len(self.kvq)
            elif self.c.kveven:
                left = len([k for k in range(j, ke) if k % 2 == 0 or k >= 13])
                n = 0 if (j % 2 == 1 and j < 13) else (-(-len(self.kvq) // max(1, left)))
            else:
                n = -(-len(self.kvq) // max(1, ke - j)) if j < ke else len(self.kvq)
            d += [self.kvq.pop(0) for _ in range(min(n, len(self.kvq)))]
            ds = self.dma_stream(d, 1, min(39, self.c.vsp * len(d)), slack=1) if d else []
            streams = [FS(self.q_reads(j + 1), 0, 30), ds]
            if j == 0 and self.c.l2pfq: streams.append(FS(self.l2pf_q(), 22, 39))
            if j == 3: streams.append(FS([I(f'v_readlane_b32 {sOLD[r]}, v{vFOFF}, {r}') for r in range(4)] + [I(f'v_readlane_b32 {sOLD2[r]}, v{vFOFF2}, {r}') for r in range(4)], 30, 39))
            if self.c.cpf1 and j == self.c.cpf1: streams.append(FS(self.code_pf('L_conv', 60, 216, 143), 24, 39))
            if j == 14 and self.c.nstg >= 1: streams.append(FS(self.kv_drain(2), 20, 39, step=2))
            if j == 13 and self.c.nstg < 1: streams.append(self.dma_stream(self.kv_stage(2), 4, 36))
            self.sch(f'q{j}', self.q_mfmas(j), streams)
            tags = []
            if j + 2 < 16:
                tags.append(f'wq{j+2}')
                if (j + 2) % 2 == 0: tags.append(f'x{(j+2)//2}')
            if j == 14: tags += ['k0', 'kv0']
            e(waittag(*tags)); e('s_waitcnt lgkmcnt(0)\ns_barrier'); self.stamp('q')
    def q_to_attn(self):
        main = self.q_mfmas(15, touter=True) + self.s_mfmas(zero=True) + self.s_mfmas()
        conv = []
        for t in range(5):
            cu = self.q_convert(t)
            conv += FS(cu, 8*t + 9, 39 + 8*t)
        drains = FS(self.kv_drain(3), 8, 24, step=2) if self.c.nstg >= 2 else []
        if self.c.nstg >= 3: drains += FS(self.kv_drain(4), 24, 40, step=2)
        for f in conv:
            w = [r for x in f.ins for r in x.writes if r[0] == 'a']
            if w and int(w[0][1:]) >= 192: f.lo = max(f.lo, 26 if int(w[0][1:]) < 224 else 42)
        init = []
        for t in range(5):
            b = Sreg(t, 0); lo = 40 + 8*t + 9; hi = 79 + 8*t
            u = [[x] for x in self.rowmax(vMX0, vMX1, b)]
            u += [I(f'v_sub_f32 v{NM4+4*t+k}, 0, v{vMX0}') for k in range(4)]
            u += [I(f'v_sub_f32 v{b+k}, v{b+k}, v{vMX0}') for k in range(8)]
            ex, cv = self.exp_units(t)
            init += FS(u + ex + cv, lo, hi)
        k0 = FS(self.k_reads(SLOT + 16384), -1, 12)
        k1 = self.k_reads(0)
        k1s = [F(k1[0], 60, 79)] + [F(u, 72 + k, 79) for k, u in enumerate(k1[1:])]
        pre, vu = self.v_reads(0)
        vs = FS(pre, 44, 70) + [F(u, 44, 84) for _, u in vu]
        d0 = (self.kv_stage(3) if self.c.nstg < 2 else []) + (self.kv_stage(4) if self.c.nstg < 3 else [])
        v1 = self.dma_stream(d0, 0, 40) if d0 else []
        if self.c.late and not d0: v1 += self.dma_stream(self.kv_reg(6, (0,)), 4, 40)
        v1 += [F(I('s_barrier'), 46, 50)] + self.dma_stream(self.kv_dma(SV, 1, SLOT + 16384, 'kv1'), 50, 64)
        if self.c.late: v1 += self.dma_stream(self.kv_reg(6, (1,) if not d0 else (0, 1)), 66, 86)
        if self.c.early5:
            v1 += [F(waittag('vr') + I('s_barrier'), 88, 90, cost=2)] + self.dma_stream(self.kv_stage(5), 92, 116)
        self.e('L_conv:')
        self.sch('q15..s1', main, [k0, drains, conv + init, k1s, vs, v1], pre_cap=9, cap=self.c.ccap)
    def iteration(self, i):
        e = self.e
        L0 = 4 if self.c.late else 2
        dyn = self.c.loop and L0 <= i <= self.c.lend
        if dyn and i == L0:
            e(f's_mov_b32 {sRB}, {(L0 % 5)*SLOT}\ns_add_u32 {sDB}, {sKVLDS}, {((L0 - 1) % 5)*SLOT}\n{self.kvoff(L0 + 5, sKO)}\n{self.kvoff(L0 + 4, sVO)}')
        if dyn: e(f'L_loopmark{i}:')
        tags = [f'kv{i}', 'vr'] + (['wown'] if i == 15 else [])
        if i == 15 and self.c.v15gap >= 0: return self.tail()
        if dyn: e('s_waitcnt vmcnt(24) lgkmcnt(0)')
        e(waittag(*tags)); e('s_barrier')
        if i == 15: return self.tail()
        if dyn: dma = self.kv_stage_dyn(i + 4)
        elif i == 1 and self.c.early5: dma = self.kv_reg(7) if self.c.late else []
        elif i in (2, 3) and self.c.late: dma = self.kv_drain(i + 4)
        elif i <= 11: dma = self.kv_stage(i + 4)
        elif i <= 13: dma = self.wo_own(i - 12)
        else: dma = []
        main = self.pv_mfmas(first=(i == 1)) + self.s_mfmas()
        base = sRB if dyn else (i % 5) * SLOT
        sm = self.softmax_streams(i, 11, lambda t: 44 + 8*t, lambda t: 12 + 8*t)
        ks = FS(self.k_reads(base), -1, 36)
        pre, vu = self.v_reads(base)
        vs = FS(pre, 20, 60) + [F(u, 37 + dt, 80) for dt, u in vu]
        streams = [sm, ks, vs]
        ds = self.dma_stream(dma, self.c.dlo, self.c.dhi) if dma else []
        if self.c.l2pf and i == self.c.pfit: ds += FS(self.l2pf_wo(), 72, 84)
        if self.c.tlb == i: ds = FS(self.tlb_touch(), 13, 30) + ds
        if self.c.cpf2 == i: ds = FS(self.code_pf('L_tail', 4, vTB, 244), 13, 30) + ds
        if dyn:
            ds += FS([I(x) for x in (f's_add_u32 {sDB}, {sRB}, {sKVLDS}', f's_add_u32 {sRB}, {sRB}, {SLOT}',
                      f's_cmp_eq_u32 {sRB}, {5*SLOT}\ns_cselect_b32 {sRB}, 0, {sRB}', f's_mov_b32 {sVO}, {sKO}', f's_add_u32 {sKO}, {sKO}, 8192') + ((f's_and_b32 {sKO}, {sKO}, 0x1e000', f's_or_b32 {sKO}, {sKO}, {sKVOFF}') if self.c.krot else ())], 61, 84)
        streams.append(ds)
        self.sch(f'it{i}', main, streams)
        if dyn: e(f'L_loopend{i}:')
    def rare(self):
        p = I('L_rare:\ns_nop 7\ns_nop 1')
        for t in range(5):
            b = Sreg(t, 0)
            p += self.rowmax(vMX0, vMX1, b)
            p += I(f'v_max_f32 v{vMX0}, 0, v{vMX0}')
            for k in range(4): p += I(f'v_sub_f32 v{NM4+4*t+k}, v{NM4+4*t+k}, v{vMX0}')
            for k in range(8): p += I(f'v_sub_f32 v{b+k}, v{b+k}, v{vMX0}')
            p += I(f'v_sub_f32 v{vTA}, 0, v{vMX0}\nv_exp_f32 v{vTA}, v{vTA}')
            for k in range(32): p += I(f'v_mul_f32 v{O(t,0)+k}, v{O(t,0)+k}, v{vTA}')
            for k in range(4):
                p += I(f'v_accvgpr_read_b32 v{vTB}, a{aL+4*t+k}\nv_mul_f32 v{vTB}, v{vTB}, v{vTA}\nv_accvgpr_write_b32 a{aL+4*t+k}, v{vTB}')
            for k in range(4):
                r = Preg(t) + k
                p += I(f'''v_lshlrev_b32 v{vTB}, 16, v{r}
                v_and_b32 v{vMX1}, 0xffff0000, v{r}
                v_mul_f32 v{vTB}, v{vTB}, v{vTA}
                v_mul_f32 v{vMX1}, v{vMX1}, v{vTA}
                v_cvt_pk_bf16_f32 v{r}, v{vTB}, v{vMX1}''')
        p += I(f's_nop 1\ns_setpc_b64 {sRET}')
        return p
    def own(self, ks, t): return self.ownmap[(ks, t)]
    def acc(self, t, nt): return 32*t + 4*nt
    def norm_units(self, t):
        us = [I(f'v_accvgpr_read_b32 v{vRL+t}, a{aL+4*t}'), I(f'v_rcp_f32 v{vRL+t}, v{vRL+t}')]
        for ks in range(4):
            b = O(t, 2*ks)
            if self.c.pkn:
                r = vRL + t; pr = r & ~1; sel = r & 1
                for k in range(0, 8, 2): us.append(I(f'v_pk_mul_f32 v[{b+k}:{b+k+1}], v[{b+k}:{b+k+1}], v[{pr}:{pr+1}] op_sel:[0,{sel}] op_sel_hi:[1,{sel}]'))
            else:
                for k in range(8): us.append(I(f'v_mul_f32 v{b+k}, v{b+k}, v{vRL+t}'))
            for k in range(4): us.append(I(f'v_cvt_pk_bf16_f32 v{self.own(ks, t) + k}, v{b+2*k}, v{b+2*k+1}'))
            f = ks*5 + t
            adr, off = (vEX1, f*1024) if f < 16 else (vEX2, (f-16)*1024)
            us.append(I(f's_add_u32 {sT1}, {sOW}, {(ks >> 1)*20480 + ((ks & 1)*5 + t)*1024}') +
                      I(f'buffer_store_dwordx4 {vr(self.own(ks, t))}, v{vL16}, {SOX}, {sT1} offen{self.pol(self.c.opol)}', tag='ost'))
            us.append(I(f'ds_write_b128 v{adr}, {vr(self.own(ks, t))} offset:{off}', tag='exw'))
        return us
    def a_reads(self, e, o, base, nks, dst, tag):
        us = []
        for ks in range(nks):
            for nt in range(4):
                for h in range(2):
                    us.append(I(f'ds_read_b64_tr_b16 {ar(dst + (ks*4 + nt)*4 + 2*h, 2)}, v{e if nt % 2 == 0 else o} offset:{base + ks*8192 + h*4096 + (nt >> 1)*256}', tag=tag))
        return us
    def rem_reads(self, kp):
        u = kp // 2; ksl = kp % 2; st = self.aset(kp)
        aa = self.a_reads(vWEr, vWOr, WOB[u % 4] + ksl*8192, 1, st, 'rr')
        adr, off = (vOB0, OB[u % 4] - OB[0]) if u % 4 < 2 else (vOB1, OB[u % 4] - OB[2])
        bb = [I(f'ds_read_b128 {ar(st + 16 + 4*t)}, v{adr} offset:{off + (ksl*5 + t)*1024}', tag='rr') for t in range(5)]
        return aa[:2] + bb + aa[2:]
    def aset(self, kp):
        return aSET[kp % 2] if kp < 22 else (0, 40)[kp - 22]
    def check(self, r):
        self.chk.append(r)
        return I(f'v_readlane_b32 {sRDY}, v{vPOLL}, {r}\ns_sub_u32 {sRDY}, {sRDY}, {sOLD[r]}\ns_cmp_eq_u32 {sRDY}, {sXCC if self.c.opol != "sc1" else 32}\ns_cbranch_scc0 L_cstub{r}\nL_cret{r}:')
    def store_units(self, t):
        us = []
        for m in range(2):
            b = self.acc(t, 2*m)
            for k in range(4): us.append(I(f'v_cvt_pk_bf16_f32 v{b+k}, v{b+2*k}, v{b+2*k+1}'))
            us.append(I(f's_add_u32 {sT1}, {sPW}, {(t*2+m)*1024}') +
                      I(f'buffer_store_dwordx4 {vr(b)}, v{vL16}, {SWS}, {sT1} offen{self.pol(self.c.stpol)}', tag='st'))
        return us
    def tail(self):
        e = self.e; L = f'v{vLANE}'; self.chk = []
        e('L_tail:\ns_mov_b64 s[16:17], s[100:101]')
        regs = {0: [220, 224, 228, 232], 1: [236, 160, 164, 168], 2: [172, 176, 180, 184], 3: [188, 192, 196, 200], 4: [204, 208, 212, 216]}
        self.ownmap = {(ks, t): regs[t][ks] for t in range(5) for ks in range(4)}
        o0 = []
        for t in range(5):
            for ks in range(4):
                for nt in range(4):
                    o0 += I(f'{MF} {vr(self.acc(t, nt))}, {ar(aA0 + (ks*4+nt)*4)}, {vr(self.own(ks, t))}, {vr(self.acc(t, nt)) if ks else "0"}')
        pv15 = self.pv_mfmas(vf=aKF, ones_first=False)
        pv15[0] = waittag('vr') + [pv15[0]]
        o0[0] = waittag('af0') + [o0[0]]
        main = self.pv_mfmas() + pv15 + o0
        sm = self.softmax_streams(15, 11, lambda t: 43 + 9*t, lambda t: 12 + 8*t)
        pre, vu = self.v_reads(0, dst=aKF)
        rd = FS(pre + [u for _, u in vu], -1, 30)
        if self.c.v15gap >= 0:
            G = self.c.v15gap
            rd = [F(waittag('kv15', 'wown') + I('s_barrier'), G, G, cost=2)] + FS(pre + [u for _, u in vu], G, 40)
            main[5] = waittag('vr') + [main[5]]
        rd += FS([I(f's_lshl_b32 {sT1}, {sHH}, 15'), I(f's_add_u32 {sT1}, {sT1}, {SLOT}'), I(f'v_add_u32 v{vOEs}, {sT1}, v{vOE}'), I(f'v_xor_b32 v{vOOs}, 32, v{vOEs}')] +
                 self.a_reads(vOEs, vOOs, 0, 4, aA0, 'af0'), -1, 70)
        setup = [I(x) for x in (f'v_lshlrev_b32 v{vL16}, 4, {L}', f's_lshl_b32 {sT1}, {sW}, 14', f's_add_u32 {sT1}, {sT1}, 98304',
                 f'v_add_u32 v{vEX1}, {sT1}, v{vL16}', f'v_add_u32 v{vEX2}, {sW4K}, v{vL16}')]
        st0 = []
        k0 = [i for i, f in enumerate(rd) if any(f'v{aVE}' in x.reads for x in f.ins)][0]
        rd[k0 + 2:k0 + 2] = FS(setup, -1, 52)
        rd += [F(waittag('vr') + I('s_barrier'), 72, 80, cost=2)] + self.dma_stream(self.wo_rem(0), 74, 90)
        rd += FS([I(f'v_xor_b32 v{vOEs}, 0x18000, v{vOEs}'), I(f'v_xor_b32 v{vOOs}, 0x18000, v{vOOs}')] + self.a_reads(vOEs, vOOs, 0, 4, aA1, 'af1'), self.c.normlast - 40, 164)
        nl = self.c.normlast
        nm = []
        for t in range(5):
            nm += FS(self.norm_units(t), 45 + 9*t + 10, min(89 + 16*t, nl))
            if t == 0:
                nm += FS([I(x) for x in (f'v_xor_b32 v{vEXR1}, 0x4000, v{vEX1}', f'v_xor_b32 v{vEXR2}, 0x1000, v{vEX2}', f's_mul_i32 {sT1}, {sQH}, 10240',
                          f's_add_u32 {sT1}, {sT1}, {OB[0]}', f'v_add_u32 v{vOB0}, {sT1}, v{vL16}', f'v_add_u32 v{vOB1}, {OB[2] - OB[0]}, v{vOB0}',
                          f'v_mov_b32 v{vWEr}, v{vOE}', f'v_xor_b32 v{vWOr}, 32, v{vOE}', f's_add_u32 {sT1}, {sOLD[0]}, {sXCC if self.c.opol != "sc1" else 32}\nv_mov_b32 v{vFLAG}, {sT1}', f'v_add_u32 v{vPOFF}, {sHP}, {L}', f'v_and_b32 v{vPOFF}, 3, v{vPOFF}', f'v_lshlrev_b32 v{vPOFF}, 2, v{vPOFF}')], -1, 89)
        l4 = [f for f in nm if any(f'a{aL+16}' in x.reads for x in f.ins)][0]
        for f in rd:
            if any(x.tag == 'af1' for x in f.ins): f.lo = max(f.lo, 100)
        l4.hi = min(l4.hi, 99)
        exr = []
        for f in range(20):
            adr, off = (vEXR1, f*1024) if f < 16 else (vEXR2, (f-16)*1024)
            exr.append(I(f'ds_read_b128 {ar(aPART + 4*f)}, v{adr} offset:{off}', tag='exr'))
        nm += [F(waittag('exw') + I('s_barrier'), -1, nl + 6, cost=2)] + FS(exr, -1, 164)
        pl = [F(I(f'buffer_load_dword v{vPOLL}, v{vPOFF}, {SDB}, 0 offen sc0 sc1'), self.c.pearly, self.c.pearly)] if self.c.pearly else []
        self.sch('tail', main, [sm, rd, st0, nm, pl], cap=self.c.tcap)
        self.stamp('main', 'o', 'h', 'ao')
        main = []
        for ks in range(4):
            for nt in range(4):
                for t in range(5):
                    main += I(f'{MF} {vr(self.acc(t, nt))}, {ar(aA1 + (ks*4+nt)*4)}, {ar(aPART + (ks*5+t)*4)}, {vr(self.acc(t, nt))}')
        main[0] = waittag('exr', 'af1') + I('s_barrier') + [main[0]]
        Z, Pg = self.c.zgap, self.c.pgap
        sig = self.stamp_i('h') + waittag('ost') + self.stamp_i('h') + I(f's_barrier\ns_cmp_lg_u32 {sW}, 0\ns_cbranch_scc1 L_nosig')
        sig += I(f's_mov_b64 exec, 1\nbuffer_store_dword v{vFLAG}, off, {SDB}, {sCL} sc0 sc1\ns_mov_b64 exec, -1\nL_nosig:')
        for x in sig:
            if x.kind == 'vst': x.kind = 'opaque'
        ds = [F(sig, Z, Z, cost=4)] + self.dma_stream(self.wo_rem(1) + self.wo_rem(2) + self.wo_rem(3), 0, 0)[:0]
        if self.c.pearly:
            ds += [F(self.stamp_i('h') + self.check(1) + self.stamp_i('h'), Z, Z, cost=4)]
            un = self.o_rem(0)
            for u in range(1, 4): un += self.o_rem(u) + self.wo_rem(u)
            d2 = self.dma_stream(un, Z + 2, 78, slack=0)
            for f in d2: f.lo = max(f.lo, Z)
            ds += d2
        else:
            w13 = self.dma_stream(self.wo_rem(1) + self.wo_rem(2) + self.wo_rem(3), Z + 2, Pg - self.c.pdist - 2)
            ds += w13 + [F(I(f'buffer_load_dword v{vPOLL}, v{vPOFF}, {SDB}, 0 offen sc0 sc1'), Pg - self.c.pdist, Pg - self.c.pdist),
                         F(self.stamp_i('h') + self.check(1) + self.stamp_i('h'), Pg, Pg, cost=4)]
            ds += self.dma_stream(self.o_rem(0) + self.o_rem(1) + self.o_rem(2) + self.o_rem(3), Pg + 1, 79, slack=0)
        c0 = [F(self.stamp_i('h') + waittag('u0') + self.stamp_i('h') + I('s_barrier'), self.c.c0gap, self.c.c0gap, cost=2)] + FS(self.rem_reads(0), self.c.c0gap, 76)
        self.sch('s1', main, [ds, c0])
        self.stamp('o', 'ao')
        pend = []
        NL = self.c.lastn
        for kp in range(24 - NL + 1):
            u = kp // 2; st = self.aset(kp)
            main = []
            if kp < 24 - NL:
                for nt in range(4):
                    for t in range(5):
                        main += I(f'{MF} {vr(self.acc(t, nt))}, {ar(st + 4*nt)}, {ar(st + 16 + 4*t)}, {vr(self.acc(t, nt))}')
            else:
                for t in range(5):
                    for k2 in range(kp, 24):
                        for nt in range(4):
                            main += I(f'{MF} {vr(self.acc(t, nt))}, {ar(self.aset(k2) + 4*nt)}, {ar(self.aset(k2) + 16 + 4*t)}, {vr(self.acc(t, nt))}')
            head = waittag('rr')
            if kp % 2 == 1 and u + 1 < 12:
                head = waittag('rr', f'u{u+1}') + I('s_barrier')
                if u + 4 < 12:
                    pend = self.wo_rem(u + 4) + self.o_rem(u + 4)
                    if (u + 4) % 4 == 0: head += self.check(1 + (u + 4) // 4)
            main[0] = head + [main[0]]
            streams = []
            if kp + 1 < 24 - NL: streams.append(FS(self.rem_reads(kp + 1), 0, 14))
            elif kp + 1 == 24 - NL:
                streams.append(FS([x for k2 in range(kp + 1, 24) for x in self.rem_reads(k2)], 0, 17))
            if pend:
                n = 4 if kp % 2 == 1 else len(pend)
                streams.append(self.dma_stream(pend[:n], 1, 18, slack=1)); pend = pend[n:]
            if kp == 24 - NL:
                su = []
                for t in range(4): su += FS(self.store_units(t), 4*NL*(t + 1) + 1, 10**6)
                streams.append(su)
            if self.c.fuse and 12 <= kp < 20:
                fs = self.final_setup(16) + self.final_setup(18); n = len(fs)
                streams.append(FS(fs[(kp - 12)*n//8:(kp - 11)*n//8], 8, 19))
            self.sch(f'r{kp}', main, streams, cap=(3 if kp >= 23 - NL else 2))
            if kp % 4 == 3: self.stamp('o', 'ao')
        for u in self.store_units(4): e(u)
        if self.c.fuse: self.final_reduce()
    def final_setup(self, part):
        L = f'v{vLANE}'
        sA, sO, sQ = 's37', 's54', 's55'
        sel = '\n'.join(f's_cmp_eq_u32 {sOCT}, {r}|s_cselect_b32 {sQ}, {sOLD2[r]}, {sQ}' for r in range(4))
        sel2 = '\n'.join(f's_cmp_eq_u32 {sOCT}, {r}|s_cselect_b32 {sOLD2[r]}, {sQ}, {sOLD2[r]}' for r in range(4))
        if part == 16:
            return [I(x.replace('|', '\n')) for x in f'''s_mov_b32 s14, {8*160*1024*2}
            s_mov_b64 s[12:13], s[16:17]
            s_mul_i32 {sA}, {sOCT}, 2560
            s_add_u32 {sA}, {sA}, {sPW}
            s_lshr_b32 {sO}, {sBLK}, 2
            s_and_b32 {sO}, {sO}, 7
            s_mul_i32 {sO}, {sO}, 160
            s_mul_i32 {sQ}, {sQH}, 80
            s_add_u32 {sO}, {sO}, {sQ}
            s_lshl_b32 {sO}, {sO}, 11
            s_lshr_b32 {sQ}, {sBLK}, 5
            s_lshl_b32 {sQ}, {sQ}, 10
            s_add_u32 {sO}, {sO}, {sQ}
            s_lshl_b32 {sQ}, {sHP}, 8
            s_add_u32 {sO}, {sO}, {sQ}
            s_lshl_b32 {sQ}, {sHH}, 7
            s_add_u32 {sO}, {sO}, {sQ}
            {sel}
            s_add_u32 {sQ}, {sQ}, 1
            v_mov_b32 v{vFLAG}, {sQ}
            s_add_u32 {sQ}, {sQ}, 1
            {sel2}
            s_lshl_b32 {sCL}, {sW}, 2
            s_lshl_b32 {sIDX2}, {sIDX2}, 2
            s_mul_i32 {sQ}, {sOCT}, 160
            v_lshlrev_b32 v48, 4, {L}
            v_mov_b32 v49, 0x3f80
            v_mov_b32 v50, 0x3f800000'''.split('\n')]
        us = []
        for k in range(3):
            us += [I(x) for x in f'''v_add_u32 v26, {sQ}, {L}
            v_add_u32 v26, {64*k}, v26
            v_lshrrev_b32 v27, 7, v26
            v_lshlrev_b32 v{28+k}, 15, v27
            v_bfe_u32 v27, v26, 6, 1
            v_lshl_add_u32 v{28+k}, v27, 6, v{28+k}
            v_and_b32 v27, 15, v26
            v_lshl_add_u32 v{28+k}, v27, 11, v{28+k}
            v_bfe_u32 v27, v26, 4, 2
            v_lshl_add_u32 v{28+k}, v27, 3, v{28+k}'''.split('\n')]
        return us
    def final_reduce(self):
        e = self.e
        sA, sO = 's37', 's54'
        cmp4 = '\n'.join(f'v_readlane_b32 {sRDY}, v{vPOLL}, {r}\ns_cmp_lg_u32 {sRDY}, {sOLD2[r]}\ns_addc_u32 {sCNT}, {sCNT}, 0' for r in range(4))
        e(f'''s_mul_i32 {sT0}, {sOCT}, {PART_BYTES}
        s_sub_u32 s24, s24, {sT0}
        s_subb_u32 s25, s25, 0
        s_mov_b32 s26, {4*PART_BYTES}
        s_waitcnt vmcnt(0)
        s_mov_b64 exec, 1
        buffer_store_dword v{vFLAG}, off, {SD2}, {sIDX2} sc0 sc1
        s_mov_b64 exec, -1''')
        self.stamp('o')
        e(f'''s_mov_b32 {sWB}, {self.c.maxpoll}
        s_branch L_fpoll
        L_floop:
        {f's_sleep {self.c.slp}' if self.c.slp else ''}
        L_fpoll:
        buffer_load_dword v{vPOLL}, v48, {SD2}, {sCL} offen sc0 sc1
        s_waitcnt vmcnt(0)
        s_mov_b32 {sCNT}, 0
        {cmp4}
        s_sub_u32 {sWB}, {sWB}, 1
        s_cmp_eq_u32 {sWB}, 0
        s_cbranch_scc1 L_fgo
        s_cmp_lg_u32 {sCNT}, 4
        s_cbranch_scc1 L_floop
        L_fgo:''')
        self.stamp('o')
        R0 = 160
        for k in range(3):
            for i in range(4):
                e(f's_add_u32 {sT1}, {sA}, {i*PART_BYTES}\nbuffer_load_dwordx4 {vr(R0 + (k*4+i)*4)}, v{vL16}, {SWS}, {sT1} offen offset:{k*1024} sc1')
        for k in range(3):
            for i in range(4):
                for j in range(4):
                    r = R0 + (k*4+i)*4 + j
                    if i == 0: e(f'v_lshlrev_b32 v{96+2*j}, 16, v{r}\nv_and_b32 v{97+2*j}, 0xffff0000, v{r}')
                    elif self.c.dot: e(f'v_dot2c_f32_bf16 v{96+2*j}, v{r}, v49\nv_dot2c_f32_bf16 v{97+2*j}, v{r}, v50')
                    else: e(f'v_lshlrev_b32 v26, 16, v{r}\nv_and_b32 v27, 0xffff0000, v{r}\nv_add_f32 v{96+2*j}, v{96+2*j}, v26\nv_add_f32 v{97+2*j}, v{97+2*j}, v27')
            if self.c.dot: e('s_nop 2')
            for j in range(4): e(f'v_cvt_pk_bf16_f32 v{104+4*k+j}, v{96+2*j}, v{97+2*j}')
            if k == 2: e('s_mov_b32 exec_hi, 0')
            e(f'buffer_store_dwordx2 v[{104+4*k}:{105+4*k}], v{28+k}, {SOUT}, {sO} offen{self.pol(self.c.outpol)}')
            e(f'buffer_store_dwordx2 v[{106+4*k}:{107+4*k}], v{28+k}, {SOUT}, {sO} offen offset:32{self.pol(self.c.outpol)}')
        e('s_mov_b64 exec, -1')
    def poll_code(self):
        p = []
        for r in self.chk:
            p += I(f'''L_cstub{r}:
            s_mov_b32 {sCNT}, {self.c.maxpoll}
            L_cloop{r}:
            {f's_sleep {self.c.slp}' if self.c.slp else ''}
            buffer_load_dword v{vPOLL}, v{vPOFF}, {SDB}, 0 offen sc0 sc1
            s_waitcnt vmcnt(0)
            v_readlane_b32 {sRDY}, v{vPOLL}, {r}
            s_sub_u32 {sCNT}, {sCNT}, 1
            s_cmp_eq_u32 {sCNT}, 0
            s_cbranch_scc1 L_cret{r}
            s_sub_u32 {sRDY}, {sRDY}, {sOLD[r]}
            s_cmp_eq_u32 {sRDY}, 0
            s_cbranch_scc1 L_cloop{r}''')
            if self.c.opol != 'sc1':
                p += I(f'''s_cmp_eq_u32 {sRDY}, {sXCC}
                s_cbranch_scc1 L_cret{r}
                s_cmp_lg_u32 {sWB}, 0
                s_cbranch_scc1 L_cwb{r}
                s_mov_b32 {sWB}, 1
                s_cmp_lg_u32 {sW}, 0
                s_cbranch_scc1 L_cwb{r}
                buffer_wbl2 sc1
                s_waitcnt vmcnt(0)
                s_add_u32 {sT3}, {sOLD[0]}, 32
                v_mov_b32 v{vFLAG}, {sT3}
                s_mov_b64 exec, 1
                buffer_store_dword v{vFLAG}, off, {SDB}, {sCL} sc0 sc1
                s_mov_b64 exec, -1
                L_cwb{r}:
                s_cmp_lt_u32 {sRDY}, 32
                s_cbranch_scc1 L_cloop{r}
                buffer_inv sc1
                s_waitcnt vmcnt(0)''')
            p += I(f's_nop 4\ns_branch L_cret{r}')
        return p
    def peephole(self, prog):
        out = []; prev = {}
        for x in prog:
            if x.kind in ('label', 'branch'): prev = {}; self.curkvo = None
            if isinstance(x.tag, tuple) and x.tag[0] == 'kvo' and self.c.krot:
                if getattr(self, 'curkvo', None) == x.tag: continue
                if x.op == 's_or_b32': self.curkvo = x.tag
                out.append(x); prev.pop(sT2, None); continue
            if sT2 in x.writes: self.curkvo = None
            if x.kind == 'salu' and x.op == 's_add_u32' and len(x.writes) == 1:
                w = next(iter(x.writes))
                if w in ('m0', sT0, sT2) and prev.get(w) == x.text and w not in x.reads: continue
            for w in x.writes:
                prev.pop(w, None)
                for k in [k for k, v in prev.items() if re.search(rf'\b{w}\b', v.split(',', 1)[1])]: prev.pop(k)
            if x.kind == 'salu' and x.op == 's_add_u32' and len(x.writes) == 1: prev[next(iter(x.writes))] = x.text
            out.append(x)
        return out
    def fold(self, prog):
        idx = {x.text: k for k, x in enumerate(prog) if x.kind == 'label'}
        its = [i for i in range(16) if f'L_loopmark{i}:' in idx]
        norm = lambda x: re.sub(r'(L_stub|L_ret)\d+', r'\1', x.text)
        body = {i: [norm(x) for x in prog[idx[f'L_loopmark{i}:'] + 1: idx[f'L_loopend{i}:']]] for i in its}
        last = its[-1]; first = last
        while first - 1 in body and body[first - 1] == body[last]: first -= 1
        self.log.append(('loop', first, last, len(body[last])))
        for i in range(first + 1, last + 1): self.stubs.remove(i)
        a = idx[f'L_loopmark{first}:']; b = idx[f'L_loopend{first}:']; c = idx[f'L_loopend{last}:']
        return prog[:a] + I(self.kvoff(last + 6, sIT)) + prog[a:b] + \
            I(f's_cmp_lg_u32 {sIT}, {sKO}\ns_cbranch_scc1 L_loopmark{first}') + prog[c + 1:]
    def build(self):
        self.prologue(); self.q_phase(); self.q_to_attn(); self.stamp('main', 'q', 'a', 'ao')
        for i in range(1, 16):
            if i == 15: self.stamp('o', 'h')
            self.iteration(i)
            if i in (3, 10, 12): self.stamp('main')
            if i < 15 and not (self.c.loop and 4 <= i < self.c.lend): self.stamp('a', 'ao')
        e = self.e
        if self.c.stamps:
            e('s_waitcnt vmcnt(0)'); self.stamp()
            if self.c.hwid:
                e(f's_getreg_b32 s62, hwreg(HW_REG_XCC_ID)\nv_writelane_b32 v255, s62, {self.nst}\ns_getreg_b32 s62, hwreg(HW_REG_HW_ID)\nv_writelane_b32 v255, s62, {self.nst + 1}'); self.nst += 2
            if self.c.dbgwg >= 0:
                e(f'''s_mov_b64 s[24:25], s[56:57]
                s_mov_b32 s26, 0x10000000
                s_mov_b32 {sT2}, {STAMP_OFF}
                s_cmp_lg_u32 s2, {self.c.dbgwg}
                s_cbranch_scc1 L_end
                s_cmp_lg_u32 {sW}, 0
                s_cbranch_scc1 L_end
                v_readfirstlane_b32 {sT1}, v255
                v_lshlrev_b32 v2, 2, v{vLANE}
                v_subrev_u32 v4, {sT1}, v255
                buffer_store_dword v4, v2, {SWS}, {sT2} offen
                s_endpgm''')
            if self.c.clk == 2: self.nst = 64
            e(f'''s_mov_b64 s[24:25], s[56:57]
            s_mov_b32 s26, 0x10000000
            s_mul_i32 {sT1}, s2, {self.nst*8}
            s_add_u32 {sT1}, {sT1}, {STAMP_OFF}
            s_cmp_lg_u32 {sW}, 0
            s_cbranch_scc1 L_end
            v_lshlrev_b32 v2, 3, v{vLANE}
            v_mov_b32 v4, v255
            v_mov_b32 v5, 0
            v_cmp_gt_u32 vcc, {self.nst}, v{vLANE}
            s_and_saveexec_b64 s[60:61], vcc
            buffer_store_dwordx2 v[4:5], v2, {SWS}, {sT1} offen''')
        e('L_end:\ns_endpgm')
        if self.c.nomem:
            def drop(x):
                if x.tag == 'ost': return 'x' in self.c.nomem
                if x.tag == 'exw': return 'w' in self.c.nomem
                if x.tag == 'exr': return 'r' in self.c.nomem
                if x.kind not in ('dma', 'vld', 'vst'): return False
                t = x.text
                if 'buffer_load_dword a' in t: return 'p' in self.c.nomem and SWO in t
                if SX in t or SWQ in t: return 'q' in self.c.nomem
                if SK in t or SV in t: return 'k' in self.c.nomem
                if SWO in t or SOX in t: return 'o' in self.c.nomem
                if x.tag == 'st': return 's' in self.c.nomem
                return False
            self.p = [x for x in self.p if not drop(x)]
        prog = finalize(self.peephole(self.p))
        if self.c.loop: prog = self.fold(prog)
        for i in self.stubs: prog += I(f'L_stub{i}:\ns_call_b64 {sRET}, L_rare\ns_branch L_ret{i}')
        prog += finalize(self.rare())
        prog += self.poll_code()
        prog += I('L_codeend:')
        return prog

def reduce_kernel(cfg):
    pol = (' ' + cfg.rdpol) if cfg.rdpol else ''
    p = I(f'''
    s_cmp_ge_u32 s2, 640
    s_cbranch_scc1 L_rend
    s_load_dwordx2 s[4:5], s[0:1], 96
    s_load_dwordx2 s[8:9], s[0:1], 80
    v_lshrrev_b32 v1, 6, v0
    v_and_b32 v2, 63, v0
    v_readfirstlane_b32 s3, v1
    v_lshlrev_b32 v3, 4, v2
    s_mul_i32 s12, s2, 6554
    s_lshr_b32 s12, s12, 16
    s_mul_i32 s13, s12, 10
    s_sub_u32 s13, s2, s13
    s_lshl_b32 s13, s13, 2
    s_add_u32 s13, s13, s3           ; piece 0..39
    s_mul_i32 s16, s12, {4*PART_BYTES}
    s_lshl_b32 s17, s13, 10
    s_add_u32 s16, s16, s17
    s_add_u32 s16, s16, {PART_OFF}
    s_mov_b32 s6, {PART_OFF + 256*PART_BYTES}
    s_mov_b32 s7, 0x20000
    s_mov_b32 s10, {8*160*1024*2}
    s_mov_b32 s11, 0x20000
    ''')
    for i in range(4):
        p += I(f'buffer_load_dwordx4 v[{8+4*i}:{11+4*i}], v3, s[4:7], s16 offen{pol}')
        if i < 3: p += I(f's_add_u32 s16, s16, {PART_BYTES}')
    p += I(f'''
    s_mul_i32 s14, s13, 6554
    s_lshr_b32 s14, s14, 16          ; w
    s_mul_i32 s15, s14, 10
    s_sub_u32 s19, s13, s15          ; idx
    s_lshr_b32 s20, s19, 1           ; t
    s_and_b32 s21, s19, 1            ; m
    s_lshr_b32 s22, s12, 2
    s_and_b32 s22, s22, 7            ; b
    s_lshr_b32 s23, s12, 5           ; branch
    s_and_b32 s18, s12, 3            ; hp
    s_mul_i32 s24, s22, 160
    s_lshr_b32 s25, s14, 1
    s_mul_i32 s25, s25, 80
    s_add_u32 s24, s24, s25
    s_lshl_b32 s25, s20, 4
    s_add_u32 s24, s24, s25
    s_lshl_b32 s24, s24, 11
    s_lshl_b32 s25, s23, 10
    s_add_u32 s24, s24, s25
    s_lshl_b32 s25, s18, 8
    s_add_u32 s24, s24, s25
    s_and_b32 s25, s14, 1
    s_lshl_b32 s25, s25, 7
    s_add_u32 s24, s24, s25
    s_lshl_b32 s25, s21, 6
    s_add_u32 s24, s24, s25
    v_and_b32 v4, 15, v2
    v_lshlrev_b32 v4, 11, v4
    v_lshrrev_b32 v5, 4, v2
    v_lshl_add_u32 v4, v5, 3, v4
    ''')
    for i in range(4):
        for j in range(4):
            r = 8 + 4*i + j
            if i == 0: p += I(f'v_lshlrev_b32 v{32+2*j}, 16, v{r}\nv_and_b32 v{33+2*j}, 0xffff0000, v{r}')
            else: p += I(f'v_lshlrev_b32 v6, 16, v{r}\nv_and_b32 v7, 0xffff0000, v{r}\nv_add_f32 v{32+2*j}, v{32+2*j}, v6\nv_add_f32 v{33+2*j}, v{33+2*j}, v7')
    for j in range(4): p += I(f'v_cvt_pk_bf16_f32 v{40+j}, v{32+2*j}, v{33+2*j}')
    p += I('''buffer_store_dwordx2 v[40:41], v4, s[8:11], s24 offen
    buffer_store_dwordx2 v[42:43], v4, s[8:11], s24 offen offset:32
    L_rend:
    s_endpgm''')
    return finalize(p)

def generate(cfg, path):
    g = Gen(cfg)
    main = g.build()
    if cfg.alt:
        import copy
        c2 = copy.copy(cfg)
        for kv in cfg.alt.split('/'):
            k, v = kv.split('~'); cur = getattr(cfg, k)
            setattr(c2, k, type(cur)(int(v)) if isinstance(cur, (bool, int)) and not isinstance(cur, float) else type(cur)(v))
        m2 = Gen(c2).build()
        for x in m2: x.text = re.sub(r'\bL_(\w+)', r'LB_\1', x.text)
        main = I(f's_bitcmp1_b32 s2, {cfg.altbit}\ns_cbranch_scc1 LB_entry') + main + I('LB_entry:') + m2
    red = reduce_kernel(cfg)
    if cfg.dbgwg >= 0:
        k = [i for i, x in enumerate(red) if x.text == 'L_rend:'][0]
        red[k:k] = finalize(I(f'''s_cmp_lg_u32 s2, 0
        s_cbranch_scc1 L_rend
        s_load_dwordx2 s[8:9], s[0:1], 88
        s_mov_b32 s10, 256
        s_mov_b32 s6, 0x10000000
        s_mov_b32 s16, {STAMP_OFF}
        v_lshlrev_b32 v2, 2, v0
        buffer_load_dword v3, v2, s[4:7], s16 offen
        buffer_store_dword v3, v2, s[8:11], 0 offen'''))
    if cfg.fuse:
        s = make_file([(KN, 256, 256, 163840)], [(KN, text_of(main), 512, 102, 256)])
        s = s.replace(f'; @launch kernel={KN} grid', '; @launch grid')
    else:
        s = make_file([(KN, 256, 256, 163840), ('reduce_heads_kernel', 640, 256, 0)],
                      [(KN, text_of(main), 512, 102, 256), ('reduce_heads_kernel', text_of(red), 48, 32, 48)])
    open(path, 'w').write(s)
    open(path[:-2] + '.nst', 'w').write(str(g.nst))
    return g, main

if __name__ == '__main__':
    cfg = Cfg()
    out = sys.argv[1]
    for kv in sys.argv[2:]:
        k, v = kv.split('=')
        cur = getattr(cfg, k)
        setattr(cfg, k, type(cur)(int(v)) if isinstance(cur, (bool, int)) and not isinstance(cur, float) else type(cur)(v.replace('+', ' ')))
    g, main = generate(cfg, out)
    from collections import Counter
    print(out, 'stamps', g.nst, dict(Counter(i.kind for i in main)))
    if cfg.verbose:
        for l in g.log: print(*l)
```

```python
from gen_common import *
STAMP_OFF = 0x8000000
def gen(sections, rep):
    a = Asm(); nst = 2*len(sections) + 2
    a('''
    s_cmp_ge_u32 s2, 256
    s_cbranch_scc1 L_end
    s_load_dwordx2 s[12:13], s[0:1], 8
    s_load_dwordx2 s[44:45], s[0:1], 96
    v_lshlrev_b32 v2, 4, v0
    v_mov_b32 v255, 0
    s_waitcnt lgkmcnt(0)
    s_mov_b32 s46, 0x10000000
    s_mov_b32 s47, 0x20000
    s_mov_b32 s14, 0x2000000
    s_mov_b32 s15, 0x20000
    s_lshl_b32 s16, s2, 17
    ''')
    for k in range(24):
        a(f'buffer_load_dwordx4 v[{160+4*k//1 if False else 160+(4*k)%88}:{163+(4*k)%88}], v2, s[12:15], s16 offen\ns_add_u32 s16, s16, 4096') if k < 22 else None
    for k in range(32):
        a(f'buffer_load_dwordx4 a[{128+4*k}:{131+4*k}], v2, s[12:15], s16 offen\ns_add_u32 s16, s16, 1024')
    a('s_waitcnt vmcnt(0)')
    for r in range(0, 160): a(f'v_mov_b32 v{r+0}, 0') if r >= 4 else None
    for r in range(0, 128): a(f'v_accvgpr_write_b32 a{r}, 0')
    k = 0
    def st():
        nonlocal k
        a(f's_memrealtime s[50:51]\ns_memtime s[52:53]\ns_waitcnt lgkmcnt(0)\nv_writelane_b32 v255, s50, {k}\nv_writelane_b32 v255, s52, {k+1}'); k += 2
    for i, (name, body) in enumerate(sections):
        a('s_barrier'); st()
        a(f's_mov_b32 s20, {rep}\nL_s{i}:'); a(body)
        a(f's_sub_u32 s20, s20, 1\ns_cmp_lg_u32 s20, 0\ns_cbranch_scc1 L_s{i}')
    st()
    a(f'''s_mul_i32 s42, s2, {nst*8}
    s_add_u32 s42, s42, {STAMP_OFF}
    v_cmp_gt_u32 vcc, {nst}, v0
    s_and_saveexec_b64 s[48:49], vcc
    s_cbranch_execz L_end
    v_lshlrev_b32 v1, 3, v0
    v_mov_b32 v2, v255
    v_mov_b32 v3, 0
    buffer_store_dwordx2 v[2:3], v1, s[44:47], s42 offen
    L_end:
    s_endpgm''')
    return a.text(), nst
MF = 'v_mfma_f32_16x16x32_bf16'
def pat(order, A, B, D):
    return '\n'.join(f'{MF} {D(t, d)}, {A(d)}, {B(t)}, {D(t, d)}' for (t, d) in order)
aA = lambda d: f'a[{128+4*d}:{131+4*d}]'
aB = lambda t: f'a[{192+4*t}:{195+4*t}]'
vA = lambda d: f'v[{160+4*d}:{163+4*d}]'
vB = lambda t: f'v[{200+4*t}:{203+4*t}]'
vD = lambda t, d: f'v[{4+(t*8+d)*4 if (t*8+d) < 39 else 4}:{7+(t*8+d)*4 if (t*8+d) < 39 else 7}]'
aD = lambda t, d: f'a[{((t*8+d)%32)*4}:{((t*8+d)%32)*4+3}]'
dout = [(t, d) for d in range(8) for t in range(5)]
tout = [(t, d) for t in range(5) for d in range(8)]
diag = [((k % 5), (k*3) % 8) for k in range(40)]
M32 = '\n'.join(f'v_mfma_f32_32x32x16_bf16 v[{4+16*(k%9)}:{19+16*(k%9)}], {aA(k%8)}, {aB(k%5)}, v[{4+16*(k%9)}:{19+16*(k%9)}]' for k in range(20))
S = [('warm', pat(dout, aA, aB, vD)), ('A-same aa->v', pat(dout, aA, aB, vD)), ('B-same aa->v', pat(tout, aA, aB, vD)), ('diag aa->v', pat(diag, aA, aB, vD)),
     ('A-same vv->v', pat(dout, vA, vB, vD)), ('A-same aa->a', pat(dout, aA, aB, aD)), ('A-same vv->a', pat(dout, vA, vB, aD)), ('32x32 aa->v', M32),
     ('A-same again', pat(dout, aA, aB, vD))]
t, nst = gen(S, 24)
open('mb_pow.s', 'w').write(make_file([('s_kernel', 256, 256, 0)], [('s_kernel', t, 512, 102, 256)]))
open('mb_pow.names', 'w').write('\n'.join(n for n, _ in S))
open('mb_pow.nst', 'w').write(str(nst))
```

```python
from gen_common import *
import mb_pow as P
MF = P.MF
fill = 'v_lshlrev_b32 v3, 4, v0\nv_lshlrev_b32 v1, 3, v0\n' + '\n'.join(f'ds_write_b128 v3, a[{128+4*k}:{131+4*k}] offset:{k*4096}' for k in range(12)) + '\ns_waitcnt lgkmcnt(0)'
def pat(nrd, kind='tr', valu=0, dst=0):
    o = []; k = 0
    for i, (t, d) in enumerate(P.dout):
        o.append(f'{MF} {P.vD(t, d)}, {P.aA(d)}, {P.aB(t)}, {P.vD(t, d)}')
        if i < nrd:
            if kind == 'tr': o.append(f'ds_read_b64_tr_b16 a[{(2*i)%64}:{(2*i)%64+1}], v1 offset:{(i%20)*2048}')
            else: o.append(f'ds_read_b128 a[{(4*i)%64}:{(4*i)%64+3}], v3 offset:{(i%12)*4096}')
            if i % 8 == 7: o.append('s_waitcnt lgkmcnt(4)')
        if valu and i % 2 == 1: o.append(f'v_exp_f32 v{240+i%8}, v{160+i%40}')
    o.append('s_waitcnt lgkmcnt(0)')
    return '\n'.join(o)
zeroA = '\n'.join(f'{MF} {P.vD(t, d)}, a[64:67], {P.aB(t)}, {P.vD(t, d)}' for (t, d) in P.dout)
S = [('fill', fill), ('warm', pat(0)), ('bare', pat(0)), ('21 tr', pat(21)), ('40 tr', pat(40)), ('13 b128', pat(13, 'b')), ('26 b128', pat(26, 'b')),
     ('20 exp', pat(0, valu=1)), ('zero A', zeroA), ('bare again', pat(0))]
t, nst = P.gen(S, 24)
open('mb_pow.s', 'w').write(make_file([('s_kernel', 256, 256, 65536)], [('s_kernel', t, 512, 102, 256)]))
open('mb_pow.names', 'w').write('\n'.join(n for n, _ in S))
open('mb_pow.nst', 'w').write(str(nst))
```

```python
import sys, math, struct, re
from asmlib import *
from gen_common import make_file, KN

class Cfg:
    kpol = 'nt'; vpol = 'nt'; kpolB = '='; vpolB = '='; wpol = ''; stpol = 'sc1'; rdpol = ''; pfpol = ''
    stamps = False; stset = 'main'; clk = 0
    codepf = 1
    kv_pro = 0
    kv_end = 13
    l2pf = 1; pfit = 11; l2pfq = 0
    nstg = 3
    late = 1
    early5 = 1
    rot = 2
    vsp = 4
    kveven = 1
    thr = 8.0
    loop = 1
    nomem = ''
    verbose = 0
    dbgwg = -1
    normlast = 105
    fuse = 1
    outpol = ''
    oldpol = 'sc1'
    slp = 0
    dot = 0
    wo_it = 12
    smap = ''
    wo_hi = 80
    regend = 7
    jit = 0
    nlag = 0
    lean = 1
    tlb = 0
    tlbs = 13
    alt = ''
    altbit = 0
    cpf2 = 0
    cpf1 = 0
    pfgran = 128
    hwid = 0
    v15gap = -1
    pkq = 1
    pkn = 1
    kv_start = 0
    kvw = 0.5
    wpol0 = ''
    nwq0 = 4
    nx0 = 3
    pearly = 0
    c0gap = 66
    pdist = 10
    lastn = 2
    opol = 'sc1'
    zgap = 2
    pgap = 30
    maxpoll = 200000
    krot = 0
    ccap = 6
    tcap = 4
    lend = 10
    dlo = 24
    dhi = 80
STAMP_OFF = 0x8000000
PART_BYTES = 40960
PART_OFF = 0x2000000
OX_BYTES = 327680
FLAG_OFF = 0x3000000
def f32(x): return '0x%08x' % struct.unpack('<I', struct.pack('<f', x))[0]

SX, SWQ, SK, SV, SWO, SWS = 's[4:7]', 's[8:11]', 's[12:15]', 's[16:19]', 's[20:23]', 's[24:27]'
sW, sHH, sQH = 's3', 's28', 's29'
sKVOFF, sKVLDS, sWQOFF, sXOFF, sXLDS, sWO0, sWO1, sWOLDS, sPW = 's30', 's31', 's32', 's33', 's34', 's35', 's36', 's37', 's38'
sC, sT = 's40', 's41'
sT0, sT1, sT2, sT3 = 's42', 's43', 's44', 's45'
sRET = 's[60:61]'
sRB, sDB, sKO, sVO, sIT = 's46', 's47', 's52', 's53', 's50'
sB, sHP, sH0 = 's48', 's49', 's51'
sWQC, sXC, sWQB, sXB = 's88', 's89', 's90', 's91'
SOX, SDB = 's[76:79]', 's[80:83]'
sCL, sXCC, sRDY, sOW, sOCT = 's92', 's93', 's94', 's95', 's39'
sPO = ['s64', 's65', 's66', 's67']; sPWo = ['s68', 's69', 's70', 's71']
sW4K, sW5K, sCNT, sWB = 's96', 's97', 's98', 's99'
sKR, sKC = 's35', 's36'
sOLD = ['s72', 's73', 's74', 's75']
vFOFF = 215; vFOFF2 = 214
SD2 = 's[84:87]'; sOLD2 = ['s0', 's1', 's93', 's36']; sIDX2 = 's59'; sBLK = 's58'; SOUT = 's[12:15]'
STAMP0 = 62
def O(t, dt): return (t * 8 + dt) * 4
S0 = 160; P0 = 200; NM4 = 220
def Sreg(t, kt): return S0 + (t * 2 + kt) * 4
def Preg(t): return P0 + 4 * t
vMX0, vMX1, vTA, vTB = 240, 241, 242, 243
vK, vVE, vVO, aK, aVE = 244, 245, 246, 247, 248
vKVA, vKVB, vLANE, vWOV, vOE = 249, 250, 251, 252, 253
vWQA, vWQB, vX0, vX1 = 200, 201, 202, 203
vQE = [204, 205, 206]; vQO = [207, 208, 209]; vXR = [210, 211]
vWA = [212, 213]
vWA1 = 254
vRL = 240
vOEs, vOOs = 245, 246
vEX1, vEX2, vL16 = 247, 248, 254
vEXR1, vEXR2, vOB0, vOB1, vPOLL, vFLAG, vWEr, vWOr, vPOFF = 16, 17, 18, 19, 20, 21, 22, 23, 24
aVF, aAF, aKF, aL, aONE, aQ = 0, 80, 104, 136, 156, 160
aPART = 0; aA0 = 160
def Qf(ks, t): return aQ + (t * 4 + ks) * 4
def vr(b, n=4): return f'v[{b}:{b+n-1}]'
def ar(b, n=4): return f'a[{b}:{b+n-1}]'
SLOT = 32768
WQBUF = [147456, 65536, 102400]
XBUF = [81920, 126976]
WOB = [16384, 0, 32768, 49152]
OB = [65536, 86016, 106496, 126976]
aA1 = 80
aSET = [160, 196]
MF = 'v_mfma_f32_16x16x32_bf16'

def FS(units, lo=-1, hi=10**6, step=None):
    return [F(u, lo if step is None else int(lo + k * step), hi) for k, u in enumerate(units)]

class Gen:
    def __init__(self, cfg):
        self.c = cfg; self.p = []; self.nst = 0; self.stubs = []; self.log = []
    def e(self, x, tag=None):
        self.p += I(x, tag) if isinstance(x, str) else x
    def stamp_i(self, grp='all'):
        if self.c.stamps and grp in ('all', self.c.stset):
            self.nst += 1
            if self.c.clk == 2:
                return I(f's_memrealtime s[62:63]\ns_waitcnt lgkmcnt(0)\nv_writelane_b32 v255, s62, {self.nst - 1}\ns_memtime s[62:63]\ns_waitcnt lgkmcnt(0)\nv_writelane_b32 v255, s62, {self.nst + 31}')
            return I(f's_mem{"" if self.c.clk else "real"}time s[62:63]\ns_waitcnt lgkmcnt(0)\nv_writelane_b32 v255, s62, {self.nst - 1}')
        return []
    def stamp(self, *grps):
        for g in grps or ('all',): self.e(self.stamp_i(g))
    def sch(self, name, main, streams, **kw):
        v = []
        self.e(sched(main, streams, verbose=v, **kw))
        self.log.append((name,) + v[0])
    @staticmethod
    def pol(p): return (' ' + p) if p else ''
    def kvoff(self, tile, dst=sT2):
        if not self.c.krot: return f's_add_u32 {dst}, {sKVOFF}, {tile*8192}'
        return f's_add_u32 {dst}, {sKR}, {tile*8192}\ns_and_b32 {dst}, {dst}, 0x1e000\ns_or_b32 {dst}, {dst}, {sKVOFF}'
    def kvo(self, tile):
        u = I(self.kvoff(tile))
        for x in u: x.tag = ('kvo', tile)
        return u
    def kvp(self, srd): return self.pol(self.c.kpol if srd == SK else self.c.vpol)
    def kv_dma(self, srd, tile, lds, tag):
        us = []
        for k in range(4):
            u = I(f's_add_u32 m0, {sKVLDS}, {lds}') + self.kvo(tile)
            u += I(f'buffer_load_dwordx4 v{vKVA if k % 2 == 0 else vKVB}, {srd}, {sT2} offen offset:{k*1024}{self.kvp(srd)} lds', tag=tag)
            us.append(u)
        return us
    def kv_stage(self, st):
        b = (st % 5) * SLOT
        return (self.kv_dma(SK, st + 1, b, f'kv{st}') if st < 15 else []) + self.kv_dma(SV, st, b + 16384, f'kv{st}')
    def kv_stage_dyn(self, st):
        us = []
        for part in range(2):
            for k in range(4):
                u = I(f's_add_u32 m0, {sDB}, {part*16384}') if k == 0 else []
                if k == 0: us.append(u); u = []
                u += I(f'buffer_load_dwordx4 v{vKVA if k % 2 == 0 else vKVB}, {SK if part == 0 else SV}, {sKO if part == 0 else sVO} offen offset:{k*1024}{self.kvp(SK if part == 0 else SV)} lds', tag=f'kv{st}')
                us.append(u)
        return us
    def stg(self, st, part, k):
        if st >= 6: return ar(32 + ((st % 2)*8 + part*4 + k)*4)
        return ar(160 + ((st - 2)*8 + part*4 + k)*4)
    def kv_reg(self, st, parts=(0, 1)):
        us = []
        for part in parts:
            if st == 15 and part == 0: continue
            srd, tile = (SK, st + 1) if part == 0 else (SV, st)
            for k in range(4):
                us.append(self.kvo(tile) +
                          I(f'buffer_load_dwordx4 {self.stg(st, part, k)}, v{vKVA if k % 2 == 0 else vKVB}, {srd}, {sT2} offen offset:{k*1024}{self.kvp(srd)}'))
        return us
    def kv_drain(self, st, parts=(0, 1)):
        us = []
        for part in parts:
            if st == 15 and part == 0: continue
            for k in range(4):
                adr, off = {2: (vWA[0], 0), 3: (vWA[0], SLOT), 4: (vWA[1], 0), 6: (vWA1, 0), 7: (vWA1, SLOT)}.get(st, (vTB, 0))
                off += part*16384
                us.append(I(f'ds_write_b128 v{adr}, {self.stg(st, part, k)} offset:{off + k*1024}', tag=f'kv{st}'))
        if st > 7: us[0] = I(f'v_add_u32 v{vTB}, {((st % 5 - 1) * SLOT) & 0xffffffff:#x}, v{vWA1}') + us[0]
        return us
    def wq_next(self, j):
        if self.c.rot == 2 and j < 2: return I(f's_add_u32 {sWQB}, {sWQOFF}, {j*262144}')
        wrap = f's_cmp_eq_u32 {sWQC}, 0x400000\ns_cselect_b32 {sWQC}, 0x80000, {sWQC}' if self.c.rot == 2 else f's_and_b32 {sWQC}, {sWQC}, 0x3fffff'
        return I(f's_add_u32 {sWQB}, {sWQC}, {sWQOFF}\ns_add_u32 {sWQC}, {sWQC}, 262144\n{wrap}')
    def x_next(self, J):
        if self.c.rot == 2 and J < 1: return I(f's_add_u32 {sXB}, {sXOFF}, 0')
        wrap = f's_cmp_eq_u32 {sXC}, 1024\ns_cselect_b32 {sXC}, 128, {sXC}' if self.c.rot == 2 else f's_and_b32 {sXC}, {sXC}, 1023'
        return I(f's_add_u32 {sXB}, {sXC}, {sXOFF}\ns_add_u32 {sXC}, {sXC}, 128\n{wrap}')
    def wq_units(self, j):
        us = []
        for k in range(4):
            u = I(f's_add_u32 m0, {sKVLDS}, {WQBUF[j % 3]}\ns_add_u32 {sT0}, {sWQB}, {k*32768 - k*1024}')
            u += I(f'buffer_load_dwordx4 v{vWQA if k < 2 else vWQB}, {SWQ}, {sT0} offen offset:{k*1024}{self.pol(self.c.wpol0 if j < self.c.nwq0 else self.c.wpol)} lds', tag=f'wq{j}')
            us.append(u)
        if j == 0: us[0] = self.wq_next(0) + us[0]
        if j < 15: us[-1] += self.wq_next(j + 1)
        return us
    def x_units(self, J):
        us = []
        for k in range(5):
            im = (k % 4) * 1024
            u = I(f's_add_u32 m0, {sXLDS}, {XBUF[J % 2] + (k // 4)*4096}\ns_add_u32 {sT0}, {sXB}, {k*8192 - im}')
            u += I(f'buffer_load_dwordx4 v{vX0 if k % 2 == 0 else vX1}, {SX}, {sT0} offen offset:{im}{self.pol(self.c.wpol0 if J < self.c.nx0 else self.c.wpol)} lds', tag=f'x{J}')
            us.append(u)
        if J == 0: us[0] = self.x_next(0) + us[0]
        if J < 7: us[-1] += self.x_next(J + 1)
        return us
    def wo_half(self, base, const, lds, tag):
        us = []
        for k in range(4):
            u = I(f's_add_u32 m0, {sW4K}, {lds}\ns_add_u32 {sT0}, {base}, {const + k*3072}')
            u += I(f'buffer_load_dwordx4 v{vKVA if k % 2 == 0 else vKVB}, {SWO}, {sT0} offen offset:{k*1024}{self.pol(self.c.wpol)} lds', tag=tag)
            us.append(u)
        return us
    def wo_own(self, h):
        us = self.wo_half(sPWo[0], h*131072, (1 + h)*SLOT, 'wown') + self.wo_half(sPWo[0], h*131072 + 65536, (1 + h)*SLOT + 16384, 'wown')
        if h == 0: us[0] = I(f'v_mov_b32 v{vKVA}, v{vWOV}\nv_xor_b32 v{vKVB}, 32, v{vWOV}') + us[0]
        return us
    def wo_rem(self, u):
        return self.wo_half(sPWo[1 + u // 4], ((u >> 1) & 1)*131072 + (u & 1)*65536, WOB[u % 4], f'u{u}')
    def o_rem(self, u):
        us = []
        for k in range(5):
            x = I(f's_add_u32 m0, {sW5K}, {OB[u % 4] + (k // 4)*4096}\ns_add_u32 {sT2}, {sPO[1 + u // 4]}, {((u >> 1) & 1)*40960 + (u & 1)*20480 + (k // 4)*4096}')
            x += I(f'buffer_load_dwordx4 v{vL16}, {SOX}, {sT2} offen offset:{(k % 4)*1024}{self.pol(self.c.oldpol)} lds', tag=f'u{u}')
            us.append(x)
        return us
    def l2pf_q(self):
        pol = self.pol(self.c.pfpol); L = f'v{vLANE}'
        return [I(f'v_lshrrev_b32 v214, 3, {L}\nv_and_b32 v215, 7, {L}'),
                I(f'v_lshlrev_b32 v214, 13, v214\nv_lshl_add_u32 v214, v215, 6, v214'),
                I(f's_lshl_b32 {sT3}, {sB}, 19\ns_lshl_b32 {sT1}, {sW}, 17'),
                I(f's_add_u32 {sT3}, {sT3}, {sT1}\ns_lshl_b32 {sT1}, {sH0}, 8'),
                I(f's_add_u32 {sT3}, {sT3}, {sT1}\nbuffer_load_dword a138, v214, {SWQ}, {sT3} offen{pol}'),
                I(f's_add_u32 {sT3}, {sT3}, 65536\nbuffer_load_dword a139, v214, {SWQ}, {sT3} offen{pol}'),
                I(f'v_lshlrev_b32 v215, 6, {L}\ns_mul_i32 {sT3}, {sHP}, 40960'),
                I(f's_mul_i32 {sT1}, {sW}, 10240\ns_add_u32 {sT3}, {sT3}, {sT1}'),
                I(f'buffer_load_dword a140, v215, {SX}, {sT3} offen{pol}'),
                I(f's_add_u32 {sT3}, {sT3}, 4096\nbuffer_load_dword a141, v215, {SX}, {sT3} offen{pol}'),
                I(f's_add_u32 {sT3}, {sT3}, 4096\nbuffer_load_dword a142, v215, {SX}, {sT3} offen{pol}')]
    def l2pf_wo(self):
        pol = self.pol(self.c.pfpol)
        g128 = self.c.pfgran == 128
        us = [I(f'v_lshrrev_b32 v{vTA}, {1 if g128 else 2}, v{vLANE}\nv_and_b32 v{vTB}, {1 if g128 else 3}, v{vLANE}'),
              I(f'v_lshlrev_b32 v{vTA}, 10, v{vTA}\nv_lshl_add_u32 v{vTA}, v{vTB}, {7 if g128 else 6}, v{vTA}'),
              I(f's_lshl_b32 {sT3}, {sOCT}, 20\ns_lshl_b32 {sT1}, {sB}, 17'),
              I(f's_add_u32 {sT3}, {sT3}, {sT1}\ns_lshl_b32 {sT1}, {sW}, 15'),
              I(f's_add_u32 {sT3}, {sT3}, {sT1}\ns_lshl_b32 {sT1}, {sHP}, 8'),
              I(f's_add_u32 {sT3}, {sT3}, {sT1}\nbuffer_load_dword a240, v{vTA}, {SWO}, {sT3} offen{pol}')]
        if not g128: us.append(I(f's_add_u32 {sT3}, {sT3}, 16384\nbuffer_load_dword a241, v{vTA}, {SWO}, {sT3} offen{pol}'))
        return us
    def tlb_touch(self):
        return [I(f'v_lshlrev_b32 v{vTB}, {self.c.tlbs}, v{vLANE}'),
                I(f'buffer_load_dword a245, v{vTB}, {SOX}, 0 offen sc0 sc1'),
                I(f'buffer_load_dword a246, v{vTB}, {SWS}, 0 offen sc0 sc1'),
                I(f's_mov_b64 s[4:5], s[100:101]\ns_mov_b32 s6, {8*160*1024*2}'),
                I(f's_mul_i32 {sT3}, {sB}, {160*2048}'),
                I(f'buffer_load_dword a247, v{vTB}, s[4:7], {sT3} offen')]
    def code_pf(self, label, srd, vt, dst):
        n = self.ncpf = getattr(self, 'ncpf', 0) + 1
        a = srd
        return [I(f's_getpc_b64 s[{a}:{a+1}]\nL_pcx{n}:\ns_add_u32 s{a}, s{a}, {label}-L_pcx{n}\ns_addc_u32 s{a+1}, s{a+1}, 0'),
                I(f's_mov_b32 s{a+2}, L_codeend-{label}\ns_mov_b32 s{a+3}, 0x20000'),
                I(f's_lshl_b32 {sT3}, {sW}, 13\nv_lshlrev_b32 v{vt}, 7, v{vLANE}'),
                I(f'buffer_load_dword a{dst}, v{vt}, s[{a}:{a+3}], {sT3} offen')]
    def dma_stream(self, units, lo, hi, slack=4):
        fs = []; n = len(units); prev = {}
        for k, u in enumerate(units):
            l = lo + (k * (hi - lo + 1)) // n
            after = False
            for x in u:
                c = 1
                if x.op == 's_cselect_b32' or x.kind in ('branch', 'label'):
                    fs[-1].ins.append(x); fs[-1].cost += x.cost; continue
                if isinstance(x.tag, tuple) and self.c.krot:
                    if prev.get('kvo') == x.tag: c = 0
                    if x.op == 's_or_b32': prev['kvo'] = x.tag
                elif x.kind == 'salu' and x.op == 's_add_u32' and len(x.writes) == 1:
                    w = next(iter(x.writes))
                    if prev.get(w) == x.text and w not in x.reads: c = 0
                    prev[w] = x.text
                if x.kind not in ('salu', 'valu'): fs.append(F([x], l, l + slack, cost=c)); after = True
                elif after: fs.append(F([x], l, 10**6, cost=c))
                else: fs.append(F([x], l - 3, l, cost=c))
        return fs
    def peer_setup(self):
        o = [f's_lshl_b32 {sT3}, {sOCT}, 20', f's_lshl_b32 {sT2}, {sHP}, 8', f's_add_u32 {sT3}, {sT3}, {sT2}',
             f's_lshl_b32 {sT2}, {sW}, 14', f's_add_u32 {sT3}, {sT3}, {sT2}']
        for r in range(4):
            o += [f's_add_u32 {sT2}, {sHP}, {r}', f's_and_b32 {sT2}, {sT2}, 3', f's_mul_i32 {sPO[r]}, {sT2}, 81920', f's_add_u32 {sPO[r]}, {sPO[r]}, {sW5K}',
                  f's_lshl_b32 {sPWo[r]}, {sT2}, 18', f's_add_u32 {sPWo[r]}, {sPWo[r]}, {sT3}']
        assert self.c.opol == 'sc1'
        return '\n'.join(o)
    def rot_setup(self):
        if self.c.rot != 2: return f's_and_b32 {sXC}, {sXC}, {7 if self.c.rot else 0}'
        return f's_cmp_ge_u32 {sXC}, 7\ns_cselect_b32 {sWQC}, 7, 0\ns_sub_u32 {sXC}, {sXC}, {sWQC}\ns_add_u32 {sXC}, {sXC}, 1'
    def prologue(self):
        e = self.e; L = f'v{vLANE}'
        self.stamp('e')
        e(f'''
        s_cmp_ge_u32 s2, 256
        s_cbranch_scc1 L_end
        s_load_dwordx16 s[64:79], s[0:1], 0
        s_load_dwordx4 s[80:83], s[0:1], 64
        s_load_dwordx2 s[24:25], s[0:1], 96
        s_load_dwordx2 s[100:101], s[0:1], 80
        v_lshrrev_b32 v1, 6, v0
        v_and_b32 {L}, 63, v0
        v_readfirstlane_b32 {sW}, v1
        s_and_b32 s46, s2, 7
        s_lshr_b32 s47, s2, 3
        s_lshr_b32 {sB}, s47, 2
        s_and_b32 {sHP}, s47, 3
        s_and_b32 {sOCT}, s46, 3
        s_lshl_b32 s50, {sOCT}, 2
        s_add_u32 s50, s50, {sHP}
        s_lshl_b32 {sH0}, s50, 1
        s_lshr_b32 s52, s46, 2            ; branch
        s_and_b32 {sHH}, {sW}, 1
        s_lshr_b32 {sQH}, {sW}, 1
        v_and_b32 v2, 3, {L}
        v_lshlrev_b32 v2, 4, v2           ; cc*16
        v_lshrrev_b32 v3, 4, {L}          ; g
        v_bfe_u32 v4, {L}, 2, 2           ; r
        v_lshl_add_u32 v5, v3, 6, v2
        v_lshl_add_u32 v{vKVA}, v4, 8, v5
        v_xor_b32 v{vKVB}, 32, v{vKVA}
        v_lshl_add_u32 v{vWQA}, v4, 13, v5
        v_xor_b32 v{vWQB}, 16, v{vWQA}
        v_lshrrev_b32 v6, 5, {L}
        v_bfe_u32 v7, {L}, 2, 3
        v_lshl_add_u32 v8, v6, 6, v2
        v_lshl_add_u32 v8, v7, 10, v8
        s_lshl_b32 {sT0}, {sHH}, 5
        v_xor_b32 v{vX0}, {sT0}, v8
        v_xor_b32 v{vX1}, 32, v{vX0}
        s_lshl_b32 {sT0}, {sQH}, 12
        s_lshl_b32 {sKVLDS}, {sHH}, 13
        s_add_u32 {sKVLDS}, {sKVLDS}, {sT0}
        s_lshl_b32 {sKVOFF}, {sHH}, 17
        s_add_u32 {sKVOFF}, {sKVOFF}, {sT0}
        s_add_u32 {sT1}, {sH0}, {sHH}
        s_lshl_b32 {sWQOFF}, {sT1}, 8
        s_lshl_b32 {sT0}, {sQH}, 17
        s_add_u32 {sWQOFF}, {sWQOFF}, {sT0}
        s_mul_i32 {sXOFF}, {sW}, {5*8192}
        s_mul_i32 {sXLDS}, {sW}, {5*1024}
        s_lshl_b32 {sXC}, {sHP}, 1
        s_add_u32 {sXC}, {sXC}, {sB}
        {self.rot_setup()}
        s_lshl_b32 {sWQC}, {sXC}, 19
        s_lshl_b32 {sXC}, {sXC}, 7
        s_mul_i32 {sKR}, s2, {self.c.krot}
        s_add_u32 {sKR}, {sKR}, s47
        s_lshl_b32 {sKR}, {sKR}, 13
        s_mul_i32 s53, {sB}, 163840
        s_lshl_b32 s54, {sB}, 5
        s_add_u32 s54, s54, {sH0}
        s_lshl_b32 s54, s54, 17
        s_mov_b32 s6, 163840
        s_mov_b32 s7, 0x20000
        s_mov_b32 s10, 0x400000
        s_mov_b32 s11, 0x20000
        s_mov_b32 s14, 0x40000
        s_mov_b32 s15, 0x20000
        s_mov_b32 s18, 0x40000
        s_mov_b32 s19, 0x20000
        s_cmp_eq_u32 s52, 0
        s_cselect_b64 s[4:5], s[64:65], s[74:75]
        s_cselect_b64 s[8:9], s[70:71], s[80:81]
        s_cselect_b64 s[12:13], s[66:67], s[76:77]
        s_cselect_b64 s[16:17], s[68:69], s[78:79]
        s_cselect_b64 s[20:21], s[72:73], s[82:83]
        s_add_u32 s4, s4, s53
        s_addc_u32 s5, s5, 0
        ''')
        self.stamp()
        for u in self.x_units(0) + self.wq_units(0) + self.wq_units(1): e(u)
        e(f'''
        s_add_u32 s12, s12, s54
        s_addc_u32 s13, s13, 0
        s_add_u32 s16, s16, s54
        s_addc_u32 s17, s17, 0
        ''')
        self.kvq = self.kv_dma(SK, 0, SLOT + 16384, 'k0') + self.kv_stage(0) + self.kv_dma(SK, 2, SLOT, 'kv1')
        for st in (2, 3, 4)[:self.c.nstg]: self.kvq += self.kv_reg(st)
        self.late_pro = self.x_units(1) + self.wq_units(2) + [self.kvq.pop(0) for _ in range(self.c.kv_pro)]
        if not self.c.lean:
            for u in self.late_pro: e(u)
            self.late_pro = []
        if self.c.codepf and self.c.lean:
            e(f'''s_getpc_b64 s[84:85]
            L_pc0:
            s_mov_b32 s86, L_codeend-L_pc0
            s_mov_b32 s87, 0x20000
            v_and_b32 v22, 15, {L}
            v_lshlrev_b32 v22, 7, v22
            s_and_b32 {sT0}, s47, 7
            s_lshl_b32 {sT0}, {sT0}, 2
            s_add_u32 {sT0}, {sT0}, {sW}
            s_lshl_b32 {sT0}, {sT0}, 11
            buffer_load_dword a136, v22, s[84:87], {sT0} offen''')
        elif self.c.codepf:
            e(f'''s_getpc_b64 s[84:85]
            L_pc0:
            s_mov_b32 s86, L_codeend-L_pc0
            s_mov_b32 s87, 0x20000
            v_lshlrev_b32 v22, 7, v0
            buffer_load_dword a136, v22, s[84:87], 0 offen
            s_mov_b32 {sT0}, 32768
            buffer_load_dword a137, v22, s[84:87], {sT0} offen''')
        e(f'''
        s_mul_i32 {sPW}, {sW}, 10240
        s_lshl_b32 {sW4K}, {sW}, 12
        s_mul_i32 {sW5K}, {sW}, 5120
        s_mov_b32 {sC}, {f32(128 ** -0.5 * math.log2(math.e))}
        s_mov_b32 {sT}, {f32(self.c.thr)}
        s_lshl_b32 s55, s52, 3
        s_add_u32 s55, s55, {sB}          ; group = branch*8 + b
        s_lshl_b32 {sCL}, s55, 2
        s_add_u32 {sT2}, {sCL}, {sHP}
        s_mov_b32 {sBLK}, {sT2}
        s_add_u32 {sCL}, {sCL}, {sOCT}    ; cluster = group*4 + octet
        s_lshl_b32 {sT2}, {sT2}, 2
        s_add_u32 {sT2}, {sT2}, {sOCT}
        s_mul_i32 {sT2}, {sT2}, {PART_BYTES}
        s_add_u32 {sT2}, {sT2}, {PART_OFF}
        s_mul_i32 s55, {sCL}, {OX_BYTES}
        s_mov_b32 s22, 0x400000
        s_mov_b32 s23, 0x20000
        s_mov_b64 s[56:57], s[24:25]
        s_add_u32 s76, s24, s55
        s_addc_u32 s77, s25, 0
        s_mov_b32 s78, {OX_BYTES}
        s_mov_b32 s79, 0x20000
        s_add_u32 s24, s24, {sT2}
        s_addc_u32 s25, s25, 0
        s_mov_b32 s26, {PART_BYTES}
        s_mov_b32 s27, 0x20000
        s_lshl_b32 {sCL}, {sCL}, 7
        s_add_u32 {sCL}, {sCL}, {FLAG_OFF}
        s_add_u32 s80, s56, {sCL}
        s_addc_u32 s81, s57, 0
        s_mov_b32 s82, 16
        s_mov_b32 s83, 0x20000
        v_add_u32 v24, {sHP}, {L}
        v_and_b32 v24, 3, v24
        v_lshlrev_b32 v24, 2, v24
        buffer_load_dword v{vFOFF}, v24, {SDB}, 0 offen sc0 sc1
        s_lshl_b32 {sCL}, {sHP}, 2
        s_mov_b32 {sWB}, 0
        s_lshl_b32 {sT2}, {sBLK}, 7
        s_add_u32 {sT2}, {sT2}, {FLAG_OFF + 8192}
        s_add_u32 s84, s56, {sT2}
        s_addc_u32 s85, s57, 0
        s_mov_b32 s86, 64
        s_mov_b32 s87, 0x20000
        s_lshl_b32 {sT2}, {sW}, 2
        v_lshlrev_b32 v24, 4, {L}
        buffer_load_dword v{vFOFF2}, v24, {SD2}, {sT2} offen sc0 sc1
        s_lshl_b32 {sIDX2}, {sOCT}, 2
        s_add_u32 {sIDX2}, {sIDX2}, {sW}
        s_mul_i32 {sOW}, {sHP}, 81920
        s_mul_i32 {sT2}, {sHH}, 40960
        s_add_u32 {sOW}, {sOW}, {sT2}
        s_mul_i32 {sT2}, {sQH}, 10240
        s_add_u32 {sOW}, {sOW}, {sT2}
        {self.peer_setup()}
        v_and_b32 v9, 1, v3
        v_lshlrev_b32 v9, 5, v9           ; 32*(g&1)
        v_lshl_add_u32 v{vWOV}, v4, 10, v5
        v_and_b32 v10, 15, {L}
        v_and_b32 v11, 3, {L}
        v_lshrrev_b32 v12, 2, v10
        v_and_b32 v13, 1, v12
        v_lshlrev_b32 v13, 5, v13
        v_lshlrev_b32 v14, 4, v3
        v_xor_b32 v13, v13, v14
        v_lshl_add_u32 v13, v11, 6, v13
        v_lshl_add_u32 v13, v12, 10, v13
        s_lshl_b32 {sT1}, {sHH}, 13
        v_add_u32 v{aK}, {sT1}, v13
        v_lshl_add_u32 v15, v11, 3, v9
        v_lshl_add_u32 v15, v4, 6, v15
        v_lshl_add_u32 v16, v3, 10, v15
        v_add_u32 v{aVE}, {sT1}, v16
        v_lshrrev_b32 v16, 1, v9          ; 16*(g&1)
        v_lshlrev_b32 v22, 4, v11         ; 16*c4
        v_xor_b32 v16, v16, v22
        v_and_b32 v22, 1, v11
        v_lshl_add_u32 v16, v22, 3, v16   ; + 8*(c4&1)
        v_lshl_add_u32 v16, v4, 6, v16    ; + r*64
        v_lshl_add_u32 v16, v3, 11, v16   ; + g*2048
        v_add_u32 v16, {sT1}, v16
        v_add_u32 v{vQE[0]}, {WQBUF[0]}, v16
        v_add_u32 v{vQE[1]}, {WQBUF[1]}, v16
        v_add_u32 v{vQE[2]}, {WQBUF[2]}, v16
        v_xor_b32 v{vQO[0]}, 8, v{vQE[0]}
        v_xor_b32 v{vQO[1]}, 8, v{vQE[1]}
        v_xor_b32 v{vQO[2]}, 8, v{vQE[2]}
        s_mov_b32 vcc_lo, 0xffff0000
        s_mov_b32 vcc_hi, 0xffff0000
        v_lshrrev_b32 v17, 3, v10
        v_lshlrev_b32 v18, 5, v17
        v_xor_b32 v18, v18, v14
        v_and_b32 v19, 7, {L}
        v_lshl_add_u32 v18, v19, 6, v18
        v_lshl_add_u32 v18, v17, 10, v18
        s_mul_i32 {sT2}, {sQH}, 10240
        v_add_u32 v18, {sT2}, v18
        v_add_u32 v{vXR[0]}, {XBUF[0]}, v18
        v_add_u32 v{vXR[1]}, {XBUF[1]}, v18
        v_lshl_add_u32 v20, v3, 10, v15
        s_lshl_b32 {sT2}, {sHH}, 9
        v_add_u32 v{vOE}, {sT2}, v20
        v_lshlrev_b32 v{vWA1}, 4, {L}
        v_add_u32 v{vWA1}, {sKVLDS}, v{vWA1}
        v_add_u32 v{vWA[0]}, 65536, v{vWA1}
        v_add_u32 v{vWA[1]}, 131072, v{vWA1}
        v_add_u32 v{vWA1}, {SLOT}, v{vWA1}
        v_mov_b32 v21, 0x3f803f80
        v_accvgpr_write_b32 a{aONE}, v21
        v_accvgpr_write_b32 a{aONE+1}, v21
        v_accvgpr_write_b32 a{aONE+2}, v21
        v_accvgpr_write_b32 a{aONE+3}, v21
        ''')
    def q_reads(self, j):
        st = (j & 1) * 52
        xr = [I(f'ds_read_b128 {ar(st + 32 + 4*t)}, v{vXR[(j >> 1) & 1]} offset:{t*2048 + (j & 1)*512}') for t in range(5)]
        aa = []
        for dt in range(8):
            for u in range(2):
                adr = (vQE if dt % 2 == 0 else vQO)[j % 3]
                aa.append(I(f'ds_read_b64_tr_b16 {ar(st + 4*dt + 2*u, 2)}, v{adr} offset:{u*1024 + (dt >> 1)*256}'))
        return aa[:2] + xr + aa[2:]
    def k_reads(self, base, tag='kr'):
        us = [I(f'v_add_u32 v{vK}, {base}, v{aK}')]
        for ks in range(4):
            for kt in range(2):
                us.append(I(f'ds_read_b128 {ar(aKF + (kt*4+ks)*4)}, v{vK} offset:{kt*4096 + ks*256}', tag=tag))
        return us
    def v_reads(self, base, dst=aVF, tag='vr'):
        pre = [I(f'v_add_u32 v{vVE}, {base}, v{aVE}'), I(f'v_xor_b32 v{vVO}, 32, v{vVE}')]
        us = []
        for dt in range(8):
            for h in range(2):
                us.append((dt, I(f'ds_read_b64_tr_b16 {ar(dst + 4*dt + 2*h, 2)}, v{vVE if dt % 2 == 0 else vVO} offset:{16384 + h*4096 + (dt >> 1)*256}', tag=tag)))
        return pre, us
    def q_mfmas(self, j, touter=False):
        st = (j & 1) * 52; m = []
        order = [(t, dt) for t in range(5) for dt in range(8)] if touter else [(t, dt) for dt in range(8) for t in range(5)]
        for t, dt in order:
            m += I(f'{MF} {vr(O(t, dt))}, {ar(st + 4*dt)}, {ar(st + 32 + 4*t)}, {vr(O(t, dt)) if j else "0"}')
        return m
    def s_mfmas(self, zero=False):
        m = []
        for t in range(5):
            for ks in range(4):
                for kt in range(2):
                    c = vr(Sreg(t, kt)) if ks else ('0' if zero else vr(NM4 + 4*t))
                    m += I(f'{MF} {vr(Sreg(t, kt))}, {ar(aKF + (kt*4+ks)*4)}, {ar(Qf(ks, t))}, {c}')
        m[0] = waittag('kr') + [m[0]]
        return m
    def pv_mfmas(self, first=False, vf=aVF, ones_first=True):
        ones = [I(f'{MF} {ar(aL + 4*t)}, {ar(aONE)}, {vr(Preg(t))}, {"0" if first else ar(aL + 4*t)}')[0] for t in range(5)]
        m = list(ones) if ones_first else []
        for t in range(5):
            if not ones_first: m.append(ones[t])
            for dt in range(8):
                m += I(f'{MF} {vr(O(t, dt))}, {ar(vf + 4*dt)}, {vr(Preg(t))}, {"0" if first else vr(O(t, dt))}')
        return m
    def q_convert(self, t):
        us = []
        for ks in range(4):
            x = O(t, 2*ks); y = x + 4
            if self.c.pkq:
                for k in range(0, 8, 2): us.append(I(f'v_pk_mul_f32 v[{x+k}:{x+k+1}], v[{x+k}:{x+k+1}], s[40:41] op_sel_hi:[1,0]'))
            else:
                for k in range(8): us.append(I(f'v_mul_f32 v{x+k}, {sC}, v{x+k}'))
        for ks in range(4):
            x = O(t, 2*ks); y = x + 4
            for s in (f'v{x}, v{x}, v{x+1}', f'v{y}, v{y}, v{y+1}', f'v{x+1}, v{x+2}, v{x+3}', f'v{y+1}, v{y+2}, v{y+3}'):
                us.append(I('v_cvt_pk_bf16_f32 ' + s))
        for ks in range(4):
            x = O(t, 2*ks); y = x + 4
            for k in range(2):
                us.append(I(f'v_cndmask_b32 v{x+2+k}, v{x+k}, v{y+k}, vcc'))
                us.append(I(f'v_cndmask_b32 v{y+2+k}, v{y+k}, v{x+k}, vcc'))
        for ks in range(4):
            x = O(t, 2*ks); y = x + 4
            for k, r in enumerate((x+2, x+3, y+2, y+3)): us.append(I(f'v_accvgpr_write_b32 a{Qf(ks, t)+k}, v{r}'))
        return us
    def exp_units(self, t):
        b = Sreg(t, 0)
        return [I(f'v_exp_f32 v{b+k}, v{b+k}') for k in range(8)], [I(f'v_cvt_pk_bf16_f32 v{Preg(t)+k}, v{b+2*k}, v{b+2*k+1}') for k in range(4)]
    def rowmax(self, m, c, b):
        return I(f'''v_max3_f32 v{m}, v{b}, v{b+1}, v{b+2}
        v_max3_f32 v{c}, v{b+3}, v{b+4}, v{b+5}
        v_max3_f32 v{m}, v{m}, v{b+6}, v{b+7}
        v_max_f32 v{m}, v{m}, v{c}
        v_mov_b32 v{c}, v{m}
        v_permlane32_swap_b32 v{m}, v{c}
        v_max_f32 v{m}, v{m}, v{c}
        v_mov_b32 v{c}, v{m}
        v_permlane16_swap_b32 v{m}, v{c}
        v_max_f32 v{m}, v{m}, v{c}''')
    def softmax_streams(self, i, ck, exp_dead, cvt_lo):
        mx = []
        for t in range(5):
            b = Sreg(t, 0)
            for k in range(4):
                m = vMX0 if k % 2 == 0 else vMX1
                if t == 0 and k < 2: mx.append(I(f'v_max_f32 v{m}, v{b+2*k}, v{b+2*k+1}'))
                else: mx.append(I(f'v_max3_f32 v{m}, v{b+2*k}, v{b+2*k+1}, v{m}'))
        mx.append(I(f'v_max_f32 v{vMX0}, v{vMX0}, v{vMX1}'))
        st = FS(mx + [I(f'v_cmp_lt_f32 vcc, {sT}, v{vMX0}')], -1, ck - 1)
        st.append(F(I(f's_cbranch_vccnz L_stub{i}\nL_ret{i}:'), ck, ck, cost=1))
        self.stubs.append(i)
        for t in range(5):
            ex, cv = self.exp_units(t)
            st += FS(ex, -1, exp_dead(t)) + FS(cv, cvt_lo(t), exp_dead(t))
        return st
    def q_phase(self):
        e = self.e
        self.stamp('e'); e(waittag('x0', 'wq0')); self.stamp('e'); e('s_barrier'); self.stamp('q', 'e')
        qr = self.q_reads(0)
        for k, u in enumerate(qr):
            e(u)
            if k < len(self.late_pro): e(self.late_pro[k])
        for u in self.late_pro[len(qr):]: e(u)
        e(waittag('wq1')); e('s_waitcnt lgkmcnt(0)\ns_barrier'); self.stamp('e')
        for j in range(15):
            d = []
            if j + 3 < 16: d += self.wq_units(j + 3)
            if j % 2 == 1 and (j - 1) // 2 + 2 < 8: d += self.x_units((j - 1) // 2 + 2)
            ke = self.c.kv_end
            if j < self.c.kv_start: n = 0
            elif self.c.kveven == 2:
                wts = [(1.0 if (k % 2 == 0 or k >= 13) else self.c.kvw) for k in range(j, ke)]
                n = round(len(self.kvq) * wts[0] / sum(wts)) if wts else len(self.kvq)
            elif self.c.kveven:
                left = len([k for k in range(j, ke) if k % 2 == 0 or k >= 13])
                n = 0 if (j % 2 == 1 and j < 13) else (-(-len(self.kvq) // max(1, left)))
            else:
                n = -(-len(self.kvq) // max(1, ke - j)) if j < ke else len(self.kvq)
            d += [self.kvq.pop(0) for _ in range(min(n, len(self.kvq)))]
            ds = self.dma_stream(d, 1, min(39, self.c.vsp * len(d)), slack=1) if d else []
            streams = [FS(self.q_reads(j + 1), 0, 30), ds]
            if j == 0 and self.c.l2pfq: streams.append(FS(self.l2pf_q(), 22, 39))
            if j == 3: streams.append(FS([I(f'v_readlane_b32 {sOLD[r]}, v{vFOFF}, {r}') for r in range(4)] + [I(f'v_readlane_b32 {sOLD2[r]}, v{vFOFF2}, {r}') for r in range(4)], 30, 39))
            if self.c.cpf1 and j == self.c.cpf1: streams.append(FS(self.code_pf('L_conv', 60, 216, 143), 24, 39))
            if j == 14 and self.c.nstg >= 1: streams.append(FS(self.kv_drain(2), 20, 39, step=2))
            if j == 13 and self.c.nstg < 1: streams.append(self.dma_stream(self.kv_stage(2), 4, 36))
            self.sch(f'q{j}', self.q_mfmas(j), streams)
            tags = []
            if j + 2 < 16:
                tags.append(f'wq{j+2}')
                if (j + 2) % 2 == 0: tags.append(f'x{(j+2)//2}')
            if j == 14: tags += ['k0', 'kv0']
            e(waittag(*tags)); e('s_waitcnt lgkmcnt(0)\ns_barrier'); self.stamp('q')
    def q_to_attn(self):
        main = self.q_mfmas(15, touter=True) + self.s_mfmas(zero=True) + self.s_mfmas()
        conv = []
        for t in range(5):
            cu = self.q_convert(t)
            conv += FS(cu, 8*t + 9, 39 + 8*t)
        drains = FS(self.kv_drain(3), 8, 24, step=2) if self.c.nstg >= 2 else []
        if self.c.nstg >= 3: drains += FS(self.kv_drain(4), 24, 40, step=2)
        for f in conv:
            w = [r for x in f.ins for r in x.writes if r[0] == 'a']
            if w and int(w[0][1:]) >= 192: f.lo = max(f.lo, 26 if int(w[0][1:]) < 224 else 42)
        init = []
        for t in range(5):
            b = Sreg(t, 0); lo = 40 + 8*t + 9; hi = 79 + 8*t
            u = [[x] for x in self.rowmax(vMX0, vMX1, b)]
            u += [I(f'v_sub_f32 v{NM4+4*t+k}, 0, v{vMX0}') for k in range(4)]
            u += [I(f'v_sub_f32 v{b+k}, v{b+k}, v{vMX0}') for k in range(8)]
            ex, cv = self.exp_units(t)
            init += FS(u + ex + cv, lo, hi)
        k0 = FS(self.k_reads(SLOT + 16384), -1, 12)
        k1 = self.k_reads(0)
        k1s = [F(k1[0], 60, 79)] + [F(u, 72 + k, 79) for k, u in enumerate(k1[1:])]
        pre, vu = self.v_reads(0)
        vs = FS(pre, 44, 70) + [F(u, 44, 84) for _, u in vu]
        d0 = (self.kv_stage(3) if self.c.nstg < 2 else []) + (self.kv_stage(4) if self.c.nstg < 3 else [])
        v1 = self.dma_stream(d0, 0, 40) if d0 else []
        if self.c.late and not d0: v1 += self.dma_stream(self.kv_reg(6, (0,)), 4, 40)
        v1 += [F(I('s_barrier'), 46, 50)] + self.dma_stream(self.kv_dma(SV, 1, SLOT + 16384, 'kv1'), 50, 64)
        if self.c.late: v1 += self.dma_stream(self.kv_reg(6, (1,) if not d0 else (0, 1)), 66, 86)
        if self.c.early5:
            v1 += [F(waittag('vr') + I('s_barrier'), 88, 90, cost=2)] + self.dma_stream(self.kv_stage(5), 92, 116)
        self.e('L_conv:')
        self.sch('q15..s1', main, [k0, drains, conv + init, k1s, vs, v1], pre_cap=9, cap=self.c.ccap)
    def iteration(self, i):
        e = self.e
        L0 = max(4, self.c.regend - 3) if self.c.late else 2
        dyn = self.c.loop and L0 <= i <= self.c.lend
        if dyn and i == L0:
            e(f's_mov_b32 {sRB}, {(L0 % 5)*SLOT}\ns_add_u32 {sDB}, {sKVLDS}, {((L0 - 1) % 5)*SLOT}\n{self.kvoff(L0 + 5, sKO)}\n{self.kvoff(L0 + 4, sVO)}')
        if dyn: e(f'L_loopmark{i}:')
        tags = [f'kv{i}', 'vr'] + (['wown'] if i == 15 else [])
        if i == 15 and self.c.v15gap >= 0: return self.tail()
        if dyn: e('s_waitcnt vmcnt(24) lgkmcnt(0)')
        e(waittag(*tags)); e('s_barrier')
        if i == 15: return self.tail()
        if dyn: dma = self.kv_stage_dyn(i + 4)
        elif i == 1 and self.c.early5: dma = self.kv_reg(7) if self.c.late else []
        elif self.c.late and 6 <= i + 4 <= self.c.regend:
            dr = self.kv_drain(i + 4); dma = dr
            if i + 6 <= self.c.regend:
                ld = self.kv_reg(i + 6); h = len(dr) // 2
                dma = dr[:h] + dr[h:] + ld if len(ld) < 8 else dr[:h] + ld[:4] + dr[h:] + ld[4:]
        else:
            sm = {s: s - 4 for s in range(8, 16)}
            sm.update({int(a): int(b) for a, b in (x.split('~') for x in self.c.smap.split('/') if x)})
            dma = []
            for s in sorted(sm):
                if sm[s] == i and s > self.c.regend: dma += self.kv_stage(s)
            if 0 <= i - self.c.wo_it <= 1: dma += self.wo_own(i - self.c.wo_it)
        main = self.pv_mfmas(first=(i == 1)) + self.s_mfmas()
        base = sRB if dyn else (i % 5) * SLOT
        sm = self.softmax_streams(i, 11, lambda t: 44 + 8*t, lambda t: 12 + 8*t)
        ks = FS(self.k_reads(base), -1, 36)
        pre, vu = self.v_reads(base)
        vs = FS(pre, 20, 60) + [F(u, 37 + dt, 80) for dt, u in vu]
        streams = [sm, ks, vs]
        ds = self.dma_stream(dma, self.c.dlo if i < 12 else 13, self.c.dhi if i < 12 else self.c.wo_hi) if dma else []
        if self.c.l2pf and i == self.c.pfit: ds += FS(self.l2pf_wo(), 72, 84)
        if self.c.tlb == i: ds = FS(self.tlb_touch(), 13, 30) + ds
        if self.c.cpf2 == i: ds = FS(self.code_pf('L_tail', 4, vTB, 244), 13, 30) + ds
        if dyn:
            ds += FS([I(x) for x in (f's_add_u32 {sDB}, {sRB}, {sKVLDS}', f's_add_u32 {sRB}, {sRB}, {SLOT}',
                      f's_cmp_eq_u32 {sRB}, {5*SLOT}\ns_cselect_b32 {sRB}, 0, {sRB}', f's_mov_b32 {sVO}, {sKO}', f's_add_u32 {sKO}, {sKO}, 8192') + ((f's_and_b32 {sKO}, {sKO}, 0x1e000', f's_or_b32 {sKO}, {sKO}, {sKVOFF}') if self.c.krot else ())], 61, 84)
        streams.append(ds)
        self.sch(f'it{i}', main, streams)
        if dyn: e(f'L_loopend{i}:')
    def rare(self):
        p = I('L_rare:\ns_nop 7\ns_nop 1')
        for t in range(5):
            b = Sreg(t, 0)
            p += self.rowmax(vMX0, vMX1, b)
            p += I(f'v_max_f32 v{vMX0}, 0, v{vMX0}')
            for k in range(4): p += I(f'v_sub_f32 v{NM4+4*t+k}, v{NM4+4*t+k}, v{vMX0}')
            for k in range(8): p += I(f'v_sub_f32 v{b+k}, v{b+k}, v{vMX0}')
            p += I(f'v_sub_f32 v{vTA}, 0, v{vMX0}\nv_exp_f32 v{vTA}, v{vTA}')
            for k in range(32): p += I(f'v_mul_f32 v{O(t,0)+k}, v{O(t,0)+k}, v{vTA}')
            for k in range(4):
                p += I(f'v_accvgpr_read_b32 v{vTB}, a{aL+4*t+k}\nv_mul_f32 v{vTB}, v{vTB}, v{vTA}\nv_accvgpr_write_b32 a{aL+4*t+k}, v{vTB}')
            for k in range(4):
                r = Preg(t) + k
                p += I(f'''v_lshlrev_b32 v{vTB}, 16, v{r}
                v_and_b32 v{vMX1}, 0xffff0000, v{r}
                v_mul_f32 v{vTB}, v{vTB}, v{vTA}
                v_mul_f32 v{vMX1}, v{vMX1}, v{vTA}
                v_cvt_pk_bf16_f32 v{r}, v{vTB}, v{vMX1}''')
        p += I(f's_nop 1\ns_setpc_b64 {sRET}')
        return p
    def own(self, ks, t): return self.ownmap[(ks, t)]
    def acc(self, t, nt): return 32*t + 4*nt
    def norm_units(self, t):
        us = [I(f'v_accvgpr_read_b32 v{vRL+t}, a{aL+4*t}'), I(f'v_rcp_f32 v{vRL+t}, v{vRL+t}')]
        for ks in range(4):
            b = O(t, 2*ks)
            if self.c.pkn:
                r = vRL + t; pr = r & ~1; sel = r & 1
                for k in range(0, 8, 2): us.append(I(f'v_pk_mul_f32 v[{b+k}:{b+k+1}], v[{b+k}:{b+k+1}], v[{pr}:{pr+1}] op_sel:[0,{sel}] op_sel_hi:[1,{sel}]'))
            else:
                for k in range(8): us.append(I(f'v_mul_f32 v{b+k}, v{b+k}, v{vRL+t}'))
            for k in range(4): us.append(I(f'v_cvt_pk_bf16_f32 v{self.own(ks, t) + k}, v{b+2*k}, v{b+2*k+1}'))
            f = ks*5 + t
            adr, off = (vEX1, f*1024) if f < 16 else (vEX2, (f-16)*1024)
            us.append(I(f's_add_u32 {sT1}, {sOW}, {(ks >> 1)*20480 + ((ks & 1)*5 + t)*1024}') +
                      I(f'buffer_store_dwordx4 {vr(self.own(ks, t))}, v{vL16}, {SOX}, {sT1} offen{self.pol(self.c.opol)}', tag='ost'))
            us.append(I(f'ds_write_b128 v{adr}, {vr(self.own(ks, t))} offset:{off}', tag='exw'))
        return us
    def a_reads(self, e, o, base, nks, dst, tag):
        us = []
        for ks in range(nks):
            for nt in range(4):
                for h in range(2):
                    us.append(I(f'ds_read_b64_tr_b16 {ar(dst + (ks*4 + nt)*4 + 2*h, 2)}, v{e if nt % 2 == 0 else o} offset:{base + ks*8192 + h*4096 + (nt >> 1)*256}', tag=tag))
        return us
    def rem_reads(self, kp):
        u = kp // 2; ksl = kp % 2; st = self.aset(kp)
        aa = self.a_reads(vWEr, vWOr, WOB[u % 4] + ksl*8192, 1, st, 'rr')
        adr, off = (vOB0, OB[u % 4] - OB[0]) if u % 4 < 2 else (vOB1, OB[u % 4] - OB[2])
        bb = [I(f'ds_read_b128 {ar(st + 16 + 4*t)}, v{adr} offset:{off + (ksl*5 + t)*1024}', tag='rr') for t in range(5)]
        return aa[:2] + bb + aa[2:]
    def aset(self, kp):
        return aSET[kp % 2] if kp < 22 else (0, 40)[kp - 22]
    def check(self, r):
        self.chk.append(r)
        return I(f'v_readlane_b32 {sRDY}, v{vPOLL}, {r}\ns_sub_u32 {sRDY}, {sRDY}, {sOLD[r]}\ns_cmp_eq_u32 {sRDY}, {sXCC if self.c.opol != "sc1" else 32}\ns_cbranch_scc0 L_cstub{r}\nL_cret{r}:')
    def store_units(self, t):
        us = []
        for m in range(2):
            b = self.acc(t, 2*m)
            for k in range(4): us.append(I(f'v_cvt_pk_bf16_f32 v{b+k}, v{b+2*k}, v{b+2*k+1}'))
            us.append(I(f's_add_u32 {sT1}, {sPW}, {(t*2+m)*1024}') +
                      I(f'buffer_store_dwordx4 {vr(b)}, v{vL16}, {SWS}, {sT1} offen{self.pol(self.c.stpol)}', tag='st'))
        return us
    def tail(self):
        e = self.e; L = f'v{vLANE}'; self.chk = []
        e('L_tail:\ns_mov_b64 s[16:17], s[100:101]')
        regs = {0: [220, 224, 228, 232], 1: [236, 160, 164, 168], 2: [172, 176, 180, 184], 3: [188, 192, 196, 200], 4: [204, 208, 212, 216]}
        self.ownmap = {(ks, t): regs[t][ks] for t in range(5) for ks in range(4)}
        o0 = []
        for t in range(5):
            for ks in range(4):
                for nt in range(4):
                    o0 += I(f'{MF} {vr(self.acc(t, nt))}, {ar(aA0 + (ks*4+nt)*4)}, {vr(self.own(ks, t))}, {vr(self.acc(t, nt)) if ks else "0"}')
        pv15 = self.pv_mfmas(vf=aKF, ones_first=False)
        pv15[0] = waittag('vr') + [pv15[0]]
        o0[0] = waittag('af0') + [o0[0]]
        main = self.pv_mfmas() + pv15 + o0
        sm = self.softmax_streams(15, 11, lambda t: 43 + 9*t, lambda t: 12 + 8*t)
        pre, vu = self.v_reads(0, dst=aKF)
        rd = FS(pre + [u for _, u in vu], -1, 30)
        if self.c.v15gap >= 0:
            G = self.c.v15gap
            rd = [F(waittag('kv15', 'wown') + I('s_barrier'), G, G, cost=2)] + FS(pre + [u for _, u in vu], G, 40)
            main[5] = waittag('vr') + [main[5]]
        rd += FS([I(f's_lshl_b32 {sT1}, {sHH}, 15'), I(f's_add_u32 {sT1}, {sT1}, {SLOT}'), I(f'v_add_u32 v{vOEs}, {sT1}, v{vOE}'), I(f'v_xor_b32 v{vOOs}, 32, v{vOEs}')] +
                 self.a_reads(vOEs, vOOs, 0, 4, aA0, 'af0'), -1, 70)
        setup = [I(x) for x in (f'v_lshlrev_b32 v{vL16}, 4, {L}', f's_lshl_b32 {sT1}, {sW}, 14', f's_add_u32 {sT1}, {sT1}, 98304',
                 f'v_add_u32 v{vEX1}, {sT1}, v{vL16}', f'v_add_u32 v{vEX2}, {sW4K}, v{vL16}')]
        st0 = []
        k0 = [i for i, f in enumerate(rd) if any(f'v{aVE}' in x.reads for x in f.ins)][0]
        rd[k0 + 2:k0 + 2] = FS(setup, -1, 52)
        rd += [F(waittag('vr') + I('s_barrier'), 72, 80, cost=2)] + self.dma_stream(self.wo_rem(0), 74, 90)
        rd += FS([I(f'v_xor_b32 v{vOEs}, 0x18000, v{vOEs}'), I(f'v_xor_b32 v{vOOs}, 0x18000, v{vOOs}')] + self.a_reads(vOEs, vOOs, 0, 4, aA1, 'af1'), self.c.normlast - 40, 164)
        nl = self.c.normlast
        nm = []
        carry = []
        for t in range(5):
            nu = self.norm_units(t)
            if self.c.nlag:
                out = []; pend = carry; carry = []
                for u in nu:
                    if any(x.kind in ('vst', 'ds') for x in u): pend.append([self.c.nlag * (len(pend) + 1), u]); continue
                    out.append(u)
                    for p in pend: p[0] -= 1
                    while pend and pend[0][0] <= 0: out.append(pend.pop(0)[1])
                if t < 4: carry = pend
                else: out += [p[1] for p in pend]
                nu = out
            nm += FS(nu, 45 + 9*t + 10, min(89 + 16*t, nl))
            if t == 0:
                nm += FS([I(x) for x in (f'v_xor_b32 v{vEXR1}, 0x4000, v{vEX1}', f'v_xor_b32 v{vEXR2}, 0x1000, v{vEX2}', f's_mul_i32 {sT1}, {sQH}, 10240',
                          f's_add_u32 {sT1}, {sT1}, {OB[0]}', f'v_add_u32 v{vOB0}, {sT1}, v{vL16}', f'v_add_u32 v{vOB1}, {OB[2] - OB[0]}, v{vOB0}',
                          f'v_mov_b32 v{vWEr}, v{vOE}', f'v_xor_b32 v{vWOr}, 32, v{vOE}', f's_add_u32 {sT1}, {sOLD[0]}, {sXCC if self.c.opol != "sc1" else 32}\nv_mov_b32 v{vFLAG}, {sT1}', f'v_add_u32 v{vPOFF}, {sHP}, {L}', f'v_and_b32 v{vPOFF}, 3, v{vPOFF}', f'v_lshlrev_b32 v{vPOFF}, 2, v{vPOFF}')], -1, 89)
        l4 = [f for f in nm if any(f'a{aL+16}' in x.reads for x in f.ins)][0]
        for f in rd:
            if any(x.tag == 'af1' for x in f.ins): f.lo = max(f.lo, 100)
        l4.hi = min(l4.hi, 99)
        exr = []
        for f in range(20):
            adr, off = (vEXR1, f*1024) if f < 16 else (vEXR2, (f-16)*1024)
            exr.append(I(f'ds_read_b128 {ar(aPART + 4*f)}, v{adr} offset:{off}', tag='exr'))
        nm += [F(waittag('exw') + I('s_barrier'), -1, nl + 6, cost=2)] + FS(exr, -1, 164)
        pl = [F(I(f'buffer_load_dword v{vPOLL}, v{vPOFF}, {SDB}, 0 offen sc0 sc1'), self.c.pearly, self.c.pearly)] if self.c.pearly else []
        self.sch('tail', main, [sm, rd, st0, nm, pl], cap=self.c.tcap)
        self.stamp('main', 'o', 'h', 'ao')
        main = []
        for ks in range(4):
            for nt in range(4):
                for t in range(5):
                    main += I(f'{MF} {vr(self.acc(t, nt))}, {ar(aA1 + (ks*4+nt)*4)}, {ar(aPART + (ks*5+t)*4)}, {vr(self.acc(t, nt))}')
        main[0] = waittag('exr', 'af1') + I('s_barrier') + [main[0]]
        Z, Pg = self.c.zgap, self.c.pgap
        sig = self.stamp_i('h') + waittag('ost') + self.stamp_i('h') + I(f's_barrier\ns_cmp_lg_u32 {sW}, 0\ns_cbranch_scc1 L_nosig')
        sig += I(f's_mov_b64 exec, 1\nbuffer_store_dword v{vFLAG}, off, {SDB}, {sCL} sc0 sc1\ns_mov_b64 exec, -1\nL_nosig:')
        for x in sig:
            if x.kind == 'vst': x.kind = 'opaque'
        ds = [F(sig, Z, Z, cost=4)] + self.dma_stream(self.wo_rem(1) + self.wo_rem(2) + self.wo_rem(3), 0, 0)[:0]
        if self.c.pearly:
            ds += [F(self.stamp_i('h') + self.check(1) + self.stamp_i('h'), Z, Z, cost=4)]
            un = self.o_rem(0)
            for u in range(1, 4): un += self.o_rem(u) + self.wo_rem(u)
            d2 = self.dma_stream(un, Z + 2, 78, slack=0)
            for f in d2: f.lo = max(f.lo, Z)
            ds += d2
        else:
            w13 = self.dma_stream(self.wo_rem(1) + self.wo_rem(2) + self.wo_rem(3), Z + 2, Pg - self.c.pdist - 2)
            ds += w13 + [F(I(f'buffer_load_dword v{vPOLL}, v{vPOFF}, {SDB}, 0 offen sc0 sc1'), Pg - self.c.pdist, Pg - self.c.pdist),
                         F(self.stamp_i('h') + self.check(1) + self.stamp_i('h'), Pg, Pg, cost=4)]
            ds += self.dma_stream(self.o_rem(0) + self.o_rem(1) + self.o_rem(2) + self.o_rem(3), Pg + 1, 79, slack=0)
        c0 = [F(self.stamp_i('h') + waittag('u0') + self.stamp_i('h') + I('s_barrier'), self.c.c0gap, self.c.c0gap, cost=2)] + FS(self.rem_reads(0), self.c.c0gap, 76)
        self.sch('s1', main, [ds, c0])
        self.stamp('o', 'ao')
        pend = []
        NL = self.c.lastn
        for kp in range(24 - NL + 1):
            u = kp // 2; st = self.aset(kp)
            main = []
            if kp < 24 - NL:
                for nt in range(4):
                    for t in range(5):
                        main += I(f'{MF} {vr(self.acc(t, nt))}, {ar(st + 4*nt)}, {ar(st + 16 + 4*t)}, {vr(self.acc(t, nt))}')
            else:
                for t in range(5):
                    for k2 in range(kp, 24):
                        for nt in range(4):
                            main += I(f'{MF} {vr(self.acc(t, nt))}, {ar(self.aset(k2) + 4*nt)}, {ar(self.aset(k2) + 16 + 4*t)}, {vr(self.acc(t, nt))}')
            head = waittag('rr')
            if kp % 2 == 1 and u + 1 < 12:
                head = waittag('rr', f'u{u+1}') + I('s_barrier')
                if u + 4 < 12:
                    pend = self.wo_rem(u + 4) + self.o_rem(u + 4)
                    if (u + 4) % 4 == 0: head += self.check(1 + (u + 4) // 4)
            main[0] = head + [main[0]]
            streams = []
            if kp + 1 < 24 - NL: streams.append(FS(self.rem_reads(kp + 1), 0, 14))
            elif kp + 1 == 24 - NL:
                streams.append(FS([x for k2 in range(kp + 1, 24) for x in self.rem_reads(k2)], 0, 17))
            if pend:
                n = 4 if kp % 2 == 1 else len(pend)
                streams.append(self.dma_stream(pend[:n], 1, 18, slack=1)); pend = pend[n:]
            if kp == 24 - NL:
                su = []
                for t in range(4): su += FS(self.store_units(t), 4*NL*(t + 1) + 1, 10**6)
                streams.append(su)
            if self.c.fuse and 12 <= kp < 20:
                fs = self.final_setup(16) + self.final_setup(18); n = len(fs)
                streams.append(FS(fs[(kp - 12)*n//8:(kp - 11)*n//8], 8, 19))
            self.sch(f'r{kp}', main, streams, cap=(3 if kp >= 23 - NL else 2))
            if kp % 4 == 3: self.stamp('o', 'ao')
        for u in self.store_units(4): e(u)
        if self.c.fuse: self.final_reduce()
    def final_setup(self, part):
        L = f'v{vLANE}'
        sA, sO, sQ = 's37', 's54', 's55'
        sel = '\n'.join(f's_cmp_eq_u32 {sOCT}, {r}|s_cselect_b32 {sQ}, {sOLD2[r]}, {sQ}' for r in range(4))
        sel2 = '\n'.join(f's_cmp_eq_u32 {sOCT}, {r}|s_cselect_b32 {sOLD2[r]}, {sQ}, {sOLD2[r]}' for r in range(4))
        if part == 16:
            return [I(x.replace('|', '\n')) for x in f'''s_mov_b32 s14, {8*160*1024*2}
            s_mov_b64 s[12:13], s[16:17]
            s_mul_i32 {sA}, {sOCT}, 2560
            s_add_u32 {sA}, {sA}, {sPW}
            s_lshr_b32 {sO}, {sBLK}, 2
            s_and_b32 {sO}, {sO}, 7
            s_mul_i32 {sO}, {sO}, 160
            s_mul_i32 {sQ}, {sQH}, 80
            s_add_u32 {sO}, {sO}, {sQ}
            s_lshl_b32 {sO}, {sO}, 11
            s_lshr_b32 {sQ}, {sBLK}, 5
            s_lshl_b32 {sQ}, {sQ}, 10
            s_add_u32 {sO}, {sO}, {sQ}
            s_lshl_b32 {sQ}, {sHP}, 8
            s_add_u32 {sO}, {sO}, {sQ}
            s_lshl_b32 {sQ}, {sHH}, 7
            s_add_u32 {sO}, {sO}, {sQ}
            {sel}
            s_add_u32 {sQ}, {sQ}, 1
            v_mov_b32 v{vFLAG}, {sQ}
            s_add_u32 {sQ}, {sQ}, 1
            {sel2}
            s_lshl_b32 {sCL}, {sW}, 2
            s_lshl_b32 {sIDX2}, {sIDX2}, 2
            s_mul_i32 {sQ}, {sOCT}, 160
            v_lshlrev_b32 v48, 4, {L}
            v_mov_b32 v49, 0x3f80
            v_mov_b32 v50, 0x3f800000'''.split('\n')]
        us = []
        for k in range(3):
            us += [I(x) for x in f'''v_add_u32 v26, {sQ}, {L}
            v_add_u32 v26, {64*k}, v26
            v_lshrrev_b32 v27, 7, v26
            v_lshlrev_b32 v{28+k}, 15, v27
            v_bfe_u32 v27, v26, 6, 1
            v_lshl_add_u32 v{28+k}, v27, 6, v{28+k}
            v_and_b32 v27, 15, v26
            v_lshl_add_u32 v{28+k}, v27, 11, v{28+k}
            v_bfe_u32 v27, v26, 4, 2
            v_lshl_add_u32 v{28+k}, v27, 3, v{28+k}'''.split('\n')]
        return us
    def final_reduce(self):
        e = self.e
        sA, sO = 's37', 's54'
        cmp4 = '\n'.join(f'v_readlane_b32 {sRDY}, v{vPOLL}, {r}\ns_cmp_lg_u32 {sRDY}, {sOLD2[r]}\ns_addc_u32 {sCNT}, {sCNT}, 0' for r in range(4))
        e(f'''s_mul_i32 {sT0}, {sOCT}, {PART_BYTES}
        s_sub_u32 s24, s24, {sT0}
        s_subb_u32 s25, s25, 0
        s_mov_b32 s26, {4*PART_BYTES}
        s_waitcnt vmcnt(0)
        s_mov_b64 exec, 1
        buffer_store_dword v{vFLAG}, off, {SD2}, {sIDX2} sc0 sc1
        s_mov_b64 exec, -1''')
        self.stamp('o')
        e(f'''s_mov_b32 {sWB}, {self.c.maxpoll}
        s_branch L_fpoll
        L_floop:
        {f's_sleep {self.c.slp}' if self.c.slp else ''}
        L_fpoll:
        buffer_load_dword v{vPOLL}, v48, {SD2}, {sCL} offen sc0 sc1
        s_waitcnt vmcnt(0)
        s_mov_b32 {sCNT}, 0
        {cmp4}
        s_sub_u32 {sWB}, {sWB}, 1
        s_cmp_eq_u32 {sWB}, 0
        s_cbranch_scc1 L_fgo
        s_cmp_lg_u32 {sCNT}, 4
        s_cbranch_scc1 L_floop
        L_fgo:''')
        self.stamp('o')
        R0 = 160
        for k in range(3):
            for i in range(4):
                e(f's_add_u32 {sT1}, {sA}, {i*PART_BYTES}\nbuffer_load_dwordx4 {vr(R0 + (k*4+i)*4)}, v{vL16}, {SWS}, {sT1} offen offset:{k*1024} sc1')
        for k in range(3):
            for i in range(4):
                for j in range(4):
                    r = R0 + (k*4+i)*4 + j
                    if i == 0: e(f'v_lshlrev_b32 v{96+2*j}, 16, v{r}\nv_and_b32 v{97+2*j}, 0xffff0000, v{r}')
                    elif self.c.dot: e(f'v_dot2c_f32_bf16 v{96+2*j}, v{r}, v49\nv_dot2c_f32_bf16 v{97+2*j}, v{r}, v50')
                    else: e(f'v_lshlrev_b32 v26, 16, v{r}\nv_and_b32 v27, 0xffff0000, v{r}\nv_add_f32 v{96+2*j}, v{96+2*j}, v26\nv_add_f32 v{97+2*j}, v{97+2*j}, v27')
            if self.c.dot: e('s_nop 2')
            for j in range(4): e(f'v_cvt_pk_bf16_f32 v{104+4*k+j}, v{96+2*j}, v{97+2*j}')
            if k == 2: e('s_mov_b32 exec_hi, 0')
            e(f'buffer_store_dwordx2 v[{104+4*k}:{105+4*k}], v{28+k}, {SOUT}, {sO} offen{self.pol(self.c.outpol)}')
            e(f'buffer_store_dwordx2 v[{106+4*k}:{107+4*k}], v{28+k}, {SOUT}, {sO} offen offset:32{self.pol(self.c.outpol)}')
        e('s_mov_b64 exec, -1')
    def poll_code(self):
        p = []
        for r in self.chk:
            p += I(f'''L_cstub{r}:
            s_mov_b32 {sCNT}, {self.c.maxpoll}
            L_cloop{r}:
            {f's_sleep {self.c.slp}' if self.c.slp else ''}
            buffer_load_dword v{vPOLL}, v{vPOFF}, {SDB}, 0 offen sc0 sc1
            s_waitcnt vmcnt(0)
            v_readlane_b32 {sRDY}, v{vPOLL}, {r}
            s_sub_u32 {sCNT}, {sCNT}, 1
            s_cmp_eq_u32 {sCNT}, 0
            s_cbranch_scc1 L_cret{r}
            s_sub_u32 {sRDY}, {sRDY}, {sOLD[r]}
            s_cmp_eq_u32 {sRDY}, 0
            s_cbranch_scc1 L_cloop{r}''')
            if self.c.opol != 'sc1':
                p += I(f'''s_cmp_eq_u32 {sRDY}, {sXCC}
                s_cbranch_scc1 L_cret{r}
                s_cmp_lg_u32 {sWB}, 0
                s_cbranch_scc1 L_cwb{r}
                s_mov_b32 {sWB}, 1
                s_cmp_lg_u32 {sW}, 0
                s_cbranch_scc1 L_cwb{r}
                buffer_wbl2 sc1
                s_waitcnt vmcnt(0)
                s_add_u32 {sT3}, {sOLD[0]}, 32
                v_mov_b32 v{vFLAG}, {sT3}
                s_mov_b64 exec, 1
                buffer_store_dword v{vFLAG}, off, {SDB}, {sCL} sc0 sc1
                s_mov_b64 exec, -1
                L_cwb{r}:
                s_cmp_lt_u32 {sRDY}, 32
                s_cbranch_scc1 L_cloop{r}
                buffer_inv sc1
                s_waitcnt vmcnt(0)''')
            p += I(f's_nop 4\ns_branch L_cret{r}')
        return p
    def peephole(self, prog):
        out = []; prev = {}
        for x in prog:
            if x.kind in ('label', 'branch'): prev = {}; self.curkvo = None
            if isinstance(x.tag, tuple) and x.tag[0] == 'kvo' and self.c.krot:
                if getattr(self, 'curkvo', None) == x.tag: continue
                if x.op == 's_or_b32': self.curkvo = x.tag
                out.append(x); prev.pop(sT2, None); continue
            if sT2 in x.writes: self.curkvo = None
            if x.kind == 'salu' and x.op == 's_add_u32' and len(x.writes) == 1:
                w = next(iter(x.writes))
                if w in ('m0', sT0, sT2) and prev.get(w) == x.text and w not in x.reads: continue
            for w in x.writes:
                prev.pop(w, None)
                for k in [k for k, v in prev.items() if re.search(rf'\b{w}\b', v.split(',', 1)[1])]: prev.pop(k)
            if x.kind == 'salu' and x.op == 's_add_u32' and len(x.writes) == 1: prev[next(iter(x.writes))] = x.text
            out.append(x)
        return out
    def fold(self, prog):
        idx = {x.text: k for k, x in enumerate(prog) if x.kind == 'label'}
        its = [i for i in range(16) if f'L_loopmark{i}:' in idx]
        norm = lambda x: re.sub(r'(L_stub|L_ret)\d+', r'\1', x.text)
        body = {i: [norm(x) for x in prog[idx[f'L_loopmark{i}:'] + 1: idx[f'L_loopend{i}:']]] for i in its}
        last = its[-1]; first = last
        while first - 1 in body and body[first - 1] == body[last]: first -= 1
        self.log.append(('loop', first, last, len(body[last])))
        for i in range(first + 1, last + 1): self.stubs.remove(i)
        a = idx[f'L_loopmark{first}:']; b = idx[f'L_loopend{first}:']; c = idx[f'L_loopend{last}:']
        return prog[:a] + I(self.kvoff(last + 6, sIT)) + prog[a:b] + \
            I(f's_cmp_lg_u32 {sIT}, {sKO}\ns_cbranch_scc1 L_loopmark{first}') + prog[c + 1:]
    def build(self):
        self.prologue(); self.q_phase(); self.q_to_attn(); self.stamp('main', 'q', 'a', 'ao')
        for i in range(1, 16):
            if i == 15: self.stamp('o', 'h')
            self.iteration(i)
            if i in (3, 10, 12): self.stamp('main')
            if i < 15 and not (self.c.loop and max(4, self.c.regend - 3) <= i < self.c.lend): self.stamp('a', 'ao')
        e = self.e
        if self.c.stamps:
            e('s_waitcnt vmcnt(0)'); self.stamp()
            if self.c.hwid:
                e(f's_getreg_b32 s62, hwreg(HW_REG_XCC_ID)\nv_writelane_b32 v255, s62, {self.nst}\ns_getreg_b32 s62, hwreg(HW_REG_HW_ID)\nv_writelane_b32 v255, s62, {self.nst + 1}'); self.nst += 2
            if self.c.dbgwg >= 0:
                e(f'''s_mov_b64 s[24:25], s[56:57]
                s_mov_b32 s26, 0x10000000
                s_mov_b32 {sT2}, {STAMP_OFF}
                s_cmp_lg_u32 s2, {self.c.dbgwg}
                s_cbranch_scc1 L_end
                s_cmp_lg_u32 {sW}, 0
                s_cbranch_scc1 L_end
                v_readfirstlane_b32 {sT1}, v255
                v_lshlrev_b32 v2, 2, v{vLANE}
                v_subrev_u32 v4, {sT1}, v255
                buffer_store_dword v4, v2, {SWS}, {sT2} offen
                s_endpgm''')
            if self.c.clk == 2: self.nst = 64
            e(f'''s_mov_b64 s[24:25], s[56:57]
            s_mov_b32 s26, 0x10000000
            s_mul_i32 {sT1}, s2, {self.nst*8}
            s_add_u32 {sT1}, {sT1}, {STAMP_OFF}
            s_cmp_lg_u32 {sW}, 0
            s_cbranch_scc1 L_end
            v_lshlrev_b32 v2, 3, v{vLANE}
            v_mov_b32 v4, v255
            v_mov_b32 v5, 0
            v_cmp_gt_u32 vcc, {self.nst}, v{vLANE}
            s_and_saveexec_b64 s[60:61], vcc
            buffer_store_dwordx2 v[4:5], v2, {SWS}, {sT1} offen''')
        e('L_end:\ns_endpgm')
        if self.c.nomem:
            def drop(x):
                if x.tag == 'ost': return 'x' in self.c.nomem
                if x.tag == 'exw': return 'w' in self.c.nomem
                if x.tag == 'exr': return 'r' in self.c.nomem
                if x.kind not in ('dma', 'vld', 'vst'): return False
                t = x.text
                if 'buffer_load_dword a' in t: return 'p' in self.c.nomem and SWO in t
                if SX in t or SWQ in t: return 'q' in self.c.nomem
                if SK in t or SV in t: return 'k' in self.c.nomem
                if SWO in t or SOX in t: return 'o' in self.c.nomem
                if x.tag == 'st': return 's' in self.c.nomem
                return False
            self.p = [x for x in self.p if not drop(x)]
        if self.c.jit:
            import random
            rnd = random.Random(self.c.jit); q = []; n = 0
            for x in self.p:
                isbar = x.kind == 'barrier'
                pre = isbar and rnd.random() < 0.5
                def j():
                    nonlocal n; n += 1
                    return I(f's_cmp_lg_u32 {sW}, {rnd.randrange(4)}\ns_cbranch_scc1 L_jit{n}\ns_sleep {rnd.choice([2, 6, 20, 60])}\nL_jit{n}:')
                if pre: q += j()
                q.append(x)
                if isbar and not pre: q += j()
                if x.text.startswith('s_cbranch_scc1 L_end') and n == 0:
                    n += 1
                    q += I(f's_mul_i32 s62, s2, {rnd.randrange(1, 64, 2)}\ns_and_b32 s62, s62, 7\nL_jd:\ns_sleep 40\ns_sub_u32 s62, s62, 1\ns_cmp_ge_i32 s62, 0\ns_cbranch_scc1 L_jd')
            self.p = q
        prog = finalize(self.peephole(self.p))
        if self.c.loop and any(x.text.startswith('L_loopmark') for x in prog): prog = self.fold(prog)
        for i in self.stubs: prog += I(f'L_stub{i}:\ns_call_b64 {sRET}, L_rare\ns_branch L_ret{i}')
        prog += finalize(self.rare())
        prog += self.poll_code()
        prog += I('L_codeend:')
        return prog

def reduce_kernel(cfg):
    pol = (' ' + cfg.rdpol) if cfg.rdpol else ''
    p = I(f'''
    s_cmp_ge_u32 s2, 640
    s_cbranch_scc1 L_rend
    s_load_dwordx2 s[4:5], s[0:1], 96
    s_load_dwordx2 s[8:9], s[0:1], 80
    v_lshrrev_b32 v1, 6, v0
    v_and_b32 v2, 63, v0
    v_readfirstlane_b32 s3, v1
    v_lshlrev_b32 v3, 4, v2
    s_mul_i32 s12, s2, 6554
    s_lshr_b32 s12, s12, 16
    s_mul_i32 s13, s12, 10
    s_sub_u32 s13, s2, s13
    s_lshl_b32 s13, s13, 2
    s_add_u32 s13, s13, s3           ; piece 0..39
    s_mul_i32 s16, s12, {4*PART_BYTES}
    s_lshl_b32 s17, s13, 10
    s_add_u32 s16, s16, s17
    s_add_u32 s16, s16, {PART_OFF}
    s_mov_b32 s6, {PART_OFF + 256*PART_BYTES}
    s_mov_b32 s7, 0x20000
    s_mov_b32 s10, {8*160*1024*2}
    s_mov_b32 s11, 0x20000
    ''')
    for i in range(4):
        p += I(f'buffer_load_dwordx4 v[{8+4*i}:{11+4*i}], v3, s[4:7], s16 offen{pol}')
        if i < 3: p += I(f's_add_u32 s16, s16, {PART_BYTES}')
    p += I(f'''
    s_mul_i32 s14, s13, 6554
    s_lshr_b32 s14, s14, 16          ; w
    s_mul_i32 s15, s14, 10
    s_sub_u32 s19, s13, s15          ; idx
    s_lshr_b32 s20, s19, 1           ; t
    s_and_b32 s21, s19, 1            ; m
    s_lshr_b32 s22, s12, 2
    s_and_b32 s22, s22, 7            ; b
    s_lshr_b32 s23, s12, 5           ; branch
    s_and_b32 s18, s12, 3            ; hp
    s_mul_i32 s24, s22, 160
    s_lshr_b32 s25, s14, 1
    s_mul_i32 s25, s25, 80
    s_add_u32 s24, s24, s25
    s_lshl_b32 s25, s20, 4
    s_add_u32 s24, s24, s25
    s_lshl_b32 s24, s24, 11
    s_lshl_b32 s25, s23, 10
    s_add_u32 s24, s24, s25
    s_lshl_b32 s25, s18, 8
    s_add_u32 s24, s24, s25
    s_and_b32 s25, s14, 1
    s_lshl_b32 s25, s25, 7
    s_add_u32 s24, s24, s25
    s_lshl_b32 s25, s21, 6
    s_add_u32 s24, s24, s25
    v_and_b32 v4, 15, v2
    v_lshlrev_b32 v4, 11, v4
    v_lshrrev_b32 v5, 4, v2
    v_lshl_add_u32 v4, v5, 3, v4
    ''')
    for i in range(4):
        for j in range(4):
            r = 8 + 4*i + j
            if i == 0: p += I(f'v_lshlrev_b32 v{32+2*j}, 16, v{r}\nv_and_b32 v{33+2*j}, 0xffff0000, v{r}')
            else: p += I(f'v_lshlrev_b32 v6, 16, v{r}\nv_and_b32 v7, 0xffff0000, v{r}\nv_add_f32 v{32+2*j}, v{32+2*j}, v6\nv_add_f32 v{33+2*j}, v{33+2*j}, v7')
    for j in range(4): p += I(f'v_cvt_pk_bf16_f32 v{40+j}, v{32+2*j}, v{33+2*j}')
    p += I('''buffer_store_dwordx2 v[40:41], v4, s[8:11], s24 offen
    buffer_store_dwordx2 v[42:43], v4, s[8:11], s24 offen offset:32
    L_rend:
    s_endpgm''')
    return finalize(p)

def generate(cfg, path):
    g = Gen(cfg)
    main = g.build()
    if cfg.alt:
        import copy
        c2 = copy.copy(cfg)
        for kv in cfg.alt.split('/'):
            k, v = kv.split('~'); cur = getattr(cfg, k)
            setattr(c2, k, type(cur)(int(v)) if isinstance(cur, (bool, int)) and not isinstance(cur, float) else type(cur)(v))
        m2 = Gen(c2).build()
        for x in m2: x.text = re.sub(r'\bL_(\w+)', r'LB_\1', x.text)
        main = I(f's_bitcmp1_b32 s2, {cfg.altbit}\ns_cbranch_scc1 LB_entry') + main + I('LB_entry:') + m2
    red = reduce_kernel(cfg)
    if cfg.dbgwg >= 0:
        k = [i for i, x in enumerate(red) if x.text == 'L_rend:'][0]
        red[k:k] = finalize(I(f'''s_cmp_lg_u32 s2, 0
        s_cbranch_scc1 L_rend
        s_load_dwordx2 s[8:9], s[0:1], 88
        s_mov_b32 s10, 256
        s_mov_b32 s6, 0x10000000
        s_mov_b32 s16, {STAMP_OFF}
        v_lshlrev_b32 v2, 2, v0
        buffer_load_dword v3, v2, s[4:7], s16 offen
        buffer_store_dword v3, v2, s[8:11], 0 offen'''))
    if cfg.fuse:
        s = make_file([(KN, 256, 256, 163840)], [(KN, text_of(main), 512, 102, 256)])
        s = s.replace(f'; @launch kernel={KN} grid', '; @launch grid')
    else:
        s = make_file([(KN, 256, 256, 163840), ('reduce_heads_kernel', 640, 256, 0)],
                      [(KN, text_of(main), 512, 102, 256), ('reduce_heads_kernel', text_of(red), 48, 32, 48)])
    open(path, 'w').write(s)
    open(path[:-2] + '.nst', 'w').write(str(g.nst))
    return g, main

if __name__ == '__main__':
    cfg = Cfg()
    out = sys.argv[1]
    for kv in sys.argv[2:]:
        k, v = kv.split('=')
        cur = getattr(cfg, k)
        setattr(cfg, k, type(cur)(int(v)) if isinstance(cur, (bool, int)) and not isinstance(cur, float) else type(cur)(v.replace('+', ' ')))
    g, main = generate(cfg, out)
    from collections import Counter
    print(out, 'stamps', g.nst, dict(Counter(i.kind for i in main)))
    if cfg.verbose:
        for l in g.log: print(*l)
```

```python
import sys, math, struct, re
from asmlib import *
from gen_common import make_file, KN

class Cfg:
    kpol = 'nt'; vpol = 'nt'; kpolB = '='; vpolB = '='; wpol = ''; stpol = 'sc1'; rdpol = ''; pfpol = ''
    stamps = False; stset = 'main'; clk = 0
    codepf = 1
    kv_pro = 0
    kv_end = 13
    l2pf = 1; pfit = 11; l2pfq = 0
    nstg = 3
    late = 1
    early5 = 1
    rot = 2
    vsp = 4
    kveven = 1
    thr = 8.0
    loop = 1
    nomem = ''
    verbose = 0
    dbgwg = -1
    normlast = 105
    fuse = 1
    outpol = ''
    oldpol = 'sc1'
    slp = 0
    dot = 0
    kmul = 0
    khh = 0
    kk = 1
    wo_it = 12
    smap = ''
    wo_hi = 80
    regend = 7
    jit = 0
    nlag = 0
    lean = 1
    tlb = 0
    tlbs = 13
    alt = ''
    altbit = 0
    cpf2 = 0
    cpf1 = 0
    pfgran = 128
    hwid = 0
    v15gap = -1
    pkq = 1
    pkn = 1
    kv_start = 0
    kvw = 0.5
    wpol0 = ''
    nwq0 = 4
    nx0 = 3
    pearly = 0
    c0gap = 66
    pdist = 10
    lastn = 2
    opol = 'sc1'
    zgap = 2
    pgap = 30
    maxpoll = 200000
    krot = 0
    ccap = 6
    tcap = 4
    lend = 10
    dlo = 24
    dhi = 80
STAMP_OFF = 0x8000000
PART_BYTES = 40960
PART_OFF = 0x2000000
OX_BYTES = 327680
FLAG_OFF = 0x3000000
def f32(x): return '0x%08x' % struct.unpack('<I', struct.pack('<f', x))[0]

SX, SWQ, SK, SV, SWO, SWS = 's[4:7]', 's[8:11]', 's[12:15]', 's[16:19]', 's[20:23]', 's[24:27]'
sW, sHH, sQH = 's3', 's28', 's29'
sKVOFF, sKVLDS, sWQOFF, sXOFF, sXLDS, sWO0, sWO1, sWOLDS, sPW = 's30', 's31', 's32', 's33', 's34', 's35', 's36', 's37', 's38'
sC, sT = 's40', 's41'
sT0, sT1, sT2, sT3 = 's42', 's43', 's44', 's45'
sRET = 's[60:61]'
sRB, sDB, sKO, sVO, sIT = 's46', 's47', 's52', 's53', 's50'
sB, sHP, sH0 = 's48', 's49', 's51'
sWQC, sXC, sWQB, sXB = 's88', 's89', 's90', 's91'
SOX, SDB = 's[76:79]', 's[80:83]'
sCL, sXCC, sRDY, sOW, sOCT = 's92', 's93', 's94', 's95', 's39'
sPO = ['s64', 's65', 's66', 's67']; sPWo = ['s68', 's69', 's70', 's71']
sW4K, sW5K, sCNT, sWB = 's96', 's97', 's98', 's99'
sKR, sKC = 's35', 's36'
sOLD = ['s72', 's73', 's74', 's75']
vFOFF = 215; vFOFF2 = 214
SD2 = 's[84:87]'; sOLD2 = ['s0', 's1', 's93', 's36']; sIDX2 = 's59'; sBLK = 's58'; SOUT = 's[12:15]'
STAMP0 = 62
def O(t, dt): return (t * 8 + dt) * 4
S0 = 160; P0 = 200; NM4 = 220
def Sreg(t, kt): return S0 + (t * 2 + kt) * 4
def Preg(t): return P0 + 4 * t
vMX0, vMX1, vTA, vTB = 240, 241, 242, 243
vK, vVE, vVO, aK, aVE = 244, 245, 246, 247, 248
vKVA, vKVB, vLANE, vWOV, vOE = 249, 250, 251, 252, 253
vWQA, vWQB, vX0, vX1 = 200, 201, 202, 203
vQE = [204, 205, 206]; vQO = [207, 208, 209]; vXR = [210, 211]
vWA = [212, 213]
vWA1 = 254
vRL = 240
vOEs, vOOs = 245, 246
vEX1, vEX2, vL16 = 247, 248, 254
vEXR1, vEXR2, vOB0, vOB1, vPOLL, vFLAG, vWEr, vWOr, vPOFF = 16, 17, 18, 19, 20, 21, 22, 23, 24
aVF, aAF, aKF, aL, aONE, aQ = 0, 80, 104, 136, 156, 160
aPART = 0; aA0 = 160
def Qf(ks, t): return aQ + (t * 4 + ks) * 4
def vr(b, n=4): return f'v[{b}:{b+n-1}]'
def ar(b, n=4): return f'a[{b}:{b+n-1}]'
SLOT = 32768
WQBUF = [147456, 65536, 102400]
XBUF = [81920, 126976]
WOB = [16384, 0, 32768, 49152]
OB = [65536, 86016, 106496, 126976]
aA1 = 80
aSET = [160, 196]
MF = 'v_mfma_f32_16x16x32_bf16'

def FS(units, lo=-1, hi=10**6, step=None):
    return [F(u, lo if step is None else int(lo + k * step), hi) for k, u in enumerate(units)]

class Gen:
    def __init__(self, cfg):
        self.c = cfg; self.p = []; self.nst = 0; self.stubs = []; self.log = []
    def e(self, x, tag=None):
        self.p += I(x, tag) if isinstance(x, str) else x
    def stamp_i(self, grp='all'):
        if self.c.stamps and grp in ('all', self.c.stset):
            self.nst += 1
            if self.c.clk == 2:
                return I(f's_memrealtime s[62:63]\ns_waitcnt lgkmcnt(0)\nv_writelane_b32 v255, s62, {self.nst - 1}\ns_memtime s[62:63]\ns_waitcnt lgkmcnt(0)\nv_writelane_b32 v255, s62, {self.nst + 31}')
            return I(f's_mem{"" if self.c.clk else "real"}time s[62:63]\ns_waitcnt lgkmcnt(0)\nv_writelane_b32 v255, s62, {self.nst - 1}')
        return []
    def stamp(self, *grps):
        for g in grps or ('all',): self.e(self.stamp_i(g))
    def sch(self, name, main, streams, **kw):
        v = []
        self.e(sched(main, streams, verbose=v, **kw))
        self.log.append((name,) + v[0])
    @staticmethod
    def pol(p): return (' ' + p) if p else ''
    def kvoff(self, tile, dst=sT2):
        if not self.c.krot: return f's_add_u32 {dst}, {sKVOFF}, {tile*8192}'
        return f's_add_u32 {dst}, {sKR}, {tile*8192}\ns_and_b32 {dst}, {dst}, 0x1e000\ns_or_b32 {dst}, {dst}, {sKVOFF}'
    def kvo(self, tile):
        u = I(self.kvoff(tile))
        for x in u: x.tag = ('kvo', tile)
        return u
    def kvp(self, srd): return self.pol(self.c.kpol if srd == SK else self.c.vpol)
    def kv_dma(self, srd, tile, lds, tag):
        us = []
        for k in range(4):
            u = I(f's_add_u32 m0, {sKVLDS}, {lds}') + self.kvo(tile)
            u += I(f'buffer_load_dwordx4 v{vKVA if k % 2 == 0 else vKVB}, {srd}, {sT2} offen offset:{k*1024}{self.kvp(srd)} lds', tag=tag)
            us.append(u)
        return us
    def kv_stage(self, st):
        b = (st % 5) * SLOT
        return (self.kv_dma(SK, st + 1, b, f'kv{st}') if st < 15 else []) + self.kv_dma(SV, st, b + 16384, f'kv{st}')
    def kv_stage_dyn(self, st):
        us = []
        for part in range(2):
            for k in range(4):
                u = I(f's_add_u32 m0, {sDB}, {part*16384}') if k == 0 else []
                if k == 0: us.append(u); u = []
                u += I(f'buffer_load_dwordx4 v{vKVA if k % 2 == 0 else vKVB}, {SK if part == 0 else SV}, {sKO if part == 0 else sVO} offen offset:{k*1024}{self.kvp(SK if part == 0 else SV)} lds', tag=f'kv{st}')
                us.append(u)
        return us
    def stg(self, st, part, k):
        if st >= 6: return ar(32 + ((st % 2)*8 + part*4 + k)*4)
        return ar(160 + ((st - 2)*8 + part*4 + k)*4)
    def kv_reg(self, st, parts=(0, 1)):
        us = []
        for part in parts:
            if st == 15 and part == 0: continue
            srd, tile = (SK, st + 1) if part == 0 else (SV, st)
            for k in range(4):
                us.append(self.kvo(tile) +
                          I(f'buffer_load_dwordx4 {self.stg(st, part, k)}, v{vKVA if k % 2 == 0 else vKVB}, {srd}, {sT2} offen offset:{k*1024}{self.kvp(srd)}'))
        return us
    def kv_drain(self, st, parts=(0, 1)):
        us = []
        for part in parts:
            if st == 15 and part == 0: continue
            for k in range(4):
                adr, off = {2: (vWA[0], 0), 3: (vWA[0], SLOT), 4: (vWA[1], 0), 6: (vWA1, 0), 7: (vWA1, SLOT)}.get(st, (vTB, 0))
                off += part*16384
                us.append(I(f'ds_write_b128 v{adr}, {self.stg(st, part, k)} offset:{off + k*1024}', tag=f'kv{st}'))
        if st > 7: us[0] = I(f'v_add_u32 v{vTB}, {((st % 5 - 1) * SLOT) & 0xffffffff:#x}, v{vWA1}') + us[0]
        return us
    def wq_next(self, j):
        if self.c.rot == 2 and j < 2: return I(f's_add_u32 {sWQB}, {sWQOFF}, {j*262144}')
        wrap = f's_cmp_eq_u32 {sWQC}, 0x400000\ns_cselect_b32 {sWQC}, 0x80000, {sWQC}' if self.c.rot == 2 else f's_and_b32 {sWQC}, {sWQC}, 0x3fffff'
        return I(f's_add_u32 {sWQB}, {sWQC}, {sWQOFF}\ns_add_u32 {sWQC}, {sWQC}, 262144\n{wrap}')
    def x_next(self, J):
        if self.c.rot == 2 and J < 1: return I(f's_add_u32 {sXB}, {sXOFF}, 0')
        wrap = f's_cmp_eq_u32 {sXC}, 1024\ns_cselect_b32 {sXC}, 128, {sXC}' if self.c.rot == 2 else f's_and_b32 {sXC}, {sXC}, 1023'
        return I(f's_add_u32 {sXB}, {sXC}, {sXOFF}\ns_add_u32 {sXC}, {sXC}, 128\n{wrap}')
    def wq_units(self, j):
        us = []
        for k in range(4):
            u = I(f's_add_u32 m0, {sKVLDS}, {WQBUF[j % 3]}\ns_add_u32 {sT0}, {sWQB}, {k*32768 - k*1024}')
            u += I(f'buffer_load_dwordx4 v{vWQA if k < 2 else vWQB}, {SWQ}, {sT0} offen offset:{k*1024}{self.pol(self.c.wpol0 if j < self.c.nwq0 else self.c.wpol)} lds', tag=f'wq{j}')
            us.append(u)
        if j == 0: us[0] = self.wq_next(0) + us[0]
        if j < 15: us[-1] += self.wq_next(j + 1)
        return us
    def x_units(self, J):
        us = []
        for k in range(5):
            im = (k % 4) * 1024
            u = I(f's_add_u32 m0, {sXLDS}, {XBUF[J % 2] + (k // 4)*4096}\ns_add_u32 {sT0}, {sXB}, {k*8192 - im}')
            u += I(f'buffer_load_dwordx4 v{vX0 if k % 2 == 0 else vX1}, {SX}, {sT0} offen offset:{im}{self.pol(self.c.wpol0 if J < self.c.nx0 else self.c.wpol)} lds', tag=f'x{J}')
            us.append(u)
        if J == 0: us[0] = self.x_next(0) + us[0]
        if J < 7: us[-1] += self.x_next(J + 1)
        return us
    def wo_half(self, base, const, lds, tag):
        us = []
        for k in range(4):
            u = I(f's_add_u32 m0, {sW4K}, {lds}\ns_add_u32 {sT0}, {base}, {const + k*3072}')
            u += I(f'buffer_load_dwordx4 v{vKVA if k % 2 == 0 else vKVB}, {SWO}, {sT0} offen offset:{k*1024}{self.pol(self.c.wpol)} lds', tag=tag)
            us.append(u)
        return us
    def wo_own(self, h):
        us = self.wo_half(sPWo[0], h*131072, (1 + h)*SLOT, 'wown') + self.wo_half(sPWo[0], h*131072 + 65536, (1 + h)*SLOT + 16384, 'wown')
        if h == 0: us[0] = I(f'v_mov_b32 v{vKVA}, v{vWOV}\nv_xor_b32 v{vKVB}, 32, v{vWOV}') + us[0]
        return us
    def wo_rem(self, u):
        return self.wo_half(sPWo[1 + u // 4], ((u >> 1) & 1)*131072 + (u & 1)*65536, WOB[u % 4], f'u{u}')
    def o_rem(self, u):
        us = []
        for k in range(5):
            x = I(f's_add_u32 m0, {sW5K}, {OB[u % 4] + (k // 4)*4096}\ns_add_u32 {sT2}, {sPO[1 + u // 4]}, {((u >> 1) & 1)*40960 + (u & 1)*20480 + (k // 4)*4096}')
            x += I(f'buffer_load_dwordx4 v{vL16}, {SOX}, {sT2} offen offset:{(k % 4)*1024}{self.pol(self.c.oldpol)} lds', tag=f'u{u}')
            us.append(x)
        return us
    def l2pf_q(self):
        pol = self.pol(self.c.pfpol); L = f'v{vLANE}'
        return [I(f'v_lshrrev_b32 v214, 3, {L}\nv_and_b32 v215, 7, {L}'),
                I(f'v_lshlrev_b32 v214, 13, v214\nv_lshl_add_u32 v214, v215, 6, v214'),
                I(f's_lshl_b32 {sT3}, {sB}, 19\ns_lshl_b32 {sT1}, {sW}, 17'),
                I(f's_add_u32 {sT3}, {sT3}, {sT1}\ns_lshl_b32 {sT1}, {sH0}, 8'),
                I(f's_add_u32 {sT3}, {sT3}, {sT1}\nbuffer_load_dword a138, v214, {SWQ}, {sT3} offen{pol}'),
                I(f's_add_u32 {sT3}, {sT3}, 65536\nbuffer_load_dword a139, v214, {SWQ}, {sT3} offen{pol}'),
                I(f'v_lshlrev_b32 v215, 6, {L}\ns_mul_i32 {sT3}, {sHP}, 40960'),
                I(f's_mul_i32 {sT1}, {sW}, 10240\ns_add_u32 {sT3}, {sT3}, {sT1}'),
                I(f'buffer_load_dword a140, v215, {SX}, {sT3} offen{pol}'),
                I(f's_add_u32 {sT3}, {sT3}, 4096\nbuffer_load_dword a141, v215, {SX}, {sT3} offen{pol}'),
                I(f's_add_u32 {sT3}, {sT3}, 4096\nbuffer_load_dword a142, v215, {SX}, {sT3} offen{pol}')]
    def l2pf_wo(self):
        pol = self.pol(self.c.pfpol)
        g128 = self.c.pfgran == 128
        us = [I(f'v_lshrrev_b32 v{vTA}, {1 if g128 else 2}, v{vLANE}\nv_and_b32 v{vTB}, {1 if g128 else 3}, v{vLANE}'),
              I(f'v_lshlrev_b32 v{vTA}, 10, v{vTA}\nv_lshl_add_u32 v{vTA}, v{vTB}, {7 if g128 else 6}, v{vTA}'),
              I(f's_lshl_b32 {sT3}, {sOCT}, 20\ns_lshl_b32 {sT1}, {sB}, 17'),
              I(f's_add_u32 {sT3}, {sT3}, {sT1}\ns_lshl_b32 {sT1}, {sW}, 15'),
              I(f's_add_u32 {sT3}, {sT3}, {sT1}\ns_lshl_b32 {sT1}, {sHP}, 8'),
              I(f's_add_u32 {sT3}, {sT3}, {sT1}\nbuffer_load_dword a240, v{vTA}, {SWO}, {sT3} offen{pol}')]
        if not g128: us.append(I(f's_add_u32 {sT3}, {sT3}, 16384\nbuffer_load_dword a241, v{vTA}, {SWO}, {sT3} offen{pol}'))
        return us
    def tlb_touch(self):
        return [I(f'v_lshlrev_b32 v{vTB}, {self.c.tlbs}, v{vLANE}'),
                I(f'buffer_load_dword a245, v{vTB}, {SOX}, 0 offen sc0 sc1'),
                I(f'buffer_load_dword a246, v{vTB}, {SWS}, 0 offen sc0 sc1'),
                I(f's_mov_b64 s[4:5], s[100:101]\ns_mov_b32 s6, {8*160*1024*2}'),
                I(f's_mul_i32 {sT3}, {sB}, {160*2048}'),
                I(f'buffer_load_dword a247, v{vTB}, s[4:7], {sT3} offen')]
    def code_pf(self, label, srd, vt, dst):
        n = self.ncpf = getattr(self, 'ncpf', 0) + 1
        a = srd
        return [I(f's_getpc_b64 s[{a}:{a+1}]\nL_pcx{n}:\ns_add_u32 s{a}, s{a}, {label}-L_pcx{n}\ns_addc_u32 s{a+1}, s{a+1}, 0'),
                I(f's_mov_b32 s{a+2}, L_codeend-{label}\ns_mov_b32 s{a+3}, 0x20000'),
                I(f's_lshl_b32 {sT3}, {sW}, 13\nv_lshlrev_b32 v{vt}, 7, v{vLANE}'),
                I(f'buffer_load_dword a{dst}, v{vt}, s[{a}:{a+3}], {sT3} offen')]
    def dma_stream(self, units, lo, hi, slack=4):
        fs = []; n = len(units); prev = {}
        for k, u in enumerate(units):
            l = lo + (k * (hi - lo + 1)) // n
            after = False
            for x in u:
                c = 1
                if x.op == 's_cselect_b32' or x.kind in ('branch', 'label'):
                    fs[-1].ins.append(x); fs[-1].cost += x.cost; continue
                if isinstance(x.tag, tuple) and self.c.krot:
                    if prev.get('kvo') == x.tag: c = 0
                    if x.op == 's_or_b32': prev['kvo'] = x.tag
                elif x.kind == 'salu' and x.op == 's_add_u32' and len(x.writes) == 1:
                    w = next(iter(x.writes))
                    if prev.get(w) == x.text and w not in x.reads: c = 0
                    prev[w] = x.text
                if x.kind not in ('salu', 'valu'): fs.append(F([x], l, l + slack, cost=c)); after = True
                elif after: fs.append(F([x], l, 10**6, cost=c))
                else: fs.append(F([x], l - 3, l, cost=c))
        return fs
    def peer_setup(self):
        o = [f's_lshl_b32 {sT3}, {sOCT}, 20', f's_lshl_b32 {sT2}, {sHP}, 8', f's_add_u32 {sT3}, {sT3}, {sT2}',
             f's_lshl_b32 {sT2}, {sW}, 14', f's_add_u32 {sT3}, {sT3}, {sT2}']
        for r in range(4):
            o += [f's_add_u32 {sT2}, {sHP}, {r}', f's_and_b32 {sT2}, {sT2}, 3', f's_mul_i32 {sPO[r]}, {sT2}, 81920', f's_add_u32 {sPO[r]}, {sPO[r]}, {sW5K}',
                  f's_lshl_b32 {sPWo[r]}, {sT2}, 18', f's_add_u32 {sPWo[r]}, {sPWo[r]}, {sT3}']
        assert self.c.opol == 'sc1'
        return '\n'.join(o)
    def khash(self):
        if not self.c.kmul: return ''
        return f's_lshl_b32 {sKR}, s2, 1\ns_add_u32 {sKR}, {sKR}, {sHH}\ns_mul_i32 {sKR}, {sKR}, {self.c.kmul}\ns_lshr_b32 {sT0}, {sKR}, 16\ns_xor_b32 {sKR}, {sKR}, {sT0}\ns_mul_i32 {sKR}, {sKR}, 0x45d9f3b\ns_lshr_b32 {sKR}, {sKR}, 20'
    def rot_setup(self):
        if self.c.rot != 2: return f's_and_b32 {sXC}, {sXC}, {7 if self.c.rot else 0}'
        return f's_cmp_ge_u32 {sXC}, 7\ns_cselect_b32 {sWQC}, 7, 0\ns_sub_u32 {sXC}, {sXC}, {sWQC}\ns_add_u32 {sXC}, {sXC}, 1'
    def prologue(self):
        e = self.e; L = f'v{vLANE}'
        self.stamp('e')
        e(f'''
        s_cmp_ge_u32 s2, 256
        s_cbranch_scc1 L_end
        s_load_dwordx16 s[64:79], s[0:1], 0
        s_load_dwordx4 s[80:83], s[0:1], 64
        s_load_dwordx2 s[24:25], s[0:1], 96
        s_load_dwordx2 s[100:101], s[0:1], 80
        v_lshrrev_b32 v1, 6, v0
        v_and_b32 {L}, 63, v0
        v_readfirstlane_b32 {sW}, v1
        s_and_b32 s46, s2, 7
        s_lshr_b32 s47, s2, 3
        s_lshr_b32 {sB}, s47, 2
        s_and_b32 {sHP}, s47, 3
        s_and_b32 {sOCT}, s46, 3
        s_lshl_b32 s50, {sOCT}, 2
        s_add_u32 s50, s50, {sHP}
        s_lshl_b32 {sH0}, s50, 1
        s_lshr_b32 s52, s46, 2            ; branch
        s_and_b32 {sHH}, {sW}, 1
        s_lshr_b32 {sQH}, {sW}, 1
        v_and_b32 v2, 3, {L}
        v_lshlrev_b32 v2, 4, v2           ; cc*16
        v_lshrrev_b32 v3, 4, {L}          ; g
        v_bfe_u32 v4, {L}, 2, 2           ; r
        v_lshl_add_u32 v5, v3, 6, v2
        v_lshl_add_u32 v{vKVA}, v4, 8, v5
        v_xor_b32 v{vKVB}, 32, v{vKVA}
        v_lshl_add_u32 v{vWQA}, v4, 13, v5
        v_xor_b32 v{vWQB}, 16, v{vWQA}
        v_lshrrev_b32 v6, 5, {L}
        v_bfe_u32 v7, {L}, 2, 3
        v_lshl_add_u32 v8, v6, 6, v2
        v_lshl_add_u32 v8, v7, 10, v8
        s_lshl_b32 {sT0}, {sHH}, 5
        v_xor_b32 v{vX0}, {sT0}, v8
        v_xor_b32 v{vX1}, 32, v{vX0}
        s_lshl_b32 {sT0}, {sQH}, 12
        s_lshl_b32 {sKVLDS}, {sHH}, 13
        s_add_u32 {sKVLDS}, {sKVLDS}, {sT0}
        s_lshl_b32 {sKVOFF}, {sHH}, 17
        s_add_u32 {sKVOFF}, {sKVOFF}, {sT0}
        s_add_u32 {sT1}, {sH0}, {sHH}
        s_lshl_b32 {sWQOFF}, {sT1}, 8
        s_lshl_b32 {sT0}, {sQH}, 17
        s_add_u32 {sWQOFF}, {sWQOFF}, {sT0}
        s_mul_i32 {sXOFF}, {sW}, {5*8192}
        s_mul_i32 {sXLDS}, {sW}, {5*1024}
        s_lshl_b32 {sXC}, {sHP}, 1
        s_add_u32 {sXC}, {sXC}, {sB}
        {self.rot_setup()}
        s_lshl_b32 {sWQC}, {sXC}, 19
        s_lshl_b32 {sXC}, {sXC}, 7
        s_mul_i32 {sKR}, s2, {self.c.krot}
        s_mul_i32 {sT0}, s47, {self.c.kk}
        s_add_u32 {sKR}, {sKR}, {sT0}
        s_mul_i32 {sT0}, {sHH}, {self.c.khh}
        s_add_u32 {sKR}, {sKR}, {sT0}
        {self.khash()}
        s_lshl_b32 {sKR}, {sKR}, 13
        s_mul_i32 s53, {sB}, 163840
        s_lshl_b32 s54, {sB}, 5
        s_add_u32 s54, s54, {sH0}
        s_lshl_b32 s54, s54, 17
        s_mov_b32 s6, 163840
        s_mov_b32 s7, 0x20000
        s_mov_b32 s10, 0x400000
        s_mov_b32 s11, 0x20000
        s_mov_b32 s14, 0x40000
        s_mov_b32 s15, 0x20000
        s_mov_b32 s18, 0x40000
        s_mov_b32 s19, 0x20000
        s_cmp_eq_u32 s52, 0
        s_cselect_b64 s[4:5], s[64:65], s[74:75]
        s_cselect_b64 s[8:9], s[70:71], s[80:81]
        s_cselect_b64 s[12:13], s[66:67], s[76:77]
        s_cselect_b64 s[16:17], s[68:69], s[78:79]
        s_cselect_b64 s[20:21], s[72:73], s[82:83]
        s_add_u32 s4, s4, s53
        s_addc_u32 s5, s5, 0
        ''')
        self.stamp()
        for u in self.x_units(0) + self.wq_units(0) + self.wq_units(1): e(u)
        e(f'''
        s_add_u32 s12, s12, s54
        s_addc_u32 s13, s13, 0
        s_add_u32 s16, s16, s54
        s_addc_u32 s17, s17, 0
        ''')
        self.kvq = self.kv_dma(SK, 0, SLOT + 16384, 'k0') + self.kv_stage(0) + self.kv_dma(SK, 2, SLOT, 'kv1')
        for st in (2, 3, 4)[:self.c.nstg]: self.kvq += self.kv_reg(st)
        self.late_pro = self.x_units(1) + self.wq_units(2) + [self.kvq.pop(0) for _ in range(self.c.kv_pro)]
        if not self.c.lean:
            for u in self.late_pro: e(u)
            self.late_pro = []
        if self.c.codepf and self.c.lean:
            e(f'''s_getpc_b64 s[84:85]
            L_pc0:
            s_mov_b32 s86, L_codeend-L_pc0
            s_mov_b32 s87, 0x20000
            v_and_b32 v22, 15, {L}
            v_lshlrev_b32 v22, 7, v22
            s_and_b32 {sT0}, s47, 7
            s_lshl_b32 {sT0}, {sT0}, 2
            s_add_u32 {sT0}, {sT0}, {sW}
            s_lshl_b32 {sT0}, {sT0}, 11
            buffer_load_dword a136, v22, s[84:87], {sT0} offen''')
        elif self.c.codepf:
            e(f'''s_getpc_b64 s[84:85]
            L_pc0:
            s_mov_b32 s86, L_codeend-L_pc0
            s_mov_b32 s87, 0x20000
            v_lshlrev_b32 v22, 7, v0
            buffer_load_dword a136, v22, s[84:87], 0 offen
            s_mov_b32 {sT0}, 32768
            buffer_load_dword a137, v22, s[84:87], {sT0} offen''')
        e(f'''
        s_mul_i32 {sPW}, {sW}, 10240
        s_lshl_b32 {sW4K}, {sW}, 12
        s_mul_i32 {sW5K}, {sW}, 5120
        s_mov_b32 {sC}, {f32(128 ** -0.5 * math.log2(math.e))}
        s_mov_b32 {sT}, {f32(self.c.thr)}
        s_lshl_b32 s55, s52, 3
        s_add_u32 s55, s55, {sB}          ; group = branch*8 + b
        s_lshl_b32 {sCL}, s55, 2
        s_add_u32 {sT2}, {sCL}, {sHP}
        s_mov_b32 {sBLK}, {sT2}
        s_add_u32 {sCL}, {sCL}, {sOCT}    ; cluster = group*4 + octet
        s_lshl_b32 {sT2}, {sT2}, 2
        s_add_u32 {sT2}, {sT2}, {sOCT}
        s_mul_i32 {sT2}, {sT2}, {PART_BYTES}
        s_add_u32 {sT2}, {sT2}, {PART_OFF}
        s_mul_i32 s55, {sCL}, {OX_BYTES}
        s_mov_b32 s22, 0x400000
        s_mov_b32 s23, 0x20000
        s_mov_b64 s[56:57], s[24:25]
        s_add_u32 s76, s24, s55
        s_addc_u32 s77, s25, 0
        s_mov_b32 s78, {OX_BYTES}
        s_mov_b32 s79, 0x20000
        s_add_u32 s24, s24, {sT2}
        s_addc_u32 s25, s25, 0
        s_mov_b32 s26, {PART_BYTES}
        s_mov_b32 s27, 0x20000
        s_lshl_b32 {sCL}, {sCL}, 7
        s_add_u32 {sCL}, {sCL}, {FLAG_OFF}
        s_add_u32 s80, s56, {sCL}
        s_addc_u32 s81, s57, 0
        s_mov_b32 s82, 16
        s_mov_b32 s83, 0x20000
        v_add_u32 v24, {sHP}, {L}
        v_and_b32 v24, 3, v24
        v_lshlrev_b32 v24, 2, v24
        buffer_load_dword v{vFOFF}, v24, {SDB}, 0 offen sc0 sc1
        s_lshl_b32 {sCL}, {sHP}, 2
        s_mov_b32 {sWB}, 0
        s_lshl_b32 {sT2}, {sBLK}, 7
        s_add_u32 {sT2}, {sT2}, {FLAG_OFF + 8192}
        s_add_u32 s84, s56, {sT2}
        s_addc_u32 s85, s57, 0
        s_mov_b32 s86, 64
        s_mov_b32 s87, 0x20000
        s_lshl_b32 {sT2}, {sW}, 2
        v_lshlrev_b32 v24, 4, {L}
        buffer_load_dword v{vFOFF2}, v24, {SD2}, {sT2} offen sc0 sc1
        s_lshl_b32 {sIDX2}, {sOCT}, 2
        s_add_u32 {sIDX2}, {sIDX2}, {sW}
        s_mul_i32 {sOW}, {sHP}, 81920
        s_mul_i32 {sT2}, {sHH}, 40960
        s_add_u32 {sOW}, {sOW}, {sT2}
        s_mul_i32 {sT2}, {sQH}, 10240
        s_add_u32 {sOW}, {sOW}, {sT2}
        {self.peer_setup()}
        v_and_b32 v9, 1, v3
        v_lshlrev_b32 v9, 5, v9           ; 32*(g&1)
        v_lshl_add_u32 v{vWOV}, v4, 10, v5
        v_and_b32 v10, 15, {L}
        v_and_b32 v11, 3, {L}
        v_lshrrev_b32 v12, 2, v10
        v_and_b32 v13, 1, v12
        v_lshlrev_b32 v13, 5, v13
        v_lshlrev_b32 v14, 4, v3
        v_xor_b32 v13, v13, v14
        v_lshl_add_u32 v13, v11, 6, v13
        v_lshl_add_u32 v13, v12, 10, v13
        s_lshl_b32 {sT1}, {sHH}, 13
        v_add_u32 v{aK}, {sT1}, v13
        v_lshl_add_u32 v15, v11, 3, v9
        v_lshl_add_u32 v15, v4, 6, v15
        v_lshl_add_u32 v16, v3, 10, v15
        v_add_u32 v{aVE}, {sT1}, v16
        v_lshrrev_b32 v16, 1, v9          ; 16*(g&1)
        v_lshlrev_b32 v22, 4, v11         ; 16*c4
        v_xor_b32 v16, v16, v22
        v_and_b32 v22, 1, v11
        v_lshl_add_u32 v16, v22, 3, v16   ; + 8*(c4&1)
        v_lshl_add_u32 v16, v4, 6, v16    ; + r*64
        v_lshl_add_u32 v16, v3, 11, v16   ; + g*2048
        v_add_u32 v16, {sT1}, v16
        v_add_u32 v{vQE[0]}, {WQBUF[0]}, v16
        v_add_u32 v{vQE[1]}, {WQBUF[1]}, v16
        v_add_u32 v{vQE[2]}, {WQBUF[2]}, v16
        v_xor_b32 v{vQO[0]}, 8, v{vQE[0]}
        v_xor_b32 v{vQO[1]}, 8, v{vQE[1]}
        v_xor_b32 v{vQO[2]}, 8, v{vQE[2]}
        s_mov_b32 vcc_lo, 0xffff0000
        s_mov_b32 vcc_hi, 0xffff0000
        v_lshrrev_b32 v17, 3, v10
        v_lshlrev_b32 v18, 5, v17
        v_xor_b32 v18, v18, v14
        v_and_b32 v19, 7, {L}
        v_lshl_add_u32 v18, v19, 6, v18
        v_lshl_add_u32 v18, v17, 10, v18
        s_mul_i32 {sT2}, {sQH}, 10240
        v_add_u32 v18, {sT2}, v18
        v_add_u32 v{vXR[0]}, {XBUF[0]}, v18
        v_add_u32 v{vXR[1]}, {XBUF[1]}, v18
        v_lshl_add_u32 v20, v3, 10, v15
        s_lshl_b32 {sT2}, {sHH}, 9
        v_add_u32 v{vOE}, {sT2}, v20
        v_lshlrev_b32 v{vWA1}, 4, {L}
        v_add_u32 v{vWA1}, {sKVLDS}, v{vWA1}
        v_add_u32 v{vWA[0]}, 65536, v{vWA1}
        v_add_u32 v{vWA[1]}, 131072, v{vWA1}
        v_add_u32 v{vWA1}, {SLOT}, v{vWA1}
        v_mov_b32 v21, 0x3f803f80
        v_accvgpr_write_b32 a{aONE}, v21
        v_accvgpr_write_b32 a{aONE+1}, v21
        v_accvgpr_write_b32 a{aONE+2}, v21
        v_accvgpr_write_b32 a{aONE+3}, v21
        ''')
    def q_reads(self, j):
        st = (j & 1) * 52
        xr = [I(f'ds_read_b128 {ar(st + 32 + 4*t)}, v{vXR[(j >> 1) & 1]} offset:{t*2048 + (j & 1)*512}') for t in range(5)]
        aa = []
        for dt in range(8):
            for u in range(2):
                adr = (vQE if dt % 2 == 0 else vQO)[j % 3]
                aa.append(I(f'ds_read_b64_tr_b16 {ar(st + 4*dt + 2*u, 2)}, v{adr} offset:{u*1024 + (dt >> 1)*256}'))
        return aa[:2] + xr + aa[2:]
    def k_reads(self, base, tag='kr'):
        us = [I(f'v_add_u32 v{vK}, {base}, v{aK}')]
        for ks in range(4):
            for kt in range(2):
                us.append(I(f'ds_read_b128 {ar(aKF + (kt*4+ks)*4)}, v{vK} offset:{kt*4096 + ks*256}', tag=tag))
        return us
    def v_reads(self, base, dst=aVF, tag='vr'):
        pre = [I(f'v_add_u32 v{vVE}, {base}, v{aVE}'), I(f'v_xor_b32 v{vVO}, 32, v{vVE}')]
        us = []
        for dt in range(8):
            for h in range(2):
                us.append((dt, I(f'ds_read_b64_tr_b16 {ar(dst + 4*dt + 2*h, 2)}, v{vVE if dt % 2 == 0 else vVO} offset:{16384 + h*4096 + (dt >> 1)*256}', tag=tag)))
        return pre, us
    def q_mfmas(self, j, touter=False):
        st = (j & 1) * 52; m = []
        order = [(t, dt) for t in range(5) for dt in range(8)] if touter else [(t, dt) for dt in range(8) for t in range(5)]
        for t, dt in order:
            m += I(f'{MF} {vr(O(t, dt))}, {ar(st + 4*dt)}, {ar(st + 32 + 4*t)}, {vr(O(t, dt)) if j else "0"}')
        return m
    def s_mfmas(self, zero=False):
        m = []
        for t in range(5):
            for ks in range(4):
                for kt in range(2):
                    c = vr(Sreg(t, kt)) if ks else ('0' if zero else vr(NM4 + 4*t))
                    m += I(f'{MF} {vr(Sreg(t, kt))}, {ar(aKF + (kt*4+ks)*4)}, {ar(Qf(ks, t))}, {c}')
        m[0] = waittag('kr') + [m[0]]
        return m
    def pv_mfmas(self, first=False, vf=aVF, ones_first=True):
        ones = [I(f'{MF} {ar(aL + 4*t)}, {ar(aONE)}, {vr(Preg(t))}, {"0" if first else ar(aL + 4*t)}')[0] for t in range(5)]
        m = list(ones) if ones_first else []
        for t in range(5):
            if not ones_first: m.append(ones[t])
            for dt in range(8):
                m += I(f'{MF} {vr(O(t, dt))}, {ar(vf + 4*dt)}, {vr(Preg(t))}, {"0" if first else vr(O(t, dt))}')
        return m
    def q_convert(self, t):
        us = []
        for ks in range(4):
            x = O(t, 2*ks); y = x + 4
            if self.c.pkq:
                for k in range(0, 8, 2): us.append(I(f'v_pk_mul_f32 v[{x+k}:{x+k+1}], v[{x+k}:{x+k+1}], s[40:41] op_sel_hi:[1,0]'))
            else:
                for k in range(8): us.append(I(f'v_mul_f32 v{x+k}, {sC}, v{x+k}'))
        for ks in range(4):
            x = O(t, 2*ks); y = x + 4
            for s in (f'v{x}, v{x}, v{x+1}', f'v{y}, v{y}, v{y+1}', f'v{x+1}, v{x+2}, v{x+3}', f'v{y+1}, v{y+2}, v{y+3}'):
                us.append(I('v_cvt_pk_bf16_f32 ' + s))
        for ks in range(4):
            x = O(t, 2*ks); y = x + 4
            for k in range(2):
                us.append(I(f'v_cndmask_b32 v{x+2+k}, v{x+k}, v{y+k}, vcc'))
                us.append(I(f'v_cndmask_b32 v{y+2+k}, v{y+k}, v{x+k}, vcc'))
        for ks in range(4):
            x = O(t, 2*ks); y = x + 4
            for k, r in enumerate((x+2, x+3, y+2, y+3)): us.append(I(f'v_accvgpr_write_b32 a{Qf(ks, t)+k}, v{r}'))
        return us
    def exp_units(self, t):
        b = Sreg(t, 0)
        return [I(f'v_exp_f32 v{b+k}, v{b+k}') for k in range(8)], [I(f'v_cvt_pk_bf16_f32 v{Preg(t)+k}, v{b+2*k}, v{b+2*k+1}') for k in range(4)]
    def rowmax(self, m, c, b):
        return I(f'''v_max3_f32 v{m}, v{b}, v{b+1}, v{b+2}
        v_max3_f32 v{c}, v{b+3}, v{b+4}, v{b+5}
        v_max3_f32 v{m}, v{m}, v{b+6}, v{b+7}
        v_max_f32 v{m}, v{m}, v{c}
        v_mov_b32 v{c}, v{m}
        v_permlane32_swap_b32 v{m}, v{c}
        v_max_f32 v{m}, v{m}, v{c}
        v_mov_b32 v{c}, v{m}
        v_permlane16_swap_b32 v{m}, v{c}
        v_max_f32 v{m}, v{m}, v{c}''')
    def softmax_streams(self, i, ck, exp_dead, cvt_lo):
        mx = []
        for t in range(5):
            b = Sreg(t, 0)
            for k in range(4):
                m = vMX0 if k % 2 == 0 else vMX1
                if t == 0 and k < 2: mx.append(I(f'v_max_f32 v{m}, v{b+2*k}, v{b+2*k+1}'))
                else: mx.append(I(f'v_max3_f32 v{m}, v{b+2*k}, v{b+2*k+1}, v{m}'))
        mx.append(I(f'v_max_f32 v{vMX0}, v{vMX0}, v{vMX1}'))
        st = FS(mx + [I(f'v_cmp_lt_f32 vcc, {sT}, v{vMX0}')], -1, ck - 1)
        st.append(F(I(f's_cbranch_vccnz L_stub{i}\nL_ret{i}:'), ck, ck, cost=1))
        self.stubs.append(i)
        for t in range(5):
            ex, cv = self.exp_units(t)
            st += FS(ex, -1, exp_dead(t)) + FS(cv, cvt_lo(t), exp_dead(t))
        return st
    def q_phase(self):
        e = self.e
        self.stamp('e'); e(waittag('x0', 'wq0')); self.stamp('e'); e('s_barrier'); self.stamp('q', 'e')
        qr = self.q_reads(0)
        for k, u in enumerate(qr):
            e(u)
            if k < len(self.late_pro): e(self.late_pro[k])
        for u in self.late_pro[len(qr):]: e(u)
        e(waittag('wq1')); e('s_waitcnt lgkmcnt(0)\ns_barrier'); self.stamp('e')
        for j in range(15):
            d = []
            if j + 3 < 16: d += self.wq_units(j + 3)
            if j % 2 == 1 and (j - 1) // 2 + 2 < 8: d += self.x_units((j - 1) // 2 + 2)
            ke = self.c.kv_end
            if j < self.c.kv_start: n = 0
            elif self.c.kveven == 2:
                wts = [(1.0 if (k % 2 == 0 or k >= 13) else self.c.kvw) for k in range(j, ke)]
                n = round(len(self.kvq) * wts[0] / sum(wts)) if wts else len(self.kvq)
            elif self.c.kveven:
                left = len([k for k in range(j, ke) if k % 2 == 0 or k >= 13])
                n = 0 if (j % 2 == 1 and j < 13) else (-(-len(self.kvq) // max(1, left)))
            else:
                n = -(-len(self.kvq) // max(1, ke - j)) if j < ke else len(self.kvq)
            d += [self.kvq.pop(0) for _ in range(min(n, len(self.kvq)))]
            ds = self.dma_stream(d, 1, min(39, self.c.vsp * len(d)), slack=1) if d else []
            streams = [FS(self.q_reads(j + 1), 0, 30), ds]
            if j == 0 and self.c.l2pfq: streams.append(FS(self.l2pf_q(), 22, 39))
            if j == 3: streams.append(FS([I(f'v_readlane_b32 {sOLD[r]}, v{vFOFF}, {r}') for r in range(4)] + [I(f'v_readlane_b32 {sOLD2[r]}, v{vFOFF2}, {r}') for r in range(4)], 30, 39))
            if self.c.cpf1 and j == self.c.cpf1: streams.append(FS(self.code_pf('L_conv', 60, 216, 143), 24, 39))
            if j == 14 and self.c.nstg >= 1: streams.append(FS(self.kv_drain(2), 20, 39, step=2))
            if j == 13 and self.c.nstg < 1: streams.append(self.dma_stream(self.kv_stage(2), 4, 36))
            self.sch(f'q{j}', self.q_mfmas(j), streams)
            tags = []
            if j + 2 < 16:
                tags.append(f'wq{j+2}')
                if (j + 2) % 2 == 0: tags.append(f'x{(j+2)//2}')
            if j == 14: tags += ['k0', 'kv0']
            e(waittag(*tags)); e('s_waitcnt lgkmcnt(0)\ns_barrier'); self.stamp('q')
    def q_to_attn(self):
        main = self.q_mfmas(15, touter=True) + self.s_mfmas(zero=True) + self.s_mfmas()
        conv = []
        for t in range(5):
            cu = self.q_convert(t)
            conv += FS(cu, 8*t + 9, 39 + 8*t)
        drains = FS(self.kv_drain(3), 8, 24, step=2) if self.c.nstg >= 2 else []
        if self.c.nstg >= 3: drains += FS(self.kv_drain(4), 24, 40, step=2)
        for f in conv:
            w = [r for x in f.ins for r in x.writes if r[0] == 'a']
            if w and int(w[0][1:]) >= 192: f.lo = max(f.lo, 26 if int(w[0][1:]) < 224 else 42)
        init = []
        for t in range(5):
            b = Sreg(t, 0); lo = 40 + 8*t + 9; hi = 79 + 8*t
            u = [[x] for x in self.rowmax(vMX0, vMX1, b)]
            u += [I(f'v_sub_f32 v{NM4+4*t+k}, 0, v{vMX0}') for k in range(4)]
            u += [I(f'v_sub_f32 v{b+k}, v{b+k}, v{vMX0}') for k in range(8)]
            ex, cv = self.exp_units(t)
            init += FS(u + ex + cv, lo, hi)
        k0 = FS(self.k_reads(SLOT + 16384), -1, 12)
        k1 = self.k_reads(0)
        k1s = [F(k1[0], 60, 79)] + [F(u, 72 + k, 79) for k, u in enumerate(k1[1:])]
        pre, vu = self.v_reads(0)
        vs = FS(pre, 44, 70) + [F(u, 44, 84) for _, u in vu]
        d0 = (self.kv_stage(3) if self.c.nstg < 2 else []) + (self.kv_stage(4) if self.c.nstg < 3 else [])
        v1 = self.dma_stream(d0, 0, 40) if d0 else []
        if self.c.late and not d0: v1 += self.dma_stream(self.kv_reg(6, (0,)), 4, 40)
        v1 += [F(I('s_barrier'), 46, 50)] + self.dma_stream(self.kv_dma(SV, 1, SLOT + 16384, 'kv1'), 50, 64)
        if self.c.late: v1 += self.dma_stream(self.kv_reg(6, (1,) if not d0 else (0, 1)), 66, 86)
        if self.c.early5:
            v1 += [F(waittag('vr') + I('s_barrier'), 88, 90, cost=2)] + self.dma_stream(self.kv_stage(5), 92, 116)
        self.e('L_conv:')
        self.sch('q15..s1', main, [k0, drains, conv + init, k1s, vs, v1], pre_cap=9, cap=self.c.ccap)
    def iteration(self, i):
        e = self.e
        L0 = max(4, self.c.regend - 3) if self.c.late else 2
        dyn = self.c.loop and L0 <= i <= self.c.lend
        if dyn and i == L0:
            e(f's_mov_b32 {sRB}, {(L0 % 5)*SLOT}\ns_add_u32 {sDB}, {sKVLDS}, {((L0 - 1) % 5)*SLOT}\n{self.kvoff(L0 + 5, sKO)}\n{self.kvoff(L0 + 4, sVO)}')
        if dyn: e(f'L_loopmark{i}:')
        tags = [f'kv{i}', 'vr'] + (['wown'] if i == 15 else [])
        if i == 15 and self.c.v15gap >= 0: return self.tail()
        if dyn: e('s_waitcnt vmcnt(24) lgkmcnt(0)')
        e(waittag(*tags)); e('s_barrier')
        if i == 15: return self.tail()
        if dyn: dma = self.kv_stage_dyn(i + 4)
        elif i == 1 and self.c.early5: dma = self.kv_reg(7) if self.c.late else []
        elif self.c.late and 6 <= i + 4 <= self.c.regend:
            dr = self.kv_drain(i + 4); dma = dr
            if i + 6 <= self.c.regend:
                ld = self.kv_reg(i + 6); h = len(dr) // 2
                dma = dr[:h] + dr[h:] + ld if len(ld) < 8 else dr[:h] + ld[:4] + dr[h:] + ld[4:]
        else:
            sm = {s: s - 4 for s in range(8, 16)}
            sm.update({int(a): int(b) for a, b in (x.split('~') for x in self.c.smap.split('/') if x)})
            dma = []
            for s in sorted(sm):
                if sm[s] == i and s > self.c.regend: dma += self.kv_stage(s)
            if 0 <= i - self.c.wo_it <= 1: dma += self.wo_own(i - self.c.wo_it)
        main = self.pv_mfmas(first=(i == 1)) + self.s_mfmas()
        base = sRB if dyn else (i % 5) * SLOT
        sm = self.softmax_streams(i, 11, lambda t: 44 + 8*t, lambda t: 12 + 8*t)
        ks = FS(self.k_reads(base), -1, 36)
        pre, vu = self.v_reads(base)
        vs = FS(pre, 20, 60) + [F(u, 37 + dt, 80) for dt, u in vu]
        streams = [sm, ks, vs]
        ds = self.dma_stream(dma, self.c.dlo if i < 12 else 13, self.c.dhi if i < 12 else self.c.wo_hi) if dma else []
        if self.c.l2pf and i == self.c.pfit: ds += FS(self.l2pf_wo(), 72, 84)
        if self.c.tlb == i: ds = FS(self.tlb_touch(), 13, 30) + ds
        if self.c.cpf2 == i: ds = FS(self.code_pf('L_tail', 4, vTB, 244), 13, 30) + ds
        if dyn:
            ds += FS([I(x) for x in (f's_add_u32 {sDB}, {sRB}, {sKVLDS}', f's_add_u32 {sRB}, {sRB}, {SLOT}',
                      f's_cmp_eq_u32 {sRB}, {5*SLOT}\ns_cselect_b32 {sRB}, 0, {sRB}', f's_mov_b32 {sVO}, {sKO}', f's_add_u32 {sKO}, {sKO}, 8192') + ((f's_and_b32 {sKO}, {sKO}, 0x1e000', f's_or_b32 {sKO}, {sKO}, {sKVOFF}') if self.c.krot else ())], 61, 84)
        streams.append(ds)
        self.sch(f'it{i}', main, streams)
        if dyn: e(f'L_loopend{i}:')
    def rare(self):
        p = I('L_rare:\ns_nop 7\ns_nop 1')
        for t in range(5):
            b = Sreg(t, 0)
            p += self.rowmax(vMX0, vMX1, b)
            p += I(f'v_max_f32 v{vMX0}, 0, v{vMX0}')
            for k in range(4): p += I(f'v_sub_f32 v{NM4+4*t+k}, v{NM4+4*t+k}, v{vMX0}')
            for k in range(8): p += I(f'v_sub_f32 v{b+k}, v{b+k}, v{vMX0}')
            p += I(f'v_sub_f32 v{vTA}, 0, v{vMX0}\nv_exp_f32 v{vTA}, v{vTA}')
            for k in range(32): p += I(f'v_mul_f32 v{O(t,0)+k}, v{O(t,0)+k}, v{vTA}')
            for k in range(4):
                p += I(f'v_accvgpr_read_b32 v{vTB}, a{aL+4*t+k}\nv_mul_f32 v{vTB}, v{vTB}, v{vTA}\nv_accvgpr_write_b32 a{aL+4*t+k}, v{vTB}')
            for k in range(4):
                r = Preg(t) + k
                p += I(f'''v_lshlrev_b32 v{vTB}, 16, v{r}
                v_and_b32 v{vMX1}, 0xffff0000, v{r}
                v_mul_f32 v{vTB}, v{vTB}, v{vTA}
                v_mul_f32 v{vMX1}, v{vMX1}, v{vTA}
                v_cvt_pk_bf16_f32 v{r}, v{vTB}, v{vMX1}''')
        p += I(f's_nop 1\ns_setpc_b64 {sRET}')
        return p
    def own(self, ks, t): return self.ownmap[(ks, t)]
    def acc(self, t, nt): return 32*t + 4*nt
    def norm_units(self, t):
        us = [I(f'v_accvgpr_read_b32 v{vRL+t}, a{aL+4*t}'), I(f'v_rcp_f32 v{vRL+t}, v{vRL+t}')]
        for ks in range(4):
            b = O(t, 2*ks)
            if self.c.pkn:
                r = vRL + t; pr = r & ~1; sel = r & 1
                for k in range(0, 8, 2): us.append(I(f'v_pk_mul_f32 v[{b+k}:{b+k+1}], v[{b+k}:{b+k+1}], v[{pr}:{pr+1}] op_sel:[0,{sel}] op_sel_hi:[1,{sel}]'))
            else:
                for k in range(8): us.append(I(f'v_mul_f32 v{b+k}, v{b+k}, v{vRL+t}'))
            for k in range(4): us.append(I(f'v_cvt_pk_bf16_f32 v{self.own(ks, t) + k}, v{b+2*k}, v{b+2*k+1}'))
            f = ks*5 + t
            adr, off = (vEX1, f*1024) if f < 16 else (vEX2, (f-16)*1024)
            us.append(I(f's_add_u32 {sT1}, {sOW}, {(ks >> 1)*20480 + ((ks & 1)*5 + t)*1024}') +
                      I(f'buffer_store_dwordx4 {vr(self.own(ks, t))}, v{vL16}, {SOX}, {sT1} offen{self.pol(self.c.opol)}', tag='ost'))
            us.append(I(f'ds_write_b128 v{adr}, {vr(self.own(ks, t))} offset:{off}', tag='exw'))
        return us
    def a_reads(self, e, o, base, nks, dst, tag):
        us = []
        for ks in range(nks):
            for nt in range(4):
                for h in range(2):
                    us.append(I(f'ds_read_b64_tr_b16 {ar(dst + (ks*4 + nt)*4 + 2*h, 2)}, v{e if nt % 2 == 0 else o} offset:{base + ks*8192 + h*4096 + (nt >> 1)*256}', tag=tag))
        return us
    def rem_reads(self, kp):
        u = kp // 2; ksl = kp % 2; st = self.aset(kp)
        aa = self.a_reads(vWEr, vWOr, WOB[u % 4] + ksl*8192, 1, st, 'rr')
        adr, off = (vOB0, OB[u % 4] - OB[0]) if u % 4 < 2 else (vOB1, OB[u % 4] - OB[2])
        bb = [I(f'ds_read_b128 {ar(st + 16 + 4*t)}, v{adr} offset:{off + (ksl*5 + t)*1024}', tag='rr') for t in range(5)]
        return aa[:2] + bb + aa[2:]
    def aset(self, kp):
        return aSET[kp % 2] if kp < 22 else (0, 40)[kp - 22]
    def check(self, r):
        self.chk.append(r)
        return I(f'v_readlane_b32 {sRDY}, v{vPOLL}, {r}\ns_sub_u32 {sRDY}, {sRDY}, {sOLD[r]}\ns_cmp_eq_u32 {sRDY}, {sXCC if self.c.opol != "sc1" else 32}\ns_cbranch_scc0 L_cstub{r}\nL_cret{r}:')
    def store_units(self, t):
        us = []
        for m in range(2):
            b = self.acc(t, 2*m)
            for k in range(4): us.append(I(f'v_cvt_pk_bf16_f32 v{b+k}, v{b+2*k}, v{b+2*k+1}'))
            us.append(I(f's_add_u32 {sT1}, {sPW}, {(t*2+m)*1024}') +
                      I(f'buffer_store_dwordx4 {vr(b)}, v{vL16}, {SWS}, {sT1} offen{self.pol(self.c.stpol)}', tag='st'))
        return us
    def tail(self):
        e = self.e; L = f'v{vLANE}'; self.chk = []
        e('L_tail:\ns_mov_b64 s[16:17], s[100:101]')
        regs = {0: [220, 224, 228, 232], 1: [236, 160, 164, 168], 2: [172, 176, 180, 184], 3: [188, 192, 196, 200], 4: [204, 208, 212, 216]}
        self.ownmap = {(ks, t): regs[t][ks] for t in range(5) for ks in range(4)}
        o0 = []
        for t in range(5):
            for ks in range(4):
                for nt in range(4):
                    o0 += I(f'{MF} {vr(self.acc(t, nt))}, {ar(aA0 + (ks*4+nt)*4)}, {vr(self.own(ks, t))}, {vr(self.acc(t, nt)) if ks else "0"}')
        pv15 = self.pv_mfmas(vf=aKF, ones_first=False)
        pv15[0] = waittag('vr') + [pv15[0]]
        o0[0] = waittag('af0') + [o0[0]]
        main = self.pv_mfmas() + pv15 + o0
        sm = self.softmax_streams(15, 11, lambda t: 43 + 9*t, lambda t: 12 + 8*t)
        pre, vu = self.v_reads(0, dst=aKF)
        rd = FS(pre + [u for _, u in vu], -1, 30)
        if self.c.v15gap >= 0:
            G = self.c.v15gap
            rd = [F(waittag('kv15', 'wown') + I('s_barrier'), G, G, cost=2)] + FS(pre + [u for _, u in vu], G, 40)
            main[5] = waittag('vr') + [main[5]]
        rd += FS([I(f's_lshl_b32 {sT1}, {sHH}, 15'), I(f's_add_u32 {sT1}, {sT1}, {SLOT}'), I(f'v_add_u32 v{vOEs}, {sT1}, v{vOE}'), I(f'v_xor_b32 v{vOOs}, 32, v{vOEs}')] +
                 self.a_reads(vOEs, vOOs, 0, 4, aA0, 'af0'), -1, 70)
        setup = [I(x) for x in (f'v_lshlrev_b32 v{vL16}, 4, {L}', f's_lshl_b32 {sT1}, {sW}, 14', f's_add_u32 {sT1}, {sT1}, 98304',
                 f'v_add_u32 v{vEX1}, {sT1}, v{vL16}', f'v_add_u32 v{vEX2}, {sW4K}, v{vL16}')]
        st0 = []
        k0 = [i for i, f in enumerate(rd) if any(f'v{aVE}' in x.reads for x in f.ins)][0]
        rd[k0 + 2:k0 + 2] = FS(setup, -1, 52)
        rd += [F(waittag('vr') + I('s_barrier'), 72, 80, cost=2)] + self.dma_stream(self.wo_rem(0), 74, 90)
        rd += FS([I(f'v_xor_b32 v{vOEs}, 0x18000, v{vOEs}'), I(f'v_xor_b32 v{vOOs}, 0x18000, v{vOOs}')] + self.a_reads(vOEs, vOOs, 0, 4, aA1, 'af1'), self.c.normlast - 40, 164)
        nl = self.c.normlast
        nm = []
        carry = []
        for t in range(5):
            nu = self.norm_units(t)
            if self.c.nlag:
                out = []; pend = carry; carry = []
                for u in nu:
                    if any(x.kind in ('vst', 'ds') for x in u): pend.append([self.c.nlag * (len(pend) + 1), u]); continue
                    out.append(u)
                    for p in pend: p[0] -= 1
                    while pend and pend[0][0] <= 0: out.append(pend.pop(0)[1])
                if t < 4: carry = pend
                else: out += [p[1] for p in pend]
                nu = out
            nm += FS(nu, 45 + 9*t + 10, min(89 + 16*t, nl))
            if t == 0:
                nm += FS([I(x) for x in (f'v_xor_b32 v{vEXR1}, 0x4000, v{vEX1}', f'v_xor_b32 v{vEXR2}, 0x1000, v{vEX2}', f's_mul_i32 {sT1}, {sQH}, 10240',
                          f's_add_u32 {sT1}, {sT1}, {OB[0]}', f'v_add_u32 v{vOB0}, {sT1}, v{vL16}', f'v_add_u32 v{vOB1}, {OB[2] - OB[0]}, v{vOB0}',
                          f'v_mov_b32 v{vWEr}, v{vOE}', f'v_xor_b32 v{vWOr}, 32, v{vOE}', f's_add_u32 {sT1}, {sOLD[0]}, {sXCC if self.c.opol != "sc1" else 32}\nv_mov_b32 v{vFLAG}, {sT1}', f'v_add_u32 v{vPOFF}, {sHP}, {L}', f'v_and_b32 v{vPOFF}, 3, v{vPOFF}', f'v_lshlrev_b32 v{vPOFF}, 2, v{vPOFF}')], -1, 89)
        l4 = [f for f in nm if any(f'a{aL+16}' in x.reads for x in f.ins)][0]
        for f in rd:
            if any(x.tag == 'af1' for x in f.ins): f.lo = max(f.lo, 100)
        l4.hi = min(l4.hi, 99)
        exr = []
        for f in range(20):
            adr, off = (vEXR1, f*1024) if f < 16 else (vEXR2, (f-16)*1024)
            exr.append(I(f'ds_read_b128 {ar(aPART + 4*f)}, v{adr} offset:{off}', tag='exr'))
        nm += [F(waittag('exw') + I('s_barrier'), -1, nl + 6, cost=2)] + FS(exr, -1, 164)
        pl = [F(I(f'buffer_load_dword v{vPOLL}, v{vPOFF}, {SDB}, 0 offen sc0 sc1'), self.c.pearly, self.c.pearly)] if self.c.pearly else []
        self.sch('tail', main, [sm, rd, st0, nm, pl], cap=self.c.tcap)
        self.stamp('main', 'o', 'h', 'ao')
        main = []
        for ks in range(4):
            for nt in range(4):
                for t in range(5):
                    main += I(f'{MF} {vr(self.acc(t, nt))}, {ar(aA1 + (ks*4+nt)*4)}, {ar(aPART + (ks*5+t)*4)}, {vr(self.acc(t, nt))}')
        main[0] = waittag('exr', 'af1') + I('s_barrier') + [main[0]]
        Z, Pg = self.c.zgap, self.c.pgap
        sig = self.stamp_i('h') + waittag('ost') + self.stamp_i('h') + I(f's_barrier\ns_cmp_lg_u32 {sW}, 0\ns_cbranch_scc1 L_nosig')
        sig += I(f's_mov_b64 exec, 1\nbuffer_store_dword v{vFLAG}, off, {SDB}, {sCL} sc0 sc1\ns_mov_b64 exec, -1\nL_nosig:')
        for x in sig:
            if x.kind == 'vst': x.kind = 'opaque'
        ds = [F(sig, Z, Z, cost=4)] + self.dma_stream(self.wo_rem(1) + self.wo_rem(2) + self.wo_rem(3), 0, 0)[:0]
        if self.c.pearly:
            ds += [F(self.stamp_i('h') + self.check(1) + self.stamp_i('h'), Z, Z, cost=4)]
            un = self.o_rem(0)
            for u in range(1, 4): un += self.o_rem(u) + self.wo_rem(u)
            d2 = self.dma_stream(un, Z + 2, 78, slack=0)
            for f in d2: f.lo = max(f.lo, Z)
            ds += d2
        else:
            w13 = self.dma_stream(self.wo_rem(1) + self.wo_rem(2) + self.wo_rem(3), Z + 2, Pg - self.c.pdist - 2)
            ds += w13 + [F(I(f'buffer_load_dword v{vPOLL}, v{vPOFF}, {SDB}, 0 offen sc0 sc1'), Pg - self.c.pdist, Pg - self.c.pdist),
                         F(self.stamp_i('h') + self.check(1) + self.stamp_i('h'), Pg, Pg, cost=4)]
            ds += self.dma_stream(self.o_rem(0) + self.o_rem(1) + self.o_rem(2) + self.o_rem(3), Pg + 1, 79, slack=0)
        c0 = [F(self.stamp_i('h') + waittag('u0') + self.stamp_i('h') + I('s_barrier'), self.c.c0gap, self.c.c0gap, cost=2)] + FS(self.rem_reads(0), self.c.c0gap, 76)
        self.sch('s1', main, [ds, c0])
        self.stamp('o', 'ao')
        pend = []
        NL = self.c.lastn
        for kp in range(24 - NL + 1):
            u = kp // 2; st = self.aset(kp)
            main = []
            if kp < 24 - NL:
                for nt in range(4):
                    for t in range(5):
                        main += I(f'{MF} {vr(self.acc(t, nt))}, {ar(st + 4*nt)}, {ar(st + 16 + 4*t)}, {vr(self.acc(t, nt))}')
            else:
                for t in range(5):
                    for k2 in range(kp, 24):
                        for nt in range(4):
                            main += I(f'{MF} {vr(self.acc(t, nt))}, {ar(self.aset(k2) + 4*nt)}, {ar(self.aset(k2) + 16 + 4*t)}, {vr(self.acc(t, nt))}')
            head = waittag('rr')
            if kp % 2 == 1 and u + 1 < 12:
                head = waittag('rr', f'u{u+1}') + I('s_barrier')
                if u + 4 < 12:
                    pend = self.wo_rem(u + 4) + self.o_rem(u + 4)
                    if (u + 4) % 4 == 0: head += self.check(1 + (u + 4) // 4)
            main[0] = head + [main[0]]
            streams = []
            if kp + 1 < 24 - NL: streams.append(FS(self.rem_reads(kp + 1), 0, 14))
            elif kp + 1 == 24 - NL:
                streams.append(FS([x for k2 in range(kp + 1, 24) for x in self.rem_reads(k2)], 0, 17))
            if pend:
                n = 4 if kp % 2 == 1 else len(pend)
                streams.append(self.dma_stream(pend[:n], 1, 18, slack=1)); pend = pend[n:]
            if kp == 24 - NL:
                su = []
                for t in range(4): su += FS(self.store_units(t), 4*NL*(t + 1) + 1, 10**6)
                streams.append(su)
            if self.c.fuse and 12 <= kp < 20:
                fs = self.final_setup(16) + self.final_setup(18); n = len(fs)
                streams.append(FS(fs[(kp - 12)*n//8:(kp - 11)*n//8], 8, 19))
            self.sch(f'r{kp}', main, streams, cap=(3 if kp >= 23 - NL else 2))
            if kp % 4 == 3: self.stamp('o', 'ao')
        for u in self.store_units(4): e(u)
        if self.c.fuse: self.final_reduce()
    def final_setup(self, part):
        L = f'v{vLANE}'
        sA, sO, sQ = 's37', 's54', 's55'
        sel = '\n'.join(f's_cmp_eq_u32 {sOCT}, {r}|s_cselect_b32 {sQ}, {sOLD2[r]}, {sQ}' for r in range(4))
        sel2 = '\n'.join(f's_cmp_eq_u32 {sOCT}, {r}|s_cselect_b32 {sOLD2[r]}, {sQ}, {sOLD2[r]}' for r in range(4))
        if part == 16:
            return [I(x.replace('|', '\n')) for x in f'''s_mov_b32 s14, {8*160*1024*2}
            s_mov_b64 s[12:13], s[16:17]
            s_mul_i32 {sA}, {sOCT}, 2560
            s_add_u32 {sA}, {sA}, {sPW}
            s_lshr_b32 {sO}, {sBLK}, 2
            s_and_b32 {sO}, {sO}, 7
            s_mul_i32 {sO}, {sO}, 160
            s_mul_i32 {sQ}, {sQH}, 80
            s_add_u32 {sO}, {sO}, {sQ}
            s_lshl_b32 {sO}, {sO}, 11
            s_lshr_b32 {sQ}, {sBLK}, 5
            s_lshl_b32 {sQ}, {sQ}, 10
            s_add_u32 {sO}, {sO}, {sQ}
            s_lshl_b32 {sQ}, {sHP}, 8
            s_add_u32 {sO}, {sO}, {sQ}
            s_lshl_b32 {sQ}, {sHH}, 7
            s_add_u32 {sO}, {sO}, {sQ}
            {sel}
            s_add_u32 {sQ}, {sQ}, 1
            v_mov_b32 v{vFLAG}, {sQ}
            s_add_u32 {sQ}, {sQ}, 1
            {sel2}
            s_lshl_b32 {sCL}, {sW}, 2
            s_lshl_b32 {sIDX2}, {sIDX2}, 2
            s_mul_i32 {sQ}, {sOCT}, 160
            v_lshlrev_b32 v48, 4, {L}
            v_mov_b32 v49, 0x3f80
            v_mov_b32 v50, 0x3f800000'''.split('\n')]
        us = []
        for k in range(3):
            us += [I(x) for x in f'''v_add_u32 v26, {sQ}, {L}
            v_add_u32 v26, {64*k}, v26
            v_lshrrev_b32 v27, 7, v26
            v_lshlrev_b32 v{28+k}, 15, v27
            v_bfe_u32 v27, v26, 6, 1
            v_lshl_add_u32 v{28+k}, v27, 6, v{28+k}
            v_and_b32 v27, 15, v26
            v_lshl_add_u32 v{28+k}, v27, 11, v{28+k}
            v_bfe_u32 v27, v26, 4, 2
            v_lshl_add_u32 v{28+k}, v27, 3, v{28+k}'''.split('\n')]
        return us
    def final_reduce(self):
        e = self.e
        sA, sO = 's37', 's54'
        cmp4 = '\n'.join(f'v_readlane_b32 {sRDY}, v{vPOLL}, {r}\ns_cmp_lg_u32 {sRDY}, {sOLD2[r]}\ns_addc_u32 {sCNT}, {sCNT}, 0' for r in range(4))
        e(f'''s_mul_i32 {sT0}, {sOCT}, {PART_BYTES}
        s_sub_u32 s24, s24, {sT0}
        s_subb_u32 s25, s25, 0
        s_mov_b32 s26, {4*PART_BYTES}
        s_waitcnt vmcnt(0)
        s_mov_b64 exec, 1
        buffer_store_dword v{vFLAG}, off, {SD2}, {sIDX2} sc0 sc1
        s_mov_b64 exec, -1''')
        self.stamp('o')
        e(f'''s_mov_b32 {sWB}, {self.c.maxpoll}
        s_branch L_fpoll
        L_floop:
        {f's_sleep {self.c.slp}' if self.c.slp else ''}
        L_fpoll:
        buffer_load_dword v{vPOLL}, v48, {SD2}, {sCL} offen sc0 sc1
        s_waitcnt vmcnt(0)
        s_mov_b32 {sCNT}, 0
        {cmp4}
        s_sub_u32 {sWB}, {sWB}, 1
        s_cmp_eq_u32 {sWB}, 0
        s_cbranch_scc1 L_fgo
        s_cmp_lg_u32 {sCNT}, 4
        s_cbranch_scc1 L_floop
        L_fgo:''')
        self.stamp('o')
        R0 = 160
        for k in range(3):
            for i in range(4):
                e(f's_add_u32 {sT1}, {sA}, {i*PART_BYTES}\nbuffer_load_dwordx4 {vr(R0 + (k*4+i)*4)}, v{vL16}, {SWS}, {sT1} offen offset:{k*1024} sc1')
        for k in range(3):
            for i in range(4):
                for j in range(4):
                    r = R0 + (k*4+i)*4 + j
                    if i == 0: e(f'v_lshlrev_b32 v{96+2*j}, 16, v{r}\nv_and_b32 v{97+2*j}, 0xffff0000, v{r}')
                    elif self.c.dot: e(f'v_dot2c_f32_bf16 v{96+2*j}, v{r}, v49\nv_dot2c_f32_bf16 v{97+2*j}, v{r}, v50')
                    else: e(f'v_lshlrev_b32 v26, 16, v{r}\nv_and_b32 v27, 0xffff0000, v{r}\nv_add_f32 v{96+2*j}, v{96+2*j}, v26\nv_add_f32 v{97+2*j}, v{97+2*j}, v27')
            if self.c.dot: e('s_nop 2')
            for j in range(4): e(f'v_cvt_pk_bf16_f32 v{104+4*k+j}, v{96+2*j}, v{97+2*j}')
            if k == 2: e('s_mov_b32 exec_hi, 0')
            e(f'buffer_store_dwordx2 v[{104+4*k}:{105+4*k}], v{28+k}, {SOUT}, {sO} offen{self.pol(self.c.outpol)}')
            e(f'buffer_store_dwordx2 v[{106+4*k}:{107+4*k}], v{28+k}, {SOUT}, {sO} offen offset:32{self.pol(self.c.outpol)}')
        e('s_mov_b64 exec, -1')
    def poll_code(self):
        p = []
        for r in self.chk:
            p += I(f'''L_cstub{r}:
            s_mov_b32 {sCNT}, {self.c.maxpoll}
            L_cloop{r}:
            {f's_sleep {self.c.slp}' if self.c.slp else ''}
            buffer_load_dword v{vPOLL}, v{vPOFF}, {SDB}, 0 offen sc0 sc1
            s_waitcnt vmcnt(0)
            v_readlane_b32 {sRDY}, v{vPOLL}, {r}
            s_sub_u32 {sCNT}, {sCNT}, 1
            s_cmp_eq_u32 {sCNT}, 0
            s_cbranch_scc1 L_cret{r}
            s_sub_u32 {sRDY}, {sRDY}, {sOLD[r]}
            s_cmp_eq_u32 {sRDY}, 0
            s_cbranch_scc1 L_cloop{r}''')
            if self.c.opol != 'sc1':
                p += I(f'''s_cmp_eq_u32 {sRDY}, {sXCC}
                s_cbranch_scc1 L_cret{r}
                s_cmp_lg_u32 {sWB}, 0
                s_cbranch_scc1 L_cwb{r}
                s_mov_b32 {sWB}, 1
                s_cmp_lg_u32 {sW}, 0
                s_cbranch_scc1 L_cwb{r}
                buffer_wbl2 sc1
                s_waitcnt vmcnt(0)
                s_add_u32 {sT3}, {sOLD[0]}, 32
                v_mov_b32 v{vFLAG}, {sT3}
                s_mov_b64 exec, 1
                buffer_store_dword v{vFLAG}, off, {SDB}, {sCL} sc0 sc1
                s_mov_b64 exec, -1
                L_cwb{r}:
                s_cmp_lt_u32 {sRDY}, 32
                s_cbranch_scc1 L_cloop{r}
                buffer_inv sc1
                s_waitcnt vmcnt(0)''')
            p += I(f's_nop 4\ns_branch L_cret{r}')
        return p
    def peephole(self, prog):
        out = []; prev = {}
        for x in prog:
            if x.kind in ('label', 'branch'): prev = {}; self.curkvo = None
            if isinstance(x.tag, tuple) and x.tag[0] == 'kvo' and self.c.krot:
                if getattr(self, 'curkvo', None) == x.tag: continue
                if x.op == 's_or_b32': self.curkvo = x.tag
                out.append(x); prev.pop(sT2, None); continue
            if sT2 in x.writes: self.curkvo = None
            if x.kind == 'salu' and x.op == 's_add_u32' and len(x.writes) == 1:
                w = next(iter(x.writes))
                if w in ('m0', sT0, sT2) and prev.get(w) == x.text and w not in x.reads: continue
            for w in x.writes:
                prev.pop(w, None)
                for k in [k for k, v in prev.items() if re.search(rf'\b{w}\b', v.split(',', 1)[1])]: prev.pop(k)
            if x.kind == 'salu' and x.op == 's_add_u32' and len(x.writes) == 1: prev[next(iter(x.writes))] = x.text
            out.append(x)
        return out
    def fold(self, prog):
        idx = {x.text: k for k, x in enumerate(prog) if x.kind == 'label'}
        its = [i for i in range(16) if f'L_loopmark{i}:' in idx]
        norm = lambda x: re.sub(r'(L_stub|L_ret)\d+', r'\1', x.text)
        body = {i: [norm(x) for x in prog[idx[f'L_loopmark{i}:'] + 1: idx[f'L_loopend{i}:']]] for i in its}
        last = its[-1]; first = last
        while first - 1 in body and body[first - 1] == body[last]: first -= 1
        self.log.append(('loop', first, last, len(body[last])))
        for i in range(first + 1, last + 1): self.stubs.remove(i)
        a = idx[f'L_loopmark{first}:']; b = idx[f'L_loopend{first}:']; c = idx[f'L_loopend{last}:']
        return prog[:a] + I(self.kvoff(last + 6, sIT)) + prog[a:b] + \
            I(f's_cmp_lg_u32 {sIT}, {sKO}\ns_cbranch_scc1 L_loopmark{first}') + prog[c + 1:]
    def build(self):
        self.prologue(); self.q_phase(); self.q_to_attn(); self.stamp('main', 'q', 'a', 'ao')
        for i in range(1, 16):
            if i == 15: self.stamp('o', 'h')
            self.iteration(i)
            if i in (3, 10, 12): self.stamp('main')
            if i < 15 and not (self.c.loop and max(4, self.c.regend - 3) <= i < self.c.lend): self.stamp('a', 'ao')
        e = self.e
        if self.c.stamps:
            e('s_waitcnt vmcnt(0)'); self.stamp()
            if self.c.hwid:
                e(f's_getreg_b32 s62, hwreg(HW_REG_XCC_ID)\nv_writelane_b32 v255, s62, {self.nst}\ns_getreg_b32 s62, hwreg(HW_REG_HW_ID)\nv_writelane_b32 v255, s62, {self.nst + 1}'); self.nst += 2
            if self.c.dbgwg >= 0:
                e(f'''s_mov_b64 s[24:25], s[56:57]
                s_mov_b32 s26, 0x10000000
                s_mov_b32 {sT2}, {STAMP_OFF}
                s_cmp_lg_u32 s2, {self.c.dbgwg}
                s_cbranch_scc1 L_end
                s_cmp_lg_u32 {sW}, 0
                s_cbranch_scc1 L_end
                v_readfirstlane_b32 {sT1}, v255
                v_lshlrev_b32 v2, 2, v{vLANE}
                v_subrev_u32 v4, {sT1}, v255
                buffer_store_dword v4, v2, {SWS}, {sT2} offen
                s_endpgm''')
            if self.c.clk == 2: self.nst = 64
            e(f'''s_mov_b64 s[24:25], s[56:57]
            s_mov_b32 s26, 0x10000000
            s_mul_i32 {sT1}, s2, {self.nst*8}
            s_add_u32 {sT1}, {sT1}, {STAMP_OFF}
            s_cmp_lg_u32 {sW}, 0
            s_cbranch_scc1 L_end
            v_lshlrev_b32 v2, 3, v{vLANE}
            v_mov_b32 v4, v255
            v_mov_b32 v5, 0
            v_cmp_gt_u32 vcc, {self.nst}, v{vLANE}
            s_and_saveexec_b64 s[60:61], vcc
            buffer_store_dwordx2 v[4:5], v2, {SWS}, {sT1} offen''')
        e('L_end:\ns_endpgm')
        if self.c.nomem:
            def drop(x):
                if x.tag == 'ost': return 'x' in self.c.nomem
                if x.tag == 'exw': return 'w' in self.c.nomem
                if x.tag == 'exr': return 'r' in self.c.nomem
                if x.kind not in ('dma', 'vld', 'vst'): return False
                t = x.text
                if 'buffer_load_dword a' in t: return 'p' in self.c.nomem and SWO in t
                if SX in t or SWQ in t: return 'q' in self.c.nomem
                if SK in t or SV in t: return 'k' in self.c.nomem
                if SWO in t or SOX in t: return 'o' in self.c.nomem
                if x.tag == 'st': return 's' in self.c.nomem
                return False
            self.p = [x for x in self.p if not drop(x)]
        if self.c.jit:
            import random
            rnd = random.Random(self.c.jit); q = []; n = 0
            for x in self.p:
                isbar = x.kind == 'barrier'
                pre = isbar and rnd.random() < 0.5
                def j():
                    nonlocal n; n += 1
                    return I(f's_cmp_lg_u32 {sW}, {rnd.randrange(4)}\ns_cbranch_scc1 L_jit{n}\ns_sleep {rnd.choice([2, 6, 20, 60])}\nL_jit{n}:')
                if pre: q += j()
                q.append(x)
                if isbar and not pre: q += j()
                if x.text.startswith('s_cbranch_scc1 L_end') and n == 0:
                    n += 1
                    q += I(f's_mul_i32 s62, s2, {rnd.randrange(1, 64, 2)}\ns_and_b32 s62, s62, 7\nL_jd:\ns_sleep 40\ns_sub_u32 s62, s62, 1\ns_cmp_ge_i32 s62, 0\ns_cbranch_scc1 L_jd')
            self.p = q
        prog = finalize(self.peephole(self.p))
        if self.c.loop and any(x.text.startswith('L_loopmark') for x in prog): prog = self.fold(prog)
        for i in self.stubs: prog += I(f'L_stub{i}:\ns_call_b64 {sRET}, L_rare\ns_branch L_ret{i}')
        prog += finalize(self.rare())
        prog += self.poll_code()
        prog += I('L_codeend:')
        return prog

def reduce_kernel(cfg):
    pol = (' ' + cfg.rdpol) if cfg.rdpol else ''
    p = I(f'''
    s_cmp_ge_u32 s2, 640
    s_cbranch_scc1 L_rend
    s_load_dwordx2 s[4:5], s[0:1], 96
    s_load_dwordx2 s[8:9], s[0:1], 80
    v_lshrrev_b32 v1, 6, v0
    v_and_b32 v2, 63, v0
    v_readfirstlane_b32 s3, v1
    v_lshlrev_b32 v3, 4, v2
    s_mul_i32 s12, s2, 6554
    s_lshr_b32 s12, s12, 16
    s_mul_i32 s13, s12, 10
    s_sub_u32 s13, s2, s13
    s_lshl_b32 s13, s13, 2
    s_add_u32 s13, s13, s3           ; piece 0..39
    s_mul_i32 s16, s12, {4*PART_BYTES}
    s_lshl_b32 s17, s13, 10
    s_add_u32 s16, s16, s17
    s_add_u32 s16, s16, {PART_OFF}
    s_mov_b32 s6, {PART_OFF + 256*PART_BYTES}
    s_mov_b32 s7, 0x20000
    s_mov_b32 s10, {8*160*1024*2}
    s_mov_b32 s11, 0x20000
    ''')
    for i in range(4):
        p += I(f'buffer_load_dwordx4 v[{8+4*i}:{11+4*i}], v3, s[4:7], s16 offen{pol}')
        if i < 3: p += I(f's_add_u32 s16, s16, {PART_BYTES}')
    p += I(f'''
    s_mul_i32 s14, s13, 6554
    s_lshr_b32 s14, s14, 16          ; w
    s_mul_i32 s15, s14, 10
    s_sub_u32 s19, s13, s15          ; idx
    s_lshr_b32 s20, s19, 1           ; t
    s_and_b32 s21, s19, 1            ; m
    s_lshr_b32 s22, s12, 2
    s_and_b32 s22, s22, 7            ; b
    s_lshr_b32 s23, s12, 5           ; branch
    s_and_b32 s18, s12, 3            ; hp
    s_mul_i32 s24, s22, 160
    s_lshr_b32 s25, s14, 1
    s_mul_i32 s25, s25, 80
    s_add_u32 s24, s24, s25
    s_lshl_b32 s25, s20, 4
    s_add_u32 s24, s24, s25
    s_lshl_b32 s24, s24, 11
    s_lshl_b32 s25, s23, 10
    s_add_u32 s24, s24, s25
    s_lshl_b32 s25, s18, 8
    s_add_u32 s24, s24, s25
    s_and_b32 s25, s14, 1
    s_lshl_b32 s25, s25, 7
    s_add_u32 s24, s24, s25
    s_lshl_b32 s25, s21, 6
    s_add_u32 s24, s24, s25
    v_and_b32 v4, 15, v2
    v_lshlrev_b32 v4, 11, v4
    v_lshrrev_b32 v5, 4, v2
    v_lshl_add_u32 v4, v5, 3, v4
    ''')
    for i in range(4):
        for j in range(4):
            r = 8 + 4*i + j
            if i == 0: p += I(f'v_lshlrev_b32 v{32+2*j}, 16, v{r}\nv_and_b32 v{33+2*j}, 0xffff0000, v{r}')
            else: p += I(f'v_lshlrev_b32 v6, 16, v{r}\nv_and_b32 v7, 0xffff0000, v{r}\nv_add_f32 v{32+2*j}, v{32+2*j}, v6\nv_add_f32 v{33+2*j}, v{33+2*j}, v7')
    for j in range(4): p += I(f'v_cvt_pk_bf16_f32 v{40+j}, v{32+2*j}, v{33+2*j}')
    p += I('''buffer_store_dwordx2 v[40:41], v4, s[8:11], s24 offen
    buffer_store_dwordx2 v[42:43], v4, s[8:11], s24 offen offset:32
    L_rend:
    s_endpgm''')
    return finalize(p)

def generate(cfg, path):
    g = Gen(cfg)
    main = g.build()
    if cfg.alt:
        import copy
        c2 = copy.copy(cfg)
        for kv in cfg.alt.split('/'):
            k, v = kv.split('~'); cur = getattr(cfg, k)
            setattr(c2, k, type(cur)(int(v)) if isinstance(cur, (bool, int)) and not isinstance(cur, float) else type(cur)(v))
        m2 = Gen(c2).build()
        for x in m2: x.text = re.sub(r'\bL_(\w+)', r'LB_\1', x.text)
        main = I(f's_bitcmp1_b32 s2, {cfg.altbit}\ns_cbranch_scc1 LB_entry') + main + I('LB_entry:') + m2
    red = reduce_kernel(cfg)
    if cfg.dbgwg >= 0:
        k = [i for i, x in enumerate(red) if x.text == 'L_rend:'][0]
        red[k:k] = finalize(I(f'''s_cmp_lg_u32 s2, 0
        s_cbranch_scc1 L_rend
        s_load_dwordx2 s[8:9], s[0:1], 88
        s_mov_b32 s10, 256
        s_mov_b32 s6, 0x10000000
        s_mov_b32 s16, {STAMP_OFF}
        v_lshlrev_b32 v2, 2, v0
        buffer_load_dword v3, v2, s[4:7], s16 offen
        buffer_store_dword v3, v2, s[8:11], 0 offen'''))
    if cfg.fuse:
        s = make_file([(KN, 256, 256, 163840)], [(KN, text_of(main), 512, 102, 256)])
        s = s.replace(f'; @launch kernel={KN} grid', '; @launch grid')
    else:
        s = make_file([(KN, 256, 256, 163840), ('reduce_heads_kernel', 640, 256, 0)],
                      [(KN, text_of(main), 512, 102, 256), ('reduce_heads_kernel', text_of(red), 48, 32, 48)])
    open(path, 'w').write(s)
    open(path[:-2] + '.nst', 'w').write(str(g.nst))
    return g, main

if __name__ == '__main__':
    cfg = Cfg()
    out = sys.argv[1]
    for kv in sys.argv[2:]:
        k, v = kv.split('=')
        cur = getattr(cfg, k)
        setattr(cfg, k, type(cur)(int(v)) if isinstance(cur, (bool, int)) and not isinstance(cur, float) else type(cur)(v.replace('+', ' ')))
    g, main = generate(cfg, out)
    from collections import Counter
    print(out, 'stamps', g.nst, dict(Counter(i.kind for i in main)))
    if cfg.verbose:
        for l in g.log: print(*l)
```

```python
import sys, math, struct, re
from asmlib import *
from gen_common import make_file, KN

class Cfg:
    kpol = 'nt'; vpol = 'nt'; kpolB = '='; vpolB = '='; wpol = ''; stpol = 'sc1'; rdpol = ''; pfpol = ''
    stamps = False; stset = 'main'; clk = 0
    codepf = 1
    kv_pro = 0
    kv_end = 13
    l2pf = 1; pfit = 11; l2pfq = 0
    nstg = 3
    late = 1
    early5 = 1
    rot = 2
    vsp = 4
    kveven = 1
    thr = 8.0
    loop = 1
    nomem = ''
    verbose = 0
    dbgwg = -1
    normlast = 105
    fuse = 1
    outpol = ''
    oldpol = 'sc1'
    slp = 0
    dot = 0
    pldpol = 'sc1'
    kmul = 0
    khh = 0
    kk = 1
    wo_it = 12
    smap = ''
    wo_hi = 80
    regend = 7
    jit = 0
    nlag = 0
    lean = 1
    tlb = 0
    tlbs = 13
    alt = ''
    altbit = 0
    cpf2 = 0
    cpf1 = 0
    pfgran = 128
    hwid = 0
    v15gap = -1
    pkq = 1
    pkn = 1
    kv_start = 0
    kvw = 0.5
    wpol0 = ''
    nwq0 = 4
    nx0 = 3
    pearly = 0
    c0gap = 66
    pdist = 10
    lastn = 2
    opol = 'sc1'
    zgap = 2
    pgap = 30
    maxpoll = 200000
    krot = 0
    ccap = 6
    tcap = 4
    lend = 10
    dlo = 24
    dhi = 80
STAMP_OFF = 0x8000000
PART_BYTES = 40960
PART_OFF = 0x2000000
OX_BYTES = 327680
FLAG_OFF = 0x3000000
def f32(x): return '0x%08x' % struct.unpack('<I', struct.pack('<f', x))[0]

SX, SWQ, SK, SV, SWO, SWS = 's[4:7]', 's[8:11]', 's[12:15]', 's[16:19]', 's[20:23]', 's[24:27]'
sW, sHH, sQH = 's3', 's28', 's29'
sKVOFF, sKVLDS, sWQOFF, sXOFF, sXLDS, sWO0, sWO1, sWOLDS, sPW = 's30', 's31', 's32', 's33', 's34', 's35', 's36', 's37', 's38'
sC, sT = 's40', 's41'
sT0, sT1, sT2, sT3 = 's42', 's43', 's44', 's45'
sRET = 's[60:61]'
sRB, sDB, sKO, sVO, sIT = 's46', 's47', 's52', 's53', 's50'
sB, sHP, sH0 = 's48', 's49', 's51'
sWQC, sXC, sWQB, sXB = 's88', 's89', 's90', 's91'
SOX, SDB = 's[76:79]', 's[80:83]'
sCL, sXCC, sRDY, sOW, sOCT = 's92', 's93', 's94', 's95', 's39'
sPO = ['s64', 's65', 's66', 's67']; sPWo = ['s68', 's69', 's70', 's71']
sW4K, sW5K, sCNT, sWB = 's96', 's97', 's98', 's99'
sKR, sKC = 's35', 's36'
sOLD = ['s72', 's73', 's74', 's75']
vFOFF = 215; vFOFF2 = 214
SD2 = 's[84:87]'; sOLD2 = ['s0', 's1', 's93', 's36']; sIDX2 = 's59'; sBLK = 's58'; SOUT = 's[12:15]'
STAMP0 = 62
def O(t, dt): return (t * 8 + dt) * 4
S0 = 160; P0 = 200; NM4 = 220
def Sreg(t, kt): return S0 + (t * 2 + kt) * 4
def Preg(t): return P0 + 4 * t
vMX0, vMX1, vTA, vTB = 240, 241, 242, 243
vK, vVE, vVO, aK, aVE = 244, 245, 246, 247, 248
vKVA, vKVB, vLANE, vWOV, vOE = 249, 250, 251, 252, 253
vWQA, vWQB, vX0, vX1 = 200, 201, 202, 203
vQE = [204, 205, 206]; vQO = [207, 208, 209]; vXR = [210, 211]
vWA = [212, 213]
vWA1 = 254
vRL = 240
vOEs, vOOs = 245, 246
vEX1, vEX2, vL16 = 247, 248, 254
vEXR1, vEXR2, vOB0, vOB1, vPOLL, vFLAG, vWEr, vWOr, vPOFF = 16, 17, 18, 19, 20, 21, 22, 23, 24
aVF, aAF, aKF, aL, aONE, aQ = 0, 80, 104, 136, 156, 160
aPART = 0; aA0 = 160
def Qf(ks, t): return aQ + (t * 4 + ks) * 4
def vr(b, n=4): return f'v[{b}:{b+n-1}]'
def ar(b, n=4): return f'a[{b}:{b+n-1}]'
SLOT = 32768
WQBUF = [147456, 65536, 102400]
XBUF = [81920, 126976]
WOB = [16384, 0, 32768, 49152]
OB = [65536, 86016, 106496, 126976]
aA1 = 80
aSET = [160, 196]
MF = 'v_mfma_f32_16x16x32_bf16'

def FS(units, lo=-1, hi=10**6, step=None):
    return [F(u, lo if step is None else int(lo + k * step), hi) for k, u in enumerate(units)]

class Gen:
    def __init__(self, cfg):
        self.c = cfg; self.p = []; self.nst = 0; self.stubs = []; self.log = []
    def e(self, x, tag=None):
        self.p += I(x, tag) if isinstance(x, str) else x
    def stamp_i(self, grp='all'):
        if self.c.stamps and grp in ('all', self.c.stset):
            self.nst += 1
            if self.c.clk == 2:
                return I(f's_memrealtime s[62:63]\ns_waitcnt lgkmcnt(0)\nv_writelane_b32 v255, s62, {self.nst - 1}\ns_memtime s[62:63]\ns_waitcnt lgkmcnt(0)\nv_writelane_b32 v255, s62, {self.nst + 31}')
            return I(f's_mem{"" if self.c.clk else "real"}time s[62:63]\ns_waitcnt lgkmcnt(0)\nv_writelane_b32 v255, s62, {self.nst - 1}')
        return []
    def stamp(self, *grps):
        for g in grps or ('all',): self.e(self.stamp_i(g))
    def sch(self, name, main, streams, **kw):
        v = []
        self.e(sched(main, streams, verbose=v, **kw))
        self.log.append((name,) + v[0])
    @staticmethod
    def pol(p): return (' ' + p) if p else ''
    def kvoff(self, tile, dst=sT2):
        if not self.c.krot: return f's_add_u32 {dst}, {sKVOFF}, {tile*8192}'
        return f's_add_u32 {dst}, {sKR}, {tile*8192}\ns_and_b32 {dst}, {dst}, 0x1e000\ns_or_b32 {dst}, {dst}, {sKVOFF}'
    def kvo(self, tile):
        u = I(self.kvoff(tile))
        for x in u: x.tag = ('kvo', tile)
        return u
    def kvp(self, srd): return self.pol(self.c.kpol if srd == SK else self.c.vpol)
    def kv_dma(self, srd, tile, lds, tag):
        us = []
        for k in range(4):
            u = I(f's_add_u32 m0, {sKVLDS}, {lds}') + self.kvo(tile)
            u += I(f'buffer_load_dwordx4 v{vKVA if k % 2 == 0 else vKVB}, {srd}, {sT2} offen offset:{k*1024}{self.kvp(srd)} lds', tag=tag)
            us.append(u)
        return us
    def kv_stage(self, st):
        b = (st % 5) * SLOT
        return (self.kv_dma(SK, st + 1, b, f'kv{st}') if st < 15 else []) + self.kv_dma(SV, st, b + 16384, f'kv{st}')
    def kv_stage_dyn(self, st):
        us = []
        for part in range(2):
            for k in range(4):
                u = I(f's_add_u32 m0, {sDB}, {part*16384}') if k == 0 else []
                if k == 0: us.append(u); u = []
                u += I(f'buffer_load_dwordx4 v{vKVA if k % 2 == 0 else vKVB}, {SK if part == 0 else SV}, {sKO if part == 0 else sVO} offen offset:{k*1024}{self.kvp(SK if part == 0 else SV)} lds', tag=f'kv{st}')
                us.append(u)
        return us
    def stg(self, st, part, k):
        if st >= 6: return ar(32 + ((st % 2)*8 + part*4 + k)*4)
        return ar(160 + ((st - 2)*8 + part*4 + k)*4)
    def kv_reg(self, st, parts=(0, 1)):
        us = []
        for part in parts:
            if st == 15 and part == 0: continue
            srd, tile = (SK, st + 1) if part == 0 else (SV, st)
            for k in range(4):
                us.append(self.kvo(tile) +
                          I(f'buffer_load_dwordx4 {self.stg(st, part, k)}, v{vKVA if k % 2 == 0 else vKVB}, {srd}, {sT2} offen offset:{k*1024}{self.kvp(srd)}'))
        return us
    def kv_drain(self, st, parts=(0, 1)):
        us = []
        for part in parts:
            if st == 15 and part == 0: continue
            for k in range(4):
                adr, off = {2: (vWA[0], 0), 3: (vWA[0], SLOT), 4: (vWA[1], 0), 6: (vWA1, 0), 7: (vWA1, SLOT)}.get(st, (vTB, 0))
                off += part*16384
                us.append(I(f'ds_write_b128 v{adr}, {self.stg(st, part, k)} offset:{off + k*1024}', tag=f'kv{st}'))
        if st > 7: us[0] = I(f'v_add_u32 v{vTB}, {((st % 5 - 1) * SLOT) & 0xffffffff:#x}, v{vWA1}') + us[0]
        return us
    def wq_next(self, j):
        if self.c.rot == 2 and j < 2: return I(f's_add_u32 {sWQB}, {sWQOFF}, {j*262144}')
        wrap = f's_cmp_eq_u32 {sWQC}, 0x400000\ns_cselect_b32 {sWQC}, 0x80000, {sWQC}' if self.c.rot == 2 else f's_and_b32 {sWQC}, {sWQC}, 0x3fffff'
        return I(f's_add_u32 {sWQB}, {sWQC}, {sWQOFF}\ns_add_u32 {sWQC}, {sWQC}, 262144\n{wrap}')
    def x_next(self, J):
        if self.c.rot == 2 and J < 1: return I(f's_add_u32 {sXB}, {sXOFF}, 0')
        wrap = f's_cmp_eq_u32 {sXC}, 1024\ns_cselect_b32 {sXC}, 128, {sXC}' if self.c.rot == 2 else f's_and_b32 {sXC}, {sXC}, 1023'
        return I(f's_add_u32 {sXB}, {sXC}, {sXOFF}\ns_add_u32 {sXC}, {sXC}, 128\n{wrap}')
    def wq_units(self, j):
        us = []
        for k in range(4):
            u = I(f's_add_u32 m0, {sKVLDS}, {WQBUF[j % 3]}\ns_add_u32 {sT0}, {sWQB}, {k*32768 - k*1024}')
            u += I(f'buffer_load_dwordx4 v{vWQA if k < 2 else vWQB}, {SWQ}, {sT0} offen offset:{k*1024}{self.pol(self.c.wpol0 if j < self.c.nwq0 else self.c.wpol)} lds', tag=f'wq{j}')
            us.append(u)
        if j == 0: us[0] = self.wq_next(0) + us[0]
        if j < 15: us[-1] += self.wq_next(j + 1)
        return us
    def x_units(self, J):
        us = []
        for k in range(5):
            im = (k % 4) * 1024
            u = I(f's_add_u32 m0, {sXLDS}, {XBUF[J % 2] + (k // 4)*4096}\ns_add_u32 {sT0}, {sXB}, {k*8192 - im}')
            u += I(f'buffer_load_dwordx4 v{vX0 if k % 2 == 0 else vX1}, {SX}, {sT0} offen offset:{im}{self.pol(self.c.wpol0 if J < self.c.nx0 else self.c.wpol)} lds', tag=f'x{J}')
            us.append(u)
        if J == 0: us[0] = self.x_next(0) + us[0]
        if J < 7: us[-1] += self.x_next(J + 1)
        return us
    def wo_half(self, base, const, lds, tag):
        us = []
        for k in range(4):
            u = I(f's_add_u32 m0, {sW4K}, {lds}\ns_add_u32 {sT0}, {base}, {const + k*3072}')
            u += I(f'buffer_load_dwordx4 v{vKVA if k % 2 == 0 else vKVB}, {SWO}, {sT0} offen offset:{k*1024}{self.pol(self.c.wpol)} lds', tag=tag)
            us.append(u)
        return us
    def wo_own(self, h):
        us = self.wo_half(sPWo[0], h*131072, (1 + h)*SLOT, 'wown') + self.wo_half(sPWo[0], h*131072 + 65536, (1 + h)*SLOT + 16384, 'wown')
        if h == 0: us[0] = I(f'v_mov_b32 v{vKVA}, v{vWOV}\nv_xor_b32 v{vKVB}, 32, v{vWOV}') + us[0]
        return us
    def wo_rem(self, u):
        return self.wo_half(sPWo[1 + u // 4], ((u >> 1) & 1)*131072 + (u & 1)*65536, WOB[u % 4], f'u{u}')
    def o_rem(self, u):
        us = []
        for k in range(5):
            x = I(f's_add_u32 m0, {sW5K}, {OB[u % 4] + (k // 4)*4096}\ns_add_u32 {sT2}, {sPO[1 + u // 4]}, {((u >> 1) & 1)*40960 + (u & 1)*20480 + (k // 4)*4096}')
            x += I(f'buffer_load_dwordx4 v{vL16}, {SOX}, {sT2} offen offset:{(k % 4)*1024}{self.pol(self.c.oldpol)} lds', tag=f'u{u}')
            us.append(x)
        return us
    def l2pf_q(self):
        pol = self.pol(self.c.pfpol); L = f'v{vLANE}'
        return [I(f'v_lshrrev_b32 v214, 3, {L}\nv_and_b32 v215, 7, {L}'),
                I(f'v_lshlrev_b32 v214, 13, v214\nv_lshl_add_u32 v214, v215, 6, v214'),
                I(f's_lshl_b32 {sT3}, {sB}, 19\ns_lshl_b32 {sT1}, {sW}, 17'),
                I(f's_add_u32 {sT3}, {sT3}, {sT1}\ns_lshl_b32 {sT1}, {sH0}, 8'),
                I(f's_add_u32 {sT3}, {sT3}, {sT1}\nbuffer_load_dword a138, v214, {SWQ}, {sT3} offen{pol}'),
                I(f's_add_u32 {sT3}, {sT3}, 65536\nbuffer_load_dword a139, v214, {SWQ}, {sT3} offen{pol}'),
                I(f'v_lshlrev_b32 v215, 6, {L}\ns_mul_i32 {sT3}, {sHP}, 40960'),
                I(f's_mul_i32 {sT1}, {sW}, 10240\ns_add_u32 {sT3}, {sT3}, {sT1}'),
                I(f'buffer_load_dword a140, v215, {SX}, {sT3} offen{pol}'),
                I(f's_add_u32 {sT3}, {sT3}, 4096\nbuffer_load_dword a141, v215, {SX}, {sT3} offen{pol}'),
                I(f's_add_u32 {sT3}, {sT3}, 4096\nbuffer_load_dword a142, v215, {SX}, {sT3} offen{pol}')]
    def l2pf_wo(self):
        pol = self.pol(self.c.pfpol)
        g128 = self.c.pfgran == 128
        us = [I(f'v_lshrrev_b32 v{vTA}, {1 if g128 else 2}, v{vLANE}\nv_and_b32 v{vTB}, {1 if g128 else 3}, v{vLANE}'),
              I(f'v_lshlrev_b32 v{vTA}, 10, v{vTA}\nv_lshl_add_u32 v{vTA}, v{vTB}, {7 if g128 else 6}, v{vTA}'),
              I(f's_lshl_b32 {sT3}, {sOCT}, 20\ns_lshl_b32 {sT1}, {sB}, 17'),
              I(f's_add_u32 {sT3}, {sT3}, {sT1}\ns_lshl_b32 {sT1}, {sW}, 15'),
              I(f's_add_u32 {sT3}, {sT3}, {sT1}\ns_lshl_b32 {sT1}, {sHP}, 8'),
              I(f's_add_u32 {sT3}, {sT3}, {sT1}\nbuffer_load_dword a240, v{vTA}, {SWO}, {sT3} offen{pol}')]
        if not g128: us.append(I(f's_add_u32 {sT3}, {sT3}, 16384\nbuffer_load_dword a241, v{vTA}, {SWO}, {sT3} offen{pol}'))
        return us
    def tlb_touch(self):
        return [I(f'v_lshlrev_b32 v{vTB}, {self.c.tlbs}, v{vLANE}'),
                I(f'buffer_load_dword a245, v{vTB}, {SOX}, 0 offen sc0 sc1'),
                I(f'buffer_load_dword a246, v{vTB}, {SWS}, 0 offen sc0 sc1'),
                I(f's_mov_b64 s[4:5], s[100:101]\ns_mov_b32 s6, {8*160*1024*2}'),
                I(f's_mul_i32 {sT3}, {sB}, {160*2048}'),
                I(f'buffer_load_dword a247, v{vTB}, s[4:7], {sT3} offen')]
    def code_pf(self, label, srd, vt, dst):
        n = self.ncpf = getattr(self, 'ncpf', 0) + 1
        a = srd
        return [I(f's_getpc_b64 s[{a}:{a+1}]\nL_pcx{n}:\ns_add_u32 s{a}, s{a}, {label}-L_pcx{n}\ns_addc_u32 s{a+1}, s{a+1}, 0'),
                I(f's_mov_b32 s{a+2}, L_codeend-{label}\ns_mov_b32 s{a+3}, 0x20000'),
                I(f's_lshl_b32 {sT3}, {sW}, 13\nv_lshlrev_b32 v{vt}, 7, v{vLANE}'),
                I(f'buffer_load_dword a{dst}, v{vt}, s[{a}:{a+3}], {sT3} offen')]
    def dma_stream(self, units, lo, hi, slack=4):
        fs = []; n = len(units); prev = {}
        for k, u in enumerate(units):
            l = lo + (k * (hi - lo + 1)) // n
            after = False
            for x in u:
                c = 1
                if x.op == 's_cselect_b32' or x.kind in ('branch', 'label'):
                    fs[-1].ins.append(x); fs[-1].cost += x.cost; continue
                if isinstance(x.tag, tuple) and self.c.krot:
                    if prev.get('kvo') == x.tag: c = 0
                    if x.op == 's_or_b32': prev['kvo'] = x.tag
                elif x.kind == 'salu' and x.op == 's_add_u32' and len(x.writes) == 1:
                    w = next(iter(x.writes))
                    if prev.get(w) == x.text and w not in x.reads: c = 0
                    prev[w] = x.text
                if x.kind not in ('salu', 'valu'): fs.append(F([x], l, l + slack, cost=c)); after = True
                elif after: fs.append(F([x], l, 10**6, cost=c))
                else: fs.append(F([x], l - 3, l, cost=c))
        return fs
    def peer_setup(self):
        o = [f's_lshl_b32 {sT3}, {sOCT}, 20', f's_lshl_b32 {sT2}, {sHP}, 8', f's_add_u32 {sT3}, {sT3}, {sT2}',
             f's_lshl_b32 {sT2}, {sW}, 14', f's_add_u32 {sT3}, {sT3}, {sT2}']
        for r in range(4):
            o += [f's_add_u32 {sT2}, {sHP}, {r}', f's_and_b32 {sT2}, {sT2}, 3', f's_mul_i32 {sPO[r]}, {sT2}, 81920', f's_add_u32 {sPO[r]}, {sPO[r]}, {sW5K}',
                  f's_lshl_b32 {sPWo[r]}, {sT2}, 18', f's_add_u32 {sPWo[r]}, {sPWo[r]}, {sT3}']
        assert 'sc1' in self.c.opol
        return '\n'.join(o)
    def khash(self):
        if not self.c.kmul: return ''
        return f's_lshl_b32 {sKR}, s2, 1\ns_add_u32 {sKR}, {sKR}, {sHH}\ns_mul_i32 {sKR}, {sKR}, {self.c.kmul}\ns_lshr_b32 {sT0}, {sKR}, 16\ns_xor_b32 {sKR}, {sKR}, {sT0}\ns_mul_i32 {sKR}, {sKR}, 0x45d9f3b\ns_lshr_b32 {sKR}, {sKR}, 20'
    def rot_setup(self):
        if self.c.rot != 2: return f's_and_b32 {sXC}, {sXC}, {7 if self.c.rot else 0}'
        return f's_cmp_ge_u32 {sXC}, 7\ns_cselect_b32 {sWQC}, 7, 0\ns_sub_u32 {sXC}, {sXC}, {sWQC}\ns_add_u32 {sXC}, {sXC}, 1'
    def prologue(self):
        e = self.e; L = f'v{vLANE}'
        self.stamp('e')
        e(f'''
        s_cmp_ge_u32 s2, 256
        s_cbranch_scc1 L_end
        s_load_dwordx16 s[64:79], s[0:1], 0
        s_load_dwordx4 s[80:83], s[0:1], 64
        s_load_dwordx2 s[24:25], s[0:1], 96
        s_load_dwordx2 s[100:101], s[0:1], 80
        v_lshrrev_b32 v1, 6, v0
        v_and_b32 {L}, 63, v0
        v_readfirstlane_b32 {sW}, v1
        s_and_b32 s46, s2, 7
        s_lshr_b32 s47, s2, 3
        s_lshr_b32 {sB}, s47, 2
        s_and_b32 {sHP}, s47, 3
        s_and_b32 {sOCT}, s46, 3
        s_lshl_b32 s50, {sOCT}, 2
        s_add_u32 s50, s50, {sHP}
        s_lshl_b32 {sH0}, s50, 1
        s_lshr_b32 s52, s46, 2            ; branch
        s_and_b32 {sHH}, {sW}, 1
        s_lshr_b32 {sQH}, {sW}, 1
        v_and_b32 v2, 3, {L}
        v_lshlrev_b32 v2, 4, v2           ; cc*16
        v_lshrrev_b32 v3, 4, {L}          ; g
        v_bfe_u32 v4, {L}, 2, 2           ; r
        v_lshl_add_u32 v5, v3, 6, v2
        v_lshl_add_u32 v{vKVA}, v4, 8, v5
        v_xor_b32 v{vKVB}, 32, v{vKVA}
        v_lshl_add_u32 v{vWQA}, v4, 13, v5
        v_xor_b32 v{vWQB}, 16, v{vWQA}
        v_lshrrev_b32 v6, 5, {L}
        v_bfe_u32 v7, {L}, 2, 3
        v_lshl_add_u32 v8, v6, 6, v2
        v_lshl_add_u32 v8, v7, 10, v8
        s_lshl_b32 {sT0}, {sHH}, 5
        v_xor_b32 v{vX0}, {sT0}, v8
        v_xor_b32 v{vX1}, 32, v{vX0}
        s_lshl_b32 {sT0}, {sQH}, 12
        s_lshl_b32 {sKVLDS}, {sHH}, 13
        s_add_u32 {sKVLDS}, {sKVLDS}, {sT0}
        s_lshl_b32 {sKVOFF}, {sHH}, 17
        s_add_u32 {sKVOFF}, {sKVOFF}, {sT0}
        s_add_u32 {sT1}, {sH0}, {sHH}
        s_lshl_b32 {sWQOFF}, {sT1}, 8
        s_lshl_b32 {sT0}, {sQH}, 17
        s_add_u32 {sWQOFF}, {sWQOFF}, {sT0}
        s_mul_i32 {sXOFF}, {sW}, {5*8192}
        s_mul_i32 {sXLDS}, {sW}, {5*1024}
        s_lshl_b32 {sXC}, {sHP}, 1
        s_add_u32 {sXC}, {sXC}, {sB}
        {self.rot_setup()}
        s_lshl_b32 {sWQC}, {sXC}, 19
        s_lshl_b32 {sXC}, {sXC}, 7
        s_mul_i32 {sKR}, s2, {self.c.krot}
        s_mul_i32 {sT0}, s47, {self.c.kk}
        s_add_u32 {sKR}, {sKR}, {sT0}
        s_mul_i32 {sT0}, {sHH}, {self.c.khh}
        s_add_u32 {sKR}, {sKR}, {sT0}
        {self.khash()}
        s_lshl_b32 {sKR}, {sKR}, 13
        s_mul_i32 s53, {sB}, 163840
        s_lshl_b32 s54, {sB}, 5
        s_add_u32 s54, s54, {sH0}
        s_lshl_b32 s54, s54, 17
        s_mov_b32 s6, 163840
        s_mov_b32 s7, 0x20000
        s_mov_b32 s10, 0x400000
        s_mov_b32 s11, 0x20000
        s_mov_b32 s14, 0x40000
        s_mov_b32 s15, 0x20000
        s_mov_b32 s18, 0x40000
        s_mov_b32 s19, 0x20000
        s_cmp_eq_u32 s52, 0
        s_cselect_b64 s[4:5], s[64:65], s[74:75]
        s_cselect_b64 s[8:9], s[70:71], s[80:81]
        s_cselect_b64 s[12:13], s[66:67], s[76:77]
        s_cselect_b64 s[16:17], s[68:69], s[78:79]
        s_cselect_b64 s[20:21], s[72:73], s[82:83]
        s_add_u32 s4, s4, s53
        s_addc_u32 s5, s5, 0
        ''')
        self.stamp()
        for u in self.x_units(0) + self.wq_units(0) + self.wq_units(1): e(u)
        e(f'''
        s_add_u32 s12, s12, s54
        s_addc_u32 s13, s13, 0
        s_add_u32 s16, s16, s54
        s_addc_u32 s17, s17, 0
        ''')
        self.kvq = self.kv_dma(SK, 0, SLOT + 16384, 'k0') + self.kv_stage(0) + self.kv_dma(SK, 2, SLOT, 'kv1')
        for st in (2, 3, 4)[:self.c.nstg]: self.kvq += self.kv_reg(st)
        self.late_pro = self.x_units(1) + self.wq_units(2) + [self.kvq.pop(0) for _ in range(self.c.kv_pro)]
        if not self.c.lean:
            for u in self.late_pro: e(u)
            self.late_pro = []
        if self.c.codepf and self.c.lean:
            e(f'''s_getpc_b64 s[84:85]
            L_pc0:
            s_mov_b32 s86, L_codeend-L_pc0
            s_mov_b32 s87, 0x20000
            v_and_b32 v22, 15, {L}
            v_lshlrev_b32 v22, 7, v22
            s_and_b32 {sT0}, s47, 7
            s_lshl_b32 {sT0}, {sT0}, 2
            s_add_u32 {sT0}, {sT0}, {sW}
            s_lshl_b32 {sT0}, {sT0}, 11
            buffer_load_dword a136, v22, s[84:87], {sT0} offen''')
        elif self.c.codepf:
            e(f'''s_getpc_b64 s[84:85]
            L_pc0:
            s_mov_b32 s86, L_codeend-L_pc0
            s_mov_b32 s87, 0x20000
            v_lshlrev_b32 v22, 7, v0
            buffer_load_dword a136, v22, s[84:87], 0 offen
            s_mov_b32 {sT0}, 32768
            buffer_load_dword a137, v22, s[84:87], {sT0} offen''')
        e(f'''
        s_mul_i32 {sPW}, {sW}, 10240
        s_lshl_b32 {sW4K}, {sW}, 12
        s_mul_i32 {sW5K}, {sW}, 5120
        s_mov_b32 {sC}, {f32(128 ** -0.5 * math.log2(math.e))}
        s_mov_b32 {sT}, {f32(self.c.thr)}
        s_lshl_b32 s55, s52, 3
        s_add_u32 s55, s55, {sB}          ; group = branch*8 + b
        s_lshl_b32 {sCL}, s55, 2
        s_add_u32 {sT2}, {sCL}, {sHP}
        s_mov_b32 {sBLK}, {sT2}
        s_add_u32 {sCL}, {sCL}, {sOCT}    ; cluster = group*4 + octet
        s_lshl_b32 {sT2}, {sT2}, 2
        s_add_u32 {sT2}, {sT2}, {sOCT}
        s_mul_i32 {sT2}, {sT2}, {PART_BYTES}
        s_add_u32 {sT2}, {sT2}, {PART_OFF}
        s_mul_i32 s55, {sCL}, {OX_BYTES}
        s_mov_b32 s22, 0x400000
        s_mov_b32 s23, 0x20000
        s_mov_b64 s[56:57], s[24:25]
        s_add_u32 s76, s24, s55
        s_addc_u32 s77, s25, 0
        s_mov_b32 s78, {OX_BYTES}
        s_mov_b32 s79, 0x20000
        s_add_u32 s24, s24, {sT2}
        s_addc_u32 s25, s25, 0
        s_mov_b32 s26, {PART_BYTES}
        s_mov_b32 s27, 0x20000
        s_lshl_b32 {sCL}, {sCL}, 7
        s_add_u32 {sCL}, {sCL}, {FLAG_OFF}
        s_add_u32 s80, s56, {sCL}
        s_addc_u32 s81, s57, 0
        s_mov_b32 s82, 16
        s_mov_b32 s83, 0x20000
        v_add_u32 v24, {sHP}, {L}
        v_and_b32 v24, 3, v24
        v_lshlrev_b32 v24, 2, v24
        buffer_load_dword v{vFOFF}, v24, {SDB}, 0 offen sc0 sc1
        s_lshl_b32 {sCL}, {sHP}, 2
        s_mov_b32 {sWB}, 0
        s_lshl_b32 {sT2}, {sBLK}, 7
        s_add_u32 {sT2}, {sT2}, {FLAG_OFF + 8192}
        s_add_u32 s84, s56, {sT2}
        s_addc_u32 s85, s57, 0
        s_mov_b32 s86, 64
        s_mov_b32 s87, 0x20000
        s_lshl_b32 {sT2}, {sW}, 2
        v_lshlrev_b32 v24, 4, {L}
        buffer_load_dword v{vFOFF2}, v24, {SD2}, {sT2} offen sc0 sc1
        s_lshl_b32 {sIDX2}, {sOCT}, 2
        s_add_u32 {sIDX2}, {sIDX2}, {sW}
        s_mul_i32 {sOW}, {sHP}, 81920
        s_mul_i32 {sT2}, {sHH}, 40960
        s_add_u32 {sOW}, {sOW}, {sT2}
        s_mul_i32 {sT2}, {sQH}, 10240
        s_add_u32 {sOW}, {sOW}, {sT2}
        {self.peer_setup()}
        v_and_b32 v9, 1, v3
        v_lshlrev_b32 v9, 5, v9           ; 32*(g&1)
        v_lshl_add_u32 v{vWOV}, v4, 10, v5
        v_and_b32 v10, 15, {L}
        v_and_b32 v11, 3, {L}
        v_lshrrev_b32 v12, 2, v10
        v_and_b32 v13, 1, v12
        v_lshlrev_b32 v13, 5, v13
        v_lshlrev_b32 v14, 4, v3
        v_xor_b32 v13, v13, v14
        v_lshl_add_u32 v13, v11, 6, v13
        v_lshl_add_u32 v13, v12, 10, v13
        s_lshl_b32 {sT1}, {sHH}, 13
        v_add_u32 v{aK}, {sT1}, v13
        v_lshl_add_u32 v15, v11, 3, v9
        v_lshl_add_u32 v15, v4, 6, v15
        v_lshl_add_u32 v16, v3, 10, v15
        v_add_u32 v{aVE}, {sT1}, v16
        v_lshrrev_b32 v16, 1, v9          ; 16*(g&1)
        v_lshlrev_b32 v22, 4, v11         ; 16*c4
        v_xor_b32 v16, v16, v22
        v_and_b32 v22, 1, v11
        v_lshl_add_u32 v16, v22, 3, v16   ; + 8*(c4&1)
        v_lshl_add_u32 v16, v4, 6, v16    ; + r*64
        v_lshl_add_u32 v16, v3, 11, v16   ; + g*2048
        v_add_u32 v16, {sT1}, v16
        v_add_u32 v{vQE[0]}, {WQBUF[0]}, v16
        v_add_u32 v{vQE[1]}, {WQBUF[1]}, v16
        v_add_u32 v{vQE[2]}, {WQBUF[2]}, v16
        v_xor_b32 v{vQO[0]}, 8, v{vQE[0]}
        v_xor_b32 v{vQO[1]}, 8, v{vQE[1]}
        v_xor_b32 v{vQO[2]}, 8, v{vQE[2]}
        s_mov_b32 vcc_lo, 0xffff0000
        s_mov_b32 vcc_hi, 0xffff0000
        v_lshrrev_b32 v17, 3, v10
        v_lshlrev_b32 v18, 5, v17
        v_xor_b32 v18, v18, v14
        v_and_b32 v19, 7, {L}
        v_lshl_add_u32 v18, v19, 6, v18
        v_lshl_add_u32 v18, v17, 10, v18
        s_mul_i32 {sT2}, {sQH}, 10240
        v_add_u32 v18, {sT2}, v18
        v_add_u32 v{vXR[0]}, {XBUF[0]}, v18
        v_add_u32 v{vXR[1]}, {XBUF[1]}, v18
        v_lshl_add_u32 v20, v3, 10, v15
        s_lshl_b32 {sT2}, {sHH}, 9
        v_add_u32 v{vOE}, {sT2}, v20
        v_lshlrev_b32 v{vWA1}, 4, {L}
        v_add_u32 v{vWA1}, {sKVLDS}, v{vWA1}
        v_add_u32 v{vWA[0]}, 65536, v{vWA1}
        v_add_u32 v{vWA[1]}, 131072, v{vWA1}
        v_add_u32 v{vWA1}, {SLOT}, v{vWA1}
        v_mov_b32 v21, 0x3f803f80
        v_accvgpr_write_b32 a{aONE}, v21
        v_accvgpr_write_b32 a{aONE+1}, v21
        v_accvgpr_write_b32 a{aONE+2}, v21
        v_accvgpr_write_b32 a{aONE+3}, v21
        ''')
    def q_reads(self, j):
        st = (j & 1) * 52
        xr = [I(f'ds_read_b128 {ar(st + 32 + 4*t)}, v{vXR[(j >> 1) & 1]} offset:{t*2048 + (j & 1)*512}') for t in range(5)]
        aa = []
        for dt in range(8):
            for u in range(2):
                adr = (vQE if dt % 2 == 0 else vQO)[j % 3]
                aa.append(I(f'ds_read_b64_tr_b16 {ar(st + 4*dt + 2*u, 2)}, v{adr} offset:{u*1024 + (dt >> 1)*256}'))
        return aa[:2] + xr + aa[2:]
    def k_reads(self, base, tag='kr'):
        us = [I(f'v_add_u32 v{vK}, {base}, v{aK}')]
        for ks in range(4):
            for kt in range(2):
                us.append(I(f'ds_read_b128 {ar(aKF + (kt*4+ks)*4)}, v{vK} offset:{kt*4096 + ks*256}', tag=tag))
        return us
    def v_reads(self, base, dst=aVF, tag='vr'):
        pre = [I(f'v_add_u32 v{vVE}, {base}, v{aVE}'), I(f'v_xor_b32 v{vVO}, 32, v{vVE}')]
        us = []
        for dt in range(8):
            for h in range(2):
                us.append((dt, I(f'ds_read_b64_tr_b16 {ar(dst + 4*dt + 2*h, 2)}, v{vVE if dt % 2 == 0 else vVO} offset:{16384 + h*4096 + (dt >> 1)*256}', tag=tag)))
        return pre, us
    def q_mfmas(self, j, touter=False):
        st = (j & 1) * 52; m = []
        order = [(t, dt) for t in range(5) for dt in range(8)] if touter else [(t, dt) for dt in range(8) for t in range(5)]
        for t, dt in order:
            m += I(f'{MF} {vr(O(t, dt))}, {ar(st + 4*dt)}, {ar(st + 32 + 4*t)}, {vr(O(t, dt)) if j else "0"}')
        return m
    def s_mfmas(self, zero=False):
        m = []
        for t in range(5):
            for ks in range(4):
                for kt in range(2):
                    c = vr(Sreg(t, kt)) if ks else ('0' if zero else vr(NM4 + 4*t))
                    m += I(f'{MF} {vr(Sreg(t, kt))}, {ar(aKF + (kt*4+ks)*4)}, {ar(Qf(ks, t))}, {c}')
        m[0] = waittag('kr') + [m[0]]
        return m
    def pv_mfmas(self, first=False, vf=aVF, ones_first=True):
        ones = [I(f'{MF} {ar(aL + 4*t)}, {ar(aONE)}, {vr(Preg(t))}, {"0" if first else ar(aL + 4*t)}')[0] for t in range(5)]
        m = list(ones) if ones_first else []
        for t in range(5):
            if not ones_first: m.append(ones[t])
            for dt in range(8):
                m += I(f'{MF} {vr(O(t, dt))}, {ar(vf + 4*dt)}, {vr(Preg(t))}, {"0" if first else vr(O(t, dt))}')
        return m
    def q_convert(self, t):
        us = []
        for ks in range(4):
            x = O(t, 2*ks); y = x + 4
            if self.c.pkq:
                for k in range(0, 8, 2): us.append(I(f'v_pk_mul_f32 v[{x+k}:{x+k+1}], v[{x+k}:{x+k+1}], s[40:41] op_sel_hi:[1,0]'))
            else:
                for k in range(8): us.append(I(f'v_mul_f32 v{x+k}, {sC}, v{x+k}'))
        for ks in range(4):
            x = O(t, 2*ks); y = x + 4
            for s in (f'v{x}, v{x}, v{x+1}', f'v{y}, v{y}, v{y+1}', f'v{x+1}, v{x+2}, v{x+3}', f'v{y+1}, v{y+2}, v{y+3}'):
                us.append(I('v_cvt_pk_bf16_f32 ' + s))
        for ks in range(4):
            x = O(t, 2*ks); y = x + 4
            for k in range(2):
                us.append(I(f'v_cndmask_b32 v{x+2+k}, v{x+k}, v{y+k}, vcc'))
                us.append(I(f'v_cndmask_b32 v{y+2+k}, v{y+k}, v{x+k}, vcc'))
        for ks in range(4):
            x = O(t, 2*ks); y = x + 4
            for k, r in enumerate((x+2, x+3, y+2, y+3)): us.append(I(f'v_accvgpr_write_b32 a{Qf(ks, t)+k}, v{r}'))
        return us
    def exp_units(self, t):
        b = Sreg(t, 0)
        return [I(f'v_exp_f32 v{b+k}, v{b+k}') for k in range(8)], [I(f'v_cvt_pk_bf16_f32 v{Preg(t)+k}, v{b+2*k}, v{b+2*k+1}') for k in range(4)]
    def rowmax(self, m, c, b):
        return I(f'''v_max3_f32 v{m}, v{b}, v{b+1}, v{b+2}
        v_max3_f32 v{c}, v{b+3}, v{b+4}, v{b+5}
        v_max3_f32 v{m}, v{m}, v{b+6}, v{b+7}
        v_max_f32 v{m}, v{m}, v{c}
        v_mov_b32 v{c}, v{m}
        v_permlane32_swap_b32 v{m}, v{c}
        v_max_f32 v{m}, v{m}, v{c}
        v_mov_b32 v{c}, v{m}
        v_permlane16_swap_b32 v{m}, v{c}
        v_max_f32 v{m}, v{m}, v{c}''')
    def softmax_streams(self, i, ck, exp_dead, cvt_lo):
        mx = []
        for t in range(5):
            b = Sreg(t, 0)
            for k in range(4):
                m = vMX0 if k % 2 == 0 else vMX1
                if t == 0 and k < 2: mx.append(I(f'v_max_f32 v{m}, v{b+2*k}, v{b+2*k+1}'))
                else: mx.append(I(f'v_max3_f32 v{m}, v{b+2*k}, v{b+2*k+1}, v{m}'))
        mx.append(I(f'v_max_f32 v{vMX0}, v{vMX0}, v{vMX1}'))
        st = FS(mx + [I(f'v_cmp_lt_f32 vcc, {sT}, v{vMX0}')], -1, ck - 1)
        st.append(F(I(f's_cbranch_vccnz L_stub{i}\nL_ret{i}:'), ck, ck, cost=1))
        self.stubs.append(i)
        for t in range(5):
            ex, cv = self.exp_units(t)
            st += FS(ex, -1, exp_dead(t)) + FS(cv, cvt_lo(t), exp_dead(t))
        return st
    def q_phase(self):
        e = self.e
        self.stamp('e'); e(waittag('x0', 'wq0')); self.stamp('e'); e('s_barrier'); self.stamp('q', 'e')
        qr = self.q_reads(0)
        for k, u in enumerate(qr):
            e(u)
            if k < len(self.late_pro): e(self.late_pro[k])
        for u in self.late_pro[len(qr):]: e(u)
        e(waittag('wq1')); e('s_waitcnt lgkmcnt(0)\ns_barrier'); self.stamp('e')
        for j in range(15):
            d = []
            if j + 3 < 16: d += self.wq_units(j + 3)
            if j % 2 == 1 and (j - 1) // 2 + 2 < 8: d += self.x_units((j - 1) // 2 + 2)
            ke = self.c.kv_end
            if j < self.c.kv_start: n = 0
            elif self.c.kveven == 2:
                wts = [(1.0 if (k % 2 == 0 or k >= 13) else self.c.kvw) for k in range(j, ke)]
                n = round(len(self.kvq) * wts[0] / sum(wts)) if wts else len(self.kvq)
            elif self.c.kveven:
                left = len([k for k in range(j, ke) if k % 2 == 0 or k >= 13])
                n = 0 if (j % 2 == 1 and j < 13) else (-(-len(self.kvq) // max(1, left)))
            else:
                n = -(-len(self.kvq) // max(1, ke - j)) if j < ke else len(self.kvq)
            d += [self.kvq.pop(0) for _ in range(min(n, len(self.kvq)))]
            ds = self.dma_stream(d, 1, min(39, self.c.vsp * len(d)), slack=1) if d else []
            streams = [FS(self.q_reads(j + 1), 0, 30), ds]
            if j == 0 and self.c.l2pfq: streams.append(FS(self.l2pf_q(), 22, 39))
            if j == 3: streams.append(FS([I(f'v_readlane_b32 {sOLD[r]}, v{vFOFF}, {r}') for r in range(4)] + [I(f'v_readlane_b32 {sOLD2[r]}, v{vFOFF2}, {r}') for r in range(4)], 30, 39))
            if self.c.cpf1 and j == self.c.cpf1: streams.append(FS(self.code_pf('L_conv', 60, 216, 143), 24, 39))
            if j == 14 and self.c.nstg >= 1: streams.append(FS(self.kv_drain(2), 20, 39, step=2))
            if j == 13 and self.c.nstg < 1: streams.append(self.dma_stream(self.kv_stage(2), 4, 36))
            self.sch(f'q{j}', self.q_mfmas(j), streams)
            tags = []
            if j + 2 < 16:
                tags.append(f'wq{j+2}')
                if (j + 2) % 2 == 0: tags.append(f'x{(j+2)//2}')
            if j == 14: tags += ['k0', 'kv0']
            e(waittag(*tags)); e('s_waitcnt lgkmcnt(0)\ns_barrier'); self.stamp('q')
    def q_to_attn(self):
        main = self.q_mfmas(15, touter=True) + self.s_mfmas(zero=True) + self.s_mfmas()
        conv = []
        for t in range(5):
            cu = self.q_convert(t)
            conv += FS(cu, 8*t + 9, 39 + 8*t)
        drains = FS(self.kv_drain(3), 8, 24, step=2) if self.c.nstg >= 2 else []
        if self.c.nstg >= 3: drains += FS(self.kv_drain(4), 24, 40, step=2)
        for f in conv:
            w = [r for x in f.ins for r in x.writes if r[0] == 'a']
            if w and int(w[0][1:]) >= 192: f.lo = max(f.lo, 26 if int(w[0][1:]) < 224 else 42)
        init = []
        for t in range(5):
            b = Sreg(t, 0); lo = 40 + 8*t + 9; hi = 79 + 8*t
            u = [[x] for x in self.rowmax(vMX0, vMX1, b)]
            u += [I(f'v_sub_f32 v{NM4+4*t+k}, 0, v{vMX0}') for k in range(4)]
            u += [I(f'v_sub_f32 v{b+k}, v{b+k}, v{vMX0}') for k in range(8)]
            ex, cv = self.exp_units(t)
            init += FS(u + ex + cv, lo, hi)
        k0 = FS(self.k_reads(SLOT + 16384), -1, 12)
        k1 = self.k_reads(0)
        k1s = [F(k1[0], 60, 79)] + [F(u, 72 + k, 79) for k, u in enumerate(k1[1:])]
        pre, vu = self.v_reads(0)
        vs = FS(pre, 44, 70) + [F(u, 44, 84) for _, u in vu]
        d0 = (self.kv_stage(3) if self.c.nstg < 2 else []) + (self.kv_stage(4) if self.c.nstg < 3 else [])
        v1 = self.dma_stream(d0, 0, 40) if d0 else []
        if self.c.late and not d0: v1 += self.dma_stream(self.kv_reg(6, (0,)), 4, 40)
        v1 += [F(I('s_barrier'), 46, 50)] + self.dma_stream(self.kv_dma(SV, 1, SLOT + 16384, 'kv1'), 50, 64)
        if self.c.late: v1 += self.dma_stream(self.kv_reg(6, (1,) if not d0 else (0, 1)), 66, 86)
        if self.c.early5:
            v1 += [F(waittag('vr') + I('s_barrier'), 88, 90, cost=2)] + self.dma_stream(self.kv_stage(5), 92, 116)
        self.e('L_conv:')
        self.sch('q15..s1', main, [k0, drains, conv + init, k1s, vs, v1], pre_cap=9, cap=self.c.ccap)
    def iteration(self, i):
        e = self.e
        L0 = max(4, self.c.regend - 3) if self.c.late else 2
        dyn = self.c.loop and L0 <= i <= self.c.lend
        if dyn and i == L0:
            e(f's_mov_b32 {sRB}, {(L0 % 5)*SLOT}\ns_add_u32 {sDB}, {sKVLDS}, {((L0 - 1) % 5)*SLOT}\n{self.kvoff(L0 + 5, sKO)}\n{self.kvoff(L0 + 4, sVO)}')
        if dyn: e(f'L_loopmark{i}:')
        tags = [f'kv{i}', 'vr'] + (['wown'] if i == 15 else [])
        if i == 15 and self.c.v15gap >= 0: return self.tail()
        if dyn: e('s_waitcnt vmcnt(24) lgkmcnt(0)')
        e(waittag(*tags)); e('s_barrier')
        if i == 15: return self.tail()
        if dyn: dma = self.kv_stage_dyn(i + 4)
        elif i == 1 and self.c.early5: dma = self.kv_reg(7) if self.c.late else []
        elif self.c.late and 6 <= i + 4 <= self.c.regend:
            dr = self.kv_drain(i + 4); dma = dr
            if i + 6 <= self.c.regend:
                ld = self.kv_reg(i + 6); h = len(dr) // 2
                dma = dr[:h] + dr[h:] + ld if len(ld) < 8 else dr[:h] + ld[:4] + dr[h:] + ld[4:]
        else:
            sm = {s: s - 4 for s in range(8, 16)}
            sm.update({int(a): int(b) for a, b in (x.split('~') for x in self.c.smap.split('/') if x)})
            dma = []
            for s in sorted(sm):
                if sm[s] == i and s > self.c.regend: dma += self.kv_stage(s)
            if 0 <= i - self.c.wo_it <= 1: dma += self.wo_own(i - self.c.wo_it)
        main = self.pv_mfmas(first=(i == 1)) + self.s_mfmas()
        base = sRB if dyn else (i % 5) * SLOT
        sm = self.softmax_streams(i, 11, lambda t: 44 + 8*t, lambda t: 12 + 8*t)
        ks = FS(self.k_reads(base), -1, 36)
        pre, vu = self.v_reads(base)
        vs = FS(pre, 20, 60) + [F(u, 37 + dt, 80) for dt, u in vu]
        streams = [sm, ks, vs]
        ds = self.dma_stream(dma, self.c.dlo if i < 12 else 13, self.c.dhi if i < 12 else self.c.wo_hi) if dma else []
        if self.c.l2pf and i == self.c.pfit: ds += FS(self.l2pf_wo(), 72, 84)
        if self.c.tlb == i: ds = FS(self.tlb_touch(), 13, 30) + ds
        if self.c.cpf2 == i: ds = FS(self.code_pf('L_tail', 4, vTB, 244), 13, 30) + ds
        if dyn:
            ds += FS([I(x) for x in (f's_add_u32 {sDB}, {sRB}, {sKVLDS}', f's_add_u32 {sRB}, {sRB}, {SLOT}',
                      f's_cmp_eq_u32 {sRB}, {5*SLOT}\ns_cselect_b32 {sRB}, 0, {sRB}', f's_mov_b32 {sVO}, {sKO}', f's_add_u32 {sKO}, {sKO}, 8192') + ((f's_and_b32 {sKO}, {sKO}, 0x1e000', f's_or_b32 {sKO}, {sKO}, {sKVOFF}') if self.c.krot else ())], 61, 84)
        streams.append(ds)
        self.sch(f'it{i}', main, streams)
        if dyn: e(f'L_loopend{i}:')
    def rare(self):
        p = I('L_rare:\ns_nop 7\ns_nop 1')
        for t in range(5):
            b = Sreg(t, 0)
            p += self.rowmax(vMX0, vMX1, b)
            p += I(f'v_max_f32 v{vMX0}, 0, v{vMX0}')
            for k in range(4): p += I(f'v_sub_f32 v{NM4+4*t+k}, v{NM4+4*t+k}, v{vMX0}')
            for k in range(8): p += I(f'v_sub_f32 v{b+k}, v{b+k}, v{vMX0}')
            p += I(f'v_sub_f32 v{vTA}, 0, v{vMX0}\nv_exp_f32 v{vTA}, v{vTA}')
            for k in range(32): p += I(f'v_mul_f32 v{O(t,0)+k}, v{O(t,0)+k}, v{vTA}')
            for k in range(4):
                p += I(f'v_accvgpr_read_b32 v{vTB}, a{aL+4*t+k}\nv_mul_f32 v{vTB}, v{vTB}, v{vTA}\nv_accvgpr_write_b32 a{aL+4*t+k}, v{vTB}')
            for k in range(4):
                r = Preg(t) + k
                p += I(f'''v_lshlrev_b32 v{vTB}, 16, v{r}
                v_and_b32 v{vMX1}, 0xffff0000, v{r}
                v_mul_f32 v{vTB}, v{vTB}, v{vTA}
                v_mul_f32 v{vMX1}, v{vMX1}, v{vTA}
                v_cvt_pk_bf16_f32 v{r}, v{vTB}, v{vMX1}''')
        p += I(f's_nop 1\ns_setpc_b64 {sRET}')
        return p
    def own(self, ks, t): return self.ownmap[(ks, t)]
    def acc(self, t, nt): return 32*t + 4*nt
    def norm_units(self, t):
        us = [I(f'v_accvgpr_read_b32 v{vRL+t}, a{aL+4*t}'), I(f'v_rcp_f32 v{vRL+t}, v{vRL+t}')]
        for ks in range(4):
            b = O(t, 2*ks)
            if self.c.pkn:
                r = vRL + t; pr = r & ~1; sel = r & 1
                for k in range(0, 8, 2): us.append(I(f'v_pk_mul_f32 v[{b+k}:{b+k+1}], v[{b+k}:{b+k+1}], v[{pr}:{pr+1}] op_sel:[0,{sel}] op_sel_hi:[1,{sel}]'))
            else:
                for k in range(8): us.append(I(f'v_mul_f32 v{b+k}, v{b+k}, v{vRL+t}'))
            for k in range(4): us.append(I(f'v_cvt_pk_bf16_f32 v{self.own(ks, t) + k}, v{b+2*k}, v{b+2*k+1}'))
            f = ks*5 + t
            adr, off = (vEX1, f*1024) if f < 16 else (vEX2, (f-16)*1024)
            us.append(I(f's_add_u32 {sT1}, {sOW}, {(ks >> 1)*20480 + ((ks & 1)*5 + t)*1024}') +
                      I(f'buffer_store_dwordx4 {vr(self.own(ks, t))}, v{vL16}, {SOX}, {sT1} offen{self.pol(self.c.opol)}', tag='ost'))
            us.append(I(f'ds_write_b128 v{adr}, {vr(self.own(ks, t))} offset:{off}', tag='exw'))
        return us
    def a_reads(self, e, o, base, nks, dst, tag):
        us = []
        for ks in range(nks):
            for nt in range(4):
                for h in range(2):
                    us.append(I(f'ds_read_b64_tr_b16 {ar(dst + (ks*4 + nt)*4 + 2*h, 2)}, v{e if nt % 2 == 0 else o} offset:{base + ks*8192 + h*4096 + (nt >> 1)*256}', tag=tag))
        return us
    def rem_reads(self, kp):
        u = kp // 2; ksl = kp % 2; st = self.aset(kp)
        aa = self.a_reads(vWEr, vWOr, WOB[u % 4] + ksl*8192, 1, st, 'rr')
        adr, off = (vOB0, OB[u % 4] - OB[0]) if u % 4 < 2 else (vOB1, OB[u % 4] - OB[2])
        bb = [I(f'ds_read_b128 {ar(st + 16 + 4*t)}, v{adr} offset:{off + (ksl*5 + t)*1024}', tag='rr') for t in range(5)]
        return aa[:2] + bb + aa[2:]
    def aset(self, kp):
        return aSET[kp % 2] if kp < 22 else (0, 40)[kp - 22]
    def check(self, r):
        self.chk.append(r)
        return I(f'v_readlane_b32 {sRDY}, v{vPOLL}, {r}\ns_sub_u32 {sRDY}, {sRDY}, {sOLD[r]}\ns_cmp_eq_u32 {sRDY}, {sXCC if "sc1" not in self.c.opol else 32}\ns_cbranch_scc0 L_cstub{r}\nL_cret{r}:')
    def store_units(self, t):
        us = []
        for m in range(2):
            b = self.acc(t, 2*m)
            for k in range(4): us.append(I(f'v_cvt_pk_bf16_f32 v{b+k}, v{b+2*k}, v{b+2*k+1}'))
            us.append(I(f's_add_u32 {sT1}, {sPW}, {(t*2+m)*1024}') +
                      I(f'buffer_store_dwordx4 {vr(b)}, v{vL16}, {SWS}, {sT1} offen{self.pol(self.c.stpol)}', tag='st'))
        return us
    def tail(self):
        e = self.e; L = f'v{vLANE}'; self.chk = []
        e('L_tail:\ns_mov_b64 s[16:17], s[100:101]')
        regs = {0: [220, 224, 228, 232], 1: [236, 160, 164, 168], 2: [172, 176, 180, 184], 3: [188, 192, 196, 200], 4: [204, 208, 212, 216]}
        self.ownmap = {(ks, t): regs[t][ks] for t in range(5) for ks in range(4)}
        o0 = []
        for t in range(5):
            for ks in range(4):
                for nt in range(4):
                    o0 += I(f'{MF} {vr(self.acc(t, nt))}, {ar(aA0 + (ks*4+nt)*4)}, {vr(self.own(ks, t))}, {vr(self.acc(t, nt)) if ks else "0"}')
        pv15 = self.pv_mfmas(vf=aKF, ones_first=False)
        pv15[0] = waittag('vr') + [pv15[0]]
        o0[0] = waittag('af0') + [o0[0]]
        main = self.pv_mfmas() + pv15 + o0
        sm = self.softmax_streams(15, 11, lambda t: 43 + 9*t, lambda t: 12 + 8*t)
        pre, vu = self.v_reads(0, dst=aKF)
        rd = FS(pre + [u for _, u in vu], -1, 30)
        if self.c.v15gap >= 0:
            G = self.c.v15gap
            rd = [F(waittag('kv15', 'wown') + I('s_barrier'), G, G, cost=2)] + FS(pre + [u for _, u in vu], G, 40)
            main[5] = waittag('vr') + [main[5]]
        rd += FS([I(f's_lshl_b32 {sT1}, {sHH}, 15'), I(f's_add_u32 {sT1}, {sT1}, {SLOT}'), I(f'v_add_u32 v{vOEs}, {sT1}, v{vOE}'), I(f'v_xor_b32 v{vOOs}, 32, v{vOEs}')] +
                 self.a_reads(vOEs, vOOs, 0, 4, aA0, 'af0'), -1, 70)
        setup = [I(x) for x in (f'v_lshlrev_b32 v{vL16}, 4, {L}', f's_lshl_b32 {sT1}, {sW}, 14', f's_add_u32 {sT1}, {sT1}, 98304',
                 f'v_add_u32 v{vEX1}, {sT1}, v{vL16}', f'v_add_u32 v{vEX2}, {sW4K}, v{vL16}')]
        st0 = []
        k0 = [i for i, f in enumerate(rd) if any(f'v{aVE}' in x.reads for x in f.ins)][0]
        rd[k0 + 2:k0 + 2] = FS(setup, -1, 52)
        rd += [F(waittag('vr') + I('s_barrier'), 72, 80, cost=2)] + self.dma_stream(self.wo_rem(0), 74, 90)
        rd += FS([I(f'v_xor_b32 v{vOEs}, 0x18000, v{vOEs}'), I(f'v_xor_b32 v{vOOs}, 0x18000, v{vOOs}')] + self.a_reads(vOEs, vOOs, 0, 4, aA1, 'af1'), self.c.normlast - 40, 164)
        nl = self.c.normlast
        nm = []
        carry = []
        for t in range(5):
            nu = self.norm_units(t)
            if self.c.nlag:
                out = []; pend = carry; carry = []
                for u in nu:
                    if any(x.kind in ('vst', 'ds') for x in u): pend.append([self.c.nlag * (len(pend) + 1), u]); continue
                    out.append(u)
                    for p in pend: p[0] -= 1
                    while pend and pend[0][0] <= 0: out.append(pend.pop(0)[1])
                if t < 4: carry = pend
                else: out += [p[1] for p in pend]
                nu = out
            nm += FS(nu, 45 + 9*t + 10, min(89 + 16*t, nl))
            if t == 0:
                nm += FS([I(x) for x in (f'v_xor_b32 v{vEXR1}, 0x4000, v{vEX1}', f'v_xor_b32 v{vEXR2}, 0x1000, v{vEX2}', f's_mul_i32 {sT1}, {sQH}, 10240',
                          f's_add_u32 {sT1}, {sT1}, {OB[0]}', f'v_add_u32 v{vOB0}, {sT1}, v{vL16}', f'v_add_u32 v{vOB1}, {OB[2] - OB[0]}, v{vOB0}',
                          f'v_mov_b32 v{vWEr}, v{vOE}', f'v_xor_b32 v{vWOr}, 32, v{vOE}', f's_add_u32 {sT1}, {sOLD[0]}, {sXCC if "sc1" not in self.c.opol else 32}\nv_mov_b32 v{vFLAG}, {sT1}', f'v_add_u32 v{vPOFF}, {sHP}, {L}', f'v_and_b32 v{vPOFF}, 3, v{vPOFF}', f'v_lshlrev_b32 v{vPOFF}, 2, v{vPOFF}')], -1, 89)
        l4 = [f for f in nm if any(f'a{aL+16}' in x.reads for x in f.ins)][0]
        for f in rd:
            if any(x.tag == 'af1' for x in f.ins): f.lo = max(f.lo, 100)
        l4.hi = min(l4.hi, 99)
        exr = []
        for f in range(20):
            adr, off = (vEXR1, f*1024) if f < 16 else (vEXR2, (f-16)*1024)
            exr.append(I(f'ds_read_b128 {ar(aPART + 4*f)}, v{adr} offset:{off}', tag='exr'))
        nm += [F(waittag('exw') + I('s_barrier'), -1, nl + 6, cost=2)] + FS(exr, -1, 164)
        pl = [F(I(f'buffer_load_dword v{vPOLL}, v{vPOFF}, {SDB}, 0 offen sc0 sc1'), self.c.pearly, self.c.pearly)] if self.c.pearly else []
        self.sch('tail', main, [sm, rd, st0, nm, pl], cap=self.c.tcap)
        self.stamp('main', 'o', 'h', 'ao')
        main = []
        for ks in range(4):
            for nt in range(4):
                for t in range(5):
                    main += I(f'{MF} {vr(self.acc(t, nt))}, {ar(aA1 + (ks*4+nt)*4)}, {ar(aPART + (ks*5+t)*4)}, {vr(self.acc(t, nt))}')
        main[0] = waittag('exr', 'af1') + I('s_barrier') + [main[0]]
        Z, Pg = self.c.zgap, self.c.pgap
        sig = self.stamp_i('h') + waittag('ost') + self.stamp_i('h') + I(f's_barrier\ns_cmp_lg_u32 {sW}, 0\ns_cbranch_scc1 L_nosig')
        sig += I(f's_mov_b64 exec, 1\nbuffer_store_dword v{vFLAG}, off, {SDB}, {sCL} sc0 sc1\ns_mov_b64 exec, -1\nL_nosig:')
        for x in sig:
            if x.kind == 'vst': x.kind = 'opaque'
        ds = [F(sig, Z, Z, cost=4)] + self.dma_stream(self.wo_rem(1) + self.wo_rem(2) + self.wo_rem(3), 0, 0)[:0]
        if self.c.pearly:
            ds += [F(self.stamp_i('h') + self.check(1) + self.stamp_i('h'), Z, Z, cost=4)]
            un = self.o_rem(0)
            for u in range(1, 4): un += self.o_rem(u) + self.wo_rem(u)
            d2 = self.dma_stream(un, Z + 2, 78, slack=0)
            for f in d2: f.lo = max(f.lo, Z)
            ds += d2
        else:
            w13 = self.dma_stream(self.wo_rem(1) + self.wo_rem(2) + self.wo_rem(3), Z + 2, Pg - self.c.pdist - 2)
            ds += w13 + [F(I(f'buffer_load_dword v{vPOLL}, v{vPOFF}, {SDB}, 0 offen sc0 sc1'), Pg - self.c.pdist, Pg - self.c.pdist),
                         F(self.stamp_i('h') + self.check(1) + self.stamp_i('h'), Pg, Pg, cost=4)]
            ds += self.dma_stream(self.o_rem(0) + self.o_rem(1) + self.o_rem(2) + self.o_rem(3), Pg + 1, 79, slack=0)
        c0 = [F(self.stamp_i('h') + waittag('u0') + self.stamp_i('h') + I('s_barrier'), self.c.c0gap, self.c.c0gap, cost=2)] + FS(self.rem_reads(0), self.c.c0gap, 76)
        self.sch('s1', main, [ds, c0])
        self.stamp('o', 'ao')
        pend = []
        NL = self.c.lastn
        for kp in range(24 - NL + 1):
            u = kp // 2; st = self.aset(kp)
            main = []
            if kp < 24 - NL:
                for nt in range(4):
                    for t in range(5):
                        main += I(f'{MF} {vr(self.acc(t, nt))}, {ar(st + 4*nt)}, {ar(st + 16 + 4*t)}, {vr(self.acc(t, nt))}')
            else:
                for t in range(5):
                    for k2 in range(kp, 24):
                        for nt in range(4):
                            main += I(f'{MF} {vr(self.acc(t, nt))}, {ar(self.aset(k2) + 4*nt)}, {ar(self.aset(k2) + 16 + 4*t)}, {vr(self.acc(t, nt))}')
            head = waittag('rr')
            if kp % 2 == 1 and u + 1 < 12:
                head = waittag('rr', f'u{u+1}') + I('s_barrier')
                if u + 4 < 12:
                    pend = self.wo_rem(u + 4) + self.o_rem(u + 4)
                    if (u + 4) % 4 == 0: head += self.check(1 + (u + 4) // 4)
            main[0] = head + [main[0]]
            streams = []
            if kp + 1 < 24 - NL: streams.append(FS(self.rem_reads(kp + 1), 0, 14))
            elif kp + 1 == 24 - NL:
                streams.append(FS([x for k2 in range(kp + 1, 24) for x in self.rem_reads(k2)], 0, 17))
            if pend:
                n = 4 if kp % 2 == 1 else len(pend)
                streams.append(self.dma_stream(pend[:n], 1, 18, slack=1)); pend = pend[n:]
            if kp == 24 - NL:
                su = []
                for t in range(4): su += FS(self.store_units(t), 4*NL*(t + 1) + 1, 10**6)
                streams.append(su)
            if self.c.fuse and 12 <= kp < 20:
                fs = self.final_setup(16) + self.final_setup(18); n = len(fs)
                streams.append(FS(fs[(kp - 12)*n//8:(kp - 11)*n//8], 8, 19))
            self.sch(f'r{kp}', main, streams, cap=(3 if kp >= 23 - NL else 2))
            if kp % 4 == 3: self.stamp('o', 'ao')
        for u in self.store_units(4): e(u)
        if self.c.fuse: self.final_reduce()
    def final_setup(self, part):
        L = f'v{vLANE}'
        sA, sO, sQ = 's37', 's54', 's55'
        sel = '\n'.join(f's_cmp_eq_u32 {sOCT}, {r}|s_cselect_b32 {sQ}, {sOLD2[r]}, {sQ}' for r in range(4))
        sel2 = '\n'.join(f's_cmp_eq_u32 {sOCT}, {r}|s_cselect_b32 {sOLD2[r]}, {sQ}, {sOLD2[r]}' for r in range(4))
        if part == 16:
            return [I(x.replace('|', '\n')) for x in f'''s_mov_b32 s14, {8*160*1024*2}
            s_mov_b64 s[12:13], s[16:17]
            s_mul_i32 {sA}, {sOCT}, 2560
            s_add_u32 {sA}, {sA}, {sPW}
            s_lshr_b32 {sO}, {sBLK}, 2
            s_and_b32 {sO}, {sO}, 7
            s_mul_i32 {sO}, {sO}, 160
            s_mul_i32 {sQ}, {sQH}, 80
            s_add_u32 {sO}, {sO}, {sQ}
            s_lshl_b32 {sO}, {sO}, 11
            s_lshr_b32 {sQ}, {sBLK}, 5
            s_lshl_b32 {sQ}, {sQ}, 10
            s_add_u32 {sO}, {sO}, {sQ}
            s_lshl_b32 {sQ}, {sHP}, 8
            s_add_u32 {sO}, {sO}, {sQ}
            s_lshl_b32 {sQ}, {sHH}, 7
            s_add_u32 {sO}, {sO}, {sQ}
            {sel}
            s_add_u32 {sQ}, {sQ}, 1
            v_mov_b32 v{vFLAG}, {sQ}
            s_add_u32 {sQ}, {sQ}, 1
            {sel2}
            s_lshl_b32 {sCL}, {sW}, 2
            s_lshl_b32 {sIDX2}, {sIDX2}, 2
            s_mul_i32 {sQ}, {sOCT}, 160
            v_lshlrev_b32 v48, 4, {L}
            v_mov_b32 v49, 0x3f80
            v_mov_b32 v50, 0x3f800000'''.split('\n')]
        us = []
        for k in range(3):
            us += [I(x) for x in f'''v_add_u32 v26, {sQ}, {L}
            v_add_u32 v26, {64*k}, v26
            v_lshrrev_b32 v27, 7, v26
            v_lshlrev_b32 v{28+k}, 15, v27
            v_bfe_u32 v27, v26, 6, 1
            v_lshl_add_u32 v{28+k}, v27, 6, v{28+k}
            v_and_b32 v27, 15, v26
            v_lshl_add_u32 v{28+k}, v27, 11, v{28+k}
            v_bfe_u32 v27, v26, 4, 2
            v_lshl_add_u32 v{28+k}, v27, 3, v{28+k}'''.split('\n')]
        return us
    def final_reduce(self):
        e = self.e
        sA, sO = 's37', 's54'
        cmp4 = '\n'.join(f'v_readlane_b32 {sRDY}, v{vPOLL}, {r}\ns_cmp_lg_u32 {sRDY}, {sOLD2[r]}\ns_addc_u32 {sCNT}, {sCNT}, 0' for r in range(4))
        e(f'''s_mul_i32 {sT0}, {sOCT}, {PART_BYTES}
        s_sub_u32 s24, s24, {sT0}
        s_subb_u32 s25, s25, 0
        s_mov_b32 s26, {4*PART_BYTES}
        s_waitcnt vmcnt(0)
        s_mov_b64 exec, 1
        buffer_store_dword v{vFLAG}, off, {SD2}, {sIDX2} sc0 sc1
        s_mov_b64 exec, -1''')
        self.stamp('o')
        e(f'''s_mov_b32 {sWB}, {self.c.maxpoll}
        s_branch L_fpoll
        L_floop:
        {f's_sleep {self.c.slp}' if self.c.slp else ''}
        L_fpoll:
        buffer_load_dword v{vPOLL}, v48, {SD2}, {sCL} offen sc0 sc1
        s_waitcnt vmcnt(0)
        s_mov_b32 {sCNT}, 0
        {cmp4}
        s_sub_u32 {sWB}, {sWB}, 1
        s_cmp_eq_u32 {sWB}, 0
        s_cbranch_scc1 L_fgo
        s_cmp_lg_u32 {sCNT}, 4
        s_cbranch_scc1 L_floop
        L_fgo:''')
        self.stamp('o')
        R0 = 160
        for k in range(3):
            for i in range(4):
                e(f's_add_u32 {sT1}, {sA}, {i*PART_BYTES}\nbuffer_load_dwordx4 {vr(R0 + (k*4+i)*4)}, v{vL16}, {SWS}, {sT1} offen offset:{k*1024}{self.pol(self.c.pldpol)}')
        for k in range(3):
            for i in range(4):
                for j in range(4):
                    r = R0 + (k*4+i)*4 + j
                    if i == 0: e(f'v_lshlrev_b32 v{96+2*j}, 16, v{r}\nv_and_b32 v{97+2*j}, 0xffff0000, v{r}')
                    elif self.c.dot: e(f'v_dot2c_f32_bf16 v{96+2*j}, v{r}, v49\nv_dot2c_f32_bf16 v{97+2*j}, v{r}, v50')
                    else: e(f'v_lshlrev_b32 v26, 16, v{r}\nv_and_b32 v27, 0xffff0000, v{r}\nv_add_f32 v{96+2*j}, v{96+2*j}, v26\nv_add_f32 v{97+2*j}, v{97+2*j}, v27')
            if self.c.dot: e('s_nop 2')
            for j in range(4): e(f'v_cvt_pk_bf16_f32 v{104+4*k+j}, v{96+2*j}, v{97+2*j}')
            if k == 2: e('s_mov_b32 exec_hi, 0')
            e(f'buffer_store_dwordx2 v[{104+4*k}:{105+4*k}], v{28+k}, {SOUT}, {sO} offen{self.pol(self.c.outpol)}')
            e(f'buffer_store_dwordx2 v[{106+4*k}:{107+4*k}], v{28+k}, {SOUT}, {sO} offen offset:32{self.pol(self.c.outpol)}')
        e('s_mov_b64 exec, -1')
    def poll_code(self):
        p = []
        for r in self.chk:
            p += I(f'''L_cstub{r}:
            s_mov_b32 {sCNT}, {self.c.maxpoll}
            L_cloop{r}:
            {f's_sleep {self.c.slp}' if self.c.slp else ''}
            buffer_load_dword v{vPOLL}, v{vPOFF}, {SDB}, 0 offen sc0 sc1
            s_waitcnt vmcnt(0)
            v_readlane_b32 {sRDY}, v{vPOLL}, {r}
            s_sub_u32 {sCNT}, {sCNT}, 1
            s_cmp_eq_u32 {sCNT}, 0
            s_cbranch_scc1 L_cret{r}
            s_sub_u32 {sRDY}, {sRDY}, {sOLD[r]}
            s_cmp_eq_u32 {sRDY}, 0
            s_cbranch_scc1 L_cloop{r}''')
            if 'sc1' not in self.c.opol:
                p += I(f'''s_cmp_eq_u32 {sRDY}, {sXCC}
                s_cbranch_scc1 L_cret{r}
                s_cmp_lg_u32 {sWB}, 0
                s_cbranch_scc1 L_cwb{r}
                s_mov_b32 {sWB}, 1
                s_cmp_lg_u32 {sW}, 0
                s_cbranch_scc1 L_cwb{r}
                buffer_wbl2 sc1
                s_waitcnt vmcnt(0)
                s_add_u32 {sT3}, {sOLD[0]}, 32
                v_mov_b32 v{vFLAG}, {sT3}
                s_mov_b64 exec, 1
                buffer_store_dword v{vFLAG}, off, {SDB}, {sCL} sc0 sc1
                s_mov_b64 exec, -1
                L_cwb{r}:
                s_cmp_lt_u32 {sRDY}, 32
                s_cbranch_scc1 L_cloop{r}
                buffer_inv sc1
                s_waitcnt vmcnt(0)''')
            p += I(f's_nop 4\ns_branch L_cret{r}')
        return p
    def peephole(self, prog):
        out = []; prev = {}
        for x in prog:
            if x.kind in ('label', 'branch'): prev = {}; self.curkvo = None
            if isinstance(x.tag, tuple) and x.tag[0] == 'kvo' and self.c.krot:
                if getattr(self, 'curkvo', None) == x.tag: continue
                if x.op == 's_or_b32': self.curkvo = x.tag
                out.append(x); prev.pop(sT2, None); continue
            if sT2 in x.writes: self.curkvo = None
            if x.kind == 'salu' and x.op == 's_add_u32' and len(x.writes) == 1:
                w = next(iter(x.writes))
                if w in ('m0', sT0, sT2) and prev.get(w) == x.text and w not in x.reads: continue
            for w in x.writes:
                prev.pop(w, None)
                for k in [k for k, v in prev.items() if re.search(rf'\b{w}\b', v.split(',', 1)[1])]: prev.pop(k)
            if x.kind == 'salu' and x.op == 's_add_u32' and len(x.writes) == 1: prev[next(iter(x.writes))] = x.text
            out.append(x)
        return out
    def fold(self, prog):
        idx = {x.text: k for k, x in enumerate(prog) if x.kind == 'label'}
        its = [i for i in range(16) if f'L_loopmark{i}:' in idx]
        norm = lambda x: re.sub(r'(L_stub|L_ret)\d+', r'\1', x.text)
        body = {i: [norm(x) for x in prog[idx[f'L_loopmark{i}:'] + 1: idx[f'L_loopend{i}:']]] for i in its}
        last = its[-1]; first = last
        while first - 1 in body and body[first - 1] == body[last]: first -= 1
        self.log.append(('loop', first, last, len(body[last])))
        for i in range(first + 1, last + 1): self.stubs.remove(i)
        a = idx[f'L_loopmark{first}:']; b = idx[f'L_loopend{first}:']; c = idx[f'L_loopend{last}:']
        return prog[:a] + I(self.kvoff(last + 6, sIT)) + prog[a:b] + \
            I(f's_cmp_lg_u32 {sIT}, {sKO}\ns_cbranch_scc1 L_loopmark{first}') + prog[c + 1:]
    def build(self):
        self.prologue(); self.q_phase(); self.q_to_attn(); self.stamp('main', 'q', 'a', 'ao')
        for i in range(1, 16):
            if i == 15: self.stamp('o', 'h')
            self.iteration(i)
            if i in (3, 10, 12): self.stamp('main')
            if i < 15 and not (self.c.loop and max(4, self.c.regend - 3) <= i < self.c.lend): self.stamp('a', 'ao')
        e = self.e
        if self.c.stamps:
            e('s_waitcnt vmcnt(0)'); self.stamp()
            if self.c.hwid:
                e(f's_getreg_b32 s62, hwreg(HW_REG_XCC_ID)\nv_writelane_b32 v255, s62, {self.nst}\ns_getreg_b32 s62, hwreg(HW_REG_HW_ID)\nv_writelane_b32 v255, s62, {self.nst + 1}'); self.nst += 2
            if self.c.dbgwg >= 0:
                e(f'''s_mov_b64 s[24:25], s[56:57]
                s_mov_b32 s26, 0x10000000
                s_mov_b32 {sT2}, {STAMP_OFF}
                s_cmp_lg_u32 s2, {self.c.dbgwg}
                s_cbranch_scc1 L_end
                s_cmp_lg_u32 {sW}, 0
                s_cbranch_scc1 L_end
                v_readfirstlane_b32 {sT1}, v255
                v_lshlrev_b32 v2, 2, v{vLANE}
                v_subrev_u32 v4, {sT1}, v255
                buffer_store_dword v4, v2, {SWS}, {sT2} offen
                s_endpgm''')
            if self.c.clk == 2: self.nst = 64
            e(f'''s_mov_b64 s[24:25], s[56:57]
            s_mov_b32 s26, 0x10000000
            s_mul_i32 {sT1}, s2, {self.nst*8}
            s_add_u32 {sT1}, {sT1}, {STAMP_OFF}
            s_cmp_lg_u32 {sW}, 0
            s_cbranch_scc1 L_end
            v_lshlrev_b32 v2, 3, v{vLANE}
            v_mov_b32 v4, v255
            v_mov_b32 v5, 0
            v_cmp_gt_u32 vcc, {self.nst}, v{vLANE}
            s_and_saveexec_b64 s[60:61], vcc
            buffer_store_dwordx2 v[4:5], v2, {SWS}, {sT1} offen''')
        e('L_end:\ns_endpgm')
        if self.c.nomem:
            def drop(x):
                if x.tag == 'ost': return 'x' in self.c.nomem
                if x.tag == 'exw': return 'w' in self.c.nomem
                if x.tag == 'exr': return 'r' in self.c.nomem
                if x.kind not in ('dma', 'vld', 'vst'): return False
                t = x.text
                if 'buffer_load_dword a' in t: return 'p' in self.c.nomem and SWO in t
                if SX in t or SWQ in t: return 'q' in self.c.nomem
                if SK in t or SV in t: return 'k' in self.c.nomem
                if SWO in t or SOX in t: return 'o' in self.c.nomem
                if x.tag == 'st': return 's' in self.c.nomem
                return False
            self.p = [x for x in self.p if not drop(x)]
        if self.c.jit:
            import random
            rnd = random.Random(self.c.jit); q = []; n = 0
            for x in self.p:
                isbar = x.kind == 'barrier'
                pre = isbar and rnd.random() < 0.5
                def j():
                    nonlocal n; n += 1
                    return I(f's_cmp_lg_u32 {sW}, {rnd.randrange(4)}\ns_cbranch_scc1 L_jit{n}\ns_sleep {rnd.choice([2, 6, 20, 60])}\nL_jit{n}:')
                if pre: q += j()
                q.append(x)
                if isbar and not pre: q += j()
                if x.text.startswith('s_cbranch_scc1 L_end') and n == 0:
                    n += 1
                    q += I(f's_mul_i32 s62, s2, {rnd.randrange(1, 64, 2)}\ns_and_b32 s62, s62, 7\nL_jd:\ns_sleep 40\ns_sub_u32 s62, s62, 1\ns_cmp_ge_i32 s62, 0\ns_cbranch_scc1 L_jd')
            self.p = q
        prog = finalize(self.peephole(self.p))
        if self.c.loop and any(x.text.startswith('L_loopmark') for x in prog): prog = self.fold(prog)
        for i in self.stubs: prog += I(f'L_stub{i}:\ns_call_b64 {sRET}, L_rare\ns_branch L_ret{i}')
        prog += finalize(self.rare())
        prog += self.poll_code()
        prog += I('L_codeend:')
        return prog

def reduce_kernel(cfg):
    pol = (' ' + cfg.rdpol) if cfg.rdpol else ''
    p = I(f'''
    s_cmp_ge_u32 s2, 640
    s_cbranch_scc1 L_rend
    s_load_dwordx2 s[4:5], s[0:1], 96
    s_load_dwordx2 s[8:9], s[0:1], 80
    v_lshrrev_b32 v1, 6, v0
    v_and_b32 v2, 63, v0
    v_readfirstlane_b32 s3, v1
    v_lshlrev_b32 v3, 4, v2
    s_mul_i32 s12, s2, 6554
    s_lshr_b32 s12, s12, 16
    s_mul_i32 s13, s12, 10
    s_sub_u32 s13, s2, s13
    s_lshl_b32 s13, s13, 2
    s_add_u32 s13, s13, s3           ; piece 0..39
    s_mul_i32 s16, s12, {4*PART_BYTES}
    s_lshl_b32 s17, s13, 10
    s_add_u32 s16, s16, s17
    s_add_u32 s16, s16, {PART_OFF}
    s_mov_b32 s6, {PART_OFF + 256*PART_BYTES}
    s_mov_b32 s7, 0x20000
    s_mov_b32 s10, {8*160*1024*2}
    s_mov_b32 s11, 0x20000
    ''')
    for i in range(4):
        p += I(f'buffer_load_dwordx4 v[{8+4*i}:{11+4*i}], v3, s[4:7], s16 offen{pol}')
        if i < 3: p += I(f's_add_u32 s16, s16, {PART_BYTES}')
    p += I(f'''
    s_mul_i32 s14, s13, 6554
    s_lshr_b32 s14, s14, 16          ; w
    s_mul_i32 s15, s14, 10
    s_sub_u32 s19, s13, s15          ; idx
    s_lshr_b32 s20, s19, 1           ; t
    s_and_b32 s21, s19, 1            ; m
    s_lshr_b32 s22, s12, 2
    s_and_b32 s22, s22, 7            ; b
    s_lshr_b32 s23, s12, 5           ; branch
    s_and_b32 s18, s12, 3            ; hp
    s_mul_i32 s24, s22, 160
    s_lshr_b32 s25, s14, 1
    s_mul_i32 s25, s25, 80
    s_add_u32 s24, s24, s25
    s_lshl_b32 s25, s20, 4
    s_add_u32 s24, s24, s25
    s_lshl_b32 s24, s24, 11
    s_lshl_b32 s25, s23, 10
    s_add_u32 s24, s24, s25
    s_lshl_b32 s25, s18, 8
    s_add_u32 s24, s24, s25
    s_and_b32 s25, s14, 1
    s_lshl_b32 s25, s25, 7
    s_add_u32 s24, s24, s25
    s_lshl_b32 s25, s21, 6
    s_add_u32 s24, s24, s25
    v_and_b32 v4, 15, v2
    v_lshlrev_b32 v4, 11, v4
    v_lshrrev_b32 v5, 4, v2
    v_lshl_add_u32 v4, v5, 3, v4
    ''')
    for i in range(4):
        for j in range(4):
            r = 8 + 4*i + j
            if i == 0: p += I(f'v_lshlrev_b32 v{32+2*j}, 16, v{r}\nv_and_b32 v{33+2*j}, 0xffff0000, v{r}')
            else: p += I(f'v_lshlrev_b32 v6, 16, v{r}\nv_and_b32 v7, 0xffff0000, v{r}\nv_add_f32 v{32+2*j}, v{32+2*j}, v6\nv_add_f32 v{33+2*j}, v{33+2*j}, v7')
    for j in range(4): p += I(f'v_cvt_pk_bf16_f32 v{40+j}, v{32+2*j}, v{33+2*j}')
    p += I('''buffer_store_dwordx2 v[40:41], v4, s[8:11], s24 offen
    buffer_store_dwordx2 v[42:43], v4, s[8:11], s24 offen offset:32
    L_rend:
    s_endpgm''')
    return finalize(p)

def generate(cfg, path):
    g = Gen(cfg)
    main = g.build()
    if cfg.alt:
        import copy
        c2 = copy.copy(cfg)
        for kv in cfg.alt.split('/'):
            k, v = kv.split('~'); cur = getattr(cfg, k)
            setattr(c2, k, type(cur)(int(v)) if isinstance(cur, (bool, int)) and not isinstance(cur, float) else type(cur)(v))
        m2 = Gen(c2).build()
        for x in m2: x.text = re.sub(r'\bL_(\w+)', r'LB_\1', x.text)
        main = I(f's_bitcmp1_b32 s2, {cfg.altbit}\ns_cbranch_scc1 LB_entry') + main + I('LB_entry:') + m2
    red = reduce_kernel(cfg)
    if cfg.dbgwg >= 0:
        k = [i for i, x in enumerate(red) if x.text == 'L_rend:'][0]
        red[k:k] = finalize(I(f'''s_cmp_lg_u32 s2, 0
        s_cbranch_scc1 L_rend
        s_load_dwordx2 s[8:9], s[0:1], 88
        s_mov_b32 s10, 256
        s_mov_b32 s6, 0x10000000
        s_mov_b32 s16, {STAMP_OFF}
        v_lshlrev_b32 v2, 2, v0
        buffer_load_dword v3, v2, s[4:7], s16 offen
        buffer_store_dword v3, v2, s[8:11], 0 offen'''))
    if cfg.fuse:
        s = make_file([(KN, 256, 256, 163840)], [(KN, text_of(main), 512, 102, 256)])
        s = s.replace(f'; @launch kernel={KN} grid', '; @launch grid')
    else:
        s = make_file([(KN, 256, 256, 163840), ('reduce_heads_kernel', 640, 256, 0)],
                      [(KN, text_of(main), 512, 102, 256), ('reduce_heads_kernel', text_of(red), 48, 32, 48)])
    open(path, 'w').write(s)
    open(path[:-2] + '.nst', 'w').write(str(g.nst))
    return g, main

if __name__ == '__main__':
    cfg = Cfg()
    out = sys.argv[1]
    for kv in sys.argv[2:]:
        k, v = kv.split('=')
        cur = getattr(cfg, k)
        setattr(cfg, k, type(cur)(int(v)) if isinstance(cur, (bool, int)) and not isinstance(cur, float) else type(cur)(v.replace('+', ' ')))
    g, main = generate(cfg, out)
    from collections import Counter
    print(out, 'stamps', g.nst, dict(Counter(i.kind for i in main)))
    if cfg.verbose:
        for l in g.log: print(*l)
```

```python
import sys, math, struct, re
from asmlib import *
from gen_common import make_file, KN

class Cfg:
    kpol = 'nt'; vpol = 'nt'; kpolB = '='; vpolB = '='; wpol = ''; stpol = 'sc1'; rdpol = ''; pfpol = ''
    stamps = False; stset = 'main'; clk = 0
    codepf = 1
    kv_pro = 4
    kv_end = 13
    l2pf = 1; pfit = 11; l2pfq = 0
    nstg = 3
    late = 1
    early5 = 1
    rot = 2
    vsp = 4
    kveven = 1
    thr = 8.0
    loop = 1
    nomem = ''
    verbose = 0
    dbgwg = -1
    normlast = 105
    fuse = 1
    outpol = ''
    oldpol = 'sc1'
    slp = 2
    pearly = 0
    c0gap = 66
    pdist = 10
    lastn = 2
    opol = 'sc1'
    zgap = 2
    pgap = 30
    maxpoll = 200000
    krot = 0
    ccap = 2
    tcap = 2
    lend = 10
    dlo = 24
    dhi = 80
STAMP_OFF = 0x8000000
PART_BYTES = 40960
PART_OFF = 0x2000000
OX_BYTES = 327680
FLAG_OFF = 0x3000000
def f32(x): return '0x%08x' % struct.unpack('<I', struct.pack('<f', x))[0]

SX, SWQ, SK, SV, SWO, SWS = 's[4:7]', 's[8:11]', 's[12:15]', 's[16:19]', 's[20:23]', 's[24:27]'
sW, sHH, sQH = 's3', 's28', 's29'
sKVOFF, sKVLDS, sWQOFF, sXOFF, sXLDS, sWO0, sWO1, sWOLDS, sPW = 's30', 's31', 's32', 's33', 's34', 's35', 's36', 's37', 's38'
sC, sT = 's40', 's41'
sT0, sT1, sT2, sT3 = 's42', 's43', 's44', 's45'
sRET = 's[60:61]'
sRB, sDB, sKO, sVO, sIT = 's46', 's47', 's52', 's53', 's50'
sB, sHP, sH0 = 's48', 's49', 's51'
sWQC, sXC, sWQB, sXB = 's88', 's89', 's90', 's91'
SOX, SDB = 's[76:79]', 's[80:83]'
sCL, sXCC, sRDY, sOW, sOCT = 's92', 's93', 's94', 's95', 's39'
sPO = ['s64', 's65', 's66', 's67']; sPWo = ['s68', 's69', 's70', 's71']
sW4K, sW5K, sCNT, sWB = 's96', 's97', 's98', 's99'
sKR, sKC = 's35', 's36'
sOLD = ['s72', 's73', 's74', 's75']
vFOFF = 215; vFOFF2 = 214
SD2 = 's[84:87]'; sOLD2 = ['s37', 's54', 's55', 's100']; sBLK = 's101'; SOUT = 's[12:15]'
STAMP0 = 62
def O(t, dt): return (t * 8 + dt) * 4
S0 = 160; P0 = 200; NM4 = 220
def Sreg(t, kt): return S0 + (t * 2 + kt) * 4
def Preg(t): return P0 + 4 * t
vMX0, vMX1, vTA, vTB = 240, 241, 242, 243
vK, vVE, vVO, aK, aVE = 244, 245, 246, 247, 248
vKVA, vKVB, vLANE, vWOV, vOE = 249, 250, 251, 252, 253
vWQA, vWQB, vX0, vX1 = 200, 201, 202, 203
vQE = [204, 205, 206]; vQO = [207, 208, 209]; vXR = [210, 211]
vWA = [212, 213]
vWA1 = 254
vRL = 240
vOEs, vOOs = 245, 246
vEX1, vEX2, vL16 = 247, 248, 254
vEXR1, vEXR2, vOB0, vOB1, vPOLL, vFLAG, vWEr, vWOr, vPOFF = 16, 17, 18, 19, 20, 21, 22, 23, 24
aVF, aAF, aKF, aL, aONE, aQ = 0, 80, 104, 136, 156, 160
aPART = 0; aA0 = 160
def Qf(ks, t): return aQ + (t * 4 + ks) * 4
def vr(b, n=4): return f'v[{b}:{b+n-1}]'
def ar(b, n=4): return f'a[{b}:{b+n-1}]'
SLOT = 32768
WQBUF = [147456, 65536, 102400]
XBUF = [81920, 126976]
WOB = [16384, 0, 32768, 49152]
OB = [65536, 86016, 106496, 126976]
aA1 = 80
aSET = [160, 196]
MF = 'v_mfma_f32_16x16x32_bf16'

def FS(units, lo=-1, hi=10**6, step=None):
    return [F(u, lo if step is None else int(lo + k * step), hi) for k, u in enumerate(units)]

class Gen:
    def __init__(self, cfg):
        self.c = cfg; self.p = []; self.nst = 0; self.stubs = []; self.log = []
    def e(self, x, tag=None):
        self.p += I(x, tag) if isinstance(x, str) else x
    def stamp_i(self, grp='all'):
        if self.c.stamps and grp in ('all', self.c.stset):
            self.nst += 1
            return I(f's_mem{"" if self.c.clk else "real"}time s[62:63]\ns_waitcnt lgkmcnt(0)\nv_writelane_b32 v255, s62, {self.nst - 1}')
        return []
    def stamp(self, *grps):
        for g in grps or ('all',): self.e(self.stamp_i(g))
    def sch(self, name, main, streams, **kw):
        v = []
        self.e(sched(main, streams, verbose=v, **kw))
        self.log.append((name,) + v[0])
    @staticmethod
    def pol(p): return (' ' + p) if p else ''
    def kvoff(self, tile, dst=sT2):
        if not self.c.krot: return f's_add_u32 {dst}, {sKVOFF}, {tile*8192}'
        return f's_add_u32 {dst}, {sKR}, {tile*8192}\ns_and_b32 {dst}, {dst}, 0x1e000\ns_or_b32 {dst}, {dst}, {sKVOFF}'
    def kvo(self, tile):
        u = I(self.kvoff(tile))
        for x in u: x.tag = ('kvo', tile)
        return u
    def kvp(self, srd): return self.pol(self.c.kpol if srd == SK else self.c.vpol)
    def kv_dma(self, srd, tile, lds, tag):
        us = []
        for k in range(4):
            u = I(f's_add_u32 m0, {sKVLDS}, {lds}') + self.kvo(tile)
            u += I(f'buffer_load_dwordx4 v{vKVA if k % 2 == 0 else vKVB}, {srd}, {sT2} offen offset:{k*1024}{self.kvp(srd)} lds', tag=tag)
            us.append(u)
        return us
    def kv_stage(self, st):
        b = (st % 5) * SLOT
        return (self.kv_dma(SK, st + 1, b, f'kv{st}') if st < 15 else []) + self.kv_dma(SV, st, b + 16384, f'kv{st}')
    def kv_stage_dyn(self, st):
        us = []
        for part in range(2):
            for k in range(4):
                u = I(f's_add_u32 m0, {sDB}, {part*16384}') if k == 0 else []
                if k == 0: us.append(u); u = []
                u += I(f'buffer_load_dwordx4 v{vKVA if k % 2 == 0 else vKVB}, {SK if part == 0 else SV}, {sKO if part == 0 else sVO} offen offset:{k*1024}{self.kvp(SK if part == 0 else SV)} lds', tag=f'kv{st}')
                us.append(u)
        return us
    def stg(self, st, part, k):
        if st >= 6: return ar(32 + ((st - 6)*8 + part*4 + k)*4)
        return ar(160 + ((st - 2)*8 + part*4 + k)*4)
    def kv_reg(self, st, parts=(0, 1)):
        us = []
        for part in parts:
            srd, tile = (SK, st + 1) if part == 0 else (SV, st)
            for k in range(4):
                us.append(self.kvo(tile) +
                          I(f'buffer_load_dwordx4 {self.stg(st, part, k)}, v{vKVA if k % 2 == 0 else vKVB}, {srd}, {sT2} offen offset:{k*1024}{self.kvp(srd)}'))
        return us
    def kv_drain(self, st, parts=(0, 1)):
        us = []
        for part in parts:
            for k in range(4):
                adr, off = {2: (vWA[0], 0), 3: (vWA[0], SLOT), 4: (vWA[1], 0), 6: (vWA1, 0), 7: (vWA1, SLOT)}[st]
                off += part*16384
                us.append(I(f'ds_write_b128 v{adr}, {self.stg(st, part, k)} offset:{off + k*1024}', tag=f'kv{st}'))
        return us
    def wq_next(self, j):
        if self.c.rot == 2 and j < 2: return I(f's_add_u32 {sWQB}, {sWQOFF}, {j*262144}')
        wrap = f's_cmp_eq_u32 {sWQC}, 0x400000\ns_cselect_b32 {sWQC}, 0x80000, {sWQC}' if self.c.rot == 2 else f's_and_b32 {sWQC}, {sWQC}, 0x3fffff'
        return I(f's_add_u32 {sWQB}, {sWQC}, {sWQOFF}\ns_add_u32 {sWQC}, {sWQC}, 262144\n{wrap}')
    def x_next(self, J):
        if self.c.rot == 2 and J < 1: return I(f's_add_u32 {sXB}, {sXOFF}, 0')
        wrap = f's_cmp_eq_u32 {sXC}, 1024\ns_cselect_b32 {sXC}, 128, {sXC}' if self.c.rot == 2 else f's_and_b32 {sXC}, {sXC}, 1023'
        return I(f's_add_u32 {sXB}, {sXC}, {sXOFF}\ns_add_u32 {sXC}, {sXC}, 128\n{wrap}')
    def wq_units(self, j):
        us = []
        for k in range(4):
            u = I(f's_add_u32 m0, {sKVLDS}, {WQBUF[j % 3]}\ns_add_u32 {sT0}, {sWQB}, {k*32768 - k*1024}')
            u += I(f'buffer_load_dwordx4 v{vWQA if k < 2 else vWQB}, {SWQ}, {sT0} offen offset:{k*1024}{self.pol(self.c.wpol)} lds', tag=f'wq{j}')
            us.append(u)
        if j == 0: us[0] = self.wq_next(0) + us[0]
        if j < 15: us[-1] += self.wq_next(j + 1)
        return us
    def x_units(self, J):
        us = []
        for k in range(5):
            im = (k % 4) * 1024
            u = I(f's_add_u32 m0, {sXLDS}, {XBUF[J % 2] + (k // 4)*4096}\ns_add_u32 {sT0}, {sXB}, {k*8192 - im}')
            u += I(f'buffer_load_dwordx4 v{vX0 if k % 2 == 0 else vX1}, {SX}, {sT0} offen offset:{im}{self.pol(self.c.wpol)} lds', tag=f'x{J}')
            us.append(u)
        if J == 0: us[0] = self.x_next(0) + us[0]
        if J < 7: us[-1] += self.x_next(J + 1)
        return us
    def wo_half(self, base, const, lds, tag):
        us = []
        for k in range(4):
            u = I(f's_add_u32 m0, {sW4K}, {lds}\ns_add_u32 {sT0}, {base}, {const + k*3072}')
            u += I(f'buffer_load_dwordx4 v{vKVA if k % 2 == 0 else vKVB}, {SWO}, {sT0} offen offset:{k*1024}{self.pol(self.c.wpol)} lds', tag=tag)
            us.append(u)
        return us
    def wo_own(self, h):
        us = self.wo_half(sPWo[0], h*131072, (1 + h)*SLOT, 'wown') + self.wo_half(sPWo[0], h*131072 + 65536, (1 + h)*SLOT + 16384, 'wown')
        if h == 0: us[0] = I(f'v_mov_b32 v{vKVA}, v{vWOV}\nv_xor_b32 v{vKVB}, 32, v{vWOV}') + us[0]
        return us
    def wo_rem(self, u):
        return self.wo_half(sPWo[1 + u // 4], ((u >> 1) & 1)*131072 + (u & 1)*65536, WOB[u % 4], f'u{u}')
    def o_rem(self, u):
        us = []
        for k in range(5):
            x = I(f's_add_u32 m0, {sW5K}, {OB[u % 4] + (k // 4)*4096}\ns_add_u32 {sT2}, {sPO[1 + u // 4]}, {((u >> 1) & 1)*40960 + (u & 1)*20480 + (k // 4)*4096}')
            x += I(f'buffer_load_dwordx4 v{vL16}, {SOX}, {sT2} offen offset:{(k % 4)*1024}{self.pol(self.c.oldpol)} lds', tag=f'u{u}')
            us.append(x)
        return us
    def l2pf_q(self):
        pol = self.pol(self.c.pfpol); L = f'v{vLANE}'
        return [I(f'v_lshrrev_b32 v214, 3, {L}\nv_and_b32 v215, 7, {L}'),
                I(f'v_lshlrev_b32 v214, 13, v214\nv_lshl_add_u32 v214, v215, 6, v214'),
                I(f's_lshl_b32 {sT3}, {sB}, 19\ns_lshl_b32 {sT1}, {sW}, 17'),
                I(f's_add_u32 {sT3}, {sT3}, {sT1}\ns_lshl_b32 {sT1}, {sH0}, 8'),
                I(f's_add_u32 {sT3}, {sT3}, {sT1}\nbuffer_load_dword a138, v214, {SWQ}, {sT3} offen{pol}'),
                I(f's_add_u32 {sT3}, {sT3}, 65536\nbuffer_load_dword a139, v214, {SWQ}, {sT3} offen{pol}'),
                I(f'v_lshlrev_b32 v215, 6, {L}\ns_mul_i32 {sT3}, {sHP}, 40960'),
                I(f's_mul_i32 {sT1}, {sW}, 10240\ns_add_u32 {sT3}, {sT3}, {sT1}'),
                I(f'buffer_load_dword a140, v215, {SX}, {sT3} offen{pol}'),
                I(f's_add_u32 {sT3}, {sT3}, 4096\nbuffer_load_dword a141, v215, {SX}, {sT3} offen{pol}'),
                I(f's_add_u32 {sT3}, {sT3}, 4096\nbuffer_load_dword a142, v215, {SX}, {sT3} offen{pol}')]
    def l2pf_wo(self):
        pol = self.pol(self.c.pfpol)
        return [I(f'v_lshrrev_b32 v{vTA}, 2, v{vLANE}\nv_and_b32 v{vTB}, 3, v{vLANE}'),
                I(f'v_lshlrev_b32 v{vTA}, 10, v{vTA}\nv_lshl_add_u32 v{vTA}, v{vTB}, 6, v{vTA}'),
                I(f's_lshl_b32 {sT3}, {sOCT}, 20\ns_lshl_b32 {sT1}, {sB}, 17'),
                I(f's_add_u32 {sT3}, {sT3}, {sT1}\ns_lshl_b32 {sT1}, {sW}, 15'),
                I(f's_add_u32 {sT3}, {sT3}, {sT1}\ns_lshl_b32 {sT1}, {sHP}, 8'),
                I(f's_add_u32 {sT3}, {sT3}, {sT1}\nbuffer_load_dword a240, v{vTA}, {SWO}, {sT3} offen{pol}'),
                I(f's_add_u32 {sT3}, {sT3}, 16384\nbuffer_load_dword a241, v{vTA}, {SWO}, {sT3} offen{pol}')]
    def dma_stream(self, units, lo, hi, slack=4):
        fs = []; n = len(units); prev = {}
        for k, u in enumerate(units):
            l = lo + (k * (hi - lo + 1)) // n
            after = False
            for x in u:
                c = 1
                if x.op == 's_cselect_b32' or x.kind in ('branch', 'label'):
                    fs[-1].ins.append(x); fs[-1].cost += x.cost; continue
                if isinstance(x.tag, tuple) and self.c.krot:
                    if prev.get('kvo') == x.tag: c = 0
                    if x.op == 's_or_b32': prev['kvo'] = x.tag
                elif x.kind == 'salu' and x.op == 's_add_u32' and len(x.writes) == 1:
                    w = next(iter(x.writes))
                    if prev.get(w) == x.text and w not in x.reads: c = 0
                    prev[w] = x.text
                if x.kind not in ('salu', 'valu'): fs.append(F([x], l, l + slack, cost=c)); after = True
                elif after: fs.append(F([x], l, 10**6, cost=c))
                else: fs.append(F([x], l - 3, l, cost=c))
        return fs
    def peer_setup(self):
        o = [f's_lshl_b32 {sT3}, {sOCT}, 20', f's_lshl_b32 {sT2}, {sHP}, 8', f's_add_u32 {sT3}, {sT3}, {sT2}',
             f's_lshl_b32 {sT2}, {sW}, 14', f's_add_u32 {sT3}, {sT3}, {sT2}']
        for r in range(4):
            o += [f's_add_u32 {sT2}, {sHP}, {r}', f's_and_b32 {sT2}, {sT2}, 3', f's_mul_i32 {sPO[r]}, {sT2}, 81920', f's_add_u32 {sPO[r]}, {sPO[r]}, {sW5K}',
                  f's_lshl_b32 {sPWo[r]}, {sT2}, 18', f's_add_u32 {sPWo[r]}, {sPWo[r]}, {sT3}']
        o += [f's_getreg_b32 {sXCC}, hwreg(HW_REG_XCC_ID)', f's_and_b32 {sXCC}, {sXCC}, 15', f's_add_u32 {sXCC}, {sXCC}, 1']
        return '\n'.join(o)
    def rot_setup(self):
        if self.c.rot != 2: return f's_and_b32 {sXC}, {sXC}, {7 if self.c.rot else 0}'
        return f's_cmp_ge_u32 {sXC}, 7\ns_cselect_b32 {sWQC}, 7, 0\ns_sub_u32 {sXC}, {sXC}, {sWQC}\ns_add_u32 {sXC}, {sXC}, 1'
    def prologue(self):
        e = self.e; L = f'v{vLANE}'
        e(f'''
        s_cmp_ge_u32 s2, 256
        s_cbranch_scc1 L_end
        s_load_dwordx16 s[64:79], s[0:1], 0
        s_load_dwordx4 s[80:83], s[0:1], 64
        s_load_dwordx2 s[24:25], s[0:1], 96
        v_lshrrev_b32 v1, 6, v0
        v_and_b32 {L}, 63, v0
        v_readfirstlane_b32 {sW}, v1
        s_and_b32 s46, s2, 7
        s_lshr_b32 s47, s2, 3
        s_lshr_b32 {sB}, s47, 2
        s_and_b32 {sHP}, s47, 3
        s_and_b32 {sOCT}, s46, 3
        s_lshl_b32 s50, {sOCT}, 2
        s_add_u32 s50, s50, {sHP}
        s_lshl_b32 {sH0}, s50, 1
        s_lshr_b32 s52, s46, 2            ; branch
        s_and_b32 {sHH}, {sW}, 1
        s_lshr_b32 {sQH}, {sW}, 1
        v_and_b32 v2, 3, {L}
        v_lshlrev_b32 v2, 4, v2           ; cc*16
        v_lshrrev_b32 v3, 4, {L}          ; g
        v_bfe_u32 v4, {L}, 2, 2           ; r
        v_lshl_add_u32 v5, v3, 6, v2
        v_lshl_add_u32 v{vKVA}, v4, 8, v5
        v_xor_b32 v{vKVB}, 32, v{vKVA}
        v_lshl_add_u32 v{vWQA}, v4, 13, v5
        v_xor_b32 v{vWQB}, 16, v{vWQA}
        v_lshrrev_b32 v6, 5, {L}
        v_bfe_u32 v7, {L}, 2, 3
        v_lshl_add_u32 v8, v6, 6, v2
        v_lshl_add_u32 v8, v7, 10, v8
        s_lshl_b32 {sT0}, {sHH}, 5
        v_xor_b32 v{vX0}, {sT0}, v8
        v_xor_b32 v{vX1}, 32, v{vX0}
        s_lshl_b32 {sT0}, {sQH}, 12
        s_lshl_b32 {sKVLDS}, {sHH}, 13
        s_add_u32 {sKVLDS}, {sKVLDS}, {sT0}
        s_lshl_b32 {sKVOFF}, {sHH}, 17
        s_add_u32 {sKVOFF}, {sKVOFF}, {sT0}
        s_add_u32 {sT1}, {sH0}, {sHH}
        s_lshl_b32 {sWQOFF}, {sT1}, 8
        s_lshl_b32 {sT0}, {sQH}, 17
        s_add_u32 {sWQOFF}, {sWQOFF}, {sT0}
        s_mul_i32 {sXOFF}, {sW}, {5*8192}
        s_mul_i32 {sXLDS}, {sW}, {5*1024}
        s_lshl_b32 {sXC}, {sHP}, 1
        s_add_u32 {sXC}, {sXC}, {sB}
        {self.rot_setup()}
        s_lshl_b32 {sWQC}, {sXC}, 19
        s_lshl_b32 {sXC}, {sXC}, 7
        s_mul_i32 {sKR}, s2, {self.c.krot}
        s_add_u32 {sKR}, {sKR}, s47
        s_lshl_b32 {sKR}, {sKR}, 13
        s_mul_i32 s53, {sB}, 163840
        s_lshl_b32 s54, {sB}, 5
        s_add_u32 s54, s54, {sH0}
        s_lshl_b32 s54, s54, 17
        s_mov_b32 s6, 163840
        s_mov_b32 s7, 0x20000
        s_mov_b32 s10, 0x400000
        s_mov_b32 s11, 0x20000
        s_mov_b32 s14, 0x40000
        s_mov_b32 s15, 0x20000
        s_mov_b32 s18, 0x40000
        s_mov_b32 s19, 0x20000
        s_cmp_eq_u32 s52, 0
        s_cselect_b64 s[4:5], s[64:65], s[74:75]
        s_cselect_b64 s[8:9], s[70:71], s[80:81]
        s_cselect_b64 s[12:13], s[66:67], s[76:77]
        s_cselect_b64 s[16:17], s[68:69], s[78:79]
        s_cselect_b64 s[20:21], s[72:73], s[82:83]
        s_add_u32 s4, s4, s53
        s_addc_u32 s5, s5, 0
        ''')
        self.stamp()
        for u in self.x_units(0) + self.wq_units(0) + self.wq_units(1): e(u)
        e(f'''
        s_add_u32 s12, s12, s54
        s_addc_u32 s13, s13, 0
        s_add_u32 s16, s16, s54
        s_addc_u32 s17, s17, 0
        ''')
        self.kvq = self.kv_dma(SK, 0, SLOT + 16384, 'k0') + self.kv_stage(0) + self.kv_dma(SK, 2, SLOT, 'kv1')
        for st in (2, 3, 4)[:self.c.nstg]: self.kvq += self.kv_reg(st)
        for u in self.x_units(1) + self.wq_units(2): e(u)
        for _ in range(self.c.kv_pro): e(self.kvq.pop(0))
        if self.c.codepf:
            e(f'''s_getpc_b64 s[84:85]
            L_pc0:
            s_mov_b32 s86, L_codeend-L_pc0
            s_mov_b32 s87, 0x20000
            v_lshlrev_b32 v22, 7, v0
            buffer_load_dword a136, v22, s[84:87], 0 offen
            s_mov_b32 {sT0}, 32768
            buffer_load_dword a137, v22, s[84:87], {sT0} offen''')
        e(f'''
        s_mul_i32 {sPW}, {sW}, 10240
        s_lshl_b32 {sW4K}, {sW}, 12
        s_mul_i32 {sW5K}, {sW}, 5120
        s_mov_b32 {sC}, {f32(128 ** -0.5 * math.log2(math.e))}
        s_mov_b32 {sT}, {f32(self.c.thr)}
        s_lshl_b32 s55, s52, 3
        s_add_u32 s55, s55, {sB}          ; group = branch*8 + b
        s_lshl_b32 {sCL}, s55, 2
        s_add_u32 {sT2}, {sCL}, {sHP}
        s_mov_b32 {sBLK}, {sT2}
        s_add_u32 {sCL}, {sCL}, {sOCT}    ; cluster = group*4 + octet
        s_lshl_b32 {sT2}, {sT2}, 2
        s_add_u32 {sT2}, {sT2}, {sOCT}
        s_mul_i32 {sT2}, {sT2}, {PART_BYTES}
        s_add_u32 {sT2}, {sT2}, {PART_OFF}
        s_mul_i32 s55, {sCL}, {OX_BYTES}
        s_mov_b32 s22, 0x400000
        s_mov_b32 s23, 0x20000
        s_mov_b64 s[56:57], s[24:25]
        s_add_u32 s76, s24, s55
        s_addc_u32 s77, s25, 0
        s_mov_b32 s78, {OX_BYTES}
        s_mov_b32 s79, 0x20000
        s_add_u32 s24, s24, {sT2}
        s_addc_u32 s25, s25, 0
        s_mov_b32 s26, {PART_BYTES}
        s_mov_b32 s27, 0x20000
        s_lshl_b32 {sCL}, {sCL}, 7
        s_add_u32 {sCL}, {sCL}, {FLAG_OFF}
        s_add_u32 s80, s56, {sCL}
        s_addc_u32 s81, s57, 0
        s_mov_b32 s82, 16
        s_mov_b32 s83, 0x20000
        v_add_u32 v24, {sHP}, {L}
        v_and_b32 v24, 3, v24
        v_lshlrev_b32 v24, 2, v24
        buffer_load_dword v{vFOFF}, v24, {SDB}, 0 offen sc0 sc1
        s_lshl_b32 {sCL}, {sHP}, 2
        s_mov_b32 {sWB}, 0
        s_lshl_b32 {sT2}, {sBLK}, 7
        s_add_u32 {sT2}, {sT2}, {FLAG_OFF + 8192}
        s_add_u32 s84, s56, {sT2}
        s_addc_u32 s85, s57, 0
        s_mov_b32 s86, 16
        s_mov_b32 s87, 0x20000
        v_and_b32 v24, 3, {L}
        v_lshlrev_b32 v24, 2, v24
        buffer_load_dword v{vFOFF2}, v24, {SD2}, 0 offen sc0 sc1
        s_mul_i32 {sOW}, {sHP}, 81920
        s_mul_i32 {sT2}, {sHH}, 40960
        s_add_u32 {sOW}, {sOW}, {sT2}
        s_mul_i32 {sT2}, {sQH}, 10240
        s_add_u32 {sOW}, {sOW}, {sT2}
        {self.peer_setup()}
        v_and_b32 v9, 1, v3
        v_lshlrev_b32 v9, 5, v9           ; 32*(g&1)
        v_lshl_add_u32 v{vWOV}, v4, 10, v5
        v_and_b32 v10, 15, {L}
        v_and_b32 v11, 3, {L}
        v_lshrrev_b32 v12, 2, v10
        v_and_b32 v13, 1, v12
        v_lshlrev_b32 v13, 5, v13
        v_lshlrev_b32 v14, 4, v3
        v_xor_b32 v13, v13, v14
        v_lshl_add_u32 v13, v11, 6, v13
        v_lshl_add_u32 v13, v12, 10, v13
        s_lshl_b32 {sT1}, {sHH}, 13
        v_add_u32 v{aK}, {sT1}, v13
        v_lshl_add_u32 v15, v11, 3, v9
        v_lshl_add_u32 v15, v4, 6, v15
        v_lshl_add_u32 v16, v3, 10, v15
        v_add_u32 v{aVE}, {sT1}, v16
        v_lshrrev_b32 v16, 1, v9          ; 16*(g&1)
        v_lshlrev_b32 v22, 4, v11         ; 16*c4
        v_xor_b32 v16, v16, v22
        v_and_b32 v22, 1, v11
        v_lshl_add_u32 v16, v22, 3, v16   ; + 8*(c4&1)
        v_lshl_add_u32 v16, v4, 6, v16    ; + r*64
        v_lshl_add_u32 v16, v3, 11, v16   ; + g*2048
        v_add_u32 v16, {sT1}, v16
        v_add_u32 v{vQE[0]}, {WQBUF[0]}, v16
        v_add_u32 v{vQE[1]}, {WQBUF[1]}, v16
        v_add_u32 v{vQE[2]}, {WQBUF[2]}, v16
        v_xor_b32 v{vQO[0]}, 8, v{vQE[0]}
        v_xor_b32 v{vQO[1]}, 8, v{vQE[1]}
        v_xor_b32 v{vQO[2]}, 8, v{vQE[2]}
        s_mov_b32 vcc_lo, 0xffff0000
        s_mov_b32 vcc_hi, 0xffff0000
        v_lshrrev_b32 v17, 3, v10
        v_lshlrev_b32 v18, 5, v17
        v_xor_b32 v18, v18, v14
        v_and_b32 v19, 7, {L}
        v_lshl_add_u32 v18, v19, 6, v18
        v_lshl_add_u32 v18, v17, 10, v18
        s_mul_i32 {sT2}, {sQH}, 10240
        v_add_u32 v18, {sT2}, v18
        v_add_u32 v{vXR[0]}, {XBUF[0]}, v18
        v_add_u32 v{vXR[1]}, {XBUF[1]}, v18
        v_lshl_add_u32 v20, v3, 10, v15
        s_lshl_b32 {sT2}, {sHH}, 9
        v_add_u32 v{vOE}, {sT2}, v20
        v_lshlrev_b32 v{vWA1}, 4, {L}
        v_add_u32 v{vWA1}, {sKVLDS}, v{vWA1}
        v_add_u32 v{vWA[0]}, 65536, v{vWA1}
        v_add_u32 v{vWA[1]}, 131072, v{vWA1}
        v_add_u32 v{vWA1}, {SLOT}, v{vWA1}
        v_mov_b32 v21, 0x3f803f80
        v_accvgpr_write_b32 a{aONE}, v21
        v_accvgpr_write_b32 a{aONE+1}, v21
        v_accvgpr_write_b32 a{aONE+2}, v21
        v_accvgpr_write_b32 a{aONE+3}, v21
        ''')
    def q_reads(self, j):
        st = (j & 1) * 52
        xr = [I(f'ds_read_b128 {ar(st + 32 + 4*t)}, v{vXR[(j >> 1) & 1]} offset:{t*2048 + (j & 1)*512}') for t in range(5)]
        aa = []
        for dt in range(8):
            for u in range(2):
                adr = (vQE if dt % 2 == 0 else vQO)[j % 3]
                aa.append(I(f'ds_read_b64_tr_b16 {ar(st + 4*dt + 2*u, 2)}, v{adr} offset:{u*1024 + (dt >> 1)*256}'))
        return aa[:2] + xr + aa[2:]
    def k_reads(self, base, tag='kr'):
        us = [I(f'v_add_u32 v{vK}, {base}, v{aK}')]
        for ks in range(4):
            for kt in range(2):
                us.append(I(f'ds_read_b128 {ar(aKF + (kt*4+ks)*4)}, v{vK} offset:{kt*4096 + ks*256}', tag=tag))
        return us
    def v_reads(self, base, dst=aVF, tag='vr'):
        pre = [I(f'v_add_u32 v{vVE}, {base}, v{aVE}'), I(f'v_xor_b32 v{vVO}, 32, v{vVE}')]
        us = []
        for dt in range(8):
            for h in range(2):
                us.append((dt, I(f'ds_read_b64_tr_b16 {ar(dst + 4*dt + 2*h, 2)}, v{vVE if dt % 2 == 0 else vVO} offset:{16384 + h*4096 + (dt >> 1)*256}', tag=tag)))
        return pre, us
    def q_mfmas(self, j, touter=False):
        st = (j & 1) * 52; m = []
        order = [(t, dt) for t in range(5) for dt in range(8)] if touter else [(t, dt) for dt in range(8) for t in range(5)]
        for t, dt in order:
            m += I(f'{MF} {vr(O(t, dt))}, {ar(st + 4*dt)}, {ar(st + 32 + 4*t)}, {vr(O(t, dt)) if j else "0"}')
        return m
    def s_mfmas(self, zero=False):
        m = []
        for t in range(5):
            for ks in range(4):
                for kt in range(2):
                    c = vr(Sreg(t, kt)) if ks else ('0' if zero else vr(NM4 + 4*t))
                    m += I(f'{MF} {vr(Sreg(t, kt))}, {ar(aKF + (kt*4+ks)*4)}, {ar(Qf(ks, t))}, {c}')
        m[0] = waittag('kr') + [m[0]]
        return m
    def pv_mfmas(self, first=False, vf=aVF, ones_first=True):
        ones = [I(f'{MF} {ar(aL + 4*t)}, {ar(aONE)}, {vr(Preg(t))}, {"0" if first else ar(aL + 4*t)}')[0] for t in range(5)]
        m = list(ones) if ones_first else []
        for t in range(5):
            if not ones_first: m.append(ones[t])
            for dt in range(8):
                m += I(f'{MF} {vr(O(t, dt))}, {ar(vf + 4*dt)}, {vr(Preg(t))}, {"0" if first else vr(O(t, dt))}')
        return m
    def q_convert(self, t):
        us = []
        for ks in range(4):
            x = O(t, 2*ks); y = x + 4
            for k in range(8): us.append(I(f'v_mul_f32 v{x+k}, {sC}, v{x+k}'))
        for ks in range(4):
            x = O(t, 2*ks); y = x + 4
            for s in (f'v{x}, v{x}, v{x+1}', f'v{y}, v{y}, v{y+1}', f'v{x+1}, v{x+2}, v{x+3}', f'v{y+1}, v{y+2}, v{y+3}'):
                us.append(I('v_cvt_pk_bf16_f32 ' + s))
        for ks in range(4):
            x = O(t, 2*ks); y = x + 4
            for k in range(2):
                us.append(I(f'v_cndmask_b32 v{x+2+k}, v{x+k}, v{y+k}, vcc'))
                us.append(I(f'v_cndmask_b32 v{y+2+k}, v{y+k}, v{x+k}, vcc'))
        for ks in range(4):
            x = O(t, 2*ks); y = x + 4
            for k, r in enumerate((x+2, x+3, y+2, y+3)): us.append(I(f'v_accvgpr_write_b32 a{Qf(ks, t)+k}, v{r}'))
        return us
    def exp_units(self, t):
        b = Sreg(t, 0)
        return [I(f'v_exp_f32 v{b+k}, v{b+k}') for k in range(8)], [I(f'v_cvt_pk_bf16_f32 v{Preg(t)+k}, v{b+2*k}, v{b+2*k+1}') for k in range(4)]
    def rowmax(self, m, c, b):
        return I(f'''v_max3_f32 v{m}, v{b}, v{b+1}, v{b+2}
        v_max3_f32 v{c}, v{b+3}, v{b+4}, v{b+5}
        v_max3_f32 v{m}, v{m}, v{b+6}, v{b+7}
        v_max_f32 v{m}, v{m}, v{c}
        v_mov_b32 v{c}, v{m}
        v_permlane32_swap_b32 v{m}, v{c}
        v_max_f32 v{m}, v{m}, v{c}
        v_mov_b32 v{c}, v{m}
        v_permlane16_swap_b32 v{m}, v{c}
        v_max_f32 v{m}, v{m}, v{c}''')
    def softmax_streams(self, i, ck, exp_dead, cvt_lo):
        mx = []
        for t in range(5):
            b = Sreg(t, 0)
            for k in range(4):
                m = vMX0 if k % 2 == 0 else vMX1
                if t == 0 and k < 2: mx.append(I(f'v_max_f32 v{m}, v{b+2*k}, v{b+2*k+1}'))
                else: mx.append(I(f'v_max3_f32 v{m}, v{b+2*k}, v{b+2*k+1}, v{m}'))
        mx.append(I(f'v_max_f32 v{vMX0}, v{vMX0}, v{vMX1}'))
        st = FS(mx + [I(f'v_cmp_lt_f32 vcc, {sT}, v{vMX0}')], -1, ck - 1)
        st.append(F(I(f's_cbranch_vccnz L_stub{i}\nL_ret{i}:'), ck, ck, cost=1))
        self.stubs.append(i)
        for t in range(5):
            ex, cv = self.exp_units(t)
            st += FS(ex, -1, exp_dead(t)) + FS(cv, cvt_lo(t), exp_dead(t))
        return st
    def q_phase(self):
        e = self.e
        e(waittag('x0', 'wq0')); e('s_barrier'); self.stamp('q')
        for u in self.q_reads(0): e(u)
        e(waittag('wq1')); e('s_waitcnt lgkmcnt(0)\ns_barrier')
        for j in range(15):
            d = []
            if j + 3 < 16: d += self.wq_units(j + 3)
            if j % 2 == 1 and (j - 1) // 2 + 2 < 8: d += self.x_units((j - 1) // 2 + 2)
            ke = self.c.kv_end
            if self.c.kveven:
                left = len([k for k in range(j, ke) if k % 2 == 0 or k >= 13])
                n = 0 if (j % 2 == 1 and j < 13) else (-(-len(self.kvq) // max(1, left)))
            else:
                n = -(-len(self.kvq) // max(1, ke - j)) if j < ke else len(self.kvq)
            d += [self.kvq.pop(0) for _ in range(min(n, len(self.kvq)))]
            ds = self.dma_stream(d, 1, min(39, self.c.vsp * len(d)), slack=1) if d else []
            streams = [FS(self.q_reads(j + 1), 0, 30), ds]
            if j == 0 and self.c.l2pfq: streams.append(FS(self.l2pf_q(), 22, 39))
            if j == 3: streams.append(FS([I(f'v_readlane_b32 {sOLD[r]}, v{vFOFF}, {r}') for r in range(4)] + [I(f'v_readlane_b32 {sOLD2[r]}, v{vFOFF2}, {r}') for r in range(4)], 30, 39))
            if j == 14 and self.c.nstg >= 1: streams.append(FS(self.kv_drain(2), 20, 39, step=2))
            if j == 13 and self.c.nstg < 1: streams.append(self.dma_stream(self.kv_stage(2), 4, 36))
            self.sch(f'q{j}', self.q_mfmas(j), streams)
            tags = []
            if j + 2 < 16:
                tags.append(f'wq{j+2}')
                if (j + 2) % 2 == 0: tags.append(f'x{(j+2)//2}')
            if j == 14: tags += ['k0', 'kv0']
            e(waittag(*tags)); e('s_waitcnt lgkmcnt(0)\ns_barrier'); self.stamp('q')
    def q_to_attn(self):
        main = self.q_mfmas(15, touter=True) + self.s_mfmas(zero=True) + self.s_mfmas()
        conv = []
        for t in range(5):
            cu = self.q_convert(t)
            conv += FS(cu, 8*t + 9, 39 + 8*t)
        drains = FS(self.kv_drain(3), 8, 24, step=2) if self.c.nstg >= 2 else []
        if self.c.nstg >= 3: drains += FS(self.kv_drain(4), 24, 40, step=2)
        for f in conv:
            w = [r for x in f.ins for r in x.writes if r[0] == 'a']
            if w and int(w[0][1:]) >= 192: f.lo = max(f.lo, 26 if int(w[0][1:]) < 224 else 42)
        init = []
        for t in range(5):
            b = Sreg(t, 0); lo = 40 + 8*t + 9; hi = 79 + 8*t
            u = [[x] for x in self.rowmax(vMX0, vMX1, b)]
            u += [I(f'v_sub_f32 v{NM4+4*t+k}, 0, v{vMX0}') for k in range(4)]
            u += [I(f'v_sub_f32 v{b+k}, v{b+k}, v{vMX0}') for k in range(8)]
            ex, cv = self.exp_units(t)
            init += FS(u + ex + cv, lo, hi)
        k0 = FS(self.k_reads(SLOT + 16384), -1, 12)
        k1 = self.k_reads(0)
        k1s = [F(k1[0], 60, 79)] + [F(u, 72 + k, 79) for k, u in enumerate(k1[1:])]
        pre, vu = self.v_reads(0)
        vs = FS(pre, 44, 70) + [F(u, 44, 84) for _, u in vu]
        d0 = (self.kv_stage(3) if self.c.nstg < 2 else []) + (self.kv_stage(4) if self.c.nstg < 3 else [])
        v1 = self.dma_stream(d0, 0, 40) if d0 else []
        if self.c.late and not d0: v1 += self.dma_stream(self.kv_reg(6, (0,)), 4, 40)
        v1 += [F(I('s_barrier'), 46, 50)] + self.dma_stream(self.kv_dma(SV, 1, SLOT + 16384, 'kv1'), 50, 64)
        if self.c.late: v1 += self.dma_stream(self.kv_reg(6, (1,) if not d0 else (0, 1)), 66, 86)
        if self.c.early5:
            v1 += [F(waittag('vr') + I('s_barrier'), 88, 90, cost=2)] + self.dma_stream(self.kv_stage(5), 92, 116)
        self.sch('q15..s1', main, [k0, drains, conv + init, k1s, vs, v1], pre_cap=9, cap=self.c.ccap)
    def iteration(self, i):
        e = self.e
        L0 = 4 if self.c.late else 2
        dyn = self.c.loop and L0 <= i <= self.c.lend
        if dyn and i == L0:
            e(f's_mov_b32 {sRB}, {(L0 % 5)*SLOT}\ns_add_u32 {sDB}, {sKVLDS}, {((L0 - 1) % 5)*SLOT}\n{self.kvoff(L0 + 5, sKO)}\n{self.kvoff(L0 + 4, sVO)}\ns_mov_b32 {sKC}, 0')
        if dyn: e(f'L_loopmark{i}:')
        tags = [f'kv{i}', 'vr'] + (['wown'] if i == 15 else [])
        if dyn: e('s_waitcnt vmcnt(24) lgkmcnt(0)')
        e(waittag(*tags)); e('s_barrier')
        if i == 15: return self.tail()
        if dyn: dma = self.kv_stage_dyn(i + 4)
        elif i == 1 and self.c.early5: dma = self.kv_reg(7) if self.c.late else []
        elif i in (2, 3) and self.c.late: dma = self.kv_drain(i + 4)
        elif i <= 11: dma = self.kv_stage(i + 4)
        elif i <= 13: dma = self.wo_own(i - 12)
        else: dma = []
        main = self.pv_mfmas(first=(i == 1)) + self.s_mfmas()
        base = sRB if dyn else (i % 5) * SLOT
        sm = self.softmax_streams(i, 11, lambda t: 44 + 8*t, lambda t: 12 + 8*t)
        ks = FS(self.k_reads(base), -1, 36)
        pre, vu = self.v_reads(base)
        vs = FS(pre, 20, 60) + [F(u, 37 + dt, 80) for dt, u in vu]
        streams = [sm, ks, vs]
        ds = self.dma_stream(dma, self.c.dlo, self.c.dhi) if dma else []
        if self.c.l2pf and i == self.c.pfit: ds += FS(self.l2pf_wo(), 72, 84)
        if dyn:
            ds += FS([I(x) for x in (f's_add_u32 {sDB}, {sRB}, {sKVLDS}', f's_add_u32 {sRB}, {sRB}, {SLOT}',
                      f's_cmp_eq_u32 {sRB}, {5*SLOT}\ns_cselect_b32 {sRB}, 0, {sRB}', f's_mov_b32 {sVO}, {sKO}', f's_add_u32 {sKO}, {sKO}, 8192') + ((f's_and_b32 {sKO}, {sKO}, 0x1e000', f's_or_b32 {sKO}, {sKO}, {sKVOFF}') if self.c.krot else ())], 61, 84)
        streams.append(ds)
        self.sch(f'it{i}', main, streams)
        if dyn: e(f'L_loopend{i}:')
    def rare(self):
        p = I('L_rare:\ns_nop 7\ns_nop 1')
        for t in range(5):
            b = Sreg(t, 0)
            p += self.rowmax(vMX0, vMX1, b)
            p += I(f'v_max_f32 v{vMX0}, 0, v{vMX0}')
            for k in range(4): p += I(f'v_sub_f32 v{NM4+4*t+k}, v{NM4+4*t+k}, v{vMX0}')
            for k in range(8): p += I(f'v_sub_f32 v{b+k}, v{b+k}, v{vMX0}')
            p += I(f'v_sub_f32 v{vTA}, 0, v{vMX0}\nv_exp_f32 v{vTA}, v{vTA}')
            for k in range(32): p += I(f'v_mul_f32 v{O(t,0)+k}, v{O(t,0)+k}, v{vTA}')
            for k in range(4):
                p += I(f'v_accvgpr_read_b32 v{vTB}, a{aL+4*t+k}\nv_mul_f32 v{vTB}, v{vTB}, v{vTA}\nv_accvgpr_write_b32 a{aL+4*t+k}, v{vTB}')
            for k in range(4):
                r = Preg(t) + k
                p += I(f'''v_lshlrev_b32 v{vTB}, 16, v{r}
                v_and_b32 v{vMX1}, 0xffff0000, v{r}
                v_mul_f32 v{vTB}, v{vTB}, v{vTA}
                v_mul_f32 v{vMX1}, v{vMX1}, v{vTA}
                v_cvt_pk_bf16_f32 v{r}, v{vTB}, v{vMX1}''')
        p += I(f's_nop 1\ns_setpc_b64 {sRET}')
        return p
    def own(self, ks, t): return self.ownmap[(ks, t)]
    def acc(self, t, nt): return 32*t + 4*nt
    def norm_units(self, t):
        us = [I(f'v_accvgpr_read_b32 v{vRL+t}, a{aL+4*t}'), I(f'v_rcp_f32 v{vRL+t}, v{vRL+t}')]
        for ks in range(4):
            b = O(t, 2*ks)
            for k in range(8): us.append(I(f'v_mul_f32 v{b+k}, v{b+k}, v{vRL+t}'))
            for k in range(4): us.append(I(f'v_cvt_pk_bf16_f32 v{self.own(ks, t) + k}, v{b+2*k}, v{b+2*k+1}'))
            f = ks*5 + t
            adr, off = (vEX1, f*1024) if f < 16 else (vEX2, (f-16)*1024)
            us.append(I(f's_add_u32 {sT1}, {sOW}, {(ks >> 1)*20480 + ((ks & 1)*5 + t)*1024}') +
                      I(f'buffer_store_dwordx4 {vr(self.own(ks, t))}, v{vL16}, {SOX}, {sT1} offen{self.pol(self.c.opol)}', tag='ost'))
            us.append(I(f'ds_write_b128 v{adr}, {vr(self.own(ks, t))} offset:{off}', tag='exw'))
        return us
    def a_reads(self, e, o, base, nks, dst, tag):
        us = []
        for ks in range(nks):
            for nt in range(4):
                for h in range(2):
                    us.append(I(f'ds_read_b64_tr_b16 {ar(dst + (ks*4 + nt)*4 + 2*h, 2)}, v{e if nt % 2 == 0 else o} offset:{base + ks*8192 + h*4096 + (nt >> 1)*256}', tag=tag))
        return us
    def rem_reads(self, kp):
        u = kp // 2; ksl = kp % 2; st = aSET[kp % 2]
        aa = self.a_reads(vWEr, vWOr, WOB[u % 4] + ksl*8192, 1, st, 'rr')
        adr, off = (vOB0, OB[u % 4] - OB[0]) if u % 4 < 2 else (vOB1, OB[u % 4] - OB[2])
        bb = [I(f'ds_read_b128 {ar(st + 16 + 4*t)}, v{adr} offset:{off + (ksl*5 + t)*1024}', tag='rr') for t in range(5)]
        return aa[:2] + bb + aa[2:]
    def check(self, r):
        self.chk.append(r)
        return I(f'v_readlane_b32 {sRDY}, v{vPOLL}, {r}\ns_sub_u32 {sRDY}, {sRDY}, {sOLD[r]}\ns_cmp_eq_u32 {sRDY}, {sXCC if self.c.opol != "sc1" else 32}\ns_cbranch_scc0 L_cstub{r}\nL_cret{r}:')
    def store_units(self):
        us = []
        for t in range(5):
            for m in range(2):
                b = self.acc(t, 2*m)
                for k in range(4): us.append(I(f'v_cvt_pk_bf16_f32 v{b+k}, v{b+2*k}, v{b+2*k+1}'))
                us.append(I(f's_add_u32 {sT1}, {sPW}, {(t*2+m)*1024}') +
                          I(f'buffer_store_dwordx4 {vr(b)}, v{vL16}, {SWS}, {sT1} offen{self.pol(self.c.stpol)}', tag='st'))
        return us
    def tail(self):
        e = self.e; L = f'v{vLANE}'; self.chk = []
        regs = {0: [220, 224, 228, 232], 1: [236, 160, 164, 168], 2: [172, 176, 180, 184], 3: [188, 192, 196, 200], 4: [204, 208, 212, 216]}
        self.ownmap = {(ks, t): regs[t][ks] for t in range(5) for ks in range(4)}
        o0 = []
        for t in range(5):
            for ks in range(4):
                for nt in range(4):
                    o0 += I(f'{MF} {vr(self.acc(t, nt))}, {ar(aA0 + (ks*4+nt)*4)}, {vr(self.own(ks, t))}, {vr(self.acc(t, nt)) if ks else "0"}')
        pv15 = self.pv_mfmas(vf=aKF, ones_first=False)
        pv15[0] = waittag('vr') + [pv15[0]]
        o0[0] = waittag('af0') + [o0[0]]
        main = self.pv_mfmas() + pv15 + o0
        sm = self.softmax_streams(15, 11, lambda t: 43 + 9*t, lambda t: 12 + 8*t)
        pre, vu = self.v_reads(0, dst=aKF)
        rd = FS(pre + [u for _, u in vu], -1, 30)
        rd += FS([I(f's_lshl_b32 {sT1}, {sHH}, 15'), I(f's_add_u32 {sT1}, {sT1}, {SLOT}'), I(f'v_add_u32 v{vOEs}, {sT1}, v{vOE}'), I(f'v_xor_b32 v{vOOs}, 32, v{vOEs}')] +
                 self.a_reads(vOEs, vOOs, 0, 4, aA0, 'af0'), -1, 70)
        setup = [I(x) for x in (f'v_lshlrev_b32 v{vL16}, 4, {L}', f's_lshl_b32 {sT1}, {sW}, 14', f's_add_u32 {sT1}, {sT1}, 98304',
                 f'v_add_u32 v{vEX1}, {sT1}, v{vL16}', f'v_add_u32 v{vEX2}, {sW4K}, v{vL16}')]
        st0 = FS(setup, 12, 52)
        rd += [F(waittag('vr') + I('s_barrier'), 72, 80, cost=2)] + self.dma_stream(self.wo_rem(0), 74, 90)
        rd += FS([I(f'v_xor_b32 v{vOEs}, 0x18000, v{vOEs}'), I(f'v_xor_b32 v{vOOs}, 0x18000, v{vOOs}')] + self.a_reads(vOEs, vOOs, 0, 4, aA1, 'af1'), self.c.normlast - 40, 164)
        nl = self.c.normlast
        nm = []
        for t in range(5):
            nm += FS(self.norm_units(t), 45 + 9*t + 10, min(89 + 16*t, nl))
            if t == 0:
                nm += FS([I(x) for x in (f'v_xor_b32 v{vEXR1}, 0x4000, v{vEX1}', f'v_xor_b32 v{vEXR2}, 0x1000, v{vEX2}', f's_mul_i32 {sT1}, {sQH}, 10240',
                          f's_add_u32 {sT1}, {sT1}, {OB[0]}', f'v_add_u32 v{vOB0}, {sT1}, v{vL16}', f'v_add_u32 v{vOB1}, {OB[2] - OB[0]}, v{vOB0}',
                          f'v_mov_b32 v{vWEr}, v{vOE}', f'v_xor_b32 v{vWOr}, 32, v{vOE}', f's_add_u32 {sT1}, {sOLD[0]}, {sXCC if self.c.opol != "sc1" else 32}\nv_mov_b32 v{vFLAG}, {sT1}', f'v_add_u32 v{vPOFF}, {sHP}, {L}', f'v_and_b32 v{vPOFF}, 3, v{vPOFF}', f'v_lshlrev_b32 v{vPOFF}, 2, v{vPOFF}')], -1, 89)
        l4 = [f for f in nm if any(f'a{aL+16}' in x.reads for x in f.ins)][0]
        for f in rd:
            if any(x.tag == 'af1' for x in f.ins): f.lo = max(f.lo, 100)
        l4.hi = min(l4.hi, 99)
        exr = []
        for f in range(20):
            adr, off = (vEXR1, f*1024) if f < 16 else (vEXR2, (f-16)*1024)
            exr.append(I(f'ds_read_b128 {ar(aPART + 4*f)}, v{adr} offset:{off}', tag='exr'))
        nm += [F(waittag('exw') + I('s_barrier'), -1, nl + 6, cost=2)] + FS(exr, -1, 164)
        pl = [F(I(f'buffer_load_dword v{vPOLL}, v{vPOFF}, {SDB}, 0 offen sc0 sc1'), self.c.pearly, self.c.pearly)] if self.c.pearly else []
        self.sch('tail', main, [sm, rd, st0, nm, pl], cap=self.c.tcap)
        self.stamp('main', 'o', 'h')
        main = []
        for ks in range(4):
            for nt in range(4):
                for t in range(5):
                    main += I(f'{MF} {vr(self.acc(t, nt))}, {ar(aA1 + (ks*4+nt)*4)}, {ar(aPART + (ks*5+t)*4)}, {vr(self.acc(t, nt))}')
        main[0] = waittag('exr', 'af1') + I('s_barrier') + [main[0]]
        Z, Pg = self.c.zgap, self.c.pgap
        sig = self.stamp_i('h') + waittag('ost') + self.stamp_i('h') + I(f's_barrier\ns_cmp_lg_u32 {sW}, 0\ns_cbranch_scc1 L_nosig')
        sig += I(f's_mov_b64 exec, 1\nbuffer_store_dword v{vFLAG}, off, {SDB}, {sCL} sc0 sc1\ns_mov_b64 exec, -1\nL_nosig:')
        for x in sig:
            if x.kind == 'vst': x.kind = 'opaque'
        ds = [F(sig, Z, Z, cost=4)] + self.dma_stream(self.wo_rem(1) + self.wo_rem(2) + self.wo_rem(3), 0, 0)[:0]
        if self.c.pearly:
            ds += [F(self.stamp_i('h') + self.check(1) + self.stamp_i('h'), Z, Z, cost=4)]
            un = self.o_rem(0)
            for u in range(1, 4): un += self.o_rem(u) + self.wo_rem(u)
            d2 = self.dma_stream(un, Z + 2, 78, slack=0)
            for f in d2: f.lo = max(f.lo, Z)
            ds += d2
        else:
            w13 = self.dma_stream(self.wo_rem(1) + self.wo_rem(2) + self.wo_rem(3), Z + 2, Pg - self.c.pdist - 2)
            ds += w13 + [F(I(f'buffer_load_dword v{vPOLL}, v{vPOFF}, {SDB}, 0 offen sc0 sc1'), Pg - self.c.pdist, Pg - self.c.pdist),
                         F(self.stamp_i('h') + self.check(1) + self.stamp_i('h'), Pg, Pg, cost=4)]
            ds += self.dma_stream(self.o_rem(0) + self.o_rem(1) + self.o_rem(2) + self.o_rem(3), Pg + 1, 79, slack=0)
        c0 = [F(self.stamp_i('h') + waittag('u0') + self.stamp_i('h') + I('s_barrier'), self.c.c0gap, self.c.c0gap, cost=2)] + FS(self.rem_reads(0), self.c.c0gap, 76)
        self.sch('s1', main, [ds, c0])
        self.stamp('o')
        pend = []
        for kp in range(24):
            u = kp // 2; st = aSET[kp % 2]
            main = []
            for nt in range(4):
                for t in range(5):
                    main += I(f'{MF} {vr(self.acc(t, nt))}, {ar(st + 4*nt)}, {ar(st + 16 + 4*t)}, {vr(self.acc(t, nt))}')
            head = waittag('rr')
            if kp % 2 == 1 and u + 1 < 12:
                head = waittag('rr', f'u{u+1}') + I('s_barrier')
                if u + 4 < 12:
                    pend = self.wo_rem(u + 4) + self.o_rem(u + 4)
                    if (u + 4) % 4 == 0: head += self.check(1 + (u + 4) // 4)
            main[0] = head + [main[0]]
            streams = []
            if kp + 1 < 24: streams.append(FS(self.rem_reads(kp + 1), 0, 14))
            if pend:
                n = 4 if kp % 2 == 1 else len(pend)
                streams.append(self.dma_stream(pend[:n], 1, 18, slack=1)); pend = pend[n:]
            self.sch(f'r{kp}', main, streams)
            if kp % 4 == 3: self.stamp('o')
        for u in self.store_units(): e(u)
        if self.c.fuse: self.final_reduce()
    def final_reduce(self):
        e = self.e; L = f'v{vLANE}'
        e(f'''s_load_dwordx2 s[12:13], s[0:1], 80
        s_mov_b32 s14, {8*160*1024*2}
        s_mov_b32 s15, 0x20000
        s_mul_i32 {sT0}, {sOCT}, {PART_BYTES}
        s_sub_u32 s24, s24, {sT0}
        s_subb_u32 s25, s25, 0
        s_mov_b32 s26, {4*PART_BYTES}
        s_mul_i32 {sT0}, {sOCT}, 2560
        s_add_u32 {sT0}, {sT0}, {sPW}
        s_mul_i32 {sT2}, {sOCT}, 160
        s_lshr_b32 {sT3}, {sBLK}, 2
        s_and_b32 {sT3}, {sT3}, 7
        s_mul_i32 {sT3}, {sT3}, 160
        s_mul_i32 {sT1}, {sQH}, 80
        s_add_u32 {sT3}, {sT3}, {sT1}
        s_lshl_b32 {sT3}, {sT3}, 11
        s_lshr_b32 {sT1}, {sBLK}, 5
        s_lshl_b32 {sT1}, {sT1}, 10
        s_add_u32 {sT3}, {sT3}, {sT1}
        s_lshl_b32 {sT1}, {sHP}, 8
        s_add_u32 {sT3}, {sT3}, {sT1}
        s_lshl_b32 {sT1}, {sHH}, 7
        s_add_u32 {sT3}, {sT3}, {sT1}
        v_and_b32 v25, 3, {L}
        v_lshlrev_b32 v25, 2, v25
        s_lshl_b32 {sCL}, {sOCT}, 2''')
        for k in range(3):
            e(f'''v_add_u32 v26, {sT2}, {L}
            v_add_u32 v26, {64*k}, v26
            v_lshrrev_b32 v27, 7, v26
            v_lshlrev_b32 v{28+k}, 15, v27
            v_bfe_u32 v27, v26, 6, 1
            v_lshl_add_u32 v{28+k}, v27, 6, v{28+k}
            v_and_b32 v27, 15, v26
            v_lshl_add_u32 v{28+k}, v27, 11, v{28+k}
            v_bfe_u32 v27, v26, 4, 2
            v_lshl_add_u32 v{28+k}, v27, 3, v{28+k}''')
        sel = ''.join(f's_cmp_eq_u32 {sOCT}, {r}\ns_cselect_b32 {sRDY}, {sOLD2[r]}, {sRDY}\n' for r in range(4))
        e(sel + f's_add_u32 {sRDY}, {sRDY}, 1\nv_mov_b32 v{vFLAG}, {sRDY}\ns_add_u32 {sRDY}, {sRDY}, 1')
        e(''.join(f's_cmp_eq_u32 {sOCT}, {r}\ns_cselect_b32 {sOLD2[r]}, {sRDY}, {sOLD2[r]}\n' for r in range(4)))
        sig = I(f's_waitcnt vmcnt(0)\ns_barrier\ns_cmp_lg_u32 {sW}, 0\ns_cbranch_scc1 L_nosig2\ns_mov_b64 exec, 1\nbuffer_store_dword v{vFLAG}, off, {SD2}, {sCL} sc0 sc1\ns_mov_b64 exec, -1\nL_nosig2:')
        e(sig)
        self.stamp('o')
        poll = f's_mov_b32 {sCNT}, {self.c.maxpoll}\nL_floop:\n' + (f's_sleep {self.c.slp}\n' if self.c.slp else '') + f'buffer_load_dword v{vPOLL}, v25, {SD2}, 0 offen sc0 sc1\ns_waitcnt vmcnt(0)\ns_mov_b32 {sWB}, 0\n'
        for r in range(4):
            poll += f'v_readlane_b32 {sRDY}, v{vPOLL}, {r}\ns_cmp_lg_u32 {sRDY}, {sOLD2[r]}\ns_addc_u32 {sWB}, {sWB}, 0\n'
        poll += f's_sub_u32 {sCNT}, {sCNT}, 1\ns_cmp_eq_u32 {sCNT}, 0\ns_cbranch_scc1 L_fgo\ns_cmp_lg_u32 {sWB}, 4\ns_cbranch_scc1 L_floop\nL_fgo:'
        e(poll)
        self.stamp('o')
        for k in range(3):
            for i in range(4):
                e(f's_add_u32 {sT1}, {sT0}, {i*PART_BYTES}\nbuffer_load_dwordx4 {vr(32 + (k*4+i)*4)}, v{vL16}, {SWS}, {sT1} offen offset:{k*1024} sc1')
        for k in range(3):
            for i in range(4):
                for j in range(4):
                    r = 32 + (k*4+i)*4 + j
                    if i == 0: e(f'v_lshlrev_b32 v{96+2*j}, 16, v{r}\nv_and_b32 v{97+2*j}, 0xffff0000, v{r}')
                    else: e(f'v_lshlrev_b32 v26, 16, v{r}\nv_and_b32 v27, 0xffff0000, v{r}\nv_add_f32 v{96+2*j}, v{96+2*j}, v26\nv_add_f32 v{97+2*j}, v{97+2*j}, v27')
            for j in range(4): e(f'v_cvt_pk_bf16_f32 v{104+4*k+j}, v{96+2*j}, v{97+2*j}')
            if k == 2: e('s_mov_b32 exec_hi, 0')
            e(f'buffer_store_dwordx2 v[{104+4*k}:{105+4*k}], v{28+k}, {SOUT}, {sT3} offen{self.pol(self.c.outpol)}')
            e(f'buffer_store_dwordx2 v[{106+4*k}:{107+4*k}], v{28+k}, {SOUT}, {sT3} offen offset:32{self.pol(self.c.outpol)}')
        e('s_mov_b64 exec, -1')
    def poll_code(self):
        p = []
        for r in self.chk:
            p += I(f'''L_cstub{r}:
            s_mov_b32 {sCNT}, {self.c.maxpoll}
            L_cloop{r}:
            {f's_sleep {self.c.slp}' if self.c.slp else ''}
            buffer_load_dword v{vPOLL}, v{vPOFF}, {SDB}, 0 offen sc0 sc1
            s_waitcnt vmcnt(0)
            v_readlane_b32 {sRDY}, v{vPOLL}, {r}
            s_sub_u32 {sCNT}, {sCNT}, 1
            s_cmp_eq_u32 {sCNT}, 0
            s_cbranch_scc1 L_cret{r}
            s_sub_u32 {sRDY}, {sRDY}, {sOLD[r]}
            s_cmp_eq_u32 {sRDY}, 0
            s_cbranch_scc1 L_cloop{r}''')
            if self.c.opol != 'sc1':
                p += I(f'''s_cmp_eq_u32 {sRDY}, {sXCC}
                s_cbranch_scc1 L_cret{r}
                s_cmp_lg_u32 {sWB}, 0
                s_cbranch_scc1 L_cwb{r}
                s_mov_b32 {sWB}, 1
                s_cmp_lg_u32 {sW}, 0
                s_cbranch_scc1 L_cwb{r}
                buffer_wbl2 sc1
                s_waitcnt vmcnt(0)
                s_add_u32 {sT3}, {sOLD[0]}, 32
                v_mov_b32 v{vFLAG}, {sT3}
                s_mov_b64 exec, 1
                buffer_store_dword v{vFLAG}, off, {SDB}, {sCL} sc0 sc1
                s_mov_b64 exec, -1
                L_cwb{r}:
                s_cmp_lt_u32 {sRDY}, 32
                s_cbranch_scc1 L_cloop{r}
                buffer_inv sc1
                s_waitcnt vmcnt(0)''')
            p += I(f's_nop 4\ns_branch L_cret{r}')
        return p
    def peephole(self, prog):
        out = []; prev = {}
        for x in prog:
            if x.kind in ('label', 'branch'): prev = {}; self.curkvo = None
            if isinstance(x.tag, tuple) and x.tag[0] == 'kvo' and self.c.krot:
                if getattr(self, 'curkvo', None) == x.tag: continue
                if x.op == 's_or_b32': self.curkvo = x.tag
                out.append(x); prev.pop(sT2, None); continue
            if sT2 in x.writes: self.curkvo = None
            if x.kind == 'salu' and x.op == 's_add_u32' and len(x.writes) == 1:
                w = next(iter(x.writes))
                if w in ('m0', sT0, sT2) and prev.get(w) == x.text and w not in x.reads: continue
            for w in x.writes:
                prev.pop(w, None)
                for k in [k for k, v in prev.items() if re.search(rf'\b{w}\b', v.split(',', 1)[1])]: prev.pop(k)
            if x.kind == 'salu' and x.op == 's_add_u32' and len(x.writes) == 1: prev[next(iter(x.writes))] = x.text
            out.append(x)
        return out
    def fold(self, prog):
        idx = {x.text: k for k, x in enumerate(prog) if x.kind == 'label'}
        its = [i for i in range(16) if f'L_loopmark{i}:' in idx]
        norm = lambda x: re.sub(r'(L_stub|L_ret)\d+', r'\1', x.text)
        body = {i: [norm(x) for x in prog[idx[f'L_loopmark{i}:'] + 1: idx[f'L_loopend{i}:']]] for i in its}
        last = its[-1]; first = last
        while first - 1 in body and body[first - 1] == body[last]: first -= 1
        self.log.append(('loop', first, last, len(body[last])))
        for i in range(first + 1, last + 1): self.stubs.remove(i)
        a = idx[f'L_loopmark{first}:']; b = idx[f'L_loopend{first}:']; c = idx[f'L_loopend{last}:']
        return prog[:a] + I(self.kvoff(last + 6, sIT)) + prog[a:b] + \
            I(f's_cmp_lg_u32 {sIT}, {sKO}\ns_cbranch_scc1 L_loopmark{first}') + prog[c + 1:]
    def build(self):
        self.prologue(); self.q_phase(); self.q_to_attn(); self.stamp('main', 'q', 'a')
        for i in range(1, 16):
            if i == 15: self.stamp('o', 'h')
            self.iteration(i)
            if i in (3, 10, 12): self.stamp('main')
            if i < 15 and not (self.c.loop and 4 <= i < self.c.lend): self.stamp('a')
        e = self.e
        if self.c.stamps:
            e('s_waitcnt vmcnt(0)'); self.stamp()
            if self.c.dbgwg >= 0:
                e(f'''s_mov_b64 s[24:25], s[56:57]
                s_mov_b32 s26, 0x10000000
                s_mov_b32 {sT2}, {STAMP_OFF}
                s_cmp_lg_u32 s2, {self.c.dbgwg}
                s_cbranch_scc1 L_end
                s_cmp_lg_u32 {sW}, 0
                s_cbranch_scc1 L_end
                v_readfirstlane_b32 {sT1}, v255
                v_lshlrev_b32 v2, 2, v{vLANE}
                v_subrev_u32 v4, {sT1}, v255
                buffer_store_dword v4, v2, {SWS}, {sT2} offen
                s_endpgm''')
            e(f'''s_mov_b64 s[24:25], s[56:57]
            s_mov_b32 s26, 0x10000000
            s_mul_i32 {sT1}, s2, {self.nst*8}
            s_add_u32 {sT1}, {sT1}, {STAMP_OFF}
            s_cmp_lg_u32 {sW}, 0
            s_cbranch_scc1 L_end
            v_lshlrev_b32 v2, 3, v{vLANE}
            v_mov_b32 v4, v255
            v_mov_b32 v5, 0
            v_cmp_gt_u32 vcc, {self.nst}, v{vLANE}
            s_and_saveexec_b64 s[58:59], vcc
            buffer_store_dwordx2 v[4:5], v2, {SWS}, {sT1} offen''')
        e('L_end:\ns_endpgm')
        if self.c.nomem:
            def drop(x):
                if x.kind not in ('dma', 'vld', 'vst'): return False
                t = x.text
                if 'buffer_load_dword a' in t: return 'p' in self.c.nomem and 's[84:87]' not in t
                if SX in t or SWQ in t: return 'q' in self.c.nomem
                if SK in t or SV in t: return 'k' in self.c.nomem
                if SWO in t or SOX in t: return 'o' in self.c.nomem
                if x.tag == 'st': return 's' in self.c.nomem
                return False
            self.p = [x for x in self.p if not drop(x)]
        prog = finalize(self.peephole(self.p))
        if self.c.loop: prog = self.fold(prog)
        for i in self.stubs: prog += I(f'L_stub{i}:\ns_call_b64 {sRET}, L_rare\ns_branch L_ret{i}')
        prog += finalize(self.rare())
        prog += self.poll_code()
        prog += I('L_codeend:')
        return prog

def reduce_kernel(cfg):
    pol = (' ' + cfg.rdpol) if cfg.rdpol else ''
    p = I(f'''
    s_cmp_ge_u32 s2, 640
    s_cbranch_scc1 L_rend
    s_load_dwordx2 s[4:5], s[0:1], 96
    s_load_dwordx2 s[8:9], s[0:1], 80
    v_lshrrev_b32 v1, 6, v0
    v_and_b32 v2, 63, v0
    v_readfirstlane_b32 s3, v1
    v_lshlrev_b32 v3, 4, v2
    s_mul_i32 s12, s2, 6554
    s_lshr_b32 s12, s12, 16
    s_mul_i32 s13, s12, 10
    s_sub_u32 s13, s2, s13
    s_lshl_b32 s13, s13, 2
    s_add_u32 s13, s13, s3           ; piece 0..39
    s_mul_i32 s16, s12, {4*PART_BYTES}
    s_lshl_b32 s17, s13, 10
    s_add_u32 s16, s16, s17
    s_add_u32 s16, s16, {PART_OFF}
    s_mov_b32 s6, {PART_OFF + 256*PART_BYTES}
    s_mov_b32 s7, 0x20000
    s_mov_b32 s10, {8*160*1024*2}
    s_mov_b32 s11, 0x20000
    ''')
    for i in range(4):
        p += I(f'buffer_load_dwordx4 v[{8+4*i}:{11+4*i}], v3, s[4:7], s16 offen{pol}')
        if i < 3: p += I(f's_add_u32 s16, s16, {PART_BYTES}')
    p += I(f'''
    s_mul_i32 s14, s13, 6554
    s_lshr_b32 s14, s14, 16          ; w
    s_mul_i32 s15, s14, 10
    s_sub_u32 s19, s13, s15          ; idx
    s_lshr_b32 s20, s19, 1           ; t
    s_and_b32 s21, s19, 1            ; m
    s_lshr_b32 s22, s12, 2
    s_and_b32 s22, s22, 7            ; b
    s_lshr_b32 s23, s12, 5           ; branch
    s_and_b32 s18, s12, 3            ; hp
    s_mul_i32 s24, s22, 160
    s_lshr_b32 s25, s14, 1
    s_mul_i32 s25, s25, 80
    s_add_u32 s24, s24, s25
    s_lshl_b32 s25, s20, 4
    s_add_u32 s24, s24, s25
    s_lshl_b32 s24, s24, 11
    s_lshl_b32 s25, s23, 10
    s_add_u32 s24, s24, s25
    s_lshl_b32 s25, s18, 8
    s_add_u32 s24, s24, s25
    s_and_b32 s25, s14, 1
    s_lshl_b32 s25, s25, 7
    s_add_u32 s24, s24, s25
    s_lshl_b32 s25, s21, 6
    s_add_u32 s24, s24, s25
    v_and_b32 v4, 15, v2
    v_lshlrev_b32 v4, 11, v4
    v_lshrrev_b32 v5, 4, v2
    v_lshl_add_u32 v4, v5, 3, v4
    ''')
    for i in range(4):
        for j in range(4):
            r = 8 + 4*i + j
            if i == 0: p += I(f'v_lshlrev_b32 v{32+2*j}, 16, v{r}\nv_and_b32 v{33+2*j}, 0xffff0000, v{r}')
            else: p += I(f'v_lshlrev_b32 v6, 16, v{r}\nv_and_b32 v7, 0xffff0000, v{r}\nv_add_f32 v{32+2*j}, v{32+2*j}, v6\nv_add_f32 v{33+2*j}, v{33+2*j}, v7')
    for j in range(4): p += I(f'v_cvt_pk_bf16_f32 v{40+j}, v{32+2*j}, v{33+2*j}')
    p += I('''buffer_store_dwordx2 v[40:41], v4, s[8:11], s24 offen
    buffer_store_dwordx2 v[42:43], v4, s[8:11], s24 offen offset:32
    L_rend:
    s_endpgm''')
    return finalize(p)

def generate(cfg, path):
    g = Gen(cfg)
    main = g.build()
    if cfg.kpolB != '=' or cfg.vpolB != '=':
        import copy
        c2 = copy.copy(cfg)
        if cfg.kpolB != '=': c2.kpol = cfg.kpolB
        if cfg.vpolB != '=': c2.vpol = cfg.vpolB
        m2 = Gen(c2).build()
        for x in m2: x.text = re.sub(r'\bL_(\w+)', r'LB_\1', x.text)
        main = I('s_bitcmp1_b32 s2, 2\ns_cbranch_scc1 LB_entry') + main + I('LB_entry:') + m2
    red = reduce_kernel(cfg)
    if cfg.dbgwg >= 0:
        k = [i for i, x in enumerate(red) if x.text == 'L_rend:'][0]
        red[k:k] = finalize(I(f'''s_cmp_lg_u32 s2, 0
        s_cbranch_scc1 L_rend
        s_load_dwordx2 s[8:9], s[0:1], 88
        s_mov_b32 s10, 256
        s_mov_b32 s6, 0x10000000
        s_mov_b32 s16, {STAMP_OFF}
        v_lshlrev_b32 v2, 2, v0
        buffer_load_dword v3, v2, s[4:7], s16 offen
        buffer_store_dword v3, v2, s[8:11], 0 offen'''))
    if cfg.fuse:
        s = make_file([(KN, 256, 256, 163840)], [(KN, text_of(main), 512, 102, 256)])
        s = s.replace(f'; @launch kernel={KN} grid', '; @launch grid')
    else:
        s = make_file([(KN, 256, 256, 163840), ('reduce_heads_kernel', 640, 256, 0)],
                      [(KN, text_of(main), 512, 102, 256), ('reduce_heads_kernel', text_of(red), 48, 32, 48)])
    open(path, 'w').write(s)
    open(path[:-2] + '.nst', 'w').write(str(g.nst))
    return g, main

if __name__ == '__main__':
    cfg = Cfg()
    out = sys.argv[1]
    for kv in sys.argv[2:]:
        k, v = kv.split('=')
        cur = getattr(cfg, k)
        setattr(cfg, k, type(cur)(int(v)) if isinstance(cur, (bool, int)) and not isinstance(cur, float) else type(cur)(v.replace('+', ' ')))
    g, main = generate(cfg, out)
    from collections import Counter
    print(out, 'stamps', g.nst, dict(Counter(i.kind for i in main)))
    if cfg.verbose:
        for l in g.log: print(*l)
```

```python
import sys, math, struct, re
from asmlib import *
from gen_common import make_file, KN

class Cfg:
    kpol = 'nt'; vpol = 'nt'; kpolB = '='; vpolB = '='; wpol = ''; stpol = 'sc1'; rdpol = ''; pfpol = ''
    stamps = False; stset = 'main'; clk = 0
    codepf = 1
    kv_pro = 0
    kv_end = 13
    l2pf = 1; pfit = 11; l2pfq = 0
    nstg = 3
    late = 1
    early5 = 1
    rot = 2
    vsp = 4
    kveven = 1
    thr = 8.0
    loop = 1
    nomem = ''
    verbose = 0
    dbgwg = -1
    normlast = 105
    fuse = 1
    outpol = ''
    oldpol = 'sc1'
    slp = 0
    dot = 0
    hmap = 5
    nomax = 0
    pldpol = 'sc1'
    kmul = 0
    khh = 0
    kk = 1
    wo_it = 12
    smap = ''
    wo_hi = 80
    regend = 7
    jit = 0
    nlag = 0
    lean = 1
    tlb = 0
    tlbs = 13
    alt = ''
    altbit = 0
    cpf2 = 0
    cpf1 = 0
    pfgran = 128
    hwid = 0
    v15gap = -1
    pkq = 1
    pkn = 1
    kv_start = 0
    kvw = 0.5
    wpol0 = ''
    nwq0 = 4
    nx0 = 3
    pearly = 0
    c0gap = 66
    pdist = 10
    lastn = 2
    opol = 'sc1'
    zgap = 2
    pgap = 30
    maxpoll = 200000
    krot = 0
    ccap = 6
    tcap = 4
    lend = 10
    dlo = 24
    dhi = 80
STAMP_OFF = 0x8000000
PART_BYTES = 40960
PART_OFF = 0x2000000
OX_BYTES = 327680
FLAG_OFF = 0x3000000
def f32(x): return '0x%08x' % struct.unpack('<I', struct.pack('<f', x))[0]

SX, SWQ, SK, SV, SWO, SWS = 's[4:7]', 's[8:11]', 's[12:15]', 's[16:19]', 's[20:23]', 's[24:27]'
sW, sHH, sQH = 's3', 's28', 's29'
sKVOFF, sKVLDS, sWQOFF, sXOFF, sXLDS, sWO0, sWO1, sWOLDS, sPW = 's30', 's31', 's32', 's33', 's34', 's35', 's36', 's37', 's38'
sC, sT = 's40', 's41'
sT0, sT1, sT2, sT3 = 's42', 's43', 's44', 's45'
sRET = 's[60:61]'
sRB, sDB, sKO, sVO, sIT = 's46', 's47', 's52', 's53', 's50'
sB, sHP, sH0 = 's48', 's49', 's51'
sWQC, sXC, sWQB, sXB = 's88', 's89', 's90', 's91'
SOX, SDB = 's[76:79]', 's[80:83]'
sCL, sXCC, sRDY, sOW, sOCT = 's92', 's93', 's94', 's95', 's39'
sPO = ['s64', 's65', 's66', 's67']; sPWo = ['s68', 's69', 's70', 's71']
sW4K, sW5K, sCNT, sWB = 's96', 's97', 's98', 's99'
sKR, sKC = 's35', 's36'
sOLD = ['s72', 's73', 's74', 's75']
vFOFF = 215; vFOFF2 = 214
SD2 = 's[84:87]'; sOLD2 = ['s0', 's1', 's93', 's36']; sIDX2 = 's59'; sBLK = 's58'; SOUT = 's[12:15]'
STAMP0 = 62
def O(t, dt): return (t * 8 + dt) * 4
S0 = 160; P0 = 200; NM4 = 220
def Sreg(t, kt): return S0 + (t * 2 + kt) * 4
def Preg(t): return P0 + 4 * t
vMX0, vMX1, vTA, vTB = 240, 241, 242, 243
vK, vVE, vVO, aK, aVE = 244, 245, 246, 247, 248
vKVA, vKVB, vLANE, vWOV, vOE = 249, 250, 251, 252, 253
vWQA, vWQB, vX0, vX1 = 200, 201, 202, 203
vQE = [204, 205, 206]; vQO = [207, 208, 209]; vXR = [210, 211]
vWA = [212, 213]
vWA1 = 254
vRL = 240
vOEs, vOOs = 245, 246
vEX1, vEX2, vL16 = 247, 248, 254
vEXR1, vEXR2, vOB0, vOB1, vPOLL, vFLAG, vWEr, vWOr, vPOFF = 16, 17, 18, 19, 20, 21, 22, 23, 24
aVF, aAF, aKF, aL, aONE, aQ = 0, 80, 104, 136, 156, 160
aPART = 0; aA0 = 160
def Qf(ks, t): return aQ + (t * 4 + ks) * 4
def vr(b, n=4): return f'v[{b}:{b+n-1}]'
def ar(b, n=4): return f'a[{b}:{b+n-1}]'
SLOT = 32768
WQBUF = [147456, 65536, 102400]
XBUF = [81920, 126976]
WOB = [16384, 0, 32768, 49152]
OB = [65536, 86016, 106496, 126976]
aA1 = 80
aSET = [160, 196]
MF = 'v_mfma_f32_16x16x32_bf16'

def FS(units, lo=-1, hi=10**6, step=None):
    return [F(u, lo if step is None else int(lo + k * step), hi) for k, u in enumerate(units)]

class Gen:
    def __init__(self, cfg):
        self.c = cfg; self.p = []; self.nst = 0; self.stubs = []; self.log = []
    def e(self, x, tag=None):
        self.p += I(x, tag) if isinstance(x, str) else x
    def stamp_i(self, grp='all'):
        if self.c.stamps and grp in ('all', self.c.stset):
            self.nst += 1
            if self.c.clk == 2:
                return I(f's_memrealtime s[62:63]\ns_waitcnt lgkmcnt(0)\nv_writelane_b32 v255, s62, {self.nst - 1}\ns_memtime s[62:63]\ns_waitcnt lgkmcnt(0)\nv_writelane_b32 v255, s62, {self.nst + 31}')
            return I(f's_mem{"" if self.c.clk else "real"}time s[62:63]\ns_waitcnt lgkmcnt(0)\nv_writelane_b32 v255, s62, {self.nst - 1}')
        return []
    def stamp(self, *grps):
        for g in grps or ('all',): self.e(self.stamp_i(g))
    def sch(self, name, main, streams, **kw):
        v = []
        self.e(sched(main, streams, verbose=v, **kw))
        self.log.append((name,) + v[0])
    @staticmethod
    def pol(p): return (' ' + p) if p else ''
    def kvoff(self, tile, dst=sT2):
        if not self.c.krot: return f's_add_u32 {dst}, {sKVOFF}, {tile*8192}'
        return f's_add_u32 {dst}, {sKR}, {tile*8192}\ns_and_b32 {dst}, {dst}, 0x1e000\ns_or_b32 {dst}, {dst}, {sKVOFF}'
    def kvo(self, tile):
        u = I(self.kvoff(tile))
        for x in u: x.tag = ('kvo', tile)
        return u
    def kvp(self, srd): return self.pol(self.c.kpol if srd == SK else self.c.vpol)
    def kv_dma(self, srd, tile, lds, tag):
        us = []
        for k in range(4):
            u = I(f's_add_u32 m0, {sKVLDS}, {lds}') + self.kvo(tile)
            u += I(f'buffer_load_dwordx4 v{vKVA if k % 2 == 0 else vKVB}, {srd}, {sT2} offen offset:{k*1024}{self.kvp(srd)} lds', tag=tag)
            us.append(u)
        return us
    def kv_stage(self, st):
        b = (st % 5) * SLOT
        return (self.kv_dma(SK, st + 1, b, f'kv{st}') if st < 15 else []) + self.kv_dma(SV, st, b + 16384, f'kv{st}')
    def kv_stage_dyn(self, st):
        us = []
        for part in range(2):
            for k in range(4):
                u = I(f's_add_u32 m0, {sDB}, {part*16384}') if k == 0 else []
                if k == 0: us.append(u); u = []
                u += I(f'buffer_load_dwordx4 v{vKVA if k % 2 == 0 else vKVB}, {SK if part == 0 else SV}, {sKO if part == 0 else sVO} offen offset:{k*1024}{self.kvp(SK if part == 0 else SV)} lds', tag=f'kv{st}')
                us.append(u)
        return us
    def stg(self, st, part, k):
        if st >= 6: return ar(32 + ((st % 2)*8 + part*4 + k)*4)
        return ar(160 + ((st - 2)*8 + part*4 + k)*4)
    def kv_reg(self, st, parts=(0, 1)):
        us = []
        for part in parts:
            if st == 15 and part == 0: continue
            srd, tile = (SK, st + 1) if part == 0 else (SV, st)
            for k in range(4):
                us.append(self.kvo(tile) +
                          I(f'buffer_load_dwordx4 {self.stg(st, part, k)}, v{vKVA if k % 2 == 0 else vKVB}, {srd}, {sT2} offen offset:{k*1024}{self.kvp(srd)}'))
        return us
    def kv_drain(self, st, parts=(0, 1)):
        us = []
        for part in parts:
            if st == 15 and part == 0: continue
            for k in range(4):
                adr, off = {2: (vWA[0], 0), 3: (vWA[0], SLOT), 4: (vWA[1], 0), 6: (vWA1, 0), 7: (vWA1, SLOT)}.get(st, (vTB, 0))
                off += part*16384
                us.append(I(f'ds_write_b128 v{adr}, {self.stg(st, part, k)} offset:{off + k*1024}', tag=f'kv{st}'))
        if st > 7: us[0] = I(f'v_add_u32 v{vTB}, {((st % 5 - 1) * SLOT) & 0xffffffff:#x}, v{vWA1}') + us[0]
        return us
    def wq_next(self, j):
        if self.c.rot == 2 and j < 2: return I(f's_add_u32 {sWQB}, {sWQOFF}, {j*262144}')
        wrap = f's_cmp_eq_u32 {sWQC}, 0x400000\ns_cselect_b32 {sWQC}, 0x80000, {sWQC}' if self.c.rot == 2 else f's_and_b32 {sWQC}, {sWQC}, 0x3fffff'
        return I(f's_add_u32 {sWQB}, {sWQC}, {sWQOFF}\ns_add_u32 {sWQC}, {sWQC}, 262144\n{wrap}')
    def x_next(self, J):
        if self.c.rot == 2 and J < 1: return I(f's_add_u32 {sXB}, {sXOFF}, 0')
        wrap = f's_cmp_eq_u32 {sXC}, 1024\ns_cselect_b32 {sXC}, 128, {sXC}' if self.c.rot == 2 else f's_and_b32 {sXC}, {sXC}, 1023'
        return I(f's_add_u32 {sXB}, {sXC}, {sXOFF}\ns_add_u32 {sXC}, {sXC}, 128\n{wrap}')
    def wq_units(self, j):
        us = []
        for k in range(4):
            u = I(f's_add_u32 m0, {sKVLDS}, {WQBUF[j % 3]}\ns_add_u32 {sT0}, {sWQB}, {k*32768 - k*1024}')
            u += I(f'buffer_load_dwordx4 v{vWQA if k < 2 else vWQB}, {SWQ}, {sT0} offen offset:{k*1024}{self.pol(self.c.wpol0 if j < self.c.nwq0 else self.c.wpol)} lds', tag=f'wq{j}')
            us.append(u)
        if j == 0: us[0] = self.wq_next(0) + us[0]
        if j < 15: us[-1] += self.wq_next(j + 1)
        return us
    def x_units(self, J):
        us = []
        for k in range(5):
            im = (k % 4) * 1024
            u = I(f's_add_u32 m0, {sXLDS}, {XBUF[J % 2] + (k // 4)*4096}\ns_add_u32 {sT0}, {sXB}, {k*8192 - im}')
            u += I(f'buffer_load_dwordx4 v{vX0 if k % 2 == 0 else vX1}, {SX}, {sT0} offen offset:{im}{self.pol(self.c.wpol0 if J < self.c.nx0 else self.c.wpol)} lds', tag=f'x{J}')
            us.append(u)
        if J == 0: us[0] = self.x_next(0) + us[0]
        if J < 7: us[-1] += self.x_next(J + 1)
        return us
    def wo_half(self, base, const, lds, tag):
        us = []
        for k in range(4):
            u = I(f's_add_u32 m0, {sW4K}, {lds}\ns_add_u32 {sT0}, {base}, {const + k*3072}')
            u += I(f'buffer_load_dwordx4 v{vKVA if k % 2 == 0 else vKVB}, {SWO}, {sT0} offen offset:{k*1024}{self.pol(self.c.wpol)} lds', tag=tag)
            us.append(u)
        return us
    def wo_own(self, h):
        us = self.wo_half(sPWo[0], h*131072, (1 + h)*SLOT, 'wown') + self.wo_half(sPWo[0], h*131072 + 65536, (1 + h)*SLOT + 16384, 'wown')
        if h == 0: us[0] = I(f'v_mov_b32 v{vKVA}, v{vWOV}\nv_xor_b32 v{vKVB}, 32, v{vWOV}') + us[0]
        return us
    def wo_rem(self, u):
        return self.wo_half(sPWo[1 + u // 4], ((u >> 1) & 1)*131072 + (u & 1)*65536, WOB[u % 4], f'u{u}')
    def o_rem(self, u):
        us = []
        for k in range(5):
            x = I(f's_add_u32 m0, {sW5K}, {OB[u % 4] + (k // 4)*4096}\ns_add_u32 {sT2}, {sPO[1 + u // 4]}, {((u >> 1) & 1)*40960 + (u & 1)*20480 + (k // 4)*4096}')
            x += I(f'buffer_load_dwordx4 v{vL16}, {SOX}, {sT2} offen offset:{(k % 4)*1024}{self.pol(self.c.oldpol)} lds', tag=f'u{u}')
            us.append(x)
        return us
    def l2pf_q(self):
        pol = self.pol(self.c.pfpol); L = f'v{vLANE}'
        return [I(f'v_lshrrev_b32 v214, 3, {L}\nv_and_b32 v215, 7, {L}'),
                I(f'v_lshlrev_b32 v214, 13, v214\nv_lshl_add_u32 v214, v215, 6, v214'),
                I(f's_lshl_b32 {sT3}, {sB}, 19\ns_lshl_b32 {sT1}, {sW}, 17'),
                I(f's_add_u32 {sT3}, {sT3}, {sT1}\ns_lshl_b32 {sT1}, {sH0}, 8'),
                I(f's_add_u32 {sT3}, {sT3}, {sT1}\nbuffer_load_dword a138, v214, {SWQ}, {sT3} offen{pol}'),
                I(f's_add_u32 {sT3}, {sT3}, 65536\nbuffer_load_dword a139, v214, {SWQ}, {sT3} offen{pol}'),
                I(f'v_lshlrev_b32 v215, 6, {L}\ns_mul_i32 {sT3}, {sHP}, 40960'),
                I(f's_mul_i32 {sT1}, {sW}, 10240\ns_add_u32 {sT3}, {sT3}, {sT1}'),
                I(f'buffer_load_dword a140, v215, {SX}, {sT3} offen{pol}'),
                I(f's_add_u32 {sT3}, {sT3}, 4096\nbuffer_load_dword a141, v215, {SX}, {sT3} offen{pol}'),
                I(f's_add_u32 {sT3}, {sT3}, 4096\nbuffer_load_dword a142, v215, {SX}, {sT3} offen{pol}')]
    def l2pf_wo(self):
        pol = self.pol(self.c.pfpol)
        g128 = self.c.pfgran == 128
        us = [I(f'v_lshrrev_b32 v{vTA}, {1 if g128 else 2}, v{vLANE}\nv_and_b32 v{vTB}, {1 if g128 else 3}, v{vLANE}'),
              I(f'v_lshlrev_b32 v{vTA}, 10, v{vTA}\nv_lshl_add_u32 v{vTA}, v{vTB}, {7 if g128 else 6}, v{vTA}'),
              I(f's_lshr_b32 {sT1}, {sB}, 1'), I(self.hpair(sT3, sT1)), I(f's_lshl_b32 {sT3}, {sT3}, 18\ns_and_b32 {sT1}, {sB}, 1'), I(f's_lshl_b32 {sT1}, {sT1}, 17'),
              I(f's_add_u32 {sT3}, {sT3}, {sT1}\ns_lshl_b32 {sT1}, {sW}, 15'),
              I(f's_add_u32 {sT3}, {sT3}, {sT1}\ns_lshl_b32 {sT1}, {sHP}, 8'),
              I(f's_add_u32 {sT3}, {sT3}, {sT1}\nbuffer_load_dword a240, v{vTA}, {SWO}, {sT3} offen{pol}')]
        if not g128: us.append(I(f's_add_u32 {sT3}, {sT3}, 16384\nbuffer_load_dword a241, v{vTA}, {SWO}, {sT3} offen{pol}'))
        return us
    def tlb_touch(self):
        return [I(f'v_lshlrev_b32 v{vTB}, {self.c.tlbs}, v{vLANE}'),
                I(f'buffer_load_dword a245, v{vTB}, {SOX}, 0 offen sc0 sc1'),
                I(f'buffer_load_dword a246, v{vTB}, {SWS}, 0 offen sc0 sc1'),
                I(f's_mov_b64 s[4:5], s[100:101]\ns_mov_b32 s6, {8*160*1024*2}'),
                I(f's_mul_i32 {sT3}, {sB}, {160*2048}'),
                I(f'buffer_load_dword a247, v{vTB}, s[4:7], {sT3} offen')]
    def code_pf(self, label, srd, vt, dst):
        n = self.ncpf = getattr(self, 'ncpf', 0) + 1
        a = srd
        return [I(f's_getpc_b64 s[{a}:{a+1}]\nL_pcx{n}:\ns_add_u32 s{a}, s{a}, {label}-L_pcx{n}\ns_addc_u32 s{a+1}, s{a+1}, 0'),
                I(f's_mov_b32 s{a+2}, L_codeend-{label}\ns_mov_b32 s{a+3}, 0x20000'),
                I(f's_lshl_b32 {sT3}, {sW}, 13\nv_lshlrev_b32 v{vt}, 7, v{vLANE}'),
                I(f'buffer_load_dword a{dst}, v{vt}, s[{a}:{a+3}], {sT3} offen')]
    def dma_stream(self, units, lo, hi, slack=4):
        fs = []; n = len(units); prev = {}
        for k, u in enumerate(units):
            l = lo + (k * (hi - lo + 1)) // n
            after = False
            for x in u:
                c = 1
                if x.op == 's_cselect_b32' or x.kind in ('branch', 'label'):
                    fs[-1].ins.append(x); fs[-1].cost += x.cost; continue
                if isinstance(x.tag, tuple) and self.c.krot:
                    if prev.get('kvo') == x.tag: c = 0
                    if x.op == 's_or_b32': prev['kvo'] = x.tag
                elif x.kind == 'salu' and x.op == 's_add_u32' and len(x.writes) == 1:
                    w = next(iter(x.writes))
                    if prev.get(w) == x.text and w not in x.reads: c = 0
                    prev[w] = x.text
                if x.kind not in ('salu', 'valu'): fs.append(F([x], l, l + slack, cost=c)); after = True
                elif after: fs.append(F([x], l, 10**6, cost=c))
                else: fs.append(F([x], l - 3, l, cost=c))
        return fs
    def peer_setup(self):
        o = [f's_lshl_b32 {sT3}, {sHP}, 8', f's_lshl_b32 {sT2}, {sW}, 14', f's_add_u32 {sT3}, {sT3}, {sT2}']
        for r in range(4):
            o += [f's_add_u32 {sT2}, {sHP}, {r}', f's_and_b32 {sT2}, {sT2}, 3', f's_mul_i32 {sPO[r]}, {sT2}, 81920', f's_add_u32 {sPO[r]}, {sPO[r]}, {sW5K}',
                  self.hpair(sPWo[r], sT2), f's_lshl_b32 {sPWo[r]}, {sPWo[r]}, 18', f's_add_u32 {sPWo[r]}, {sPWo[r]}, {sT3}']
        assert 'sc1' in self.c.opol
        return '\n'.join(o)
    def krot_setup(self):
        if not self.c.krot: return ''
        return f's_mul_i32 {sKR}, s2, {self.c.krot}\ns_mul_i32 {sT0}, s47, {self.c.kk}\ns_add_u32 {sKR}, {sKR}, {sT0}\ns_mul_i32 {sT0}, {sHH}, {self.c.khh}\ns_add_u32 {sKR}, {sKR}, {sT0}\n{self.khash()}\ns_lshl_b32 {sKR}, {sKR}, 13'
    def hpair(self, dst, p, tmp=sT0):
        if self.c.hmap == 0: return f's_lshl_b32 {dst}, {sOCT}, 2\ns_add_u32 {dst}, {dst}, {p}'
        a = f's_add_u32 {dst}, {sOCT}, {p}\ns_and_b32 {dst}, {dst}, 3\n'
        if self.c.hmap == 5: return a + f's_lshl_b32 {dst}, {dst}, 2\ns_add_u32 {dst}, {dst}, {p}'
        return a + f's_lshl2_add_u32 {dst}, {p}, {dst}'
    def khash(self):
        if not self.c.kmul: return ''
        return f's_lshl_b32 {sKR}, s2, 1\ns_add_u32 {sKR}, {sKR}, {sHH}\ns_mul_i32 {sKR}, {sKR}, {self.c.kmul}\ns_lshr_b32 {sT0}, {sKR}, 16\ns_xor_b32 {sKR}, {sKR}, {sT0}\ns_mul_i32 {sKR}, {sKR}, 0x45d9f3b\ns_lshr_b32 {sKR}, {sKR}, 20'
    def rot_setup(self):
        if self.c.rot != 2: return f's_and_b32 {sXC}, {sXC}, {7 if self.c.rot else 0}'
        return f's_cmp_ge_u32 {sXC}, 7\ns_cselect_b32 {sWQC}, 7, 0\ns_sub_u32 {sXC}, {sXC}, {sWQC}\ns_add_u32 {sXC}, {sXC}, 1'
    def prologue(self):
        e = self.e; L = f'v{vLANE}'
        self.stamp('e')
        e(f'''
        s_cmp_ge_u32 s2, 256
        s_cbranch_scc1 L_end
        s_load_dwordx16 s[64:79], s[0:1], 0
        s_load_dwordx4 s[80:83], s[0:1], 64
        s_load_dwordx2 s[24:25], s[0:1], 96
        s_load_dwordx2 s[100:101], s[0:1], 80
        v_lshrrev_b32 v1, 6, v0
        v_and_b32 {L}, 63, v0
        v_readfirstlane_b32 {sW}, v1
        s_and_b32 s46, s2, 7
        s_lshr_b32 s47, s2, 3
        s_lshr_b32 {sB}, s47, 2
        s_and_b32 {sHP}, s47, 3
        s_and_b32 {sOCT}, s46, 3
        {self.hpair('s50', sHP)}
        s_lshl_b32 {sH0}, s50, 1
        s_lshr_b32 s52, s46, 2            ; branch
        s_and_b32 {sHH}, {sW}, 1
        s_lshr_b32 {sQH}, {sW}, 1
        v_and_b32 v2, 3, {L}
        v_lshlrev_b32 v2, 4, v2           ; cc*16
        v_lshrrev_b32 v3, 4, {L}          ; g
        v_bfe_u32 v4, {L}, 2, 2           ; r
        v_lshl_add_u32 v5, v3, 6, v2
        v_lshl_add_u32 v{vKVA}, v4, 8, v5
        v_xor_b32 v{vKVB}, 32, v{vKVA}
        v_lshl_add_u32 v{vWQA}, v4, 13, v5
        v_xor_b32 v{vWQB}, 16, v{vWQA}
        v_lshrrev_b32 v6, 5, {L}
        v_bfe_u32 v7, {L}, 2, 3
        v_lshl_add_u32 v8, v6, 6, v2
        v_lshl_add_u32 v8, v7, 10, v8
        s_lshl_b32 {sT0}, {sHH}, 5
        v_xor_b32 v{vX0}, {sT0}, v8
        v_xor_b32 v{vX1}, 32, v{vX0}
        s_lshl_b32 {sT0}, {sQH}, 12
        s_lshl_b32 {sKVLDS}, {sHH}, 13
        s_add_u32 {sKVLDS}, {sKVLDS}, {sT0}
        s_lshl_b32 {sKVOFF}, {sHH}, 17
        s_add_u32 {sKVOFF}, {sKVOFF}, {sT0}
        s_add_u32 {sT1}, {sH0}, {sHH}
        s_lshl_b32 {sWQOFF}, {sT1}, 8
        s_lshl_b32 {sT0}, {sQH}, 17
        s_add_u32 {sWQOFF}, {sWQOFF}, {sT0}
        s_mul_i32 {sXOFF}, {sW}, {5*8192}
        s_mul_i32 {sXLDS}, {sW}, {5*1024}
        s_lshl_b32 {sXC}, {sHP}, 1
        s_add_u32 {sXC}, {sXC}, {sB}
        {self.rot_setup()}
        s_lshl_b32 {sWQC}, {sXC}, 19
        s_lshl_b32 {sXC}, {sXC}, 7
        {self.krot_setup()}
        s_mul_i32 s53, {sB}, 163840
        s_lshl_b32 s54, {sB}, 5
        s_add_u32 s54, s54, {sH0}
        s_lshl_b32 s54, s54, 17
        s_mov_b32 s6, 163840
        s_mov_b32 s7, 0x20000
        s_mov_b32 s10, 0x400000
        s_mov_b32 s11, 0x20000
        s_mov_b32 s14, 0x40000
        s_mov_b32 s15, 0x20000
        s_mov_b32 s18, 0x40000
        s_mov_b32 s19, 0x20000
        s_cmp_eq_u32 s52, 0
        s_cselect_b64 s[4:5], s[64:65], s[74:75]
        s_cselect_b64 s[8:9], s[70:71], s[80:81]
        s_cselect_b64 s[12:13], s[66:67], s[76:77]
        s_cselect_b64 s[16:17], s[68:69], s[78:79]
        s_cselect_b64 s[20:21], s[72:73], s[82:83]
        s_add_u32 s4, s4, s53
        s_addc_u32 s5, s5, 0
        ''')
        self.stamp()
        for u in self.x_units(0) + self.wq_units(0) + self.wq_units(1): e(u)
        e(f'''
        s_add_u32 s12, s12, s54
        s_addc_u32 s13, s13, 0
        s_add_u32 s16, s16, s54
        s_addc_u32 s17, s17, 0
        ''')
        self.kvq = self.kv_dma(SK, 0, SLOT + 16384, 'k0') + self.kv_stage(0) + self.kv_dma(SK, 2, SLOT, 'kv1')
        for st in (2, 3, 4)[:self.c.nstg]: self.kvq += self.kv_reg(st)
        self.late_pro = self.x_units(1) + self.wq_units(2) + [self.kvq.pop(0) for _ in range(self.c.kv_pro)]
        if not self.c.lean:
            for u in self.late_pro: e(u)
            self.late_pro = []
        if self.c.codepf and self.c.lean:
            e(f'''s_getpc_b64 s[84:85]
            L_pc0:
            s_mov_b32 s86, L_codeend-L_pc0
            s_mov_b32 s87, 0x20000
            v_and_b32 v22, 15, {L}
            v_lshlrev_b32 v22, 7, v22
            s_and_b32 {sT0}, s47, 7
            s_lshl_b32 {sT0}, {sT0}, 2
            s_add_u32 {sT0}, {sT0}, {sW}
            s_lshl_b32 {sT0}, {sT0}, 11
            buffer_load_dword a136, v22, s[84:87], {sT0} offen''')
        elif self.c.codepf:
            e(f'''s_getpc_b64 s[84:85]
            L_pc0:
            s_mov_b32 s86, L_codeend-L_pc0
            s_mov_b32 s87, 0x20000
            v_lshlrev_b32 v22, 7, v0
            buffer_load_dword a136, v22, s[84:87], 0 offen
            s_mov_b32 {sT0}, 32768
            buffer_load_dword a137, v22, s[84:87], {sT0} offen''')
        e(f'''
        s_mul_i32 {sPW}, {sW}, 10240
        s_lshl_b32 {sW4K}, {sW}, 12
        s_mul_i32 {sW5K}, {sW}, 5120
        s_mov_b32 {sC}, {f32(128 ** -0.5 * math.log2(math.e))}
        s_mov_b32 {sT}, {f32(self.c.thr)}
        s_lshl_b32 s55, s52, 3
        s_add_u32 s55, s55, {sB}          ; group = branch*8 + b
        s_lshl_b32 {sCL}, s55, 2
        s_add_u32 {sT2}, {sCL}, {sHP}
        s_mov_b32 {sBLK}, {sT2}
        s_add_u32 {sCL}, {sCL}, {sOCT}    ; cluster = group*4 + octet
        s_lshl_b32 {sT2}, {sT2}, 2
        s_add_u32 {sT2}, {sT2}, {sOCT}
        s_mul_i32 {sT2}, {sT2}, {PART_BYTES}
        s_add_u32 {sT2}, {sT2}, {PART_OFF}
        s_mul_i32 s55, {sCL}, {OX_BYTES}
        s_mov_b32 s22, 0x400000
        s_mov_b32 s23, 0x20000
        s_mov_b64 s[56:57], s[24:25]
        s_add_u32 s76, s24, s55
        s_addc_u32 s77, s25, 0
        s_mov_b32 s78, {OX_BYTES}
        s_mov_b32 s79, 0x20000
        s_add_u32 s24, s24, {sT2}
        s_addc_u32 s25, s25, 0
        s_mov_b32 s26, {PART_BYTES}
        s_mov_b32 s27, 0x20000
        s_lshl_b32 {sCL}, {sCL}, 7
        s_add_u32 {sCL}, {sCL}, {FLAG_OFF}
        s_add_u32 s80, s56, {sCL}
        s_addc_u32 s81, s57, 0
        s_mov_b32 s82, 16
        s_mov_b32 s83, 0x20000
        v_add_u32 v24, {sHP}, {L}
        v_and_b32 v24, 3, v24
        v_lshlrev_b32 v24, 2, v24
        buffer_load_dword v{vFOFF}, v24, {SDB}, 0 offen sc0 sc1
        s_lshl_b32 {sCL}, {sHP}, 2
        s_mov_b32 {sWB}, 0
        s_lshl_b32 {sT2}, {sBLK}, 7
        s_add_u32 {sT2}, {sT2}, {FLAG_OFF + 8192}
        s_add_u32 s84, s56, {sT2}
        s_addc_u32 s85, s57, 0
        s_mov_b32 s86, 64
        s_mov_b32 s87, 0x20000
        s_lshl_b32 {sT2}, {sW}, 2
        v_lshlrev_b32 v24, 4, {L}
        buffer_load_dword v{vFOFF2}, v24, {SD2}, {sT2} offen sc0 sc1
        s_lshl_b32 {sIDX2}, {sOCT}, 2
        s_add_u32 {sIDX2}, {sIDX2}, {sW}
        s_mul_i32 {sOW}, {sHP}, 81920
        s_mul_i32 {sT2}, {sHH}, 40960
        s_add_u32 {sOW}, {sOW}, {sT2}
        s_mul_i32 {sT2}, {sQH}, 10240
        s_add_u32 {sOW}, {sOW}, {sT2}
        {self.peer_setup()}
        v_and_b32 v9, 1, v3
        v_lshlrev_b32 v9, 5, v9           ; 32*(g&1)
        v_lshl_add_u32 v{vWOV}, v4, 10, v5
        v_and_b32 v10, 15, {L}
        v_and_b32 v11, 3, {L}
        v_lshrrev_b32 v12, 2, v10
        v_and_b32 v13, 1, v12
        v_lshlrev_b32 v13, 5, v13
        v_lshlrev_b32 v14, 4, v3
        v_xor_b32 v13, v13, v14
        v_lshl_add_u32 v13, v11, 6, v13
        v_lshl_add_u32 v13, v12, 10, v13
        s_lshl_b32 {sT1}, {sHH}, 13
        v_add_u32 v{aK}, {sT1}, v13
        v_lshl_add_u32 v15, v11, 3, v9
        v_lshl_add_u32 v15, v4, 6, v15
        v_lshl_add_u32 v16, v3, 10, v15
        v_add_u32 v{aVE}, {sT1}, v16
        v_lshrrev_b32 v16, 1, v9          ; 16*(g&1)
        v_lshlrev_b32 v22, 4, v11         ; 16*c4
        v_xor_b32 v16, v16, v22
        v_and_b32 v22, 1, v11
        v_lshl_add_u32 v16, v22, 3, v16   ; + 8*(c4&1)
        v_lshl_add_u32 v16, v4, 6, v16    ; + r*64
        v_lshl_add_u32 v16, v3, 11, v16   ; + g*2048
        v_add_u32 v16, {sT1}, v16
        v_add_u32 v{vQE[0]}, {WQBUF[0]}, v16
        v_add_u32 v{vQE[1]}, {WQBUF[1]}, v16
        v_add_u32 v{vQE[2]}, {WQBUF[2]}, v16
        v_xor_b32 v{vQO[0]}, 8, v{vQE[0]}
        v_xor_b32 v{vQO[1]}, 8, v{vQE[1]}
        v_xor_b32 v{vQO[2]}, 8, v{vQE[2]}
        s_mov_b32 vcc_lo, 0xffff0000
        s_mov_b32 vcc_hi, 0xffff0000
        v_lshrrev_b32 v17, 3, v10
        v_lshlrev_b32 v18, 5, v17
        v_xor_b32 v18, v18, v14
        v_and_b32 v19, 7, {L}
        v_lshl_add_u32 v18, v19, 6, v18
        v_lshl_add_u32 v18, v17, 10, v18
        s_mul_i32 {sT2}, {sQH}, 10240
        v_add_u32 v18, {sT2}, v18
        v_add_u32 v{vXR[0]}, {XBUF[0]}, v18
        v_add_u32 v{vXR[1]}, {XBUF[1]}, v18
        v_lshl_add_u32 v20, v3, 10, v15
        s_lshl_b32 {sT2}, {sHH}, 9
        v_add_u32 v{vOE}, {sT2}, v20
        v_lshlrev_b32 v{vWA1}, 4, {L}
        v_add_u32 v{vWA1}, {sKVLDS}, v{vWA1}
        v_add_u32 v{vWA[0]}, 65536, v{vWA1}
        v_add_u32 v{vWA[1]}, 131072, v{vWA1}
        v_add_u32 v{vWA1}, {SLOT}, v{vWA1}
        v_mov_b32 v21, 0x3f803f80
        v_accvgpr_write_b32 a{aONE}, v21
        v_accvgpr_write_b32 a{aONE+1}, v21
        v_accvgpr_write_b32 a{aONE+2}, v21
        v_accvgpr_write_b32 a{aONE+3}, v21
        ''')
    def q_reads(self, j):
        st = (j & 1) * 52
        xr = [I(f'ds_read_b128 {ar(st + 32 + 4*t)}, v{vXR[(j >> 1) & 1]} offset:{t*2048 + (j & 1)*512}') for t in range(5)]
        aa = []
        for dt in range(8):
            for u in range(2):
                adr = (vQE if dt % 2 == 0 else vQO)[j % 3]
                aa.append(I(f'ds_read_b64_tr_b16 {ar(st + 4*dt + 2*u, 2)}, v{adr} offset:{u*1024 + (dt >> 1)*256}'))
        return aa[:2] + xr + aa[2:]
    def k_reads(self, base, tag='kr'):
        us = [I(f'v_add_u32 v{vK}, {base}, v{aK}')]
        for ks in range(4):
            for kt in range(2):
                us.append(I(f'ds_read_b128 {ar(aKF + (kt*4+ks)*4)}, v{vK} offset:{kt*4096 + ks*256}', tag=tag))
        return us
    def v_reads(self, base, dst=aVF, tag='vr'):
        pre = [I(f'v_add_u32 v{vVE}, {base}, v{aVE}'), I(f'v_xor_b32 v{vVO}, 32, v{vVE}')]
        us = []
        for dt in range(8):
            for h in range(2):
                us.append((dt, I(f'ds_read_b64_tr_b16 {ar(dst + 4*dt + 2*h, 2)}, v{vVE if dt % 2 == 0 else vVO} offset:{16384 + h*4096 + (dt >> 1)*256}', tag=tag)))
        return pre, us
    def q_mfmas(self, j, touter=False):
        st = (j & 1) * 52; m = []
        order = [(t, dt) for t in range(5) for dt in range(8)] if touter else [(t, dt) for dt in range(8) for t in range(5)]
        for t, dt in order:
            m += I(f'{MF} {vr(O(t, dt))}, {ar(st + 4*dt)}, {ar(st + 32 + 4*t)}, {vr(O(t, dt)) if j else "0"}')
        return m
    def s_mfmas(self, zero=False):
        m = []
        for t in range(5):
            for ks in range(4):
                for kt in range(2):
                    c = vr(Sreg(t, kt)) if ks else ('0' if zero else vr(NM4 + 4*t))
                    m += I(f'{MF} {vr(Sreg(t, kt))}, {ar(aKF + (kt*4+ks)*4)}, {ar(Qf(ks, t))}, {c}')
        m[0] = waittag('kr') + [m[0]]
        return m
    def pv_mfmas(self, first=False, vf=aVF, ones_first=True):
        ones = [I(f'{MF} {ar(aL + 4*t)}, {ar(aONE)}, {vr(Preg(t))}, {"0" if first else ar(aL + 4*t)}')[0] for t in range(5)]
        m = list(ones) if ones_first else []
        for t in range(5):
            if not ones_first: m.append(ones[t])
            for dt in range(8):
                m += I(f'{MF} {vr(O(t, dt))}, {ar(vf + 4*dt)}, {vr(Preg(t))}, {"0" if first else vr(O(t, dt))}')
        return m
    def q_convert(self, t):
        us = []
        for ks in range(4):
            x = O(t, 2*ks); y = x + 4
            if self.c.pkq:
                for k in range(0, 8, 2): us.append(I(f'v_pk_mul_f32 v[{x+k}:{x+k+1}], v[{x+k}:{x+k+1}], s[40:41] op_sel_hi:[1,0]'))
            else:
                for k in range(8): us.append(I(f'v_mul_f32 v{x+k}, {sC}, v{x+k}'))
        for ks in range(4):
            x = O(t, 2*ks); y = x + 4
            for s in (f'v{x}, v{x}, v{x+1}', f'v{y}, v{y}, v{y+1}', f'v{x+1}, v{x+2}, v{x+3}', f'v{y+1}, v{y+2}, v{y+3}'):
                us.append(I('v_cvt_pk_bf16_f32 ' + s))
        for ks in range(4):
            x = O(t, 2*ks); y = x + 4
            for k in range(2):
                us.append(I(f'v_cndmask_b32 v{x+2+k}, v{x+k}, v{y+k}, vcc'))
                us.append(I(f'v_cndmask_b32 v{y+2+k}, v{y+k}, v{x+k}, vcc'))
        for ks in range(4):
            x = O(t, 2*ks); y = x + 4
            for k, r in enumerate((x+2, x+3, y+2, y+3)): us.append(I(f'v_accvgpr_write_b32 a{Qf(ks, t)+k}, v{r}'))
        return us
    def exp_units(self, t):
        b = Sreg(t, 0)
        return [I(f'v_exp_f32 v{b+k}, v{b+k}') for k in range(8)], [I(f'v_cvt_pk_bf16_f32 v{Preg(t)+k}, v{b+2*k}, v{b+2*k+1}') for k in range(4)]
    def rowmax(self, m, c, b):
        return I(f'''v_max3_f32 v{m}, v{b}, v{b+1}, v{b+2}
        v_max3_f32 v{c}, v{b+3}, v{b+4}, v{b+5}
        v_max3_f32 v{m}, v{m}, v{b+6}, v{b+7}
        v_max_f32 v{m}, v{m}, v{c}
        v_mov_b32 v{c}, v{m}
        v_permlane32_swap_b32 v{m}, v{c}
        v_max_f32 v{m}, v{m}, v{c}
        v_mov_b32 v{c}, v{m}
        v_permlane16_swap_b32 v{m}, v{c}
        v_max_f32 v{m}, v{m}, v{c}''')
    def softmax_streams(self, i, ck, exp_dead, cvt_lo):
        mx = []
        for t in range(5):
            b = Sreg(t, 0)
            for k in range(4):
                m = vMX0 if k % 2 == 0 else vMX1
                if t == 0 and k < 2: mx.append(I(f'v_max_f32 v{m}, v{b+2*k}, v{b+2*k+1}'))
                else: mx.append(I(f'v_max3_f32 v{m}, v{b+2*k}, v{b+2*k+1}, v{m}'))
        mx.append(I(f'v_max_f32 v{vMX0}, v{vMX0}, v{vMX1}'))
        st = FS(mx + [I(f'v_cmp_lt_f32 vcc, {sT}, v{vMX0}')], -1, ck - 1)
        st.append(F(I(f's_cbranch_vccnz L_stub{i}\nL_ret{i}:'), ck, ck, cost=1))
        self.stubs.append(i)
        if self.c.nomax: st = [F(I(f'L_ret{i}:'), -1, 0, cost=0)]
        for t in range(5):
            ex, cv = self.exp_units(t)
            st += FS(ex, -1, exp_dead(t)) + FS(cv, cvt_lo(t), exp_dead(t))
        return st
    def q_phase(self):
        e = self.e
        self.stamp('e'); e(waittag('x0', 'wq0')); self.stamp('e'); e('s_barrier'); self.stamp('q', 'e')
        qr = self.q_reads(0)
        for k, u in enumerate(qr):
            e(u)
            if k < len(self.late_pro): e(self.late_pro[k])
        for u in self.late_pro[len(qr):]: e(u)
        e(waittag('wq1')); e('s_waitcnt lgkmcnt(0)\ns_barrier'); self.stamp('e')
        for j in range(15):
            d = []
            if j + 3 < 16: d += self.wq_units(j + 3)
            if j % 2 == 1 and (j - 1) // 2 + 2 < 8: d += self.x_units((j - 1) // 2 + 2)
            ke = self.c.kv_end
            if j < self.c.kv_start: n = 0
            elif self.c.kveven == 2:
                wts = [(1.0 if (k % 2 == 0 or k >= 13) else self.c.kvw) for k in range(j, ke)]
                n = round(len(self.kvq) * wts[0] / sum(wts)) if wts else len(self.kvq)
            elif self.c.kveven:
                left = len([k for k in range(j, ke) if k % 2 == 0 or k >= 13])
                n = 0 if (j % 2 == 1 and j < 13) else (-(-len(self.kvq) // max(1, left)))
            else:
                n = -(-len(self.kvq) // max(1, ke - j)) if j < ke else len(self.kvq)
            d += [self.kvq.pop(0) for _ in range(min(n, len(self.kvq)))]
            ds = self.dma_stream(d, 1, min(39, self.c.vsp * len(d)), slack=1) if d else []
            streams = [FS(self.q_reads(j + 1), 0, 30), ds]
            if j == 0 and self.c.l2pfq: streams.append(FS(self.l2pf_q(), 22, 39))
            if j == 3: streams.append(FS([I(f'v_readlane_b32 {sOLD[r]}, v{vFOFF}, {r}') for r in range(4)] + [I(f'v_readlane_b32 {sOLD2[r]}, v{vFOFF2}, {r}') for r in range(4)], 30, 39))
            if self.c.cpf1 and j == self.c.cpf1: streams.append(FS(self.code_pf('L_conv', 60, 216, 143), 24, 39))
            if j == 14 and self.c.nstg >= 1: streams.append(FS(self.kv_drain(2), 20, 39, step=2))
            if j == 13 and self.c.nstg < 1: streams.append(self.dma_stream(self.kv_stage(2), 4, 36))
            self.sch(f'q{j}', self.q_mfmas(j), streams)
            tags = []
            if j + 2 < 16:
                tags.append(f'wq{j+2}')
                if (j + 2) % 2 == 0: tags.append(f'x{(j+2)//2}')
            if j == 14: tags += ['k0', 'kv0']
            e(waittag(*tags)); e('s_waitcnt lgkmcnt(0)\ns_barrier'); self.stamp('q')
    def q_to_attn(self):
        main = self.q_mfmas(15, touter=True) + self.s_mfmas(zero=True) + self.s_mfmas()
        conv = []
        for t in range(5):
            cu = self.q_convert(t)
            conv += FS(cu, 8*t + 9, 39 + 8*t)
        drains = FS(self.kv_drain(3), 8, 24, step=2) if self.c.nstg >= 2 else []
        if self.c.nstg >= 3: drains += FS(self.kv_drain(4), 24, 40, step=2)
        for f in conv:
            w = [r for x in f.ins for r in x.writes if r[0] == 'a']
            if w and int(w[0][1:]) >= 192: f.lo = max(f.lo, 26 if int(w[0][1:]) < 224 else 42)
        init = []
        for t in range(5):
            b = Sreg(t, 0); lo = 40 + 8*t + 9; hi = 79 + 8*t
            u = [[x] for x in self.rowmax(vMX0, vMX1, b)]
            u += [I(f'v_sub_f32 v{NM4+4*t+k}, 0, v{vMX0}') for k in range(4)]
            u += [I(f'v_sub_f32 v{b+k}, v{b+k}, v{vMX0}') for k in range(8)]
            ex, cv = self.exp_units(t)
            init += FS(u + ex + cv, lo, hi)
        k0 = FS(self.k_reads(SLOT + 16384), -1, 12)
        k1 = self.k_reads(0)
        k1s = [F(k1[0], 60, 79)] + [F(u, 72 + k, 79) for k, u in enumerate(k1[1:])]
        pre, vu = self.v_reads(0)
        vs = FS(pre, 44, 70) + [F(u, 44, 84) for _, u in vu]
        d0 = (self.kv_stage(3) if self.c.nstg < 2 else []) + (self.kv_stage(4) if self.c.nstg < 3 else [])
        v1 = self.dma_stream(d0, 0, 40) if d0 else []
        if self.c.late and not d0: v1 += self.dma_stream(self.kv_reg(6, (0,)), 4, 40)
        v1 += [F(I('s_barrier'), 46, 50)] + self.dma_stream(self.kv_dma(SV, 1, SLOT + 16384, 'kv1'), 50, 64)
        if self.c.late: v1 += self.dma_stream(self.kv_reg(6, (1,) if not d0 else (0, 1)), 66, 86)
        if self.c.early5:
            v1 += [F(waittag('vr') + I('s_barrier'), 88, 90, cost=2)] + self.dma_stream(self.kv_stage(5), 92, 116)
        self.e('L_conv:')
        self.sch('q15..s1', main, [k0, drains, conv + init, k1s, vs, v1], pre_cap=9, cap=self.c.ccap)
    def iteration(self, i):
        e = self.e
        L0 = max(4, self.c.regend - 3) if self.c.late else 2
        dyn = self.c.loop and L0 <= i <= self.c.lend
        if dyn and i == L0:
            e(f's_mov_b32 {sRB}, {(L0 % 5)*SLOT}\ns_add_u32 {sDB}, {sKVLDS}, {((L0 - 1) % 5)*SLOT}\n{self.kvoff(L0 + 5, sKO)}\n{self.kvoff(L0 + 4, sVO)}')
        if dyn: e(f'L_loopmark{i}:')
        tags = [f'kv{i}', 'vr'] + (['wown'] if i == 15 else [])
        if i == 15 and self.c.v15gap >= 0: return self.tail()
        if dyn: e('s_waitcnt vmcnt(24) lgkmcnt(0)')
        e(waittag(*tags)); e('s_barrier')
        if i == 15: return self.tail()
        if dyn: dma = self.kv_stage_dyn(i + 4)
        elif i == 1 and self.c.early5: dma = self.kv_reg(7) if self.c.late else []
        elif self.c.late and 6 <= i + 4 <= self.c.regend:
            dr = self.kv_drain(i + 4); dma = dr
            if i + 6 <= self.c.regend:
                ld = self.kv_reg(i + 6); h = len(dr) // 2
                dma = dr[:h] + dr[h:] + ld if len(ld) < 8 else dr[:h] + ld[:4] + dr[h:] + ld[4:]
        else:
            sm = {s: s - 4 for s in range(8, 16)}
            sm.update({int(a): int(b) for a, b in (x.split('~') for x in self.c.smap.split('/') if x)})
            dma = []
            for s in sorted(sm):
                if sm[s] == i and s > self.c.regend: dma += self.kv_stage(s)
            if 0 <= i - self.c.wo_it <= 1: dma += self.wo_own(i - self.c.wo_it)
        main = self.pv_mfmas(first=(i == 1)) + self.s_mfmas()
        base = sRB if dyn else (i % 5) * SLOT
        sm = self.softmax_streams(i, 11, lambda t: 44 + 8*t, lambda t: 12 + 8*t)
        ks = FS(self.k_reads(base), -1, 36)
        pre, vu = self.v_reads(base)
        vs = FS(pre, 20, 60) + [F(u, 37 + dt, 80) for dt, u in vu]
        streams = [sm, ks, vs]
        ds = self.dma_stream(dma, self.c.dlo if i < 12 else 13, self.c.dhi if i < 12 else self.c.wo_hi) if dma else []
        if self.c.l2pf and i == self.c.pfit: ds += FS(self.l2pf_wo(), 72, 84)
        if self.c.tlb == i: ds = FS(self.tlb_touch(), 13, 30) + ds
        if self.c.cpf2 == i: ds = FS(self.code_pf('L_tail', 4, vTB, 244), 13, 30) + ds
        if dyn:
            ds += FS([I(x) for x in (f's_add_u32 {sDB}, {sRB}, {sKVLDS}', f's_add_u32 {sRB}, {sRB}, {SLOT}',
                      f's_cmp_eq_u32 {sRB}, {5*SLOT}\ns_cselect_b32 {sRB}, 0, {sRB}', f's_mov_b32 {sVO}, {sKO}', f's_add_u32 {sKO}, {sKO}, 8192') + ((f's_and_b32 {sKO}, {sKO}, 0x1e000', f's_or_b32 {sKO}, {sKO}, {sKVOFF}') if self.c.krot else ())], 61, 84)
        streams.append(ds)
        self.sch(f'it{i}', main, streams)
        if dyn: e(f'L_loopend{i}:')
    def rare(self):
        p = I('L_rare:\ns_nop 7\ns_nop 1')
        for t in range(5):
            b = Sreg(t, 0)
            p += self.rowmax(vMX0, vMX1, b)
            p += I(f'v_max_f32 v{vMX0}, 0, v{vMX0}')
            for k in range(4): p += I(f'v_sub_f32 v{NM4+4*t+k}, v{NM4+4*t+k}, v{vMX0}')
            for k in range(8): p += I(f'v_sub_f32 v{b+k}, v{b+k}, v{vMX0}')
            p += I(f'v_sub_f32 v{vTA}, 0, v{vMX0}\nv_exp_f32 v{vTA}, v{vTA}')
            for k in range(32): p += I(f'v_mul_f32 v{O(t,0)+k}, v{O(t,0)+k}, v{vTA}')
            for k in range(4):
                p += I(f'v_accvgpr_read_b32 v{vTB}, a{aL+4*t+k}\nv_mul_f32 v{vTB}, v{vTB}, v{vTA}\nv_accvgpr_write_b32 a{aL+4*t+k}, v{vTB}')
            for k in range(4):
                r = Preg(t) + k
                p += I(f'''v_lshlrev_b32 v{vTB}, 16, v{r}
                v_and_b32 v{vMX1}, 0xffff0000, v{r}
                v_mul_f32 v{vTB}, v{vTB}, v{vTA}
                v_mul_f32 v{vMX1}, v{vMX1}, v{vTA}
                v_cvt_pk_bf16_f32 v{r}, v{vTB}, v{vMX1}''')
        p += I(f's_nop 1\ns_setpc_b64 {sRET}')
        return p
    def own(self, ks, t): return self.ownmap[(ks, t)]
    def acc(self, t, nt): return 32*t + 4*nt
    def norm_units(self, t):
        us = [I(f'v_accvgpr_read_b32 v{vRL+t}, a{aL+4*t}'), I(f'v_rcp_f32 v{vRL+t}, v{vRL+t}')]
        for ks in range(4):
            b = O(t, 2*ks)
            if self.c.pkn:
                r = vRL + t; pr = r & ~1; sel = r & 1
                for k in range(0, 8, 2): us.append(I(f'v_pk_mul_f32 v[{b+k}:{b+k+1}], v[{b+k}:{b+k+1}], v[{pr}:{pr+1}] op_sel:[0,{sel}] op_sel_hi:[1,{sel}]'))
            else:
                for k in range(8): us.append(I(f'v_mul_f32 v{b+k}, v{b+k}, v{vRL+t}'))
            for k in range(4): us.append(I(f'v_cvt_pk_bf16_f32 v{self.own(ks, t) + k}, v{b+2*k}, v{b+2*k+1}'))
            f = ks*5 + t
            adr, off = (vEX1, f*1024) if f < 16 else (vEX2, (f-16)*1024)
            us.append(I(f's_add_u32 {sT1}, {sOW}, {(ks >> 1)*20480 + ((ks & 1)*5 + t)*1024}') +
                      I(f'buffer_store_dwordx4 {vr(self.own(ks, t))}, v{vL16}, {SOX}, {sT1} offen{self.pol(self.c.opol)}', tag='ost'))
            us.append(I(f'ds_write_b128 v{adr}, {vr(self.own(ks, t))} offset:{off}', tag='exw'))
        return us
    def a_reads(self, e, o, base, nks, dst, tag):
        us = []
        for ks in range(nks):
            for nt in range(4):
                for h in range(2):
                    us.append(I(f'ds_read_b64_tr_b16 {ar(dst + (ks*4 + nt)*4 + 2*h, 2)}, v{e if nt % 2 == 0 else o} offset:{base + ks*8192 + h*4096 + (nt >> 1)*256}', tag=tag))
        return us
    def rem_reads(self, kp):
        u = kp // 2; ksl = kp % 2; st = self.aset(kp)
        aa = self.a_reads(vWEr, vWOr, WOB[u % 4] + ksl*8192, 1, st, 'rr')
        adr, off = (vOB0, OB[u % 4] - OB[0]) if u % 4 < 2 else (vOB1, OB[u % 4] - OB[2])
        bb = [I(f'ds_read_b128 {ar(st + 16 + 4*t)}, v{adr} offset:{off + (ksl*5 + t)*1024}', tag='rr') for t in range(5)]
        return aa[:2] + bb + aa[2:]
    def aset(self, kp):
        return aSET[kp % 2] if kp < 22 else (0, 40)[kp - 22]
    def check(self, r):
        self.chk.append(r)
        return I(f'v_readlane_b32 {sRDY}, v{vPOLL}, {r}\ns_sub_u32 {sRDY}, {sRDY}, {sOLD[r]}\ns_cmp_eq_u32 {sRDY}, {sXCC if "sc1" not in self.c.opol else 32}\ns_cbranch_scc0 L_cstub{r}\nL_cret{r}:')
    def store_units(self, t):
        us = []
        for m in range(2):
            b = self.acc(t, 2*m)
            for k in range(4): us.append(I(f'v_cvt_pk_bf16_f32 v{b+k}, v{b+2*k}, v{b+2*k+1}'))
            us.append(I(f's_add_u32 {sT1}, {sPW}, {(t*2+m)*1024}') +
                      I(f'buffer_store_dwordx4 {vr(b)}, v{vL16}, {SWS}, {sT1} offen{self.pol(self.c.stpol)}', tag='st'))
        return us
    def tail(self):
        e = self.e; L = f'v{vLANE}'; self.chk = []
        e('L_tail:\ns_mov_b64 s[16:17], s[100:101]')
        regs = {0: [220, 224, 228, 232], 1: [236, 160, 164, 168], 2: [172, 176, 180, 184], 3: [188, 192, 196, 200], 4: [204, 208, 212, 216]}
        self.ownmap = {(ks, t): regs[t][ks] for t in range(5) for ks in range(4)}
        o0 = []
        for t in range(5):
            for ks in range(4):
                for nt in range(4):
                    o0 += I(f'{MF} {vr(self.acc(t, nt))}, {ar(aA0 + (ks*4+nt)*4)}, {vr(self.own(ks, t))}, {vr(self.acc(t, nt)) if ks else "0"}')
        pv15 = self.pv_mfmas(vf=aKF, ones_first=False)
        pv15[0] = waittag('vr') + [pv15[0]]
        o0[0] = waittag('af0') + [o0[0]]
        main = self.pv_mfmas() + pv15 + o0
        sm = self.softmax_streams(15, 11, lambda t: 43 + 9*t, lambda t: 12 + 8*t)
        pre, vu = self.v_reads(0, dst=aKF)
        rd = FS(pre + [u for _, u in vu], -1, 30)
        if self.c.v15gap >= 0:
            G = self.c.v15gap
            rd = [F(waittag('kv15', 'wown') + I('s_barrier'), G, G, cost=2)] + FS(pre + [u for _, u in vu], G, 40)
            main[5] = waittag('vr') + [main[5]]
        rd += FS([I(f's_lshl_b32 {sT1}, {sHH}, 15'), I(f's_add_u32 {sT1}, {sT1}, {SLOT}'), I(f'v_add_u32 v{vOEs}, {sT1}, v{vOE}'), I(f'v_xor_b32 v{vOOs}, 32, v{vOEs}')] +
                 self.a_reads(vOEs, vOOs, 0, 4, aA0, 'af0'), -1, 70)
        setup = [I(x) for x in (f'v_lshlrev_b32 v{vL16}, 4, {L}', f's_lshl_b32 {sT1}, {sW}, 14', f's_add_u32 {sT1}, {sT1}, 98304',
                 f'v_add_u32 v{vEX1}, {sT1}, v{vL16}', f'v_add_u32 v{vEX2}, {sW4K}, v{vL16}')]
        st0 = []
        k0 = [i for i, f in enumerate(rd) if any(f'v{aVE}' in x.reads for x in f.ins)][0]
        rd[k0 + 2:k0 + 2] = FS(setup, -1, 52)
        rd += [F(waittag('vr') + I('s_barrier'), 72, 80, cost=2)] + self.dma_stream(self.wo_rem(0), 74, 90)
        rd += FS([I(f'v_xor_b32 v{vOEs}, 0x18000, v{vOEs}'), I(f'v_xor_b32 v{vOOs}, 0x18000, v{vOOs}')] + self.a_reads(vOEs, vOOs, 0, 4, aA1, 'af1'), self.c.normlast - 40, 164)
        nl = self.c.normlast
        nm = []
        carry = []
        for t in range(5):
            nu = self.norm_units(t)
            if self.c.nlag:
                out = []; pend = carry; carry = []
                for u in nu:
                    if any(x.kind in ('vst', 'ds') for x in u): pend.append([self.c.nlag * (len(pend) + 1), u]); continue
                    out.append(u)
                    for p in pend: p[0] -= 1
                    while pend and pend[0][0] <= 0: out.append(pend.pop(0)[1])
                if t < 4: carry = pend
                else: out += [p[1] for p in pend]
                nu = out
            nm += FS(nu, 45 + 9*t + 10, min(89 + 16*t, nl))
            if t == 0:
                nm += FS([I(x) for x in (f'v_xor_b32 v{vEXR1}, 0x4000, v{vEX1}', f'v_xor_b32 v{vEXR2}, 0x1000, v{vEX2}', f's_mul_i32 {sT1}, {sQH}, 10240',
                          f's_add_u32 {sT1}, {sT1}, {OB[0]}', f'v_add_u32 v{vOB0}, {sT1}, v{vL16}', f'v_add_u32 v{vOB1}, {OB[2] - OB[0]}, v{vOB0}',
                          f'v_mov_b32 v{vWEr}, v{vOE}', f'v_xor_b32 v{vWOr}, 32, v{vOE}', f's_add_u32 {sT1}, {sOLD[0]}, {sXCC if "sc1" not in self.c.opol else 32}\nv_mov_b32 v{vFLAG}, {sT1}', f'v_add_u32 v{vPOFF}, {sHP}, {L}', f'v_and_b32 v{vPOFF}, 3, v{vPOFF}', f'v_lshlrev_b32 v{vPOFF}, 2, v{vPOFF}')], -1, 89)
        l4 = [f for f in nm if any(f'a{aL+16}' in x.reads for x in f.ins)][0]
        for f in rd:
            if any(x.tag == 'af1' for x in f.ins): f.lo = max(f.lo, 100)
        l4.hi = min(l4.hi, 99)
        exr = []
        for f in range(20):
            adr, off = (vEXR1, f*1024) if f < 16 else (vEXR2, (f-16)*1024)
            exr.append(I(f'ds_read_b128 {ar(aPART + 4*f)}, v{adr} offset:{off}', tag='exr'))
        nm += [F(waittag('exw') + I('s_barrier'), -1, nl + 6, cost=2)] + FS(exr, -1, 164)
        pl = [F(I(f'buffer_load_dword v{vPOLL}, v{vPOFF}, {SDB}, 0 offen sc0 sc1'), self.c.pearly, self.c.pearly)] if self.c.pearly else []
        self.sch('tail', main, [sm, rd, st0, nm, pl], cap=self.c.tcap)
        self.stamp('main', 'o', 'h', 'ao')
        main = []
        for ks in range(4):
            for nt in range(4):
                for t in range(5):
                    main += I(f'{MF} {vr(self.acc(t, nt))}, {ar(aA1 + (ks*4+nt)*4)}, {ar(aPART + (ks*5+t)*4)}, {vr(self.acc(t, nt))}')
        main[0] = waittag('exr', 'af1') + I('s_barrier') + [main[0]]
        Z, Pg = self.c.zgap, self.c.pgap
        sig = self.stamp_i('h') + waittag('ost') + self.stamp_i('h') + I(f's_barrier\ns_cmp_lg_u32 {sW}, 0\ns_cbranch_scc1 L_nosig')
        sig += I(f's_mov_b64 exec, 1\nbuffer_store_dword v{vFLAG}, off, {SDB}, {sCL} sc0 sc1\ns_mov_b64 exec, -1\nL_nosig:')
        for x in sig:
            if x.kind == 'vst': x.kind = 'opaque'
        ds = [F(sig, Z, Z, cost=4)] + self.dma_stream(self.wo_rem(1) + self.wo_rem(2) + self.wo_rem(3), 0, 0)[:0]
        if self.c.pearly:
            ds += [F(self.stamp_i('h') + self.check(1) + self.stamp_i('h'), Z, Z, cost=4)]
            un = self.o_rem(0)
            for u in range(1, 4): un += self.o_rem(u) + self.wo_rem(u)
            d2 = self.dma_stream(un, Z + 2, 78, slack=0)
            for f in d2: f.lo = max(f.lo, Z)
            ds += d2
        else:
            w13 = self.dma_stream(self.wo_rem(1) + self.wo_rem(2) + self.wo_rem(3), Z + 2, Pg - self.c.pdist - 2)
            ds += w13 + [F(I(f'buffer_load_dword v{vPOLL}, v{vPOFF}, {SDB}, 0 offen sc0 sc1'), Pg - self.c.pdist, Pg - self.c.pdist),
                         F(self.stamp_i('h') + self.check(1) + self.stamp_i('h'), Pg, Pg, cost=4)]
            ds += self.dma_stream(self.o_rem(0) + self.o_rem(1) + self.o_rem(2) + self.o_rem(3), Pg + 1, 79, slack=0)
        c0 = [F(self.stamp_i('h') + waittag('u0') + self.stamp_i('h') + I('s_barrier'), self.c.c0gap, self.c.c0gap, cost=2)] + FS(self.rem_reads(0), self.c.c0gap, 76)
        self.sch('s1', main, [ds, c0])
        self.stamp('o', 'ao')
        pend = []
        NL = self.c.lastn
        for kp in range(24 - NL + 1):
            u = kp // 2; st = self.aset(kp)
            main = []
            if kp < 24 - NL:
                for nt in range(4):
                    for t in range(5):
                        main += I(f'{MF} {vr(self.acc(t, nt))}, {ar(st + 4*nt)}, {ar(st + 16 + 4*t)}, {vr(self.acc(t, nt))}')
            else:
                for t in range(5):
                    for k2 in range(kp, 24):
                        for nt in range(4):
                            main += I(f'{MF} {vr(self.acc(t, nt))}, {ar(self.aset(k2) + 4*nt)}, {ar(self.aset(k2) + 16 + 4*t)}, {vr(self.acc(t, nt))}')
            head = waittag('rr')
            if kp % 2 == 1 and u + 1 < 12:
                head = waittag('rr', f'u{u+1}') + I('s_barrier')
                if u + 4 < 12:
                    pend = self.wo_rem(u + 4) + self.o_rem(u + 4)
                    if (u + 4) % 4 == 0: head += self.check(1 + (u + 4) // 4)
            main[0] = head + [main[0]]
            streams = []
            if kp + 1 < 24 - NL: streams.append(FS(self.rem_reads(kp + 1), 0, 14))
            elif kp + 1 == 24 - NL:
                streams.append(FS([x for k2 in range(kp + 1, 24) for x in self.rem_reads(k2)], 0, 17))
            if pend:
                n = 4 if kp % 2 == 1 else len(pend)
                streams.append(self.dma_stream(pend[:n], 1, 18, slack=1)); pend = pend[n:]
            if kp == 24 - NL:
                su = []
                for t in range(4): su += FS(self.store_units(t), 4*NL*(t + 1) + 1, 10**6)
                streams.append(su)
            if self.c.fuse and 12 <= kp < 20:
                fs = self.final_setup(16) + self.final_setup(18); n = len(fs)
                streams.append(FS(fs[(kp - 12)*n//8:(kp - 11)*n//8], 8, 19))
            self.sch(f'r{kp}', main, streams, cap=(3 if kp >= 23 - NL else 2))
            if kp % 4 == 3: self.stamp('o', 'ao')
        for u in self.store_units(4): e(u)
        if self.c.fuse: self.final_reduce()
    def final_setup(self, part):
        L = f'v{vLANE}'
        sA, sO, sQ = 's37', 's54', 's55'
        sel = '\n'.join(f's_cmp_eq_u32 {sOCT}, {r}|s_cselect_b32 {sQ}, {sOLD2[r]}, {sQ}' for r in range(4))
        sel2 = '\n'.join(f's_cmp_eq_u32 {sOCT}, {r}|s_cselect_b32 {sOLD2[r]}, {sQ}, {sOLD2[r]}' for r in range(4))
        if part == 16:
            return [I(x.replace('|', '\n')) for x in f'''s_mov_b32 s14, {8*160*1024*2}
            s_mov_b64 s[12:13], s[16:17]
            s_mul_i32 {sA}, {sOCT}, 2560
            s_add_u32 {sA}, {sA}, {sPW}
            s_lshr_b32 {sO}, {sBLK}, 2
            s_and_b32 {sO}, {sO}, 7
            s_mul_i32 {sO}, {sO}, 160
            s_mul_i32 {sQ}, {sQH}, 80
            s_add_u32 {sO}, {sO}, {sQ}
            s_lshl_b32 {sO}, {sO}, 11
            s_lshr_b32 {sQ}, {sBLK}, 5
            s_lshl_b32 {sQ}, {sQ}, 10
            s_add_u32 {sO}, {sO}, {sQ}
            s_lshl_b32 {sQ}, {sHP}, 8
            s_add_u32 {sO}, {sO}, {sQ}
            s_lshl_b32 {sQ}, {sHH}, 7
            s_add_u32 {sO}, {sO}, {sQ}
            {sel}
            s_add_u32 {sQ}, {sQ}, 1
            v_mov_b32 v{vFLAG}, {sQ}
            s_add_u32 {sQ}, {sQ}, 1
            {sel2}
            s_lshl_b32 {sCL}, {sW}, 2
            s_lshl_b32 {sIDX2}, {sIDX2}, 2
            s_mul_i32 {sQ}, {sOCT}, 160
            v_lshlrev_b32 v48, 4, {L}
            v_mov_b32 v49, 0x3f80
            v_mov_b32 v50, 0x3f800000'''.split('\n')]
        us = []
        for k in range(3):
            us += [I(x) for x in f'''v_add_u32 v26, {sQ}, {L}
            v_add_u32 v26, {64*k}, v26
            v_lshrrev_b32 v27, 7, v26
            v_lshlrev_b32 v{28+k}, 15, v27
            v_bfe_u32 v27, v26, 6, 1
            v_lshl_add_u32 v{28+k}, v27, 6, v{28+k}
            v_and_b32 v27, 15, v26
            v_lshl_add_u32 v{28+k}, v27, 11, v{28+k}
            v_bfe_u32 v27, v26, 4, 2
            v_lshl_add_u32 v{28+k}, v27, 3, v{28+k}'''.split('\n')]
        return us
    def final_reduce(self):
        e = self.e
        sA, sO = 's37', 's54'
        cmp4 = '\n'.join(f'v_readlane_b32 {sRDY}, v{vPOLL}, {r}\ns_cmp_lg_u32 {sRDY}, {sOLD2[r]}\ns_addc_u32 {sCNT}, {sCNT}, 0' for r in range(4))
        e(f'''s_mul_i32 {sT0}, {sOCT}, {PART_BYTES}
        s_sub_u32 s24, s24, {sT0}
        s_subb_u32 s25, s25, 0
        s_mov_b32 s26, {4*PART_BYTES}
        s_waitcnt vmcnt(0)
        s_mov_b64 exec, 1
        buffer_store_dword v{vFLAG}, off, {SD2}, {sIDX2} sc0 sc1
        s_mov_b64 exec, -1''')
        self.stamp('o')
        e(f'''s_mov_b32 {sWB}, {self.c.maxpoll}
        s_branch L_fpoll
        L_floop:
        {f's_sleep {self.c.slp}' if self.c.slp else ''}
        L_fpoll:
        buffer_load_dword v{vPOLL}, v48, {SD2}, {sCL} offen sc0 sc1
        s_waitcnt vmcnt(0)
        s_mov_b32 {sCNT}, 0
        {cmp4}
        s_sub_u32 {sWB}, {sWB}, 1
        s_cmp_eq_u32 {sWB}, 0
        s_cbranch_scc1 L_fgo
        s_cmp_lg_u32 {sCNT}, 4
        s_cbranch_scc1 L_floop
        L_fgo:''')
        self.stamp('o')
        R0 = 160
        for k in range(3):
            for i in range(4):
                e(f's_add_u32 {sT1}, {sA}, {i*PART_BYTES}\nbuffer_load_dwordx4 {vr(R0 + (k*4+i)*4)}, v{vL16}, {SWS}, {sT1} offen offset:{k*1024}{self.pol(self.c.pldpol)}')
        for k in range(3):
            for i in range(4):
                for j in range(4):
                    r = R0 + (k*4+i)*4 + j
                    if i == 0: e(f'v_lshlrev_b32 v{96+2*j}, 16, v{r}\nv_and_b32 v{97+2*j}, 0xffff0000, v{r}')
                    elif self.c.dot: e(f'v_dot2c_f32_bf16 v{96+2*j}, v{r}, v49\nv_dot2c_f32_bf16 v{97+2*j}, v{r}, v50')
                    else: e(f'v_lshlrev_b32 v26, 16, v{r}\nv_and_b32 v27, 0xffff0000, v{r}\nv_add_f32 v{96+2*j}, v{96+2*j}, v26\nv_add_f32 v{97+2*j}, v{97+2*j}, v27')
            if self.c.dot: e('s_nop 2')
            for j in range(4): e(f'v_cvt_pk_bf16_f32 v{104+4*k+j}, v{96+2*j}, v{97+2*j}')
            if k == 2: e('s_mov_b32 exec_hi, 0')
            e(f'buffer_store_dwordx2 v[{104+4*k}:{105+4*k}], v{28+k}, {SOUT}, {sO} offen{self.pol(self.c.outpol)}')
            e(f'buffer_store_dwordx2 v[{106+4*k}:{107+4*k}], v{28+k}, {SOUT}, {sO} offen offset:32{self.pol(self.c.outpol)}')
        e('s_mov_b64 exec, -1')
    def poll_code(self):
        p = []
        for r in self.chk:
            p += I(f'''L_cstub{r}:
            s_mov_b32 {sCNT}, {self.c.maxpoll}
            L_cloop{r}:
            {f's_sleep {self.c.slp}' if self.c.slp else ''}
            buffer_load_dword v{vPOLL}, v{vPOFF}, {SDB}, 0 offen sc0 sc1
            s_waitcnt vmcnt(0)
            v_readlane_b32 {sRDY}, v{vPOLL}, {r}
            s_sub_u32 {sCNT}, {sCNT}, 1
            s_cmp_eq_u32 {sCNT}, 0
            s_cbranch_scc1 L_cret{r}
            s_sub_u32 {sRDY}, {sRDY}, {sOLD[r]}
            s_cmp_eq_u32 {sRDY}, 0
            s_cbranch_scc1 L_cloop{r}''')
            if 'sc1' not in self.c.opol:
                p += I(f'''s_cmp_eq_u32 {sRDY}, {sXCC}
                s_cbranch_scc1 L_cret{r}
                s_cmp_lg_u32 {sWB}, 0
                s_cbranch_scc1 L_cwb{r}
                s_mov_b32 {sWB}, 1
                s_cmp_lg_u32 {sW}, 0
                s_cbranch_scc1 L_cwb{r}
                buffer_wbl2 sc1
                s_waitcnt vmcnt(0)
                s_add_u32 {sT3}, {sOLD[0]}, 32
                v_mov_b32 v{vFLAG}, {sT3}
                s_mov_b64 exec, 1
                buffer_store_dword v{vFLAG}, off, {SDB}, {sCL} sc0 sc1
                s_mov_b64 exec, -1
                L_cwb{r}:
                s_cmp_lt_u32 {sRDY}, 32
                s_cbranch_scc1 L_cloop{r}
                buffer_inv sc1
                s_waitcnt vmcnt(0)''')
            p += I(f's_branch L_cret{r}')
        return p
    def peephole(self, prog):
        out = []; prev = {}
        for x in prog:
            if x.kind in ('label', 'branch'): prev = {}; self.curkvo = None
            if isinstance(x.tag, tuple) and x.tag[0] == 'kvo' and self.c.krot:
                if getattr(self, 'curkvo', None) == x.tag: continue
                if x.op == 's_or_b32': self.curkvo = x.tag
                out.append(x); prev.pop(sT2, None); continue
            if sT2 in x.writes: self.curkvo = None
            if x.kind == 'salu' and x.op == 's_add_u32' and len(x.writes) == 1:
                w = next(iter(x.writes))
                if w in ('m0', sT0, sT2) and prev.get(w) == x.text and w not in x.reads: continue
            for w in x.writes:
                prev.pop(w, None)
                for k in [k for k, v in prev.items() if re.search(rf'\b{w}\b', v.split(',', 1)[1])]: prev.pop(k)
            if x.kind == 'salu' and x.op == 's_add_u32' and len(x.writes) == 1: prev[next(iter(x.writes))] = x.text
            out.append(x)
        return out
    def fold(self, prog):
        idx = {x.text: k for k, x in enumerate(prog) if x.kind == 'label'}
        its = [i for i in range(16) if f'L_loopmark{i}:' in idx]
        norm = lambda x: re.sub(r'(L_stub|L_ret)\d+', r'\1', x.text)
        body = {i: [norm(x) for x in prog[idx[f'L_loopmark{i}:'] + 1: idx[f'L_loopend{i}:']]] for i in its}
        last = its[-1]; first = last
        while first - 1 in body and body[first - 1] == body[last]: first -= 1
        self.log.append(('loop', first, last, len(body[last])))
        for i in range(first + 1, last + 1): self.stubs.remove(i)
        a = idx[f'L_loopmark{first}:']; b = idx[f'L_loopend{first}:']; c = idx[f'L_loopend{last}:']
        return prog[:a] + I(self.kvoff(last + 6, sIT)) + prog[a:b] + \
            I(f's_cmp_lg_u32 {sIT}, {sKO}\ns_cbranch_scc1 L_loopmark{first}') + prog[c + 1:]
    def build(self):
        self.prologue(); self.q_phase(); self.q_to_attn(); self.stamp('main', 'q', 'a', 'ao')
        for i in range(1, 16):
            if i == 15: self.stamp('o', 'h')
            self.iteration(i)
            if i in (3, 10, 12): self.stamp('main')
            if i < 15 and not (self.c.loop and max(4, self.c.regend - 3) <= i < self.c.lend): self.stamp('a', 'ao')
        e = self.e
        if self.c.stamps:
            e('s_waitcnt vmcnt(0)'); self.stamp()
            if self.c.hwid:
                e(f's_getreg_b32 s62, hwreg(HW_REG_XCC_ID)\nv_writelane_b32 v255, s62, {self.nst}\ns_getreg_b32 s62, hwreg(HW_REG_HW_ID)\nv_writelane_b32 v255, s62, {self.nst + 1}'); self.nst += 2
            if self.c.dbgwg >= 0:
                e(f'''s_mov_b64 s[24:25], s[56:57]
                s_mov_b32 s26, 0x10000000
                s_mov_b32 {sT2}, {STAMP_OFF}
                s_cmp_lg_u32 s2, {self.c.dbgwg}
                s_cbranch_scc1 L_end
                s_cmp_lg_u32 {sW}, 0
                s_cbranch_scc1 L_end
                v_readfirstlane_b32 {sT1}, v255
                v_lshlrev_b32 v2, 2, v{vLANE}
                v_subrev_u32 v4, {sT1}, v255
                buffer_store_dword v4, v2, {SWS}, {sT2} offen
                s_endpgm''')
            if self.c.clk == 2: self.nst = 64
            e(f'''s_mov_b64 s[24:25], s[56:57]
            s_mov_b32 s26, 0x10000000
            s_mul_i32 {sT1}, s2, {self.nst*8}
            s_add_u32 {sT1}, {sT1}, {STAMP_OFF}
            s_cmp_lg_u32 {sW}, 0
            s_cbranch_scc1 L_end
            v_lshlrev_b32 v2, 3, v{vLANE}
            v_mov_b32 v4, v255
            v_mov_b32 v5, 0
            v_cmp_gt_u32 vcc, {self.nst}, v{vLANE}
            s_and_saveexec_b64 s[60:61], vcc
            buffer_store_dwordx2 v[4:5], v2, {SWS}, {sT1} offen''')
        e('L_end:\ns_endpgm')
        if self.c.nomem:
            def drop(x):
                if x.tag == 'ost': return 'x' in self.c.nomem
                if x.tag == 'exw': return 'w' in self.c.nomem
                if x.tag == 'exr': return 'r' in self.c.nomem
                if x.kind not in ('dma', 'vld', 'vst'): return False
                t = x.text
                if 'buffer_load_dword a' in t: return 'p' in self.c.nomem and SWO in t
                if SX in t or SWQ in t: return 'q' in self.c.nomem
                if SK in t or SV in t: return 'k' in self.c.nomem
                if SWO in t or SOX in t: return 'o' in self.c.nomem
                if x.tag == 'st': return 's' in self.c.nomem
                return False
            self.p = [x for x in self.p if not drop(x)]
        if self.c.jit:
            import random
            rnd = random.Random(self.c.jit); q = []; n = 0
            for x in self.p:
                isbar = x.kind == 'barrier'
                pre = isbar and rnd.random() < 0.5
                def j():
                    nonlocal n; n += 1
                    return I(f's_cmp_lg_u32 {sW}, {rnd.randrange(4)}\ns_cbranch_scc1 L_jit{n}\ns_sleep {rnd.choice([2, 6, 20, 60])}\nL_jit{n}:')
                if pre: q += j()
                q.append(x)
                if isbar and not pre: q += j()
                if x.text.startswith('s_cbranch_scc1 L_end') and n == 0:
                    n += 1
                    q += I(f's_mul_i32 s62, s2, {rnd.randrange(1, 64, 2)}\ns_and_b32 s62, s62, 7\nL_jd:\ns_sleep 40\ns_sub_u32 s62, s62, 1\ns_cmp_ge_i32 s62, 0\ns_cbranch_scc1 L_jd')
            self.p = q
        prog = finalize(self.peephole(self.p))
        if self.c.loop and any(x.text.startswith('L_loopmark') for x in prog): prog = self.fold(prog)
        for i in self.stubs: prog += I(f'L_stub{i}:\ns_call_b64 {sRET}, L_rare\ns_branch L_ret{i}')
        prog += finalize(self.rare())
        prog += self.poll_code()
        prog += I('L_codeend:')
        return prog

def reduce_kernel(cfg):
    pol = (' ' + cfg.rdpol) if cfg.rdpol else ''
    p = I(f'''
    s_cmp_ge_u32 s2, 640
    s_cbranch_scc1 L_rend
    s_load_dwordx2 s[4:5], s[0:1], 96
    s_load_dwordx2 s[8:9], s[0:1], 80
    v_lshrrev_b32 v1, 6, v0
    v_and_b32 v2, 63, v0
    v_readfirstlane_b32 s3, v1
    v_lshlrev_b32 v3, 4, v2
    s_mul_i32 s12, s2, 6554
    s_lshr_b32 s12, s12, 16
    s_mul_i32 s13, s12, 10
    s_sub_u32 s13, s2, s13
    s_lshl_b32 s13, s13, 2
    s_add_u32 s13, s13, s3           ; piece 0..39
    s_mul_i32 s16, s12, {4*PART_BYTES}
    s_lshl_b32 s17, s13, 10
    s_add_u32 s16, s16, s17
    s_add_u32 s16, s16, {PART_OFF}
    s_mov_b32 s6, {PART_OFF + 256*PART_BYTES}
    s_mov_b32 s7, 0x20000
    s_mov_b32 s10, {8*160*1024*2}
    s_mov_b32 s11, 0x20000
    ''')
    for i in range(4):
        p += I(f'buffer_load_dwordx4 v[{8+4*i}:{11+4*i}], v3, s[4:7], s16 offen{pol}')
        if i < 3: p += I(f's_add_u32 s16, s16, {PART_BYTES}')
    p += I(f'''
    s_mul_i32 s14, s13, 6554
    s_lshr_b32 s14, s14, 16          ; w
    s_mul_i32 s15, s14, 10
    s_sub_u32 s19, s13, s15          ; idx
    s_lshr_b32 s20, s19, 1           ; t
    s_and_b32 s21, s19, 1            ; m
    s_lshr_b32 s22, s12, 2
    s_and_b32 s22, s22, 7            ; b
    s_lshr_b32 s23, s12, 5           ; branch
    s_and_b32 s18, s12, 3            ; hp
    s_mul_i32 s24, s22, 160
    s_lshr_b32 s25, s14, 1
    s_mul_i32 s25, s25, 80
    s_add_u32 s24, s24, s25
    s_lshl_b32 s25, s20, 4
    s_add_u32 s24, s24, s25
    s_lshl_b32 s24, s24, 11
    s_lshl_b32 s25, s23, 10
    s_add_u32 s24, s24, s25
    s_lshl_b32 s25, s18, 8
    s_add_u32 s24, s24, s25
    s_and_b32 s25, s14, 1
    s_lshl_b32 s25, s25, 7
    s_add_u32 s24, s24, s25
    s_lshl_b32 s25, s21, 6
    s_add_u32 s24, s24, s25
    v_and_b32 v4, 15, v2
    v_lshlrev_b32 v4, 11, v4
    v_lshrrev_b32 v5, 4, v2
    v_lshl_add_u32 v4, v5, 3, v4
    ''')
    for i in range(4):
        for j in range(4):
            r = 8 + 4*i + j
            if i == 0: p += I(f'v_lshlrev_b32 v{32+2*j}, 16, v{r}\nv_and_b32 v{33+2*j}, 0xffff0000, v{r}')
            else: p += I(f'v_lshlrev_b32 v6, 16, v{r}\nv_and_b32 v7, 0xffff0000, v{r}\nv_add_f32 v{32+2*j}, v{32+2*j}, v6\nv_add_f32 v{33+2*j}, v{33+2*j}, v7')
    for j in range(4): p += I(f'v_cvt_pk_bf16_f32 v{40+j}, v{32+2*j}, v{33+2*j}')
    p += I('''buffer_store_dwordx2 v[40:41], v4, s[8:11], s24 offen
    buffer_store_dwordx2 v[42:43], v4, s[8:11], s24 offen offset:32
    L_rend:
    s_endpgm''')
    return finalize(p)

def generate(cfg, path):
    g = Gen(cfg)
    main = g.build()
    if cfg.alt:
        import copy
        c2 = copy.copy(cfg)
        for kv in cfg.alt.split('/'):
            k, v = kv.split('~'); cur = getattr(cfg, k)
            setattr(c2, k, type(cur)(int(v)) if isinstance(cur, (bool, int)) and not isinstance(cur, float) else type(cur)(v))
        m2 = Gen(c2).build()
        for x in m2: x.text = re.sub(r'\bL_(\w+)', r'LB_\1', x.text)
        main = I(f's_bitcmp1_b32 s2, {cfg.altbit}\ns_cbranch_scc1 LB_entry') + main + I('LB_entry:') + m2
    red = reduce_kernel(cfg)
    if cfg.dbgwg >= 0:
        k = [i for i, x in enumerate(red) if x.text == 'L_rend:'][0]
        red[k:k] = finalize(I(f'''s_cmp_lg_u32 s2, 0
        s_cbranch_scc1 L_rend
        s_load_dwordx2 s[8:9], s[0:1], 88
        s_mov_b32 s10, 256
        s_mov_b32 s6, 0x10000000
        s_mov_b32 s16, {STAMP_OFF}
        v_lshlrev_b32 v2, 2, v0
        buffer_load_dword v3, v2, s[4:7], s16 offen
        buffer_store_dword v3, v2, s[8:11], 0 offen'''))
    if cfg.fuse:
        s = make_file([(KN, 256, 256, 163840)], [(KN, text_of(main), 512, 102, 256)])
        s = s.replace(f'; @launch kernel={KN} grid', '; @launch grid')
    else:
        s = make_file([(KN, 256, 256, 163840), ('reduce_heads_kernel', 640, 256, 0)],
                      [(KN, text_of(main), 512, 102, 256), ('reduce_heads_kernel', text_of(red), 48, 32, 48)])
    open(path, 'w').write(s)
    open(path[:-2] + '.nst', 'w').write(str(g.nst))
    return g, main

if __name__ == '__main__':
    cfg = Cfg()
    out = sys.argv[1]
    for kv in sys.argv[2:]:
        k, v = kv.split('=')
        cur = getattr(cfg, k)
        setattr(cfg, k, type(cur)(int(v)) if isinstance(cur, (bool, int)) and not isinstance(cur, float) else type(cur)(v.replace('+', ' ')))
    g, main = generate(cfg, out)
    from collections import Counter
    print(out, 'stamps', g.nst, dict(Counter(i.kind for i in main)))
    if cfg.verbose:
        for l in g.log: print(*l)
```

```python
from gen_common import *
import sys
STAMP_OFF = 0x8000000
def stamp_store(a, idx, nst, stamp_s='s[40:41]'):
    a(f'''
    s_memrealtime s[40:41]
    s_waitcnt lgkmcnt(0)
    v_mov_b32 v60, s40
    v_mov_b32 v61, s41
    s_mul_i32 s42, s2, {nst*8}
    s_add_u32 s42, s42, {STAMP_OFF + idx*8}
    v_mov_b32 v62, s42
    v_cmp_eq_u32 vcc, 0, v0
    s_and_saveexec_b64 s[48:49], vcc
    s_cbranch_execz L_st{idx}
    buffer_store_dwordx2 v[60:61], v62, s[44:47], 0 offen
    L_st{idx}:
    s_mov_b64 exec, s[48:49]
    ''')
def gen(mode, nt, depth, barrier):
    a = Asm()
    a('''
    s_cmp_ge_u32 s2, 256
    s_cbranch_scc1 L_end
    s_load_dwordx4 s[4:7], s[0:1], 8      ; A_k, A_v
    s_load_dwordx4 s[8:11], s[0:1], 48    ; B_k, B_v
    s_load_dwordx2 s[44:45], s[0:1], 96
    v_lshrrev_b32 v1, 6, v0
    s_nop 0
    v_readfirstlane_b32 s3, v1
    v_and_b32 v2, 63, v0
    v_lshlrev_b32 v2, 4, v2               ; lane*16
    s_waitcnt lgkmcnt(0)
    s_mov_b32 s46, 0x10000000
    s_mov_b32 s47, 0x20000
    ''')
    stamp_store(a, 0, 2)
    ntf = (' ' + nt) if nt else ''
    if mode == 'D1':
        a('''
        s_cmp_ge_u32 s2, 128
        s_cselect_b32 s4, s8, s4
        s_cselect_b32 s5, s9, s5
        s_cselect_b32 s6, s10, s6
        s_cselect_b32 s7, s11, s7
        s_cmp_ge_u32 s3, 2
        s_cselect_b32 s12, s6, s4
        s_cselect_b32 s13, s7, s5
        s_mov_b32 s14, 0x2000000
        s_mov_b32 s15, 0x20000
        s_and_b32 s16, s2, 127
        s_lshl_b32 s16, s16, 18
        s_and_b32 s17, s3, 1
        s_lshl_b32 s17, s17, 17
        s_add_u32 s16, s16, s17      ; soffset
        s_lshl_b32 s18, s3, 13
        s_mov_b32 s19, 0
        s_mov_b32 s20, 0
        L_loop:
        s_add_u32 m0, s18, s19
        s_nop 0
        ''')
        for p in range(4):
            a(f'buffer_load_dwordx4 v2, s[12:15], s16 offen offset:{p*1024}{ntf} lds')
        a('s_add_u32 m0, m0, 4096\ns_add_u32 s21, s16, 4096')
        for p in range(4):
            a(f'buffer_load_dwordx4 v2, s[12:15], s21 offen offset:{p*1024}{ntf} lds')
        a(f'''
        s_add_u32 s16, s16, 8192
        s_add_u32 s19, s19, 32768
        s_cmp_ge_u32 s19, 163840
        s_cselect_b32 s19, 0, s19
        s_waitcnt vmcnt({8*(depth-1)})
        {'s_barrier' if barrier else ''}
        s_add_u32 s20, s20, 1
        s_cmp_lt_u32 s20, 16
        s_cbranch_scc1 L_loop
        ''')
    else:
        a('''
        s_and_b32 s22, s2, 7
        s_lshr_b32 s23, s2, 4
        s_lshl_b32 s23, s23, 3
        s_add_u32 s22, s22, s23       ; unit 0..127
        s_cmp_ge_u32 s22, 64
        s_cselect_b32 s4, s8, s4
        s_cselect_b32 s5, s9, s5
        s_cselect_b32 s6, s10, s6
        s_cselect_b32 s7, s11, s7
        s_mov_b32 s12, s4
        s_mov_b32 s13, s5
        s_mov_b32 s14, 0x2000000
        s_mov_b32 s15, 0x20000
        s_mov_b32 s24, s6
        s_mov_b32 s25, s7
        s_mov_b32 s26, 0x2000000
        s_mov_b32 s27, 0x20000
        s_and_b32 s16, s22, 63
        s_lshl_b32 s16, s16, 19
        s_lshl_b32 s17, s3, 17
        s_add_u32 s16, s16, s17      ; soffset
        s_mul_i32 s18, s3, 40960
        s_mov_b32 s19, 0
        s_mov_b32 s20, 0
        L_loop:
        ''')
        for srd in ('s[12:15]', 's[24:27]'):
            a('s_add_u32 m0, s18, s19\ns_nop 0')
            for p in range(4):
                a(f'buffer_load_dwordx4 v2, {srd}, s16 offen offset:{p*1024}{ntf} lds')
            a('s_add_u32 m0, m0, 4096\ns_add_u32 s21, s16, 4096')
            for p in range(4):
                a(f'buffer_load_dwordx4 v2, {srd}, s21 offen offset:{p*1024}{ntf} lds')
            a(f'''
            s_add_u32 s19, s19, 8192
            s_cmp_ge_u32 s19, 40960
            s_cselect_b32 s19, 0, s19
            s_waitcnt vmcnt({8*(depth-1)})
            ''')
        a(f'''
        s_add_u32 s16, s16, 8192
        s_add_u32 s20, s20, 1
        s_cmp_lt_u32 s20, 16
        s_cbranch_scc1 L_loop
        ''')
    a('s_waitcnt vmcnt(0)\ns_barrier')
    stamp_store(a, 1, 2)
    a('L_end:\ns_endpgm')
    return a.text()
if __name__ == "__main__":
    files = []
    for mode in ('D1', 'D2'):
        for nt in ('', 'nt', 'sc1', 'sc0', 'sc0 sc1', 'nt sc1', 'sc0 nt', 'sc0 nt sc1'):
            for depth in (4,):
                n = f'mb_stream_{mode}_{nt.replace(" ","_") or "plain"}_d{depth}.s'
                open(n, 'w').write(make_file([('s_kernel', 256, 256, 163840)], [('s_kernel', gen(mode, nt, depth, 1), 512, 96, 256)]))
                files.append(n)
    print(' '.join(files))
```

```python
from gen_common import *
from mb_stream import stamp_store
MAPS = {
 0: 's_lshr_b32 s16, s23, 2\ns_lshl_b32 s16, s16, 22\ns_and_b32 s17, s22, 3\ns_lshl_b32 s17, s17, 20\ns_add_u32 s16, s16, s17\ns_and_b32 s17, s23, 3\ns_lshl_b32 s17, s17, 18\ns_add_u32 s16, s16, s17',
 1: 's_lshr_b32 s16, s23, 2\ns_lshl_b32 s16, s16, 22\ns_and_b32 s17, s22, 3\ns_lshl_b32 s17, s17, 18\ns_add_u32 s16, s16, s17\ns_and_b32 s17, s23, 3\ns_lshl_b32 s17, s17, 20\ns_add_u32 s16, s16, s17',
 2: 's_lshr_b32 s16, s23, 2\ns_lshl_b32 s28, s16, 22\ns_add_u32 s17, s22, s16\ns_and_b32 s17, s17, 3\ns_lshl_b32 s17, s17, 20\ns_add_u32 s16, s28, s17\ns_and_b32 s17, s23, 3\ns_lshl_b32 s17, s17, 18\ns_add_u32 s16, s16, s17',
 3: 's_lshr_b32 s16, s23, 2\ns_lshl_b32 s16, s16, 22\ns_add_u32 s17, s22, s23\ns_and_b32 s17, s17, 3\ns_lshl_b32 s17, s17, 18\ns_add_u32 s16, s16, s17\ns_and_b32 s17, s23, 3\ns_lshl_b32 s17, s17, 20\ns_add_u32 s16, s16, s17',
 4: 's_lshr_b32 s16, s23, 2\ns_lshl_b32 s16, s16, 22\ns_xor_b32 s17, s22, s23\ns_and_b32 s17, s17, 3\ns_lshl_b32 s17, s17, 18\ns_add_u32 s16, s16, s17\ns_and_b32 s17, s23, 3\ns_lshl_b32 s17, s17, 20\ns_add_u32 s16, s16, s17',
 5: 's_lshr_b32 s16, s23, 2\ns_lshl_b32 s16, s16, 22\ns_add_u32 s17, s22, s23\ns_and_b32 s17, s17, 3\ns_lshl_b32 s17, s17, 20\ns_add_u32 s16, s16, s17\ns_and_b32 s17, s23, 3\ns_lshl_b32 s17, s17, 18\ns_add_u32 s16, s16, s17',
}
def gen(pat, gap, depth=24, mp=0):
    a = Asm()
    a('''
    s_cmp_ge_u32 s2, 256
    s_cbranch_scc1 L_end
    s_load_dwordx4 s[4:7], s[0:1], 8
    s_load_dwordx4 s[8:11], s[0:1], 48
    s_load_dwordx2 s[44:45], s[0:1], 96
    v_lshrrev_b32 v1, 6, v0
    s_nop 0
    v_readfirstlane_b32 s3, v1
    v_and_b32 v9, 63, v0
    v_and_b32 v10, 3, v9
    v_lshlrev_b32 v10, 4, v10
    v_lshrrev_b32 v11, 4, v9
    v_bfe_u32 v12, v9, 2, 2
    v_lshl_add_u32 v13, v11, 6, v10
    v_lshl_add_u32 v2, v12, 8, v13
    s_waitcnt lgkmcnt(0)
    s_mov_b32 s46, 0x10000000
    s_mov_b32 s47, 0x20000
    ''')
    stamp_store(a, 0, 2)
    a('''
    s_and_b32 s22, s2, 7
    s_lshr_b32 s23, s2, 3
    s_cmp_ge_u32 s22, 4
    s_cselect_b32 s12, s8, s4
    s_cselect_b32 s13, s9, s5
    s_cselect_b32 s24, s10, s6
    s_cselect_b32 s25, s11, s7
    s_mov_b32 s14, 0x2000000
    s_mov_b32 s15, 0x20000
    s_mov_b32 s26, 0x2000000
    s_mov_b32 s27, 0x20000
    ''')
    a(MAPS[mp])
    a('''
    ''')
    if pat == 1:   a('s_and_b32 s17, s3, 1\ns_lshl_b32 s17, s17, 17\ns_add_u32 s16, s16, s17\ns_lshr_b32 s17, s3, 1\ns_lshl_b32 s17, s17, 12\ns_add_u32 s16, s16, s17')
    elif pat == 2: a('s_lshl_b32 s17, s3, 10\ns_add_u32 s16, s16, s17')
    elif pat == 3: a('s_and_b32 s17, s3, 1\ns_lshl_b32 s17, s17, 17\ns_add_u32 s16, s16, s17')
    a('s_lshl_b32 s18, s3, 13\ns_mov_b32 m0, s18\ns_mov_b32 s20, 0\nL_loop:')
    fill = '\n'.join('v_mfma_f32_16x16x32_bf16 v[20:23], v[24:27], v[24:27], v[20:23]' for _ in range(gap))
    for k in range(8):
        if pat == 1: srd, off = ('s[12:15]' if k < 4 else 's[24:27]'), (k % 4) * 1024
        elif pat == 2: srd, off = ('s[12:15]' if k < 4 else 's[24:27]'), ((k >> 1) & 1) * 131072 + (k & 1) * 4096
        if pat == 3:
            a(f's_add_u32 s21, s16, {k*1024}\ns_cmp_ge_u32 s3, 2\ns_cbranch_scc1 L_v{k}\nbuffer_load_dwordx4 v2, s[12:15], s21 offen nt lds\ns_branch L_w{k}\nL_v{k}:\nbuffer_load_dwordx4 v2, s[24:27], s21 offen nt lds\nL_w{k}:')
        else:
            a(f's_add_u32 s21, s16, {off}\nbuffer_load_dwordx4 v2, {srd}, s21 offen nt lds')
        a(fill)
    a(f'''
    s_add_u32 s16, s16, 8192
    s_waitcnt vmcnt({depth})
    s_barrier
    s_add_u32 s20, s20, 1
    s_cmp_lt_u32 s20, 16
    s_cbranch_scc1 L_loop
    s_waitcnt vmcnt(0)
    s_barrier''')
    stamp_store(a, 1, 2)
    a('L_end:\ns_endpgm')
    return a.text()
fs = []
for mp in (0, 1, 2, 3, 4, 5):
    n = f'mb_map{mp}.s'
    open(n, 'w').write(make_file([('s_kernel', 256, 256, 163840)], [('s_kernel', gen(1, 8, mp=mp), 128, 96, 128)]))
    open(n[:-2] + '.nst', 'w').write('2')
    fs.append(n)
print(' '.join(fs))
```
